```python
import torch

def _softmax(x, axis=-1):
    return torch.softmax(x, dim=axis)

def _gelu(x):
    return torch.nn.functional.gelu(x, approximate='tanh')

def _silu(x):
    return torch.nn.functional.silu(x)

def _sigmoid(x):
    return torch.sigmoid(x)

def _layernorm(x, axis=-1, eps=1e-05):
    m = x.mean(dim=axis, keepdim=True)
    v = x.var(dim=axis, keepdim=True, unbiased=False)
    return (x - m) / torch.sqrt(v + eps)

def _scatter_add(tgt, idx, src, axis=0):
    return tgt.clone().index_add_(axis, idx, src)

def _segment_sum(src, seg, n):
    out = torch.zeros((n,) + src.shape[1:], dtype=src.dtype)
    return out.index_add_(0, seg, src)

def _pad(x, pw):
    flat = tuple((v for pair in reversed(pw) for v in pair))
    return torch.nn.functional.pad(x, flat)
kernel_name = 'recurrent_scan__memory_aug_recurrent_mem_tr__glu_gated_swiglu__prompt'

def setup_inputs():

    _w = lambda a: (lambda t: t.to(torch.bfloat16) if t.is_floating_point() else t)(torch.as_tensor(a))

    def _A_setup():
        B, S, Dm = (1, 2048, 640)
        H, Dh = (32, 128)
        M, seg = (8, 32)
        seg = min(seg, S)
        S = S // seg * seg
        return {'x': _w((lambda *s: torch.randn(*s, dtype=torch.bfloat16) * 0.1)(B, S, Dm)), 'mem0': _w((lambda *s: torch.randn(*s, dtype=torch.bfloat16) * 1.6)(B, M, Dm)), 'Wq': _w((lambda *s: torch.randn(*s, dtype=torch.bfloat16) * 0.8)(Dm, H, Dh) * Dm ** (-0.5)), 'Wk': _w((lambda *s: torch.randn(*s, dtype=torch.bfloat16) * 0.8)(Dm, H, Dh) * Dm ** (-0.5)), 'Wv': _w((lambda *s: torch.randn(*s, dtype=torch.bfloat16) * 1.6)(Dm, H, Dh) * Dm ** (-0.5)), 'Wo': _w((lambda *s: torch.randn(*s, dtype=torch.bfloat16) * 1.6)(H, Dh, Dm) * (H * Dh) ** (-0.5)), 'seg_len': seg}
    _A_in = _A_setup()

    def _B_setup():
        B, S, D, F = (1, 2048, 640, 1728)
        return {'x': _w((lambda *s: torch.randn(*s, dtype=torch.bfloat16) * 0.1)(B, S, D)), 'w1': _w((lambda *s: torch.randn(*s, dtype=torch.bfloat16) * 0.4)(D, F) * (2.0 / D) ** 0.5), 'w3': _w((lambda *s: torch.randn(*s, dtype=torch.bfloat16) * 0.4)(D, F) * (2.0 / D) ** 0.5), 'w2': _w((lambda *s: torch.randn(*s, dtype=torch.bfloat16) * 0.4)(F, D) * (2.0 / F) ** 0.5)}
    _B_in = _B_setup()
    return {'A_x': _A_in['x'], 'A_mem0': _A_in['mem0'], 'A_Wq': _A_in['Wq'], 'A_Wk': _A_in['Wk'], 'A_Wv': _A_in['Wv'], 'A_Wo': _A_in['Wo'], 'A_seg_len': _A_in['seg_len'], 'B_x': _B_in['x'], 'B_w1': _B_in['w1'], 'B_w3': _B_in['w3'], 'B_w2': _B_in['w2']}

def reference(A_x, A_mem0, A_Wq, A_Wk, A_Wv, A_Wo, A_seg_len, B_x, B_w1, B_w3, B_w2):

    def _A_ref(x, mem0, Wq, Wk, Wv, Wo, seg_len):
        B, S, Dm = x.shape
        H, Dh = (Wq.shape[1], Wq.shape[2])
        M = mem0.shape[1]
        scale = Dh ** (-0.5)
        n_seg = S // seg_len
        L = M + seg_len
        idx = torch.arange(L)
        mask = (idx[:, None] < M) | (idx[:, None] >= idx[None, :])
        mem = mem0
        outs = []
        for s in range(n_seg):
            xs = x[:, s * seg_len:(s + 1) * seg_len, :].clone()
            h = torch.concatenate([mem, xs], axis=1)
            q = torch.einsum('btd,dhe->bhte', h, Wq)
            k = torch.einsum('btd,dhe->bhte', h, Wk)
            v = torch.einsum('btd,dhe->bhte', h, Wv)
            scores = torch.einsum('bhqe,bhke->bhqk', q, k) * scale
            scores = torch.where(mask[None, None], scores, -1000000000.0)
            p = _softmax(scores, axis=-1)
            o = torch.einsum('bhqk,bhke->bhqe', p, v)
            o = torch.einsum('bhte,hed->btd', o, Wo)
            mem = o[:, :M, :].clone()
            outs.append(o[:, M:, :])
        return torch.concatenate(outs, axis=1)

    def _B_ref(x, w1, w3, w2):
        gate = torch.einsum('bsd,df->bsf', x, w1)
        up = torch.einsum('bsd,df->bsf', x, w3)
        h = _silu(gate) * up
        out = torch.einsum('bsf,fd->bsd', h, w2)
        return out
    x = A_x
    xn = _layernorm(x, axis=-1)
    s = _A_ref(xn, A_mem0, A_Wq, A_Wk, A_Wv, A_Wo, A_seg_len)
    g = _silu(_B_ref(xn, B_w1, B_w3, B_w2))
    return x + s * g
```

```python
class Asm:
    def __init__(self):
        self.lines = []
        self.nlab = 0
    def __call__(self, s):
        for l in s.strip('\n').split('\n'):
            self.lines.append('    ' + l.strip())
    def c(self, s):
        self.lines.append('    ; ' + s)
    def label(self, name):
        self.lines.append(name + ':')
    def newlabel(self, base='L'):
        self.nlab += 1
        return f'{base}_{self.nlab}'
    def raw(self, s):
        self.lines.append(s)
    def text(self):
        return '\n'.join(self.lines) + '\n'
    def nop(self, n):
        while n > 0:
            k = min(n, 16)
            self(f's_nop {k-1}')
            n -= k

def v(i, n=1):
    return f'v{i}' if n == 1 else f'v[{i}:{i+n-1}]'
def a(i, n=1):
    return f'a{i}' if n == 1 else f'a[{i}:{i+n-1}]'
def s(i, n=1):
    return f's{i}' if n == 1 else f's[{i}:{i+n-1}]'

def kernel_begin(A, name):
    A.raw(f'.globl {name}')
    A.raw('.p2align 8')
    A.raw(f'.type {name},@function')
    A.label(name)

def kernel_desc(name, vgpr, accum, sgpr=102):
    return f'''.p2align 6
.amdhsa_kernel {name}
  .amdhsa_next_free_vgpr {vgpr}
  .amdhsa_next_free_sgpr {sgpr}
  .amdhsa_accum_offset {accum}
  .amdhsa_group_segment_fixed_size 0
  .amdhsa_kernarg_size 112
  .amdhsa_user_sgpr_count 2
  .amdhsa_user_sgpr_kernarg_segment_ptr 1
  .amdhsa_system_sgpr_workgroup_id_x 1
  .amdhsa_float_denorm_mode_32 3
  .amdhsa_float_denorm_mode_16_64 3
.end_amdhsa_kernel
'''

def srd(A, d, base, nbytes):
    A(f's_mov_b32 s{d}, s{base}')
    A(f's_and_b32 s{d+1}, s{base+1}, 0xffff')
    A(f's_mov_b32 s{d+2}, {nbytes:#x}')
    A(f's_mov_b32 s{d+3}, 0x00020000')

class VX:
    def __init__(self, A, pool_lo, pool_hi, stmp):
        self.A, self.lo, self.hi, self.p, self.st = A, pool_lo, pool_hi, pool_lo, stmp
    def tmp(self):
        r = self.p; self.p += 1
        assert self.p <= self.hi, 'VX pool exhausted'
        return r
    def reg(self, r): return Val(self, r)
    def set(self, dst, val):
        if isinstance(val, int): self.A(f'v_mov_b32 v{dst}, {val & 0xffffffff:#x}')
        else: self.A(f'v_mov_b32 v{dst}, v{val.r}')
        self.p = self.lo
    def sel(self, cond, t, f):
        op, a_, b_ = cond
        A = self.A
        if isinstance(a_, int):
            A(f'v_cmp_{op}_u32 vcc, {a_}, v{b_.r}')
        else:
            if isinstance(b_, int):
                rev = dict(lt='gt', gt='lt', le='ge', ge='le', eq='eq', ne='ne')[op]
                A(f'v_cmp_{rev}_u32 vcc, {b_}, v{a_.r}')
            else:
                A(f'v_cmp_{op}_u32 vcc, v{a_.r}, v{b_.r}')
        t = self.mat(t); f = self.mat(f)
        A('s_nop 1')
        d = self.tmp()
        A(f'v_cndmask_b32 v{d}, v{f.r}, v{t.r}, vcc')
        return Val(self, d)
    def mat(self, x):
        if isinstance(x, int):
            d = self.tmp(); self.A(f'v_mov_b32 v{d}, {x & 0xffffffff:#x}'); return Val(self, d)
        return x
class Val:
    def __init__(self, X, r): self.X, self.r = X, r
    def _b(self, op, o, rev=False):
        d = self.X.tmp()
        if isinstance(o, int): self.X.A(f'{op} v{d}, {o & 0xffffffff:#x}, v{self.r}')
        else: self.X.A(f'{op} v{d}, v{o.r}, v{self.r}')
        return Val(self.X, d)
    def __add__(self, o): return self if (isinstance(o, int) and o == 0) else self._b('v_add_u32', o)
    __radd__ = __add__
    def __sub__(self, o): return self._b('v_subrev_u32', o)
    def __rsub__(self, o): return self._b('v_sub_u32', o)
    def __and__(self, o): return self._b('v_and_b32', o)
    def __xor__(self, o): return self._b('v_xor_b32', o)
    def __or__(self, o): return self._b('v_or_b32', o)
    def __lshift__(self, o): return self._b('v_lshlrev_b32', o)
    def __rshift__(self, o): return self._b('v_lshrrev_b32', o)
    def __mul__(self, o):
        if isinstance(o, int) and o & (o - 1) == 0: return self << (o.bit_length() - 1)
        return self._b('v_mul_u32_u24', o)
    __rmul__ = __mul__
```

```python
from g import *
from layout import *
from k_chain4 import M32, emit, weave, f2u
import math
LOG2E = math.log2(math.e)

sWS, sW1, sW3, sW2 = 4, 8, 12, 16
sWO, sXI, sOUT = 8, 12, 16
sW, sB, sN, sO1, sO2, sLB, sT0, sT1, sTO, sTile, sNG, sRB = 30, 31, 32, 33, 34, 35, 36, 37, 38, 39, 40, 41
WS = f's[{sWS}:{sWS+3}]'
vL16, vD1, vD2, vR1, vR2, vT0, vT1, vT2, vT3 = 1, 2, 3, 4, 5, 6, 7, 8, 9
vGo, vXo, vRw, vRr, vFl = 10, 11, 12, 13, 14
vH = 16
vA1 = 20
vWF = 40
vOF = 112
F = 240

def rbf2(A, x, y, t):
    A(f'v_cvt_pk_bf16_f32 v{t}, v{x}, v{y}')
    A(f'v_lshlrev_b32 v{x}, 16, v{t}')
    A(f'v_and_b32 v{y}, 0xffff0000, v{t}')
def silu(A, x, t):
    A(f'v_mul_f32 v{t}, {f2u(-LOG2E):#x}, v{x}')
    A(f'v_exp_f32 v{t}, v{t}')
    A('s_nop 0')
    A(f'v_add_f32 v{t}, 1.0, v{t}')
    A(f'v_rcp_f32 v{t}, v{t}')
    A('s_nop 0')
    A(f'v_mul_f32 v{x}, v{x}, v{t}')

def gen_bulk(A):
    A.label('bulk_entry')
    A('s_load_dwordx4 s[44:47], s[0:1], 64')
    A('s_load_dwordx4 s[48:51], s[0:1], 80')
    A('s_load_dwordx4 s[52:55], s[0:1], 96')
    A('s_load_dwordx2 s[56:57], s[0:1], 40')
    A('s_load_dwordx2 s[58:59], s[0:1], 0')
    X = VX(A, 200, F, 3)
    A(f'v_lshrrev_b32 v{F+3}, 6, v0')
    A(f'v_and_b32 v{F}, 63, v0')
    A(f'v_readfirstlane_b32 s{sW}, v{F+3}')
    A(f'v_bfe_u32 v{F+1}, v0, 4, 2')
    A(f'v_and_b32 v{F+2}, 15, v0')
    L, g, c, w = [X.reg(F+i) for i in range(4)]
    A(f's_lshr_b32 s{sB}, s2, 3')
    A(f's_lshl_b32 s{sB}, s{sB}, 2')
    A(f's_and_b32 s3, s2, 3')
    A(f's_add_u32 s{sB}, s{sB}, s3')
    A(f's_mov_b32 s{sTO}, 0x400000')
    X.set(vL16, L*16)
    L16 = X.reg(vL16)
    X.set(vD1, (L >> 2)*3456 + (L & 3)*16)
    X.set(vD2, (L >> 4)*1280 + (L & 15)*16)
    X.set(vR1, w*24576 + (g*8 + ((L >> 2) & 3))*64 + (L & 3)*8)
    X.set(vR2, w*24576 + (g*4 + ((L >> 2) & 3))*256 + (L & 3)*8)
    A('s_waitcnt lgkmcnt(0)')
    srd(A, sWS, 54, WS_SIZE)
    srd(A, sW1, 44, DM*FF*2)
    srd(A, sW3, 46, DM*FF*2)
    srd(A, sW2, 48, FF*DM*2)
    A(f's_mul_i32 s{sT0}, s{sB}, 20480')
    for t in range(20):
        if t and t % 4 == 0: A(f's_add_u32 s{sT0}, s{sT0}, 4096')
        A(f'buffer_load_dwordx4 a[{4*t}:{4*t+3}], v{vL16}, {WS}, s{sT0} offen offset:{1024*(t%4)}')
    A(f'v_mov_b32 v{vT0}, 0')
    for r in range(160): A(f'v_accvgpr_write_b32 a{80+r}, v{vT0}')
    A(f's_cmp_lt_u32 s{sW}, 2')
    A(f's_cselect_b32 s{sN}, 14, 13')
    A(f's_lshl_b32 s{sO1}, s{sW}, 6')
    A(f's_mul_i32 s{sO2}, s{sW}, {32*1280}')
    A(f's_mul_i32 s{sLB}, s{sW}, 24576')
    def issue(ci, nxt):
        o = []; lb = (ci % 3) * 8192
        if ci < 10:
            o.append(f's_add_u32 s{sT0}, s{sO1}, {ci*64*3456 + nxt*256}')
            for m, sr in enumerate((sW1, sW3)):
                for i in range(4):
                    o.append(f's_add_u32 m0, s{sLB}, {lb + m*4096 + i*1024}')
                    o.append(f's_add_u32 s{sT1}, s{sT0}, {i*16*3456}')
                    o.append(f'buffer_load_dwordx4 v{vD1}, s[{sr}:{sr+3}], s{sT1} offen lds')
        else:
            o.append(f's_add_u32 s{sT0}, s{sO2}, {(ci-10)*256}')
            for i in range(8):
                o.append(f's_add_u32 m0, s{sLB}, {lb + i*1024}')
                o.append(f's_add_u32 s{sT1}, s{sT0}, {i*4*1280}')
                o.append(f'buffer_load_dwordx4 v{vD2}, s[{sW2}:{sW2+3}], s{sT1} offen lds')
        return o
    emit(A, issue(0, 0)); emit(A, issue(1, 0))
    A.label('ffn_loop')
    for ci in range(15):
        emit(A, issue((ci + 2) % 15, 1 if ci + 2 >= 15 else 0))
        A('s_waitcnt vmcnt(16)')
        lb = (ci % 3) * 8192
        if ci < 10:
            for kk in range(2):
                for q in range(4):
                    m, tl = q >> 1, q & 1
                    r = vWF + 4*(kk*4 + q)
                    o = lb + m*4096 + kk*32*64 + tl*32
                    A(f'ds_read_b64_tr_b16 v[{r}:{r+1}], v{vR1} offset:{o}')
                    A(f'ds_read_b64_tr_b16 v[{r+2}:{r+3}], v{vR1} offset:{o+256}')
                if kk == 0: pass
            for kk in range(2):
                t = 2*ci + kk
                for q in range(4):
                    n = kk*4 + q
                    A(f's_waitcnt lgkmcnt({2*(7-n)})')
                    A(M32(v(vA1+4*q, 4), v(vWF+4*n, 4), a(4*t, 4), '0' if t == 0 else v(vA1+4*q, 4)))
        else:
            if ci == 10:
                A.nop(8)
                for tl in range(2):
                    for r in (0, 2):
                        gx, ux = vA1 + 4*tl + r, vA1 + 8 + 4*tl + r
                        rbf2(A, gx, gx+1, vT0); rbf2(A, ux, ux+1, vT0)
                        silu(A, gx, vT0); silu(A, gx+1, vT1)
                        rbf2(A, gx, gx+1, vT0)
                        A(f'v_mul_f32 v{gx}, v{gx}, v{ux}')
                        A(f'v_mul_f32 v{gx+1}, v{gx+1}, v{ux+1}')
                        A(f'v_cvt_pk_bf16_f32 v{vH+2*tl+r//2}, v{gx}, v{gx+1}')
            for n in range(8):
                r = vWF + 4*n
                A(f'ds_read_b64_tr_b16 v[{r}:{r+1}], v{vR2} offset:{lb + n*32}')
                A(f'ds_read_b64_tr_b16 v[{r+2}:{r+3}], v{vR2} offset:{lb + n*32 + 4096}')
            for n in range(8):
                ct = (ci - 10)*8 + n
                A(f's_waitcnt lgkmcnt({2*(7-n)})')
                A(M32(a(80+4*ct, 4), v(vWF+4*n, 4), v(vH, 4), a(80+4*ct, 4)))
    A(f's_add_u32 s{sO1}, s{sO1}, 256')
    A(f's_add_u32 s{sO2}, s{sO2}, {128*1280}')
    A(f's_sub_u32 s{sN}, s{sN}, 1')
    A(f's_cmp_lg_u32 s{sN}, 0')
    A('s_cbranch_scc1 ffn_loop')
    A('s_waitcnt vmcnt(0)')
    A('s_barrier')
    X.set(vRw, w*40960 + L16)
    X.set(vRr, w*10240 + L16)
    for ct in range(40):
        A(f'ds_write_b128 v{vRw}, a[{80+4*ct}:{80+4*ct+3}] offset:{1024*ct}')
        if ct % 8 == 7: A('s_waitcnt lgkmcnt(0)')
    A('s_barrier')
    X.set(vT2, X.reg(vRr) + 81920)
    X.set(vGo, w*5120 + L*8)
    A(f's_mul_i32 s{sT0}, s{sB}, 20480')
    A(f's_add_u32 s{sT0}, s{sT0}, {WS_G}')
    for i in range(10):
        for p in range(4):
            A(f'ds_read_b128 v[{vWF+4*p}:{vWF+4*p+3}], v{vRr if p < 2 else vT2} offset:{(p%2)*40960 + 1024*i}')
        A('s_waitcnt lgkmcnt(0)')
        for r in range(4):
            A(f'v_add_f32 v{vWF+r}, v{vWF+r}, v{vWF+4+r}')
            A(f'v_add_f32 v{vWF+8+r}, v{vWF+8+r}, v{vWF+12+r}')
            A(f'v_add_f32 v{vWF+r}, v{vWF+r}, v{vWF+8+r}')
        for r in (0, 2):
            rbf2(A, vWF+r, vWF+r+1, vT0)
            silu(A, vWF+r, vT0); silu(A, vWF+r+1, vT1)
        A(f'v_cvt_pk_bf16_f32 v{vWF+16}, v{vWF}, v{vWF+1}')
        A(f'v_cvt_pk_bf16_f32 v{vWF+17}, v{vWF+2}, v{vWF+3}')
        if i == 8: A(f's_add_u32 s{sT0}, s{sT0}, 4096')
        A(f'buffer_store_dwordx2 v[{vWF+16}:{vWF+17}], v{vGo}, {WS}, s{sT0} offen offset:{512*(i%8)} sc1')
    A('s_waitcnt vmcnt(0)')
    A('s_barrier')
    X.set(vT0, X.sel(('eq', X.reg(0), 0), 0, OOB))
    A(f'v_mov_b32 v{vT1}, 1')
    A(f's_lshl_b32 s{sT0}, s{sB}, 2')
    A(f's_add_u32 s{sT0}, s{sT0}, {WS_GFLAG}')
    A(f'buffer_store_dword v{vT1}, v{vT0}, {WS}, s{sT0} offen sc1')
    A(f's_cmp_ge_u32 s{sB}, 120')
    A('s_cbranch_scc1 bulk_end')
    A(f's_mul_i32 s{sTile}, s{sB}, 3277')
    A(f's_lshr_b32 s{sTile}, s{sTile}, 16')
    A(f's_mul_i32 s3, s{sTile}, 20')
    A(f's_sub_u32 s{sNG}, s{sB}, s3')
    srd(A, sWO, 56, 4096*DM*2)
    srd(A, sXI, 58, S_TOK*DM*2)
    srd(A, sOUT, 50, S_TOK*DM*2)
    X.set(vD1, (L >> 2)*1280 + (L & 3)*16)
    X.set(vR1, w*40960 + (g*4 + ((L >> 2) & 3))*64 + (L & 3)*8)
    A(f's_mul_i32 s{sO1}, s{sW}, {1024*1280}')
    A(f's_lshl_b32 s3, s{sNG}, 6')
    A(f's_add_u32 s{sO1}, s{sO1}, s3')
    A(f's_mul_i32 s{sLB}, s{sW}, 40960')
    for rnd in range(2):
        for i in range(32):
            A(f's_add_u32 m0, s{sLB}, {1024*i}')
            A(f's_add_u32 s{sT1}, s{sO1}, {(rnd*512 + i*16)*1280}')
            A(f'buffer_load_dwordx4 v{vD1}, s[{sWO}:{sWO+3}], s{sT1} offen lds')
        A('s_waitcnt vmcnt(0)')
        for t in range(16):
            for tl in range(2):
                r = ((rnd*16 + t)*2 + tl)*4
                A(f'ds_read_b64_tr_b16 a[{r}:{r+1}], v{vR1} offset:{t*2048 + tl*32}')
                A(f'ds_read_b64_tr_b16 a[{r+2}:{r+3}], v{vR1} offset:{t*2048 + tl*32 + 1024}')
            if t % 2 == 1: A('s_waitcnt lgkmcnt(4)')
        A('s_waitcnt lgkmcnt(0)')
    X.set(vFl, L*8)
    A.label('g_poll')
    A(f's_mov_b32 s{sT0}, {WS_GFLAG}')
    A(f'buffer_load_dwordx2 v[{vT0}:{vT1}], v{vFl}, {WS}, s{sT0} offen sc1')
    A('s_waitcnt vmcnt(0)')
    A(f'v_max_u32 v{vT0}, v{vT0}, v{vT1}')
    A(f'v_cmp_eq_u32 vcc, -1, v{vT0}')
    A('s_cbranch_vccz g_ok')
    A('s_sleep 8')
    A(f's_sub_u32 s{sTO}, s{sTO}, 1')
    A('s_cbranch_scc0 g_poll')
    A('s_branch bulk_abort')
    A.label('g_ok')
    A('s_barrier')
    X.set(vRw, w*2048 + L16)
    X.set(vRr, (w & 1)*1024 + L16)
    X.set(vD2, w*32768 + L16)
    X.set(vGo, (w & 1)*512 + L*8)
    X.set(vXo, c*1280 + (w & 1)*32 + g*8)
    A(f's_mov_b32 s{sRB}, 0')
    A.label('op_loop')
    A(f's_lshr_b32 s{sT0}, s{sTile}, 1')
    A(f's_cmp_ge_u32 s{sT0}, 62')
    A('s_cbranch_scc1 op_final')
    A(f's_lshl_b32 s{sT0}, s{sT0}, 7')
    A(f's_add_u32 s{sT0}, s{sT0}, {WS_PROG}')
    A(f'v_mov_b32 v{vT2}, 0')
    A.label('p_poll')
    A(f'buffer_load_dword v{vT0}, v{vT2}, {WS}, s{sT0} offen sc1')
    A('s_waitcnt vmcnt(0)')
    A(f'v_cmp_eq_u32 vcc, -1, v{vT0}')
    A('s_cbranch_vccz op_go')
    A('s_sleep 8')
    A(f's_sub_u32 s{sTO}, s{sTO}, 1')
    A('s_cbranch_scc0 p_poll')
    A('s_branch bulk_abort')
    A.label('op_final')
    A(f's_mov_b32 s{sT0}, {WS_FLAG}')
    A(f'buffer_load_dwordx2 v[{vT0}:{vT1}], v{vFl}, {WS}, s{sT0} offen sc1')
    A('s_waitcnt vmcnt(0)')
    A(f'v_max_u32 v{vT0}, v{vT0}, v{vT1}')
    A(f'v_cmp_eq_u32 vcc, -1, v{vT0}')
    A('s_cbranch_vccz op_go')
    A('s_sleep 2')
    A(f's_sub_u32 s{sTO}, s{sTO}, 1')
    A('s_cbranch_scc0 op_final')
    A('s_branch bulk_abort')
    A.label('op_go')
    A(f's_lshl_b32 s{sT0}, s{sTile}, 17')
    A(f's_add_u32 s{sT0}, s{sT0}, {WS_OF}')
    for t in range(32):
        if t and t % 4 == 0: A(f's_add_u32 s{sT0}, s{sT0}, 4096')
        A(f'buffer_load_dwordx4 v[{vOF+4*t}:{vOF+4*t+3}], v{vD2}, {WS}, s{sT0} offen offset:{1024*(t%4)} sc1')
    A(f's_mul_i32 s{sT0}, s{sTile}, 20480')
    A(f's_lshl_b32 s{sT1}, s{sNG}, 10')
    A(f's_add_u32 s{sT1}, s{sT1}, s{sT0}')
    A(f's_add_u32 s{sT1}, s{sT1}, {WS_G}')
    A(f'buffer_load_dwordx2 v[{vH}:{vH+1}], v{vGo}, {WS}, s{sT1} offen sc1')
    A(f's_lshl_b32 s{sT1}, s{sNG}, 6')
    A(f's_add_u32 s{sO2}, s{sT1}, s{sT0}')
    A(f'buffer_load_dwordx2 v[{vH+2}:{vH+3}], v{vXo}, s[{sXI}:{sXI+3}], s{sO2} offen')
    for t in range(32):
        A(f's_waitcnt vmcnt({33-t})')
        for tl in range(2):
            A(M32(v(vA1+4*tl, 4), a((2*t+tl)*4, 4), v(vOF+4*t, 4), '0' if t == 0 else v(vA1+4*tl, 4)))
    A(f'v_add_u32 v{vT2}, s{sRB}, v{vRw}')
    A(f'v_add_u32 v{vT3}, s{sRB}, v{vRr}')
    A.nop(6)
    A(f'ds_write_b128 v{vT2}, v[{vA1}:{vA1+3}]')
    A(f'ds_write_b128 v{vT2}, v[{vA1+4}:{vA1+7}] offset:1024')
    A(f's_xor_b32 s{sRB}, s{sRB}, 8192')
    A('s_waitcnt lgkmcnt(0)')
    A('s_barrier')
    A(f's_cmp_ge_u32 s{sW}, 2')
    A('s_cbranch_scc1 op_next')
    for p in range(4):
        A(f'ds_read_b128 v[{vWF+4*p}:{vWF+4*p+3}], v{vT3} offset:{2048*p}')
    A('s_waitcnt vmcnt(0) lgkmcnt(0)')
    for r in range(4):
        A(f'v_add_f32 v{vWF+r}, v{vWF+r}, v{vWF+4+r}')
        A(f'v_add_f32 v{vWF+8+r}, v{vWF+8+r}, v{vWF+12+r}')
        A(f'v_add_f32 v{vWF+r}, v{vWF+r}, v{vWF+8+r}')
    for r in (0, 2):
        s0, s1 = vWF+r, vWF+r+1
        rbf2(A, s0, s1, vT0)
        A(f'v_lshlrev_b32 v{vT0}, 16, v{vH+r//2}')
        A(f'v_and_b32 v{vT1}, 0xffff0000, v{vH+r//2}')
        A(f'v_mul_f32 v{s0}, v{s0}, v{vT0}')
        A(f'v_mul_f32 v{s1}, v{s1}, v{vT1}')
        rbf2(A, s0, s1, vT0)
        A(f'v_lshlrev_b32 v{vT0}, 16, v{vH+2+r//2}')
        A(f'v_and_b32 v{vT1}, 0xffff0000, v{vH+2+r//2}')
        A(f'v_add_f32 v{s0}, v{s0}, v{vT0}')
        A(f'v_add_f32 v{s1}, v{s1}, v{vT1}')
        A(f'v_cvt_pk_bf16_f32 v{vWF+16+r//2}, v{s0}, v{s1}')
    A(f'buffer_store_dwordx2 v[{vWF+16}:{vWF+17}], v{vXo}, s[{sOUT}:{sOUT+3}], s{sO2} offen')
    A.label('op_next')
    A(f's_add_u32 s{sTile}, s{sTile}, 6')
    A(f's_cmp_lt_u32 s{sTile}, 128')
    A('s_cbranch_scc1 op_loop')
    A('s_endpgm')
    A.label('bulk_abort')
    srd(A, sWO, 52, 256)
    A(f'v_mov_b32 v{vT0}, 9')
    A(f'v_mov_b32 v{vT1}, 4')
    A(f'buffer_store_dword v{vT0}, v{vT1}, s[{sWO}:{sWO+3}], 0 offen')
    A.label('bulk_end')
    A('s_endpgm')
```

```python
from g import *
from layout import *
import struct, math

def f2u(x): return struct.unpack('<I', struct.pack('<f', x))[0]
QSCALE = (128 ** -0.5) * math.log2(math.e)
NEG = -1.0e30

L_MEM = 0
L_Q   = 10240
L_K   = L_Q + 2048
L_O   = L_K + 2048
L_QX  = 20480
L_KX  = L_QX + 4096
L_XN  = L_KX + 8192
LDS_BYTES = 163840
assert L_XN + 40960 <= LDS_BYTES

sWS = 4
sWT = 8
sC2 = 12
sKXm, sQXo = 14, 15
sCnt = 16
sPar = 28
sW, sG, sJ, sH, sA, sStep, sTO = 30, 31, 32, 33, 34, 35, 36
sXw = 37
sX3r, sX1, sX2, sX3w, sVXr, sQXr, sX3z, sXr, sT0, sT1, sOF, sNH = 38, 39, 40, 41, 42, 43, 44, 45, 46, 47, 48, 49
sX3G, sX1H, sDB, sXNg, sHoff, sT2 = 50, 51, 52, 53, 54, 55
sST = 56
sWarm, sLrng, sXNl, sXNs, sQXm = 88, 89, 90, 91, 92

vX2stL, vRz2, vRz1 = 1, 2, 3
vX3ld, vRz3, vXA, vXB, vMemR = 4, 5, 6, 7, 8
vX1st, vV1st, vQKld, vQKw, vQr, vKr, vVMld = 9, 10, 11, 12, 13, 14, 15
vOw, vOr, vX2st, vWarm, vX3st, vOFst = 16, 17, 18, 19, 21, 22
vL16, vKXr, vRz1v, vT0, vT1, vT2, vT3, vRinv, vRinv1 = 23, 24, 25, 26, 27, 28, 29, 30, 31
vX2l4 = 32
vM = 36
vVM = 38
vBias = 40
vLS = 52
vWO = 56
vKX = 104
vVX = 136
vS = 144
vAcc = 156
vAcc2 = 160
vP = 164
vXACC = 172
vOFR = 184
vSent4 = 188
vRG = 192
vPS = 224
vQS = 248
vDbg = 0
aSel, aOne = 240, 244
vXNr, vM2, vJunk = 20, 37, 36

WS = f's[{sWS}:{sWS+3}]'
def M32(d, a_, b_, c_): return f'v_mfma_f32_16x16x32_bf16 {d}, {a_}, {b_}, {c_}'
def M16(d, a_, b_, c_): return f'v_mfma_f32_16x16x16_bf16 {d}, {a_}, {b_}, {c_}'

def check_sent(regs, t):
    regs = list(regs); o = []
    if len(regs) == 2:
        o.append(f'v_max_u32 v{t}, v{regs[0]}, v{regs[1]}')
    else:
        o.append(f'v_max3_u32 v{t}, v{regs[0]}, v{regs[1]}, v{regs[2]}')
        rest = regs[3:]
        while rest:
            if len(rest) >= 2:
                o.append(f'v_max3_u32 v{t}, v{t}, v{rest[0]}, v{rest[1]}'); rest = rest[2:]
            else:
                o.append(f'v_max_u32 v{t}, v{t}, v{rest[0]}'); rest = rest[1:]
    o.append(f'v_cmp_eq_u32 vcc, -1, v{t}')
    return o

def emit(A, lst):
    for l in lst:
        if l.endswith(':'): A.label(l[:-1])
        else: A(l)
def nvm(lst):
    n = 0
    for l in lst:
        if isinstance(l, tuple): l = l[1]
        if l.startswith('buffer_'): n += 1
    return n

def weave(prim, fill, per=2):
    out = []; fill = list(fill); n = 0
    for p in prim:
        out.append(p)
        if p.startswith('v_mfma'):
            n += 1; k = 0
            while fill and k < per:
                f = fill[0]
                if isinstance(f, tuple):
                    if f[0] > n: break
                    f = f[1]
                out.append(f); fill.pop(0)
                k += 0.67 if f.startswith('s_') else 1
    for f in fill:
        out.append(f[1] if isinstance(f, tuple) else f)
    return out

class Stamp:
    def __init__(self, A, on): self.A, self.on, self.n = A, on, 0
    def __call__(self, lvl=2):
        if self.on >= lvl:
            self.A(f's_memtime s[{sST+2*self.n}:{sST+2*self.n+1}]')
            self.A('s_waitcnt lgkmcnt(0)')
            self.n += 1
    def flush(self):
        if not self.on: return
        A = self.A
        for k in range(self.n):
            A(f'v_writelane_b32 v{vT3}, s{sST+2*k}, {k}')
        for k in range(5):
            A(f'v_writelane_b32 v{vT3}, s{sCnt+k}, {10+k}')
        A(f's_lshl_b32 s{sT0}, s{sStep}, 6')
        A(f's_add_u32 s{sT0}, s{sT0}, s{sDB}')
        A(f'buffer_store_dword v{vT3}, v{vDbg}, {WS}, s{sT0} offen')

def slot_list(step_add):
    return [
    f's_add_u32 s{sT0}, s{sStep}, {step_add}',
    f's_mul_i32 s{sX2}, s{sT0}, {X2_STEP}',
    f's_and_b32 s{sT0}, s{sT0}, 3',
    f's_mul_i32 s{sX3r}, s{sT0}, {X3_SLOT}',
    f's_add_u32 s{sX3r}, s{sX3r}, s{sX3G}',
    f's_mul_i32 s{sX1}, s{sT0}, {X1_SLOT}',
    f's_add_u32 s{sX1}, s{sX1}, s{sX1H}',
    f's_add_u32 s{sX2}, s{sX2}, {WS_X2}',
    f's_add_u32 s{sT0}, s{sT0}, 1',
    f's_and_b32 s{sT0}, s{sT0}, 3',
    f's_mul_i32 s{sX3w}, s{sT0}, {X3_SLOT}',
    f's_add_u32 s{sX3w}, s{sX3w}, s{sX3G}']
def reset_list(fl, loc):
    S4 = f'v[{vSent4}:{vSent4+3}]'
    o = [f's_add_u32 s{sT0}, s{sX2}, {2*X2_STEP}']
    for i in range(3):
        o.append(f'buffer_store_dwordx4 {S4}, v{vRz2 if i < 2 else vX2l4}, {WS}, s{sT0} offen sc1')
        o.append(f's_add_u32 s{sT0}, s{sT0}, {32768 if i < 2 else X2_LOC - 65536}')
    if loc:
        for i in range(3):
            o.append(f'buffer_store_dwordx4 {S4}, v{vRz2 if i < 2 else vX2l4}, {WS}, s{sT0} offen{fl}')
            if i < 2: o.append(f's_add_u32 s{sT0}, s{sT0}, 32768')
    o += [f's_add_u32 s{sT0}, s{sStep}, 2',
          f's_and_b32 s{sT0}, s{sT0}, 3',
          f's_mul_i32 s{sT1}, s{sT0}, {X1_SLOT}',
          f's_add_u32 s{sT1}, s{sT1}, s{sX1H}',
          f'buffer_store_dwordx4 {S4}, v{vRz1}, {WS}, s{sT1} offen{fl}',
          f'buffer_store_dwordx4 {S4}, v{vRz1v}, {WS}, s{sT1} offen{fl}',
          f's_add_u32 s{sT0}, s{sT0}, 1',
          f's_and_b32 s{sT0}, s{sT0}, 3',
          f's_mul_i32 s{sT1}, s{sT0}, {X3_SLOT}',
          f's_add_u32 s{sT1}, s{sT1}, s{sX3G}',
          f'buffer_store_dwordx4 {S4}, v{vRz3}, {WS}, s{sT1} offen{fl}']
    return o

def xring_list(dst, add):
    return [f's_add_u32 s{dst}, s{sStep}, {add}',
            f's_and_b32 s{dst}, s{dst}, {XRING-1}',
            f's_lshl_b32 s{dst}, s{dst}, 18',
            f's_add_u32 s{dst}, s{dst}, s{sHoff}']
def xr_list(add):
    return xring_list(sXr, add) + [
            f's_add_u32 s{sQXr}, s{sXr}, s{sQXo}',
            f's_add_u32 s{sXr}, s{sXr}, s{sKXm}',
            f's_add_u32 s{sVXr}, s{sXr}, {WS_VX}',
            f's_add_u32 s{sXr}, s{sXr}, {WS_KX}']
def kx_list():
    return [f's_add_u32 m0, s{sKXm}, {L_KX}', 's_nop 0',
            f'buffer_load_dwordx4 v{vL16}, {WS}, s{sXr} offen sc1 lds',
            f'buffer_load_dwordx4 v{vL16}, {WS}, s{sXr} offen offset:1024 sc1 lds']
def vx_list():
    return [f'buffer_load_dwordx4 v[{vVX}:{vVX+3}], v{vL16}, {WS}, s{sVXr} offen sc1',
            f'buffer_load_dwordx4 v[{vVX+4}:{vVX+7}], v{vL16}, {WS}, s{sVXr} offen offset:1024 sc1']
def qx_list():
    return [f's_mov_b32 m0, s{sQXm}', f's_xor_b32 s{sQXm}, s{sQXm}, 2048',
            f'buffer_load_dwordx4 v{vL16}, {WS}, s{sQXr} offen sc1 lds']
def xn_dma_list():
    o = [f's_mov_b32 m0, s{sXNl}', f's_add_u32 s{sT2}, s{sXNg}, 4096']
    for k in range(4):
        o.append(f'buffer_load_dwordx4 v{vL16}, {WS}, s{sXNg} offen offset:{1024*k} lds')
    o += [f's_add_u32 m0, s{sXNl}, 4096',
          f's_add_u32 s{sXNg}, s{sXNg}, 40960',
          f'buffer_load_dwordx4 v{vL16}, {WS}, s{sT2} offen lds',
          f's_sub_u32 s{sXNl}, s{sXNs}, s{sXNl}']
    return o
def xn_addr_list():
    return [f's_and_b32 s{sT0}, s{sStep}, 1',
            f's_xor_b32 s{sT0}, s{sT0}, 1',
            f's_mul_i32 s{sT0}, s{sT0}, 20480',
            f's_add_u32 s{sT0}, s{sT0}, {L_XN}',
            f'v_add_u32 v{vXNr}, s{sT0}, v{vL16}']

def ring_pass(t0, t1, addr, stride, mf, depth=7):
    o = []
    rd = lambda t: f'ds_read_b128 v[{vRG+4*(t%8)}:{vRG+4*(t%8)+3}], v{addr} offset:{stride*t}'
    for t in range(t0, min(t0 + depth, t1)): o.append(rd(t))
    for t in range(t0, t1):
        issued = min(t1, t + depth)
        o.append(f's_waitcnt lgkmcnt({issued - t - 1})')
        o += mf(t, v(vRG + 4*(t % 8), 4))
        if t + depth < t1: o.append(rd(t + depth))
    return o
def xproj(t0, t1):
    def mf(t, f):
        return [M32(v(vXACC, 4), a(4*t, 4), f, '0' if t == 0 else v(vXACC, 4)),
                M32(v(vXACC+4, 4), f, a(80+4*t, 4), '0' if t == 0 else v(vXACC+4, 4)),
                M32(v(vXACC+8, 4), a(160+4*t, 4), f, '0' if t == 0 else v(vXACC+8, 4))]
    return ring_pass(t0, t1, vXNr, 1024, mf, depth=5) if t1 > t0 else []
_xs = [0]
def xproj_store(fl, isq):
    A_, B_, C_ = vXACC, vXACC+4, vXACC+8
    R = vRG
    _xs[0] += 1; l1, l2 = f'xs_odd_{_xs[0]}', f'xs_end_{_xs[0]}'
    o = []
    if isq:
        for r in (A_, A_+2, C_, C_+2):
            o.append(f'v_pk_mul_f32 v[{r}:{r+1}], v[{r}:{r+1}], s[{sC2}:{sC2+1}]')
    o += [f'v_cvt_pk_bf16_f32 v{R}, v{C_}, v{C_+1}', f'v_cvt_pk_bf16_f32 v{R+1}, v{C_+2}, v{C_+3}',
          f'v_cvt_pk_bf16_f32 v{R+2}, v{A_}, v{A_+1}', f'v_cvt_pk_bf16_f32 v{R+3}, v{A_+2}, v{A_+3}',
          f'v_cvt_pk_bf16_f32 v{R+4}, v{C_}, v{C_+1}', f'v_cvt_pk_bf16_f32 v{R+5}, v{C_+2}, v{C_+3}',
          f'v_cvt_pk_bf16_f32 v{B_}, v{B_}, v{B_+1}', f'v_cvt_pk_bf16_f32 v{B_+1}, v{B_+2}, v{B_+3}',
          f's_cmp_lg_u32 s{sPar}, 0',
          f'buffer_store_dwordx2 v[{B_}:{B_+1}], v{vXB}, {WS}, s{sXw} offen{fl}',
          f's_cbranch_scc1 {l1}',
          f'buffer_store_dwordx4 v[{R+2}:{R+5}], v{vXA}, {WS}, s{sXw} offen{fl}',
          f's_branch {l2}',
          f'{l1}:',
          f'buffer_store_dwordx4 v[{R}:{R+3}], v{vXA}, {WS}, s{sXw} offen{fl}',
          f'{l2}:']
    return o

def slow_poll(A, lab, back, issue, consume, nl, code, cnt, two):
    A.label(lab)
    if not two: emit(A, issue(1))
    top = A.newlabel('sp')
    A.label(top)
    A(f's_add_u32 s{cnt}, s{cnt}, 1')
    emit(A, issue(0))
    A(f's_waitcnt vmcnt({nl})')
    emit(A, consume(1))
    A(f's_cbranch_vccz {back}')
    A(f's_add_u32 s{cnt}, s{cnt}, 1')
    emit(A, issue(1))
    A(f's_waitcnt vmcnt({nl})')
    emit(A, consume(0))
    A(f's_cbranch_vccz {back}')
    A(f's_sub_u32 s{sTO}, s{sTO}, 1')
    A(f's_cbranch_scc0 {top}')
    A(f's_mov_b32 s{sT0}, {code}')
    A('s_branch chain_abort')

def gen_loop(A, tag, fl, role, stamps, P):
    st = Stamp(A, stamps)
    isA = role == 'A'
    recv = role in 'AB'
    N3 = 3 if isA else 2
    vQflip = vV1st if role == 'D' else vRz1
    tails = []
    def x3_issue(k):
        r = vPS + 12*k
        return [f'buffer_load_dwordx4 v[{r+4*i}:{r+4*i+3}], v{vX3ld}, {WS}, s{sX3r} offen offset:{1024*i} sc1' for i in range(N3)]
    def x3_consume(k):
        r = vPS + 12*k
        return [f'ds_write_b128 v{vX3ld}, v[{r+4*i}:{r+4*i+3}] offset:{1024*i}' for i in range(N3)] + \
               check_sent(range(r, r+4*N3), vT0) + ['s_waitcnt lgkmcnt(0)']
    def qk_issue(k):
        return [f'buffer_load_dwordx4 v[{vQS+4*k}:{vQS+4*k+3}], v{vQKld}, {WS}, s{sX1} offen sc1']
    def qk_consume(k):
        return [f'ds_write_b128 v{vQKw}, v[{vQS+4*k}:{vQS+4*k+3}]'] + check_sent(range(vQS+4*k, vQS+4*k+4), vT0) + ['s_waitcnt lgkmcnt(0)']
    def x2_issue(k):
        return [f'buffer_load_dwordx4 v[{vKX+16*k+4*L}:{vKX+16*k+4*L+3}], v{vX2l4+L}, {WS}, s{sX2} offen sc1' for L in range(4)]
    def x2_consume(k):
        mf = [M32(v(vAcc, 4), a(aSel, 4), v(vKX+16*k+4*L, 4), '0' if L == 0 else v(vAcc, 4)) for L in range(4)]
        return weave(mf, check_sent(range(vKX+16*k, vKX+16*k+16), vT0)) + ['s_nop 3']
    xa = P['xa'] if isA else P['xa2']
    xb = 20 if isA else P['xc']
    two3, twoq, two2 = P['x3B'] >= 0, P['qkB'] >= 0, P['pollB'] >= 0
    top_young = (N3 if two3 else 0) + (2 if isA else 0)

    A.label(f'entry_{tag}')
    if isA:
        emit(A, xproj(0, 20)); A.nop(8); emit(A, xproj_store(fl, True))
    else:
        emit(A, xproj(0, P['xc']))
    emit(A, x3_issue(0))
    A('s_waitcnt vmcnt(0)')
    if two3: emit(A, x3_issue(1))
    if stamps:
        A('s_memrealtime s[96:97]')
        A('s_waitcnt lgkmcnt(0)')
    A.label(f'loop_{tag}')
    st(1)
    A(f's_waitcnt vmcnt({top_young})')
    emit(A, x3_consume(0))
    A(f's_cbranch_vccnz x3s_{tag}')
    A.label(f'x3ok_{tag}')
    tails.append(lambda: slow_poll(A, f'x3s_{tag}', f'x3ok_{tag}', x3_issue, x3_consume, N3, 1, sCnt, two3))
    A('s_barrier')
    st()
    emit(A, weave(ring_pass(0, 20, vMemR, 512, lambda t, f: [M32(v(vAcc, 4), a(4*t, 4), f, '0' if t == 0 else v(vAcc, 4))]),
                  [(P['xnA'], x) for x in xn_dma_list()], per=1))
    qepi = []
    if isA:
        qepi += [f'v_pk_mul_f32 v[{vAcc}:{vAcc+1}], v[{vAcc}:{vAcc+1}], s[{sC2}:{sC2+1}]',
                 f'v_pk_mul_f32 v[{vAcc+2}:{vAcc+3}], v[{vAcc+2}:{vAcc+3}], s[{sC2}:{sC2+1}]']
    qepi += [f'v_cvt_pk_bf16_f32 v{vT0}, v{vAcc}, v{vAcc+1}',
             f'v_cvt_pk_bf16_f32 v{vT1}, v{vAcc+2}, v{vAcc+3}',
             f'v_min_u32 v{vT0}, -2, v{vT0}',
             f'v_min_u32 v{vT1}, -2, v{vT1}',
             f'buffer_store_dwordx2 v[{vT0}:{vT1}], v{vX1st}, {WS}, s{sX1} offen{fl}']
    kxr = [f'ds_read_b128 v[{vKX+4*k}:{vKX+4*k+3}], v{vKXr} offset:{1024*k}' for k in range(8)]
    if isA:
        body = ring_pass(0, 20, vMemR, 512, lambda t, f: [M32(v(vAcc2, 4), f, a(80+4*t, 4), '0' if t == 0 else v(vAcc2, 4))])
        tailw = [f'v_cvt_pk_bf16_f32 v{vT2}, v{vAcc2}, v{vAcc2+1}',
                 f'v_cvt_pk_bf16_f32 v{vT3}, v{vAcc2+2}, v{vAcc2+3}',
                 f'v_min_u32 v{vT2}, -2, v{vT2}',
                 f'v_min_u32 v{vT3}, -2, v{vT3}',
                 f'buffer_store_dwordx2 v[{vT2}:{vT3}], v{vV1st}, {WS}, s{sX1} offen{fl}']
        nst = 1
    else:
        body = xproj(P['xc'], 20)
        tailw = xproj_store(fl, False)
        nst = 2
    nrd = sum(1 for b in body[:8] if b.startswith('ds_read'))
    emit(A, body[:nrd])
    A.nop(8 - nrd)
    emit(A, qepi)
    polls = [(P['qkA'], qk_issue(0)[0])] + ([(P['qkB'], qk_issue(1)[0])] if twoq else [])
    emit(A, weave(body[nrd:], polls))
    emit(A, kxr)
    emit(A, tailw)
    st()
    A(f's_waitcnt vmcnt({(1 if twoq else 0)+nst})')
    emit(A, qk_consume(0))
    A(f's_cbranch_vccnz qks_{tag}')
    A.label(f'qkok_{tag}')
    tails.append(lambda: slow_poll(A, f'qks_{tag}', f'qkok_{tag}', qk_issue, qk_consume, 1, 2, sCnt+1, twoq))
    A('s_barrier')
    st()
    QF, KF = vRG, vRG + 16
    for t in range(4):
        A(f'ds_read_b128 v[{QF+4*t}:{QF+4*t+3}], v{vQr} offset:{512*t}')
    for t in range(4):
        A(f'ds_read_b128 v[{KF+4*t}:{KF+4*t+3}], v{vKr} offset:{512*t}')
    A(f'buffer_load_dwordx2 v[{vVM}:{vVM+1}], v{vVMld}, {WS}, s{sX1} offen sc1')
    A(f'v_mov_b32 v{vP+6}, 0')
    A(f'v_mov_b32 v{vP+7}, 0')
    def smf(i, t):
        src = (vKX + 4*t, vKX + 16 + 4*t, KF + 4*t)[i]
        return M32(v(vS+4*i, 4), v(src, 4), v(QF+4*t, 4), v(vBias+4*i, 4) if t == 0 else v(vS+4*i, 4))
    for t in range(4):
        A(f's_waitcnt lgkmcnt({7-t})')
        A(smf(0, t))
    pf = kx_list() + ([] if isA else qx_list())
    emit(A, weave([smf(1, t) for t in range(4)], pf))
    A('s_waitcnt lgkmcnt(0)')
    E = lambda r: f'v_exp_f32 v{vS+r}, v{vS+r}'
    C = lambda d, r: f'v_cvt_pk_bf16_f32 v{d}, v{vS+r}, v{vS+r+1}'
    A(smf(2, 0)); A('s_nop 1'); A(E(0))
    A(smf(2, 1)); A(E(1))
    A(smf(2, 2)); A(E(2))
    A(smf(2, 3)); A(E(3))
    A(E(4)); A(E(5)); A(E(6)); A(E(7))
    A(C(vP, 0)); A(C(vP+1, 2)); A(C(vP+2, 4)); A(C(vP+3, 6))
    A(E(8)); A(E(9))
    A(M32(v(vAcc, 4), v(vVX, 4), v(vP, 4), '0'))
    A(E(10))
    A(M32(v(vAcc2, 4), v(vVX+4, 4), v(vP, 4), '0'))
    A(E(11))
    A(M32(v(vLS, 4), a(aOne, 4), v(vP, 4), '0'))
    A(C(vT0, 8)); A(C(vT1, 10)); A(C(vP+4, 8)); A(C(vP+5, 10))
    A(f's_waitcnt vmcnt({nvm(pf)})')
    emit(A, check_sent([vVM, vVM+1], vT2))
    A(f'v_permlane32_swap_b32 v{vP+6}, v{vT0}')
    A(f'v_permlane32_swap_b32 v{vP+7}, v{vT1}')
    A(f's_cbranch_vccnz pvs_{tag}')
    A.label(f'pvok_{tag}')
    def pv_slow():
        A.label(f'pvs_{tag}')
        A(f's_add_u32 s{sCnt+2}, s{sCnt+2}, 1')
        A(f'buffer_load_dwordx2 v[{vVM}:{vVM+1}], v{vVMld}, {WS}, s{sX1} offen sc1')
        A('s_waitcnt vmcnt(0)')
        emit(A, check_sent([vVM, vVM+1], vT2))
        A(f's_cbranch_vccz pvok_{tag}')
        A(f's_sub_u32 s{sTO}, s{sTO}, 1')
        A(f's_cbranch_scc0 pvs_{tag}')
        A(f's_mov_b32 s{sT0}, 3')
        A('s_branch chain_abort')
    tails.append(pv_slow)
    def pv_mem():
        A(M16(v(vAcc, 4), v(vVM, 2), v(vP+4, 2), v(vAcc, 4)))
        A(M16(v(vAcc2, 4), v(vVM, 2), v(vP+6, 2), v(vAcc2, 4)))
        A(M16(v(vLS, 4), a(aOne, 2), v(vP+4, 2), v(vLS, 4)))
        A.nop(6)
        A(f'v_cvt_pk_bf16_f32 v{vOFR}, v{vAcc}, v{vAcc+1}')
        A(f'v_cvt_pk_bf16_f32 v{vOFR+1}, v{vAcc+2}, v{vAcc+3}')
        A(f'v_cvt_pk_bf16_f32 v{vOFR+2}, v{vAcc2}, v{vAcc2+1}')
        A(f'v_cvt_pk_bf16_f32 v{vOFR+3}, v{vAcc2+2}, v{vAcc2+3}')
        A(f'ds_write_b128 v{vOw}, v[{vOFR}:{vOFR+3}]')
        A(f'v_rcp_f32 v{vRinv}, v{vLS}')
    pv_mem()
    A(f'v_subrev_u32 v{vT0}, {f2u(2.0**-60):#x}, v{vLS}')
    A(f'v_cmp_le_u32 vcc, s{sLrng}, v{vT0}')
    A(f'v_mov_b32 v{vRinv1}, v{vRinv}')
    A(f's_cmp_eq_u32 s{sStep}, {NSEG-1}')
    A('s_waitcnt lgkmcnt(0)')
    A(f's_cbranch_vccnz smx_{tag}')
    A.label(f'smok_{tag}')
    def sm_slow():
        A.label(f'smx_{tag}')
        A(f's_add_u32 s{sCnt+4}, s{sCnt+4}, 1')
        for i in range(3):
            for t in range(4): A(smf(i, t))
        A.nop(8)
        A(f'v_max3_f32 v{vM}, v{vS}, v{vS+1}, v{vS+2}')
        A(f'v_max3_f32 v{vM}, v{vM}, v{vS+3}, v{vS+4}')
        A(f'v_max3_f32 v{vM}, v{vM}, v{vS+5}, v{vS+6}')
        A(f'v_max3_f32 v{vM}, v{vM}, v{vS+7}, v{vS+8}')
        A(f'v_max3_f32 v{vM}, v{vM}, v{vS+9}, v{vS+10}')
        A(f'v_max_f32 v{vM}, v{vM}, v{vS+11}')
        A(f'v_mov_b32 v{vT0}, v{vM}')
        A.nop(2)
        A(f'v_permlane16_swap_b32 v{vT0}, v{vM}')
        A.nop(1)
        A(f'v_max_f32 v{vM}, v{vM}, v{vT0}')
        A(f'v_mov_b32 v{vT0}, v{vM}')
        A.nop(2)
        A(f'v_permlane32_swap_b32 v{vT0}, v{vM}')
        A.nop(1)
        A(f'v_max_f32 v{vM}, v{vM}, v{vT0}')
        for r in range(12): A(f'v_sub_f32 v{vS+r}, v{vS+r}, v{vM}')
        for r in range(12): A(E(r))
        A(f'v_mov_b32 v{vP+6}, 0')
        A(f'v_mov_b32 v{vP+7}, 0')
        A(C(vP, 0)); A(C(vP+1, 2)); A(C(vP+2, 4)); A(C(vP+3, 6))
        A(C(vT0, 8)); A(C(vT1, 10)); A(C(vP+4, 8)); A(C(vP+5, 10))
        A(M32(v(vAcc, 4), v(vVX, 4), v(vP, 4), '0'))
        A(M32(v(vAcc2, 4), v(vVX+4, 4), v(vP, 4), '0'))
        A(M32(v(vLS, 4), a(aOne, 4), v(vP, 4), '0'))
        A(f'v_permlane32_swap_b32 v{vP+6}, v{vT0}')
        A(f'v_permlane32_swap_b32 v{vP+7}, v{vT1}')
        A.nop(6)
        pv_mem()
        A.nop(1)
        A(f'v_mov_b32 v{vRinv1}, v{vRinv}')
        A(f's_cmp_eq_u32 s{sStep}, {NSEG-1}')
        A('s_waitcnt lgkmcnt(0)')
        A(f's_branch smok_{tag}')
    tails.append(sm_slow)
    A(f's_cbranch_scc1 last_{tag}')
    A('s_barrier')
    st()
    OF4 = vRG
    for t in range(4):
        A(f'ds_read_b128 v[{OF4+4*t}:{OF4+4*t+3}], v{vOr} offset:{1024*t}')
    emit(A, vx_list())
    A(f'v_xor_b32 v{vQr}, v{vQflip}, v{vQr}')
    D = vRG + 16
    R = vS
    RI = f'v[{vRinv}:{vRinv1}]'
    def scale_cvt(k):
        return [f'v_pk_mul_f32 v[{D+4*k}:{D+4*k+1}], v[{D+4*k}:{D+4*k+1}], {RI}',
                f'v_pk_mul_f32 v[{D+4*k+2}:{D+4*k+3}], v[{D+4*k+2}:{D+4*k+3}], {RI}',
                f'v_cvt_pk_bf16_f32 v{D+4*k}, v{D+4*k}, v{D+4*k+1}',
                f'v_cvt_pk_bf16_f32 v{D+4*k+1}, v{D+4*k+2}, v{D+4*k+3}']
    mind = lambda d, s_, ctl: f'v_min_u32_dpp v{d}, v{s_}, v{vM2} ' + ctl.replace(' bank', ' row_mask:0xf bank')
    export = []
    for r in (0, 2):
        export.append(f'v_pk_mul_f32 v[{vAcc+r}:{vAcc+r+1}], v[{vAcc+r}:{vAcc+r+1}], {RI}')
        export.append(f'v_pk_mul_f32 v[{vAcc2+r}:{vAcc2+r+1}], v[{vAcc2+r}:{vAcc2+r+1}], {RI}')
    export += [f'v_cvt_pk_bf16_f32 v{vOFR}, v{vAcc}, v{vAcc+1}',
               f'v_cvt_pk_bf16_f32 v{vOFR+1}, v{vAcc+2}, v{vAcc+3}',
               f'v_cvt_pk_bf16_f32 v{vOFR+2}, v{vAcc2}, v{vAcc2+1}',
               f'v_cvt_pk_bf16_f32 v{vOFR+3}, v{vAcc2+2}, v{vAcc2+3}',
               f'buffer_store_dwordx4 v[{vOFR}:{vOFR+3}], v{vOFst}, {WS}, s{sOF} offen sc1',
               f's_add_u32 s{sOF}, s{sOF}, {2*128*1024}']
    order = [2, 0, 1] if isA else [0, 1]
    op = []
    for n, k in enumerate(order):
        for t in range(4):
            if n == 0: op.append(f's_waitcnt lgkmcnt({3-t})')
            op.append(M32(v(D+4*k, 4), v(vWO+16*k+4*t, 4), v(OF4+4*t, 4), '0' if t == 0 else v(D+4*k, 4)))
    ident = 'quad_perm:[0,1,2,3] bank_mask:0x3'
    if isA:
        single = scale_cvt(2) + ['s_nop 0',
                  mind(R, D+8, 'row_shr:8 bank_mask:0xc'), mind(R+1, D+9, 'row_shr:8 bank_mask:0xc'),
                  mind(R+2, D+8, 'row_shr:7 bank_mask:0xc'), mind(R+3, D+9, 'row_shr:7 bank_mask:0xc')]
        emit(A, weave(op, export[:8] + [(8, x) for x in single]))
    else:
        emit(A, weave(op, export[:8]))
    emit(A, scale_cvt(0))
    A.nop(3 if not isA else 2)
    A(mind(R, D, ident)); A(mind(R+1, D+1, ident))
    emit(A, scale_cvt(1))
    A.nop(1)
    A(mind(R+2, D+4, ident)); A(mind(R+3, D+5, ident))
    A(f'buffer_store_dwordx4 v[{R}:{R+3}], v{vX2st}, {WS}, s{sX2} offen sc1')
    if P['loc']:
        A(f'buffer_store_dwordx4 v[{R}:{R+3}], v{vX2stL}, {WS}, s{sX2} offen{fl}')
    st()
    pre = []
    if role == 'D':
        pre += [f'buffer_load_dword v{vJunk}, v{vWarm}, {WS}, s{sWarm} offen', f's_add_u32 s{sWarm}, s{sWarm}, 40960']
    pre += export[8:]
    post = xr_list(2)
    if role == 'D':
        post += reset_list(fl, P['loc'])
        post += [f's_lshl_b32 s{sT0}, s{sStep}, 7', f's_add_u32 s{sT0}, s{sT0}, {WS_PROG - 256}',
                 f'buffer_store_dword v{vM2}, v{vX3st}, {WS}, s{sT0} offen sc1']
    post += xring_list(sXw, 3)
    emit(A, xn_addr_list())
    if recv:
        fill = pre + [(P['pollA'], x) for x in x2_issue(0)] + post + ([(P['pollB'], x) for x in x2_issue(1)] if two2 else [])
        emit(A, weave(xproj(0, xa), fill))
        st()
        A(f's_waitcnt vmcnt({nvm(post) + (4 if two2 else 0)})')
        emit(A, x2_consume(0))
        A(f's_cbranch_vccnz x2s_{tag}')
        A.label(f'x2ok_{tag}')
        tails.append(lambda: slow_poll(A, f'x2s_{tag}', f'x2ok_{tag}', x2_issue, x2_consume, 4, 4, sCnt+3, two2))
        st()
        for r in range(4):
            A(f'v_add_f32_dpp v{vAcc2+r}, v{vAcc+r}, v{vAcc+r} row_ror:8 row_mask:0xf bank_mask:0xf')
        A(f'v_cvt_pk_bf16_f32 v{vT0}, v{vAcc2}, v{vAcc2+1}')
        A(f'v_cvt_pk_bf16_f32 v{vT1}, v{vAcc2+2}, v{vAcc2+3}')
        A(f'v_min_u32 v{vT0}, -2, v{vT0}')
        A(f'v_min_u32 v{vT1}, -2, v{vT1}')
        A(f'buffer_store_dwordx2 v[{vT0}:{vT1}], v{vX3st}, {WS}, s{sX3w} offen{fl}')
    else:
        fill = pre + [(P['postD'], post[0])] + post[1:]
        emit(A, weave(xproj(0, xa), fill))
    A('s_barrier')
    st.flush()
    fill = slot_list(1) + [f's_add_u32 s{sStep}, s{sStep}, 1'] + [(P['x3A'], x) for x in x3_issue(0)]
    if two3: fill += [(P['x3B'], x) for x in x3_issue(1)]
    emit(A, weave(xproj(xa, xb), fill, per=3))
    if isA:
        A.nop(8)
        emit(A, xproj_store(fl, True))
    A(f's_branch loop_{tag}')
    A.label(f'last_{tag}')
    emit(A, export)
    if role == 'D':
        A(f's_mov_b32 s{sT0}, {WS_PROG + 61*128}')
        A(f'buffer_store_dword v{vM2}, v{vX3st}, {WS}, s{sT0} offen sc1')
    A('s_waitcnt vmcnt(0)')
    A('s_barrier')
    if role == 'D':
        A(f's_lshl_b32 s{sT0}, s{sG}, 5')
        A(f's_add_u32 s{sT0}, s{sT0}, s{sJ}')
        A(f's_lshl_b32 s{sT0}, s{sT0}, 2')
        A(f's_add_u32 s{sT0}, s{sT0}, {WS_FLAG}')
        A(f'v_cmp_eq_u32 vcc, 0, v{vL16}')
        A(f'v_mov_b32 v{vT0}, {OOB:#x}')
        A('s_nop 1')
        A(f'v_cndmask_b32 v{vT0}, v{vT0}, 0, vcc')
        A(f'buffer_store_dword v{vM2}, v{vT0}, {WS}, s{sT0} offen sc1')
    if stamps:
        A('s_memrealtime s[98:99]')
        A('s_waitcnt lgkmcnt(0)')
        A(f'v_writelane_b32 v{vT3}, s{sST}, 0')
        for k, r in enumerate((94, 96, 98)): A(f'v_writelane_b32 v{vT3}, s{r}, {1+k}')
        A(f's_add_u32 s{sT0}, s{sDB}, {63*64}')
        A(f'buffer_store_dword v{vT3}, v{vDbg}, {WS}, s{sT0} offen')
    A('s_endpgm')
    for t in tails: t()

DEFAULT_P = dict(xnA=2, loc=1, xa=15, xa2=10, xc=14, pollA=8, pollB=24, postD=12, qkA=8, qkB=14, x3A=6, x3B=12)

def gen_chain(A, name='chain_kernel', stamps=0, P=None):
    P = dict(DEFAULT_P, **(P or {}))
    wt = f's[{sWT}:{sWT+3}]'
    kernel_begin(A, name)
    A('s_cmp_ge_u32 s2, 256')
    A('s_cbranch_scc1 chain_end')
    A('s_and_b32 s3, s2, 4')
    A('s_cbranch_scc0 chain_go')
    A('s_branch bulk_entry' if P.get('bulk', 1) else 's_endpgm')
    A.label('chain_go')
    if stamps: A('s_memrealtime s[94:95]')
    A('s_load_dwordx4 s[16:19], s[0:1], 16')
    A('s_load_dwordx4 s[20:23], s[0:1], 32')
    A('s_load_dwordx4 s[24:27], s[0:1], 96')
    F = 232
    X = VX(A, vRG, F, 3)
    A(f'v_lshrrev_b32 v{F+3}, 6, v0')
    A(f'v_and_b32 v{F}, 63, v0')
    A(f'v_readfirstlane_b32 s{sW}, v{F+3}')
    A(f'v_bfe_u32 v{F+1}, v0, 4, 2')
    A(f'v_and_b32 v{F+2}, 15, v0')
    A(f's_and_b32 s{sG}, s2, 3')
    A(f's_lshr_b32 s{sJ}, s2, 3')
    A(f's_lshr_b32 s{sH}, s{sJ}, 2')
    A(f's_lshl_b32 s3, s{sG}, 3')
    A(f's_add_u32 s{sH}, s{sH}, s3')
    A(f's_and_b32 s{sA}, s{sJ}, 3')
    A(f's_and_b32 s{sPar}, s{sA}, 1')
    A(f's_mov_b32 s{sTO}, 0x40000')
    A(f'v_mov_b32 v{F+4}, s{sA}')
    A(f'v_mov_b32 v{F+5}, s{sH}')
    A(f'v_mov_b32 v{F+6}, s{sJ}')
    A(f'v_mov_b32 v{F+7}, s{sG}')
    A(f'v_mov_b32 v{F+8}, v0')
    L, g, c, w, a_, h, j, G, tid = [X.reg(F+i) for i in range(9)]
    X.set(vL16, L*16)
    L16 = X.reg(vL16)
    A('s_waitcnt lgkmcnt(0)')
    srd(A, sWS, 26, WS_SIZE)
    X.set(vT0, (L >> 3)*8192 + (L & 7)*16 + h*256 + (a_ >> 1)*128)
    own = lambda: ((a_ & 1)*2 + (w & 1))*32
    trb = lambda: (g*8 + ((L >> 2) & 3))*128 + (L & 3)*8
    X.set(vT1, trb() + own())
    X.set(vT2, trb() + (own() ^ 64))
    X.set(vT3, trb() + (own() ^ ((w & 2)*32)))
    RB = vRinv
    def stage(ptr):
        srd(A, sWT, ptr, DM * 4096 * 2)
        A(f's_lshl_b32 s63, s{sW}, 10')
        A(f's_lshl_b32 s64, s{sW}, 16')
        for i in range(20):
            A('s_mov_b32 m0, s63')
            A(f's_add_u32 s63, s63, 4096')
            A(f'buffer_load_dwordx4 v{vT0}, {wt}, s64 offen lds')
            A(f's_add_u32 s64, s64, {4*65536}')
        A('s_waitcnt vmcnt(0)')
        A('s_barrier')
    def trload(abase, RA):
        A(f'v_add_u32 v{RB}, 0x10000, v{RA}')
        for t in range(20):
            r, o = (RA, 4096 * t) if t < 16 else (RB, 4096 * (t - 16))
            A(f'ds_read_b64_tr_b16 a[{abase+4*t}:{abase+4*t+1}], v{r} offset:{o}')
            A(f'ds_read_b64_tr_b16 a[{abase+4*t+2}:{abase+4*t+3}], v{r} offset:{o+512}')
            if t % 4 == 3:
                A('s_waitcnt lgkmcnt(4)')
    for (ptr, lo) in ((16, True), (18, False)):
        stage(ptr)
        sk = A.newlabel('skw')
        A(f's_cmp_lt_u32 s{sW}, 2')
        A(f's_cbranch_scc{0 if lo else 1} {sk}')
        trload(0, vT1)
        trload(160, vT2)
        A.label(sk)
        A('s_waitcnt lgkmcnt(0)')
        A('s_barrier')
    stage(20)
    trload(80, vT3)
    A('s_waitcnt lgkmcnt(0)')
    A('s_barrier')
    srd(A, sWT, 22, 4096 * DM * 2)
    A(f's_mul_i32 s64, s{sH}, {128*1280}')
    A(f's_mul_i32 s3, s{sA}, 320')
    A(f's_add_u32 s64, s64, s3')
    A(f's_lshl_b32 s63, s{sW}, 10')
    for i in range(10):
        cid = tid + 256*i
        row = (cid*3277) >> 16
        X.set(vT0, row*1280 + (cid - row*20)*16)
        A('s_mov_b32 m0, s63')
        A(f's_add_u32 s63, s63, 4096')
        A(f'buffer_load_dwordx4 v{vT0}, {wt}, s64 offen lds')
    A('s_waitcnt vmcnt(0)')
    A('s_barrier')
    wob = lambda: (g*4 + ((L >> 2) & 3))*320 + (L & 3)*8
    X.set(vT0, wob() + w*64)
    X.set(vT1, wob() + (w & 1)*32 + 256)
    for k in range(3):
        for t in range(4):
            r, o = (vT0, 32*320*t + 32*k) if k < 2 else (vT1, 32*320*t)
            A(f'ds_read_b64_tr_b16 v[{vWO+16*k+4*t}:{vWO+16*k+4*t+1}], v{r} offset:{o}')
            A(f'ds_read_b64_tr_b16 v[{vWO+16*k+4*t+2}:{vWO+16*k+4*t+3}], v{r} offset:{o+16*320}')
        A('s_waitcnt lgkmcnt(0)')
    A('s_barrier')
    A(f's_mul_i32 s{sXNg}, s{sPar}, 20480')
    A(f's_mul_i32 s3, s{sW}, 5120')
    A(f's_add_u32 s{sXNg}, s{sXNg}, s3')
    A(f's_add_u32 s{sXNg}, s{sXNg}, {WS_XN}')
    A(f's_add_u32 s{sXNl}, s3, {L_XN}')
    A(f's_lshl_b32 s{sXNs}, s{sXNl}, 1')
    A(f's_add_u32 s{sXNs}, s{sXNs}, 20480')
    emit(A, xn_dma_list()); emit(A, xn_dma_list())
    for q in range(4): X.set(vSent4+q, -1)
    X.set(vM2, -2)
    X.set(vT0, 0x3f803f80)
    for q in range(4): A(f'v_accvgpr_write_b32 a{aOne+q}, v{vT0}')
    slot = lambda: (g*8 + (c & 7))*16
    clt8 = ('lt', c, 8); glt2 = ('lt', g, 2); wlt2 = ('lt', w, 2)
    X.set(vX3ld, X.sel(wlt2, w*3072, w*2048 + 2048) + L16)
    X.set(vMemR, slot())
    X.set(vKr, slot() + L_K)
    X.set(vQr, X.sel(clt8, L_Q, L_QX) + slot())
    tq = lambda: (a_ & 2) + (w & 1)
    X.set(vX1st, X.sel(clt8, tq()*1024 + (w >> 1)*512 + slot() + (a_ & 1)*8, OOB))
    tt = lambda: a_ & 1
    X.set(vXA, X.sel(wlt2, (tt()*2 + (c >> 3))*2048 + tq()*512 + slot() + WS_QX, tt()*4096 + tq()*1024 + L16 + WS_KX))
    X.set(vXB, ((a_ ^ (w >> 1))*2 + (w & 1))*1024 + L16 + tt()*8 + WS_VX)
    X.set(vV1st, X.sel(glt2, (a_*2 + (w & 1))*256 + L*8 + 4096, OOB))
    X.set(vVMld, w*512 + L*8 + 4096)
    X.set(vQKld, w*1024 + L16)
    X.set(vOw, w*1024 + L16 + L_O)
    X.set(vOr, L16 + L_O)
    X.set(vKXr, L16 + L_KX)
    X.set(vQKw, X.sel(glt2, L_Q, L_K - 512) + w*512 + L16)
    X.set(vT0, (a_*20 + w*4 + (c >> 1))*4096 + ((c & 1)*4 + g)*16)
    X.set(vT1, (a_*20 + 16 + w*2 + ((c >> 2) & 1))*4096 + (((c >> 1) & 1)*4 + g)*16)
    X.set(vT1, X.sel(('eq', (c & 1) + (w & 2), 0), X.reg(vT1), OOB))
    X.set(vX2st, X.sel(clt8, X.reg(vT0), X.reg(vT1)) + h*128)
    X.set(vT0, X.sel(('lt', j, 16), j*3, j*2 + 16) + w)
    U = X.reg(vT0)
    for Lq in range(4):
        X.set(vX2l4+Lq, U*4096 + L16 + 1024*Lq + X.sel(('eq', G, Lq), X2_LOC if P['loc'] else 0, 0))
        if P.get('x2m'): X.set(vX2l4+Lq, X.sel(('eq', (L >> 3) & P['x2m'], 0), X.reg(vX2l4+Lq), OOB))
    X.set(vT1, (U*3277) >> 16)
    ua = X.reg(vT1)
    X.set(vT2, U - ua*20)
    u = X.reg(vT2)
    gp = lambda: c & 3
    r1 = lambda: (c >> 2) & 1
    X.set(vT3, (ua*5 + (u >> 2))*512 + ((g*2 + (gp() >> 1))*8 + (u & 3)*2 + r1())*16)
    X.set(vRinv, (ua*5 + 4)*512 + (((u & 2) + (gp() >> 1))*8 + (u & 1)*4 + r1()*2 + g)*16)
    X.set(vT3, X.sel(('lt', u, 16), X.reg(vT3), X.reg(vRinv)) + (gp() & 1)*8)
    X.set(vX3st, X.sel(('eq', (c >> 3) + (g >> 1), 0), X.reg(vT3), OOB))
    X.set(vOFst, X.sel(clt8, OOB, ((a_ >> 1)*128 + h*4 + w)*1024 + (a_ & 1)*128 + L16 - 128))
    X.set(vRz2, (a_*20 + (L >> 3))*4096 + h*128 + (L & 7)*16)
    X.set(vX2l4, X.sel(('eq', w, 3), X.sel(('lt', L, 32), X.reg(vRz2), OOB), X.reg(vX2l4)))
    X.set(vRz1, a_*1024 + L16)
    X.set(vRz1v, X.sel(('lt', L, 32), a_*512 + L16 + 4096, OOB))
    X.set(vRz3, X.sel(('lt', L, 20), j*320 + L16, OOB))
    X.set(vWarm, X.sel(('lt', L, 10), j*1280 + L*128, OOB))
    for q in range(4):
        X.set(vT1, X.sel(('eq', c >> 1, q), X.sel(('eq', c & 1, 0), 0x3f80, 0x3f800000), 0))
        A(f'v_accvgpr_write_b32 a{aSel+q}, v{vT1}')
    X.set(vT1, X.sel(clt8, 63, a_*8 + c - 8))
    for kt in range(2):
        for r in range(4):
            X.set(vBias+4*kt+r, X.sel(('gt', g*4 + (16*kt + r), X.reg(vT1)), f2u(NEG), 0))
    for r in range(4):
        X.set(vBias+8+r, X.sel(glt2, 0, f2u(NEG)))
    X.set(vT1, X.sel(clt8, 0, 2048))
    X.set(vV1st, X.sel(('eq', w, 3), X.reg(vT1), X.reg(vV1st)))
    X.set(vRz1, X.sel(('eq', w, 3), X.reg(vRz1), X.reg(vT1)))
    X.set(vX3st, X.sel(('eq', w, 3), X.sel(('eq', L + j + G, 0), 0, OOB), X.reg(vX3st)))
    X.set(vX2stL, X.reg(vX2st) + X2_LOC)
    X.set(vT2, X.sel(('eq', tid, 0), 0, OOB))
    X.set(vT3, (L & 31)*4)
    X.set(vDbg, X.sel(('lt', L, 16), L*4, OOB))
    A(f's_mov_b32 s{sOF}, {WS_OF}')
    A(f's_cmp_lt_u32 s{sJ}, 16')
    A(f's_cselect_b32 s{sNH}, 3, 2')
    A(f's_mov_b32 s{sC2}, {f2u(QSCALE):#x}')
    A(f's_mov_b32 s{sC2+1}, {f2u(QSCALE):#x}')
    A(f's_mul_i32 s{sX3G}, s{sG}, {X3_G}')
    A(f's_add_u32 s{sX3G}, s{sX3G}, {WS_X3}')
    A(f's_mul_i32 s{sX1H}, s{sH}, {X1_H}')
    A(f's_add_u32 s{sX1H}, s{sX1H}, {WS_X1}')
    A(f's_lshl_b32 s{sHoff}, s{sH}, 13')
    A(f's_lshl_b32 s75, s{sG}, 5')
    A(f's_add_u32 s75, s75, s{sJ}')
    A(f's_lshl_b32 s{sDB}, s75, 2')
    A(f's_add_u32 s{sDB}, s{sDB}, s{sW}')
    A(f's_lshl_b32 s{sDB}, s{sDB}, 12')
    A(f's_add_u32 s{sDB}, s{sDB}, {WS_DBG:#x}')
    A(f's_lshl_b32 s{sKXm}, s{sW}, 11')
    A(f's_lshl_b32 s{sQXo}, s{sA}, 11')
    A(f's_and_b32 s3, s{sW}, 1')
    A(f's_lshl_b32 s3, s3, 10')
    A(f's_add_u32 s{sQXo}, s{sQXo}, s3')
    A(f's_add_u32 s{sQXo}, s{sQXo}, {WS_QX}')
    A(f's_add_u32 s{sQXm}, s3, {L_QX}')
    A(f's_mov_b32 s{sLrng}, {f2u(2.0**64) - f2u(2.0**-60):#x}')
    A(f's_add_u32 s3, s{sW}, 2')
    A(f's_mul_i32 s3, s3, 40960')
    A(f's_add_u32 s3, s3, {WS_XN}')
    A(f'buffer_load_dword v{vT0}, v{vWarm}, {WS}, s3 offen')
    A(f's_mov_b32 s{sWarm}, {WS_XN + 6*40960}')
    A('s_waitcnt vmcnt(0)')
    A('s_barrier')
    for sg in range(2):
        A(f's_mov_b32 s{sStep}, {sg}')
        emit(A, xring_list(sXw, 0))
        A(f's_mov_b32 s{sStep}, {sg+1}')
        emit(A, xn_addr_list())
        emit(A, xproj(0, 20))
        A.nop(8)
        lq, le = A.newlabel('xq'), A.newlabel('xe')
        A(f's_cmp_lt_u32 s{sW}, 2')
        A(f's_cbranch_scc1 {lq}')
        emit(A, xproj_store(' sc1', False))
        A(f's_branch {le}')
        A.label(lq)
        emit(A, xproj_store(' sc1', True))
        A.label(le)
        A.nop(2)
    A('s_barrier')
    emit(A, xn_dma_list())
    A('s_waitcnt vmcnt(0)')
    A('s_barrier')
    A(f's_getreg_b32 s74, hwreg(HW_REG_XCC_ID, 0, 4)')
    A(f's_lshl_b32 s3, s75, 2')
    A(f's_add_u32 s3, s3, {WS_TAB}')
    A(f'v_mov_b32 v{vT1}, s74')
    A(f'buffer_store_dword v{vT1}, v{vT2}, {WS}, s3 offen sc1')
    A(f's_lshl_b32 s3, s{sG}, 7')
    A(f's_add_u32 s3, s3, {WS_TAB}')
    A.label('tab_poll')
    A(f'buffer_load_dword v{vT0}, v{vT3}, {WS}, s3 offen sc1')
    A('s_waitcnt vmcnt(0)')
    A(f'v_cmp_eq_u32 vcc, -1, v{vT0}')
    A('s_cbranch_vccz tab_ok')
    A(f's_sub_u32 s{sTO}, s{sTO}, 1')
    A('s_cbranch_scc0 tab_poll')
    A(f's_mov_b32 s{sT0}, 5')
    A('s_branch chain_abort')
    A.label('tab_ok')
    A(f'v_cmp_ne_u32 s[68:69], v{vT1}, v{vT0}')
    A(f's_mov_b32 s{sStep}, 1')
    emit(A, xn_addr_list())
    A(f's_mov_b32 s{sStep}, 0')
    emit(A, xring_list(sXw, 2))
    emit(A, xr_list(0))
    emit(A, kx_list()); emit(A, vx_list())
    sk = A.newlabel('noq0')
    A(f's_cmp_lt_u32 s{sW}, 2')
    A(f's_cbranch_scc1 {sk}')
    emit(A, qx_list())
    A.label(sk)
    emit(A, xr_list(1))
    emit(A, slot_list(0))
    for k in range(5): A(f's_mov_b32 s{sCnt+k}, 0')
    for mode in ('f', 's'):
        if mode == 'f':
            A('s_cmp_lg_u64 s[68:69], 0')
            A('s_cbranch_scc1 disp_s')
        else:
            A.label('disp_s')
        A(f's_cmp_lt_u32 s{sW}, 2')
        A(f's_cbranch_scc1 j_{mode}A')
        A(f's_cmp_eq_u32 s{sW}, 3')
        A(f's_cbranch_scc1 j_{mode}D')
        A(f's_cmp_eq_u32 s{sNH}, 3')
        A(f's_cbranch_scc1 j_{mode}B')
        A(f's_branch entry_{mode}C')
        for r in 'ABD':
            A.label(f'j_{mode}{r}')
            A(f's_branch entry_{mode}{r}')
    for mode, fl in (('f', ''), ('s', ' sc1')):
        for role in 'ABCD':
            gen_loop(A, mode + role, fl, role, stamps, P)
    A.label('chain_abort')
    srd(A, sWT, 24, 256)
    A(f'v_mov_b32 v{vT0}, s{sT0}')
    A(f'v_mov_b32 v{vT1}, 0')
    A(f'buffer_store_dword v{vT0}, v{vT1}, {wt}, 0 offen')
    A.label('chain_end')
    A('s_endpgm')
    import k_bulk
    k_bulk.gen_bulk(A)
    return kernel_desc(name, 512, 256, 102)
```

```python
from g import *
from layout import *

def xsum_g(A, x, t):
    A(f'v_mov_b32 v{t}, v{x}')
    A.nop(2)
    A(f'v_permlane16_swap_b32 v{t}, v{x}')
    A.nop(1)
    A(f'v_add_f32 v{x}, v{x}, v{t}')
    A(f'v_mov_b32 v{t}, v{x}')
    A.nop(2)
    A(f'v_permlane32_swap_b32 v{t}, v{x}')
    A.nop(1)
    A(f'v_add_f32 v{x}, v{x}, v{t}')

def rbf(A, x):
    A(f'v_cvt_pk_bf16_f32 v{x}, v{x}, v{x}')
    A(f'v_and_b32 v{x}, 0xffff0000, v{x}')

def gen_init(A, name='init_kernel'):
    kernel_begin(A, name)
    A('s_cmp_ge_u32 s2, 256')
    A('s_cbranch_scc1 init_end')
    A('s_load_dwordx4 s[4:7], s[0:1], 0')
    A('s_load_dwordx2 s[8:9], s[0:1], 104')
    A('v_and_b32 v1, 63, v0')
    A('v_lshrrev_b32 v2, 6, v0')
    A('v_and_b32 v3, 15, v0')
    A('v_bfe_u32 v4, v0, 4, 2')
    A('s_waitcnt lgkmcnt(0)')
    srd(A, 12, 4, S_TOK * DM * 2)
    srd(A, 16, 6, NM * DM * 2)
    srd(A, 20, 8, WS_SIZE)
    A('s_cmp_ge_u32 s2, 128')
    A('s_cbranch_scc1 init_fill')
    A('s_lshl_b32 s3, s2, 4')
    A('v_add_u32 v5, s3, v3')
    A('v_mul_u32_u24 v5, 1280, v5')
    A('v_mul_u32_u24 v6, 320, v2')
    A('v_add_u32 v5, v5, v6')
    A('v_lshlrev_b32 v6, 4, v4')
    A('v_add_u32 v5, v5, v6')
    for t in range(5):
        A(f'buffer_load_dwordx4 v[{8+4*t}:{11+4*t}], v5, s[12:15], 0 offen offset:{64*t}')
    A('s_mul_i32 s3, s2, 20480')
    A('v_mul_u32_u24 v6, 5120, v2')
    A('v_lshlrev_b32 v7, 4, v1')
    A('v_add3_u32 v6, v6, v7, s3')
    A('v_lshlrev_b32 v28, 6, v2')
    A('v_lshl_add_u32 v28, v3, 2, v28')
    A('v_lshlrev_b32 v29, 2, v3')
    A('s_waitcnt vmcnt(0)')
    F = 32
    for k in range(20):
        A(f'v_lshlrev_b32 v{F+2*k}, 16, v{8+k}')
        A(f'v_and_b32 v{F+2*k+1}, 0xffff0000, v{8+k}')
    A(f'v_add_f32 v30, v{F}, v{F+1}')
    for k in range(2, 40):
        A(f'v_add_f32 v30, v30, v{F+k}')
    xsum_g(A, 30, 31)
    A('ds_write_b32 v28, v30')
    A('s_waitcnt lgkmcnt(0)')
    A('s_barrier')
    for k in range(4):
        A(f'ds_read_b32 v{72+k}, v29 offset:{64*k}')
    A('s_waitcnt lgkmcnt(0)')
    A('v_add_f32 v72, v72, v73')
    A('v_add_f32 v74, v74, v75')
    A('v_add_f32 v72, v72, v74')
    A(f'v_mul_f32 v72, {1.0/640!r}, v72')
    A(f'v_sub_f32 v31, v{F}, v72')
    A('v_mul_f32 v30, v31, v31')
    for k in range(1, 40):
        A(f'v_sub_f32 v31, v{F+k}, v72')
        A('v_fmac_f32 v30, v31, v31')
    xsum_g(A, 30, 31)
    A('ds_write_b32 v28, v30 offset:256')
    A('s_waitcnt lgkmcnt(0)')
    A('s_barrier')
    for k in range(4):
        A(f'ds_read_b32 v{76+k}, v29 offset:{256+64*k}')
    A('s_waitcnt lgkmcnt(0)')
    A('v_add_f32 v76, v76, v77')
    A('v_add_f32 v78, v78, v79')
    A('v_add_f32 v76, v76, v78')
    A(f'v_mul_f32 v76, {1.0/640!r}, v76')
    rbf(A, 76)
    A('v_add_f32 v76, 0x3727c5ac, v76')
    rbf(A, 76)
    A('v_sqrt_f32 v76, v76')
    A.nop(1)
    rbf(A, 76)
    A('v_rcp_f32 v76, v76')
    rbf(A, 72)
    for k in range(20):
        A(f'v_sub_f32 v{F+2*k}, v{F+2*k}, v72')
        A(f'v_sub_f32 v{F+2*k+1}, v{F+2*k+1}, v72')
        A(f'v_cvt_pk_bf16_f32 v31, v{F+2*k}, v{F+2*k+1}')
        A(f'v_lshlrev_b32 v30, 16, v31')
        A(f'v_and_b32 v31, 0xffff0000, v31')
        A(f'v_mul_f32 v30, v30, v76')
        A(f'v_mul_f32 v31, v31, v76')
        A(f'v_cvt_pk_bf16_f32 v{8+k}, v30, v31')
    for t in range(5):
        A(f'buffer_store_dwordx4 v[{8+4*t}:{11+4*t}], v6, s[20:23], 0 offen offset:{1024*t}' if t < 4 else
          f'v_add_u32 v6, 4096, v6\nbuffer_store_dwordx4 v[{8+4*t}:{11+4*t}], v6, s[20:23], 0 offen')
    A('s_endpgm')
    A.label('init_fill')
    A('s_sub_u32 s3, s2, 128')
    nbytes = WS_FILL_END - WS_FILL_BEG
    per = -(-nbytes // (128 * 4096))
    A('v_mov_b32 v8, -1\nv_mov_b32 v9, -1\nv_mov_b32 v10, -1\nv_mov_b32 v11, -1')
    A(f's_mul_i32 s24, s3, {per*4096}')
    A(f's_add_u32 s24, s24, {WS_FILL_BEG}')
    A('v_lshlrev_b32 v5, 4, v0')
    A('v_add_u32 v5, s24, v5')
    A(f's_mov_b32 s22, {WS_FILL_END:#x}')
    for r in range(per):
        A('buffer_store_dwordx4 v[8:11], v5, s[20:23], 0 offen')
        A('v_add_u32 v5, 4096, v5')
    A('s_cmp_ge_u32 s3, 4')
    A('s_cbranch_scc1 init_end')
    A(f's_mul_i32 s24, s3, {X3_G}')
    A(f's_add_u32 s24, s24, {WS_X3}')
    for r in range(3):
        A(f'v_add_u32 v12, {256*r}, v0')
        A('v_and_b32 v13, 7, v12')
        A('v_mul_u32_u24 v13, 1280, v13')
        A('v_lshrrev_b32 v14, 3, v12')
        A('v_lshl_add_u32 v13, v14, 4, v13')
        A('v_lshlrev_b32 v14, 4, v12')
        A('v_add_u32 v14, s24, v14')
        if r == 2:
            A('v_cmp_gt_u32 vcc, 640, v12')
            A(f'v_mov_b32 v15, {OOB:#x}')
            A.nop(1)
            A('v_cndmask_b32 v13, v15, v13, vcc')
            A('v_cndmask_b32 v14, v15, v14, vcc')
        A('buffer_load_dwordx4 v[16:19], v13, s[16:19], 0 offen')
        A('s_waitcnt vmcnt(0)')
        for k in range(4):
            A(f'v_min_u32 v{16+k}, -2, v{16+k}')
        A('buffer_store_dwordx4 v[16:19], v14, s[20:23], 0 offen')
        A.nop(2)
    A.label('init_end')
    A('s_endpgm')
    return kernel_desc(name, 80, 80, 32)
```

```python
S_TOK, DM, NH, DH, NM, SEG, NSEG, FF = 2048, 640, 32, 128, 8, 32, 64, 1728
WS_SIZE = 0x10000000
WS_XN   = 0x0
RING    = 4
WS_X3   = 0x300000
X3_G    = 10240
X3_SLOT = 4 * X3_G
WS_X1   = WS_X3 + RING * X3_SLOT
X1_H    = 6144
X1_SLOT = 32 * X1_H
WS_TAB  = WS_X1 + RING * X1_SLOT
WS_FLAG = WS_TAB + 0x1000
WS_GFLAG = WS_FLAG + 0x400
WS_PROG = WS_FLAG + 0x1000
WS_X2   = WS_FLAG + 64 * 512
X2_SLOT = 80 * 32 * 128
X2_LOC  = X2_SLOT
X2_STEP = 2 * X2_SLOT
WS_FILL_END = WS_X2 + 2 * X2_STEP
WS_FILL_BEG = WS_X3 + X3_SLOT
XRING   = 4
WS_QX   = 0x3000000
XSEG    = 32 * 8192
WS_KX   = WS_QX + XRING * XSEG
WS_VX   = WS_KX + XRING * XSEG
WS_OF   = WS_VX + XRING * XSEG
WS_HF   = WS_OF + 128 * 128 * 1024
WS_G    = WS_HF + 128 * 54 * 1024
WS_DBG  = 0xF000000
OOB     = 0x40000000
assert WS_X2 + 67 * X2_STEP < WS_QX
```

```python
import sys, json
from g import *
from layout import *
import k_init
import k_chain4 as k_chain
NAME = 'recurrent_scan__memory_aug_recurrent_mem_tr__glu_gated_swiglu__prompt'
def build(stamps=0, P=None):
    hdr = open(f'cdna_kernels/{NAME}.s.ref').read().split('\n')
    hdr = [l for l in hdr if l.startswith(';') and '@launch' not in l and 'Override' not in l and 'grid=ceil' not in l]
    launches = ['; @launch kernel=init_kernel grid=(256,1,1) block=(256,1,1) lds=1024',
                f'; @launch kernel=chain_kernel grid=(256,1,1) block=(256,1,1) lds={k_chain.LDS_BYTES}']
    A = Asm()
    A.raw('.amdgcn_target "amdgcn-amd-amdhsa--gfx950"')
    A.raw('.text')
    descs = []
    descs.append(k_init.gen_init(A))
    descs.append(k_chain.gen_chain(A, stamps=stamps, P=P))
    return '\n'.join(hdr + launches) + '\n' + A.text() + '.section .rodata,"a"\n' + ''.join(descs)
if __name__ == '__main__':
    out = sys.argv[1]
    stamps = int(sys.argv[2]) if len(sys.argv) > 2 else 0
    P = json.loads(sys.argv[3]) if len(sys.argv) > 3 else None
    open(out, 'w').write(build(stamps=stamps, P=P))
```

```python
from g import *
from layout import *
import struct, math
def f2u(x): return struct.unpack('<I', struct.pack('<f', x))[0]
QSCALE = (128 ** -0.5) * math.log2(math.e)
def M32(d, a_, b_, c_): return f'v_mfma_f32_16x16x32_bf16 {d}, {a_}, {b_}, {c_}'
def M16(d, a_, b_, c_): return f'v_mfma_f32_16x16x16_bf16 {d}, {a_}, {b_}, {c_}'
def check_sent(regs, t):
    regs = list(regs); o = []
    if len(regs) == 2:
        o.append(f'v_max_u32 v{t}, v{regs[0]}, v{regs[1]}')
    else:
        o.append(f'v_max3_u32 v{t}, v{regs[0]}, v{regs[1]}, v{regs[2]}')
        rest = regs[3:]
        while rest:
            if len(rest) >= 2:
                o.append(f'v_max3_u32 v{t}, v{t}, v{rest[0]}, v{rest[1]}'); rest = rest[2:]
            else:
                o.append(f'v_max_u32 v{t}, v{t}, v{rest[0]}'); rest = rest[1:]
    o.append(f'v_cmp_eq_u32 vcc, -1, v{t}')
    return o
def emit(A, lst):
    for l in lst:
        if l.endswith(':'): A.label(l[:-1])
        else: A(l)
def nvm(lst):
    n = 0
    for l in lst:
        if isinstance(l, tuple): l = l[1]
        if l.startswith('buffer_'): n += 1
    return n
def weave(prim, fill, per=2):
    out = []; fill = list(fill); n = 0
    for p in prim:
        out.append(p)
        if p.startswith('v_mfma'):
            n += 1; k = 0
            while fill and k < per:
                f = fill[0]
                if isinstance(f, tuple):
                    if f[0] > n: break
                    f = f[1]
                out.append(f); fill.pop(0)
                k += 0.67 if f.startswith('s_') else 1
    for f in fill:
        out.append(f[1] if isinstance(f, tuple) else f)
    return out
def wait_start(A, dsrd, vt, sdst, sto, okl, abort, sleep=2):
    top = A.newlabel('ws')
    A.label(top)
    A(f'v_mov_b32 v{vt}, 0')
    A(f'buffer_load_dword v{vt}, v{vt}, {dsrd}, 0 offen offset:{DBG_GO} sc1')
    A('s_waitcnt vmcnt(0)')
    A(f'v_readfirstlane_b32 s{sdst}, v{vt}')
    A(f's_cmp_lt_i32 s{sdst}, 0')
    A(f's_cbranch_scc1 {okl}')
    A(f's_sleep {sleep}')
    A(f's_sub_u32 s{sto}, s{sto}, 1')
    A(f's_cbranch_scc0 {top}')
    A(f's_branch {abort}')
    A.label(okl)
def x2_table(A, X, L, dst, smask, sws_lo, t):
    X.set(t, (L*21846) >> 16)
    A(f'v_lshrrev_b32 v{dst}, v{t}, s{smask}' if False else f'v_mov_b32 v{dst}, s{smask}')
    A(f'v_lshrrev_b32 v{dst}, v{t}, v{dst}')
    X.set(dst, (X.reg(t) << 21) + (L - X.reg(t)*3)*655360 + ((X.reg(dst) & 1) << 13))
    A(f's_sub_u32 s3, 0, s{sws_lo}')
    A('s_and_b32 s3, s3, 0x1fffff')
    A(f's_add_u32 s3, s3, {WS_X2}')
    A(f'v_add_u32 v{dst}, s3, v{dst}')

N_ARRIVE = 64 + 22
def arrive(A, dsrd, vt, vz, stmp, done):
    A(f'v_mov_b32 v{vt}, 1')
    A(f'buffer_atomic_add v{vt}, v{vz}, {dsrd}, 0 offen offset:{DBG_CNT} sc0')
    A('s_waitcnt vmcnt(0)')
    A(f'v_readfirstlane_b32 s{stmp}, v{vt}')
    A(f's_cmp_lg_u32 s{stmp}, {N_ARRIVE-1}')
    A(f's_cbranch_scc1 {done}')
    A(f'v_mov_b32 v{vt}, 0')
    A(f'buffer_atomic_or v{vt}, v{vz}, {dsrd}, 0 offen offset:{DBG_MASK} sc0')
    A('s_waitcnt vmcnt(0)')
    A(f'v_or_b32 v{vt}, 0x80000000, v{vt}')
    A(f'buffer_store_dword v{vt}, v{vz}, {dsrd}, 0 offen offset:{DBG_GO} sc1')

def arrive_s(A, sbase, stmp, done):
    A(f's_mov_b32 s{stmp}, 1')
    A(f's_atomic_add s{stmp}, s[{sbase}:{sbase+1}], {DBG_CNT} glc')
    A('s_waitcnt lgkmcnt(0)')
    A(f's_cmp_lg_u32 s{stmp}, {N_ARRIVE-1}')
    A(f's_cbranch_scc1 {done}')
    A(f's_mov_b32 s{stmp}, 0')
    A(f's_atomic_or s{stmp}, s[{sbase}:{sbase+1}], {DBG_MASK} glc')
    A('s_waitcnt lgkmcnt(0)')
    A(f's_or_b32 s{stmp}, s{stmp}, 0x80000000')
    A(f's_atomic_or s{stmp}, s[{sbase}:{sbase+1}], {DBG_GO}')
    A('s_waitcnt lgkmcnt(0)')
```

```python
from k7_common import *
LOG2E = math.log2(math.e)
sWS, sR1, sR2, sR3, sR4 = 4, 8, 12, 16, 20
sM = 92
sC2 = 24
sW, sB, sN, sO1, sO2, sLB, sT0, sT1, sTO, sTile, sNG, sRB, sZs, sQ = 30, 31, 32, 33, 34, 35, 36, 37, 38, 39, 40, 41, 42, 43
WS = f's[{sWS}:{sWS+3}]'
R1, R2, R3, R4 = [f's[{r}:{r+3}]' for r in (sR1, sR2, sR3, sR4)]
vL16, vD1, vD2, vD3, vR1, vT0, vT1, vT2, vT3 = 1, 2, 3, 4, 5, 6, 7, 8, 9
vGo, vXo, vRw, vRr, vFl, vZt, vZf = 10, 11, 12, 13, 14, 15, 16
vZu = 17
vH = 24
vA1 = 32
vWF = 64
vY = 84
vR1b = 100
vR2n = 112
vOF = 112
F = 244

def rbf2(A, x, y, t):
    A(f'v_cvt_pk_bf16_f32 v{t}, v{x}, v{y}')
    A(f'v_lshlrev_b32 v{x}, 16, v{t}')
    A(f'v_and_b32 v{y}, 0xffff0000, v{t}')
def rbf(A, x):
    A(f'v_cvt_pk_bf16_f32 v{x}, v{x}, v{x}')
    A(f'v_and_b32 v{x}, 0xffff0000, v{x}')
def silu(A, x, t):
    A(f'v_mul_f32 v{t}, {f2u(-LOG2E):#x}, v{x}')
    A(f'v_exp_f32 v{t}, v{t}')
    A('s_nop 0')
    A(f'v_add_f32 v{t}, 1.0, v{t}')
    A(f'v_rcp_f32 v{t}, v{t}')
    A('s_nop 0')
    A(f'v_mul_f32 v{x}, v{x}, v{t}')
def xsum_g(A, x, t):
    for sw in ('16', '32'):
        A(f'v_mov_b32 v{t}, v{x}')
        A.nop(2)
        A(f'v_permlane{sw}_swap_b32 v{t}, v{x}')
        A.nop(1)
        A(f'v_add_f32 v{x}, v{x}, v{t}')
def spin_flags(A, lab, ok, off, sleep):
    A.label(lab)
    A(f's_mov_b32 s{sT0}, {off}')
    A(f'buffer_load_dwordx2 v[{vT0}:{vT1}], v{vFl}, {WS}, s{sT0} offen sc1')
    A('s_waitcnt vmcnt(0)')
    emit(A, check_sent([vT0, vT1], vT0))
    A(f's_cbranch_vccz {ok}')
    A(f's_sleep {sleep}')
    A(f's_sub_u32 s{sTO}, s{sTO}, 1')
    A(f's_cbranch_scc0 {lab}')
    A('s_branch bulk_abort')

def gen_bulk(A, stamps, P):
    nst = [0]
    def st():
        if stamps:
            A(f's_memrealtime s[{70+2*nst[0]}:{71+2*nst[0]}]'); A('s_waitcnt lgkmcnt(0)'); nst[0] += 1
    A.label('bulk_entry')
    st()
    A('s_load_dwordx4 s[44:47], s[0:1], 64')
    A('s_load_dwordx4 s[48:51], s[0:1], 80')
    A('s_load_dwordx4 s[52:55], s[0:1], 96')
    A('s_load_dwordx2 s[56:57], s[0:1], 40')
    A('s_load_dwordx4 s[60:63], s[0:1], 0')
    A('s_load_dwordx4 s[88:91], s[0:1], 16')
    A('s_load_dwordx2 s[58:59], s[0:1], 32')
    X = VX(A, 200, F, 3)
    A(f'v_lshrrev_b32 v{F+3}, 6, v0')
    A(f'v_and_b32 v{F}, 63, v0')
    A(f'v_readfirstlane_b32 s{sW}, v{F+3}')
    A(f'v_bfe_u32 v{F+1}, v0, 4, 2')
    A(f'v_and_b32 v{F+2}, 15, v0')
    A(f's_lshr_b32 s{sB}, s2, 3')
    A(f's_lshl_b32 s{sB}, s{sB}, 2')
    A(f's_and_b32 s{sQ}, s2, 3')
    A(f's_add_u32 s{sB}, s{sB}, s{sQ}')
    A(f'v_mov_b32 v{F+4}, s{sB}')
    A(f's_lshl_b32 s{sM}, s{sQ}, 5')
    A(f's_lshr_b32 s3, s{sB}, 2')
    A(f's_add_u32 s{sM}, s{sM}, s3')
    A(f'v_mov_b32 v{F+5}, s{sM}')
    L, g, c, w, b, m_ = [X.reg(F+i) for i in range(6)]
    tid = X.reg(0)
    A(f's_mov_b32 s{sTO}, 0x400000')
    X.set(vL16, L*16)
    L16 = X.reg(vL16)
    X.set(vT0, (b*16 + c)*1280 + w*320 + g*16)
    A('s_waitcnt lgkmcnt(0)')
    srd(A, sWS, 54, WS_SIZE)
    srd(A, sR1, 60, S_TOK*DM*2)
    srd(A, sR3, 62, NM*DM*2)
    srd(A, sR4, 52, 256)
    XR, FL = 32, 64
    for t in range(5):
        A(f'buffer_load_dwordx4 v[{XR+4*t}:{XR+4*t+3}], v{vT0}, {R1}, 0 offen offset:{64*t}')
    X.set(vD1, (L >> 3)*8192 + ((((L >> 1) & 3) ^ (((L >> 4) & 1) | ((w & 1) << 1)))*2 + (L & 1))*16 + (m_ >> 2)*256 + (m_ & 2)*64)
    def stage(ptr, base):
        srd(A, sR2, ptr, DM*4096*2)
        A(f's_lshl_b32 s{sT0}, s{sW}, 10')
        A(f's_add_u32 s{sT0}, s{sT0}, {base}')
        A(f's_lshl_b32 s{sT1}, s{sW}, 16')
        for i in range(20):
            A(f's_mov_b32 m0, s{sT0}')
            A(f's_add_u32 s{sT0}, s{sT0}, 4096')
            A(f'buffer_load_dwordx4 v{vD1}, {R2}, s{sT1} offen lds')
            A(f's_add_u32 s{sT1}, s{sT1}, {4*65536}')
    nbytes = WS_FILL_END - WS_FILL_BEG
    per = -(-nbytes // (128 * 4096))
    for q in range(4): A(f'v_mov_b32 v{vH+q}, -1')
    for r in range(per):
        o = b*(per*4096) + tid*16 + (WS_FILL_BEG + r*4096)
        X.set(vT1, X.sel(('lt', o, WS_FILL_END), o, OOB))
        A(f'buffer_store_dwordx4 v[{vH}:{vH+3}], v{vT1}, {WS}, 0 offen sc1')
    A('s_sub_u32 s26, 0, s54')
    A('s_and_b32 s26, s26, 0x1fffff')
    A(f's_add_u32 s26, s26, {WS_X2}')
    X.set(vT1, X.sel(('lt', b, 120), b*16384 + tid*16, OOB))
    for r in range(4):
        A(f'buffer_store_dwordx4 v[{vH}:{vH+3}], v{vT1}, {WS}, s26 offen sc1')
        A('s_add_u32 s26, s26, 4096')
    X.set(vT1, b*20480 + w*5120 + L16 + WS_XN)
    X.set(vRw, w*64 + c*4)
    X.set(vRr, c*4)
    A(f's_waitcnt vmcnt({per + 4})')
    for k in range(20):
        A(f'v_lshlrev_b32 v{FL+2*k}, 16, v{XR+k}')
        A(f'v_and_b32 v{FL+2*k+1}, 0xffff0000, v{XR+k}')
    A(f'v_add_f32 v{vT2}, v{FL}, v{FL+1}')
    for k in range(2, 40): A(f'v_add_f32 v{vT2}, v{vT2}, v{FL+k}')
    def wg_sum(dst, off):
        xsum_g(A, vT2, vT3)
        A(f'ds_write_b32 v{vRw}, v{vT2} offset:{off}')
        A('s_waitcnt lgkmcnt(0)')
        A('s_barrier')
        for k in range(4): A(f'ds_read_b32 v{dst+k}, v{vRr} offset:{off+64*k}')
        A('s_waitcnt lgkmcnt(0)')
        A(f'v_add_f32 v{dst}, v{dst}, v{dst+1}')
        A(f'v_add_f32 v{dst+2}, v{dst+2}, v{dst+3}')
        A(f'v_add_f32 v{dst}, v{dst}, v{dst+2}')
        A(f'v_mul_f32 v{dst}, {f2u(1.0/640):#x}, v{dst}')
    MN, VR = 104, 108
    wg_sum(MN, 0)
    A(f'v_sub_f32 v{vT3}, v{FL}, v{MN}')
    A(f'v_mul_f32 v{vT2}, v{vT3}, v{vT3}')
    for k in range(1, 40):
        A(f'v_sub_f32 v{vT3}, v{FL+k}, v{MN}')
        A(f'v_fmac_f32 v{vT2}, v{vT3}, v{vT3}')
    wg_sum(VR, 256)
    rbf(A, VR)
    A(f'v_add_f32 v{VR}, 0x3727c5ac, v{VR}')
    rbf(A, VR)
    A(f'v_sqrt_f32 v{VR}, v{VR}')
    A.nop(1)
    rbf(A, VR)
    A(f'v_rcp_f32 v{VR}, v{VR}')
    rbf(A, MN)
    for k in range(20):
        A(f'v_sub_f32 v{FL+2*k}, v{FL+2*k}, v{MN}')
        A(f'v_sub_f32 v{FL+2*k+1}, v{FL+2*k+1}, v{MN}')
        rbf2(A, FL+2*k, FL+2*k+1, vT3)
        A(f'v_mul_f32 v{FL+2*k}, v{FL+2*k}, v{VR}')
        A(f'v_mul_f32 v{FL+2*k+1}, v{FL+2*k+1}, v{VR}')
        A(f'v_cvt_pk_bf16_f32 v{XR+k}, v{FL+2*k}, v{FL+2*k+1}')
    for t in range(5):
        if t == 4: A(f'v_add_u32 v{vT1}, 4096, v{vT1}')
        A(f'buffer_store_dwordx4 v[{XR+4*t}:{XR+4*t+3}], v{vT1}, {WS}, 0 offen offset:{1024*(t%4)} sc1')
    A(f's_cmp_lt_u32 s{sB}, 124')
    A('s_cbranch_scc1 b_nomem')
    for r in range(3):
        idn = tid + 256*r
        ok = ('lt', idn, 640)
        X.set(vT2, X.sel(ok, (idn & 7)*1280 + (idn >> 3)*16, OOB))
        idn = tid + 256*r
        X.set(vT3, X.sel(('lt', idn, 640), idn*16 + (b & 3)*X3_G + WS_X3, OOB))
        A(f'buffer_load_dwordx4 v[{vWF}:{vWF+3}], v{vT2}, {R3}, 0 offen')
        A('s_waitcnt vmcnt(0)')
        for k in range(4): A(f'v_min_u32 v{vWF+k}, -2, v{vWF+k}')
        A(f'buffer_store_dwordx4 v[{vWF}:{vWF+3}], v{vT3}, {WS}, 0 offen sc1')
        A.nop(2)
    A.label('b_nomem')
    X.set(vZf, X.sel(('eq', tid, 0), 0, OOB))
    X.set(vFl, L*8)
    stage(58, 81920)
    for m, ptr in enumerate((88, 90)):
        srd(A, sR2, ptr, DM*4096*2)
        for i in range(3):
            X.set(vT1, X.sel(('lt', tid + 256*i, 640), (tid + 256*i)*8192 + (m_ >> 2)*256 + (m_ & 2)*64, OOB))
            A(f'buffer_load_dword v{112+3*m+i}, v{vT1}, {R2}, 0 offen')
    A('s_waitcnt vmcnt(26)')
    A('s_barrier')
    A(f's_cmp_lg_u32 s{sW}, 0')
    A('s_cbranch_scc1 b_arrived')
    arrive_s(A, 52, 26, 'b_arrived')
    A.label('b_arrived')
    trb = lambda le: (g*8 + ((L >> 2) & 3))*128 + (le ^ (((L >> 3) & 1) | ((g & 1) << 1)))*32 + (L & 3)*8
    def trload(abase, R0):
        A(f'v_add_u32 v{vT3}, 0x10000, v{R0}')
        for t in range(20):
            r, o = (R0, 4096*t) if t < 16 else (vT3, 4096*(t-16))
            A(f'ds_read_b64_tr_b16 a[{abase+4*t}:{abase+4*t+1}], v{r} offset:{o}')
            A(f'ds_read_b64_tr_b16 a[{abase+4*t+2}:{abase+4*t+3}], v{r} offset:{o+512}')
            if t % 4 == 3: A('s_waitcnt lgkmcnt(4)')
    X.set(vR1, trb(w) + 81920)
    A('s_waitcnt vmcnt(0)')
    A('s_barrier')
    trload(80, vR1)
    A('s_waitcnt lgkmcnt(0)')
    A('s_barrier')
    stage(88, 0)
    stage(90, 81920)
    X.set(vR1, trb(w & 1) + (w >> 1)*81920)
    X.set(vD3, trb((w & 1) + 2) + (w >> 1)*81920)
    A(f's_and_b32 s{sT0}, s{sB}, 15')
    A(f's_mul_i32 s{sT0}, s{sT0}, 5')
    A(f'v_mov_b32 v{vT0}, s{sT0}')
    for u in range(5):
        uu = X.reg(vT0) + u
        X.set(vZu+u, (uu >> 1)*16384 + (uu & 1)*4096 + tid*16)
    wait_start(A, R4, vT0, 26, sTO, 'b_start', 'bulk_abort', sleep=4)
    x2_table(A, X, L, vZt, 26, 54, vT1)
    A('s_barrier')
    trload(0, vR1)
    trload(160, vD3)
    A('s_waitcnt lgkmcnt(0)')
    st()
    A(f's_lshr_b32 s{sZs}, s{sB}, 4')
    def fill(nph, flag):
        for q in range(4): A(f'v_mov_b32 v{vH+q}, -1')
        for ph in range(nph):
            A(f'v_readlane_b32 s{sT0}, v{vZt}, s{sZs}')
            if flag == 0:
                A(f's_cmp_lt_u32 s{sZs}, 3')
                A(f's_cselect_b32 s{sT0}, {OOB:#x}, s{sT0}')
            A(f's_add_u32 s{sZs}, s{sZs}, 8')
            A.nop(4)
            for u in range(5):
                A(f'buffer_store_dwordx4 v[{vH}:{vH+3}], v{vZu+u}, {WS}, s{sT0} offen sc1')
        A('s_waitcnt vmcnt(0)')
        A('s_barrier')
        A(f's_lshl_b32 s{sT0}, s{sB}, 2')
        A(f's_add_u32 s{sT0}, s{sT0}, {WS_ZFLAG + 512*flag}')
        A(f'buffer_store_dword v{vZf}, v{vZf}, {WS}, s{sT0} offen sc1')
    A('s_barrier')
    A(f's_cmp_lt_u32 s{sW}, 2')
    A(f's_cselect_b32 s{sC2}, {f2u(QSCALE):#x}, 1.0')
    A(f's_mov_b32 s{sC2+1}, s{sC2}')
    tq = lambda: (m_ & 2) + (w & 1)
    X.set(vGo, X.sel(('lt', w, 2), (c >> 3)*2048 + tq()*512 + (g*8 + (c & 7))*16 + 16384, tq()*1024 + L16))
    X.set(vXo, ((m_ & 2)*2 + w)*1024 + L16 + 8192)
    X.set(vRr, X.sel(('eq', tid, 0), m_*4 + WS_QP, OOB))
    A(f's_and_b32 s3, s{sM}, 1')
    A(f's_mul_i32 s{sO1}, s3, 40960')
    A(f's_mul_i32 s{sLB}, s{sW}, 5120')
    A(f's_add_u32 s{sO1}, s{sO1}, s{sLB}')
    A(f's_mul_i32 s{sO2}, s3, {XSEG}')
    A(f's_lshr_b32 s3, s{sM}, 2')
    A(f's_mul_i32 s3, s3, {XH}')
    A(f's_add_u32 s{sO2}, s{sO2}, s3')
    A(f's_add_u32 s{sO2}, s{sO2}, {WS_KX}')
    A(f's_mov_b32 s{sN}, 0')
    RG, XA, PK, PV = 40, 72, 84, 88
    def x_dma(buf, adv):
        o = [f's_add_u32 m0, s{sLB}, {20480*buf}', f's_add_u32 s{sT0}, s{sO1}, 4096']
        o += [f'buffer_load_dwordx4 v{vL16}, {WS}, s{sO1} offen offset:{1024*k} sc1 lds' for k in range(4)]
        o += [f's_add_u32 m0, s{sLB}, {20480*buf + 4096}', f's_add_u32 s{sO1}, s{sO1}, {adv}',
              f'buffer_load_dwordx4 v{vL16}, {WS}, s{sT0} offen sc1 lds']
        return o
    def x_tile(tt, young):
        A(f's_waitcnt vmcnt({young})')
        A('s_barrier')
        fl = x_dma(1 - tt, 61440 if tt == 0 else 20480)
        if tt == 1:
            fl = [f'v_mov_b32 v{vT0}, s{sN}', f'buffer_store_dword v{vT0}, v{vRr}, {WS}, 0 offen sc1'] + fl
        o = []
        rd = lambda t: f'ds_read_b128 v[{RG+4*(t%8)}:{RG+4*(t%8)+3}], v{vL16} offset:{20480*tt + 1024*t}'
        for t in range(6): o.append(rd(t))
        for t in range(20):
            o.append(f's_waitcnt lgkmcnt({min(20, t + 6) - t - 1})')
            f = v(RG + 4*(t % 8), 4)
            o.append(M32(v(XA, 4), a(4*t, 4), f, '0' if t == 0 else v(XA, 4)))
            o.append(M32(v(XA+4, 4), a(160+4*t, 4), f, '0' if t == 0 else v(XA+4, 4)))
            o.append(M32(v(XA+8, 4), f, a(80+4*t, 4), '0' if t == 0 else v(XA+8, 4)))
            if t + 6 < 20: o.append(rd(t + 6))
        emit(A, weave(o, fl, per=1))
        if tt: A(f's_add_u32 s{sT1}, s{sO2}, 4096')
        A.nop(6)
        for r in range(0, 8, 2): A(f'v_pk_mul_f32 v[{XA+r}:{XA+r+1}], v[{XA+r}:{XA+r+1}], s[{sC2}:{sC2+1}]')
        for r in range(4): A(f'v_cvt_pk_bf16_f32 v{PK+r}, v{XA+2*r}, v{XA+2*r+1}')
        A(f'buffer_store_dwordx4 v[{PK}:{PK+3}], v{vGo}, {WS}, s{sT1 if tt else sO2} offen sc1')
        for r in range(2): A(f'v_cvt_pk_bf16_f32 v{PV+2*tt+r}, v{XA+8+2*r}, v{XA+8+2*r+1}')
        if tt:
            A(f'buffer_store_dwordx4 v[{PV}:{PV+3}], v{vXo}, {WS}, s{sO2} offen sc1')
            A(f's_add_u32 s{sO2}, s{sO2}, {2*XSEG}')
            A(f's_add_u32 s{sN}, s{sN}, 1')
    emit(A, x_dma(0, 20480))
    A('s_waitcnt vmcnt(0)')
    A.label('q_loop')
    x_tile(0, 2); x_tile(1, 1)
    A(f's_cmp_eq_u32 s{sN}, 1')
    A('s_cbranch_scc1 q_fill0')
    A(f's_cmp_eq_u32 s{sN}, 6')
    A('s_cbranch_scc1 q_fill')
    A(f's_cmp_eq_u32 s{sN}, 16')
    A('s_cbranch_scc1 q_fill2')
    A.label('q_back')
    A(f's_cmp_lt_u32 s{sN}, 32')
    A('s_cbranch_scc1 q_loop')
    A('s_branch q_done')
    A.label('q_fill0')
    A('s_waitcnt vmcnt(0)')
    A('s_barrier')
    A(f'v_mov_b32 v{vT0}, 1')
    A(f'buffer_store_dword v{vT0}, v{vRr}, {WS}, 0 offen sc1')
    fill(1, 0)
    A('s_branch q_back')
    A.label('q_fill')
    fill(2, 1)
    A('s_branch q_back')
    A.label('q_fill2')
    fill(5, 2)
    A('s_branch q_back')
    A.label('q_done')
    A('s_waitcnt vmcnt(0)')
    A('s_barrier')
    A(f'v_mov_b32 v{vT0}, 64')
    A(f'buffer_store_dword v{vT0}, v{vRr}, {WS}, 0 offen sc1')
    st()
    srd(A, sR1, 44, DM*FF*2)
    srd(A, sR2, 46, DM*FF*2)
    srd(A, sR3, 48, FF*DM*2)
    jj, qq = (lambda: b >> 2), (lambda: b & 3)
    X.set(vT2, X.sel(('lt', tid, 160), ((tid >> 3)*32 + jj())*3456 + ((tid & 7)*4 + qq())*128, OOB))
    A(f'buffer_load_dword v{vWF}, v{vT2}, {R1}, 0 offen')
    A(f'buffer_load_dword v{vWF+1}, v{vT2}, {R2}, 0 offen')
    X.set(vT3, (tid*6554) >> 16)
    rr = X.reg(vT3)
    X.set(vT2, X.sel(('lt', tid, 140), (((rr >> 1)*4 + qq())*64 + (rr & 1)*32 + jj())*1280 + (tid - rr*10)*128, OOB))
    A(f'buffer_load_dword v{vWF+2}, v{vT2}, {R3}, 0 offen')
    A(f's_and_b32 s{sTile}, s{sB}, 0x7c')
    A(f's_add_u32 s{sTile}, s{sTile}, s{sW}')
    A(f's_mul_i32 s{sT0}, s{sTile}, 20480')
    for t in range(20):
        if t and t % 4 == 0: A(f's_add_u32 s{sT0}, s{sT0}, 4096')
        A(f'buffer_load_dwordx4 a[{4*t}:{4*t+3}], v{vL16}, {WS}, s{sT0} offen offset:{1024*(t%4)} sc1')
    st()
    X.set(vD1, (w*8 + (L >> 3))*3456 + ((((L >> 1) & 3) ^ (((L >> 4) & 1) | ((w & 1) << 1)))*2 + (L & 1))*16)
    for i, dst in enumerate((vD2, vD3)):
        X.set(dst, (w*8 + (L >> 4) + 4*i)*1280 + ((((L >> 1) & 7) ^ ((L >> 4) + 4*i))*2 + (L & 1))*16)
    for tl in range(4):
        X.set(vR1b+tl, (g*8 + ((L >> 2) & 3))*128 + ((((L >> 3) & 1) | ((g & 1) << 1)) ^ tl)*32 + (L & 3)*8)
        X.set(vR1b+4+tl, X.reg(vR1b+tl) + 65536)
    for n in range(8):
        X.set(vR2n+n, (g*4 + ((L >> 2) & 3))*256 + ((((g & 1)*4 + ((L >> 2) & 3)) ^ n)*32) + (L & 3)*8)
        X.set(vR2n+8+n, X.reg(vR2n+n) + 65536)
    A(f'v_mov_b32 v{vT0}, 0')
    for r in range(160): A(f'v_accvgpr_write_b32 a{80+r}, v{vT0}')
    A(f's_cmp_lt_u32 s{sQ}, 3')
    A(f's_cselect_b32 s{sN}, 7, 6')
    A(f's_lshl_b32 s{sO1}, s{sQ}, 7')
    A(f's_mul_i32 s{sO2}, s{sQ}, {64*1280}')
    A(f's_lshl_b32 s{sLB}, s{sW}, 10')
    A(f's_lshl_b32 s{sRB}, s{sW}, 11')
    NS, NC = 15, 30
    def issue(ci, nxt):
        o = []; lb = (ci % NS) * 8192
        if ci < 20:
            for m, sr in enumerate((R1, R2)):
                o.append(f's_add_u32 m0, s{sLB}, {lb + m*4096}')
                o.append(f's_add_u32 s{sT0}, s{sO1}, {ci*32*3456 + nxt*512}')
                o.append(f'buffer_load_dwordx4 v{vD1}, {sr}, s{sT0} offen lds')
        else:
            hb, cc = (ci - 20) // 5, (ci - 20) % 5
            for i in range(2):
                o.append(f's_add_u32 m0, s{sRB}, {lb + i*1024}')
                o.append(f's_add_u32 s{sT0}, s{sO2}, {hb*32*1280 + cc*256}')
                o.append(f'buffer_load_dwordx4 v{vD2 if i == 0 else vD3}, {R3}, s{sT0} offen lds')
        return o
    A('s_waitcnt vmcnt(0)')
    for ci in range(NS - 1): emit(A, issue(ci, 0))
    A.label('ffn_loop')
    for ci in range(NC):
        A(f's_waitcnt vmcnt({2*(NS-2)})')
        A('s_barrier')
        lb = (ci % NS) * 8192
        hi = 1 if lb >= 65536 else 0
        lb -= hi*65536
        nx = issue((ci + NS - 1) % NC, 1 if ci + NS - 1 >= NC else 0)
        mf = []
        if ci < 20:
            for n in range(8):
                m, tl = n >> 2, n & 3
                r = vWF + 4*n
                A(f'ds_read_b64_tr_b16 v[{r}:{r+1}], v{vR1b+4*hi+tl} offset:{lb + m*4096}')
                A(f'ds_read_b64_tr_b16 v[{r+2}:{r+3}], v{vR1b+4*hi+tl} offset:{lb + m*4096 + 512}')
            for n in range(8):
                mf.append(f's_waitcnt lgkmcnt({2*(7-n)})')
                mf.append(M32(v(vA1+4*n, 4), v(vWF+4*n, 4), a(4*ci, 4), '0' if ci == 0 else v(vA1+4*n, 4)))
        else:
            hb, cc = (ci - 20) // 5, (ci - 20) % 5
            for n in range(8):
                r = vWF + 4*n
                A(f'ds_read_b64_tr_b16 v[{r}:{r+1}], v{vR2n+8*hi+n} offset:{lb}')
                A(f'ds_read_b64_tr_b16 v[{r+2}:{r+3}], v{vR2n+8*hi+n} offset:{lb + 4096}')
            if ci == 20:
                for tl in range(4):
                    for r in (0, 2):
                        gx, ux = vA1 + 4*tl + r, vA1 + 16 + 4*tl + r
                        rbf2(A, gx, gx+1, vT0); rbf2(A, ux, ux+1, vT0)
                        silu(A, gx, vT0); silu(A, gx+1, vT1)
                        rbf2(A, gx, gx+1, vT0)
                        A(f'v_mul_f32 v{gx}, v{gx}, v{ux}')
                        A(f'v_mul_f32 v{gx+1}, v{gx+1}, v{ux+1}')
                        A(f'v_cvt_pk_bf16_f32 v{vH+2*tl+r//2}, v{gx}, v{gx+1}')
                A('s_nop 0')
            for n in range(8):
                ct = cc*8 + n
                mf.append(f's_waitcnt lgkmcnt({2*(7-n)})')
                mf.append(M32(a(80+4*ct, 4), v(vWF+4*n, 4), v(vH+4*hb, 4), a(80+4*ct, 4)))
        emit(A, weave(mf, nx, per=1))
    A(f's_add_u32 s{sO1}, s{sO1}, 512')
    A(f's_add_u32 s{sO2}, s{sO2}, {256*1280}')
    A(f's_sub_u32 s{sN}, s{sN}, 1')
    A(f's_cmp_lg_u32 s{sN}, 0')
    A('s_cbranch_scc1 ffn_loop')
    A('s_waitcnt vmcnt(0)')
    A('s_barrier')
    st()
    A(f's_lshl_b32 s{sT0}, s{sQ}, 7')
    A(f's_add_u32 s{sT0}, s{sT0}, s{sTile}')
    A(f's_mul_i32 s{sT0}, s{sT0}, 40960')
    A(f's_add_u32 s{sT0}, s{sT0}, {WS_G}')
    for ct in range(40):
        if ct and ct % 4 == 0: A(f's_add_u32 s{sT0}, s{sT0}, 4096')
        A(f'buffer_store_dwordx4 a[{80+4*ct}:{80+4*ct+3}], v{vL16}, {WS}, s{sT0} offen offset:{1024*(ct%4)} sc1')
    A('s_waitcnt vmcnt(0)')
    A('s_barrier')
    A(f's_lshl_b32 s{sT0}, s{sB}, 2')
    A(f's_add_u32 s{sT0}, s{sT0}, {WS_GFLAG}')
    A(f'buffer_store_dword v{vZf}, v{vZf}, {WS}, s{sT0} offen sc1')
    A(f's_cmp_ge_u32 s{sB}, 120')
    A('s_cbranch_scc1 bulk_end')
    A(f's_mul_i32 s{sTile}, s{sB}, 3277')
    A(f's_lshr_b32 s{sTile}, s{sTile}, 16')
    A(f's_mul_i32 s3, s{sTile}, 20')
    A(f's_sub_u32 s{sNG}, s{sB}, s3')
    srd(A, sR1, 56, 4096*DM*2)
    srd(A, sR2, 60, S_TOK*DM*2)
    srd(A, sR3, 50, S_TOK*DM*2)
    X.set(vD1, (L >> 2)*1280 + (L & 3)*16)
    X.set(vR1, w*40960 + (g*4 + ((L >> 2) & 3))*64 + (L & 3)*8)
    A(f's_mul_i32 s{sO1}, s{sW}, {1024*1280}')
    A(f's_lshl_b32 s3, s{sNG}, 6')
    A(f's_add_u32 s{sO1}, s{sO1}, s3')
    A(f's_mul_i32 s{sLB}, s{sW}, 40960')
    for rnd in range(2):
        for i in range(32):
            A(f's_add_u32 m0, s{sLB}, {1024*i}')
            A(f's_add_u32 s{sT1}, s{sO1}, {(rnd*512 + i*16)*1280}')
            A(f'buffer_load_dwordx4 v{vD1}, {R1}, s{sT1} offen lds')
        A('s_waitcnt vmcnt(0)')
        for t in range(16):
            for tl in range(2):
                r = ((rnd*16 + t)*2 + tl)*4
                A(f'ds_read_b64_tr_b16 a[{r}:{r+1}], v{vR1} offset:{t*2048 + tl*32}')
                A(f'ds_read_b64_tr_b16 a[{r+2}:{r+3}], v{vR1} offset:{t*2048 + tl*32 + 1024}')
            if t % 2 == 1: A('s_waitcnt lgkmcnt(4)')
        A('s_waitcnt lgkmcnt(0)')
    X.set(vRw, w*2048 + L16)
    X.set(vRr, (w & 1)*1024 + L16)
    X.set(vD2, w*32768 + L16)
    X.set(vGo, (w & 1)*1024 + L16)
    X.set(vXo, c*1280 + (w & 1)*32 + g*8)
    if stamps: X.set(vD3, X.sel(('lt', tid, 8), tid*4, OOB))
    spin_flags(A, 'g_poll', 'g_ok', WS_GFLAG, 8)
    A.label('g_ok')
    A('s_barrier')
    st()
    A(f's_mov_b32 s{sRB}, 0')
    A.label('op_loop')
    A(f's_lshr_b32 s{sT0}, s{sTile}, 1')
    A(f's_cmp_ge_u32 s{sT0}, 62')
    A('s_cbranch_scc1 op_final')
    A(f's_lshl_b32 s{sT0}, s{sT0}, 7')
    A(f's_add_u32 s{sT0}, s{sT0}, {WS_PROG}')
    A(f'v_mov_b32 v{vT2}, 0')
    A.label('p_poll')
    A(f'buffer_load_dword v{vT0}, v{vT2}, {WS}, s{sT0} offen sc1')
    A('s_waitcnt vmcnt(0)')
    A(f'v_cmp_eq_u32 vcc, -1, v{vT0}')
    A('s_cbranch_vccz op_go')
    A('s_sleep 8')
    A(f's_sub_u32 s{sTO}, s{sTO}, 1')
    A('s_cbranch_scc0 p_poll')
    A('s_branch bulk_abort')
    spin_flags(A, 'op_final', 'op_go', WS_FLAG, 2)
    A.label('op_go')
    A(f's_lshl_b32 s{sT0}, s{sTile}, 17')
    A(f's_add_u32 s{sT0}, s{sT0}, {WS_OF}')
    for t in range(32):
        if t and t % 4 == 0: A(f's_add_u32 s{sT0}, s{sT0}, 4096')
        A(f'buffer_load_dwordx4 v[{vOF+4*t}:{vOF+4*t+3}], v{vD2}, {WS}, s{sT0} offen offset:{1024*(t%4)} sc1')
    A(f's_mul_i32 s{sT0}, s{sTile}, 20480')
    A(f's_lshl_b32 s{sT1}, s{sNG}, 10')
    A(f's_add_u32 s{sT1}, s{sT1}, s{sT0}')
    A(f's_lshl_b32 s{sT1}, s{sT1}, 1')
    A(f's_add_u32 s{sT1}, s{sT1}, {WS_G}')
    for q in range(4):
        A(f'buffer_load_dwordx4 v[{vY+4*q}:{vY+4*q+3}], v{vGo}, {WS}, s{sT1} offen sc1')
        if q < 3: A(f's_add_u32 s{sT1}, s{sT1}, {128*40960}')
    A(f's_lshl_b32 s{sT1}, s{sNG}, 6')
    A(f's_add_u32 s{sO2}, s{sT1}, s{sT0}')
    A(f'buffer_load_dwordx2 v[{vH+2}:{vH+3}], v{vXo}, {R2}, s{sO2} offen')
    for t in range(32):
        A(f's_waitcnt vmcnt({36-t})')
        for tl in range(2):
            A(M32(v(vA1+4*tl, 4), a((2*t+tl)*4, 4), v(vOF+4*t, 4), '0' if t == 0 else v(vA1+4*tl, 4)))
    A(f'v_add_u32 v{vT2}, s{sRB}, v{vRw}')
    A(f'v_add_u32 v{vT3}, s{sRB}, v{vRr}')
    A.nop(6)
    A(f'ds_write_b128 v{vT2}, v[{vA1}:{vA1+3}]')
    A(f'ds_write_b128 v{vT2}, v[{vA1+4}:{vA1+7}] offset:1024')
    A(f's_xor_b32 s{sRB}, s{sRB}, 8192')
    A('s_waitcnt lgkmcnt(0)')
    A('s_barrier')
    A(f's_cmp_ge_u32 s{sW}, 2')
    A('s_cbranch_scc1 op_next')
    for p in range(4): A(f'ds_read_b128 v[{vWF+4*p}:{vWF+4*p+3}], v{vT3} offset:{2048*p}')
    A('s_waitcnt vmcnt(0) lgkmcnt(0)')
    for r in range(4):
        for bs in (vWF, vY):
            A(f'v_add_f32 v{bs+r}, v{bs+r}, v{bs+4+r}')
            A(f'v_add_f32 v{bs+8+r}, v{bs+8+r}, v{bs+12+r}')
            A(f'v_add_f32 v{bs+r}, v{bs+r}, v{bs+8+r}')
    for r in (0, 2):
        s0, s1 = vWF+r, vWF+r+1
        rbf2(A, vY+r, vY+r+1, vT0)
        silu(A, vY+r, vT0); silu(A, vY+r+1, vT1)
        rbf2(A, vY+r, vY+r+1, vT0)
        rbf2(A, s0, s1, vT0)
        A(f'v_mul_f32 v{s0}, v{s0}, v{vY+r}')
        A(f'v_mul_f32 v{s1}, v{s1}, v{vY+r+1}')
        rbf2(A, s0, s1, vT0)
        A(f'v_lshlrev_b32 v{vT0}, 16, v{vH+2+r//2}')
        A(f'v_and_b32 v{vT1}, 0xffff0000, v{vH+2+r//2}')
        A(f'v_add_f32 v{s0}, v{s0}, v{vT0}')
        A(f'v_add_f32 v{s1}, v{s1}, v{vT1}')
        A(f'v_cvt_pk_bf16_f32 v{vWF+16+r//2}, v{s0}, v{s1}')
    A(f'buffer_store_dwordx2 v[{vWF+16}:{vWF+17}], v{vXo}, {R3}, s{sO2} offen')
    A.label('op_next')
    A(f's_add_u32 s{sTile}, s{sTile}, 6')
    A(f's_cmp_lt_u32 s{sTile}, 128')
    A('s_cbranch_scc1 op_loop')
    if stamps:
        A('s_waitcnt vmcnt(0)')
        st()
        for q in range(nst[0]): A(f'v_writelane_b32 v{vT0}, s{70+2*q}, {q}')
        A(f's_lshl_b32 s{sT0}, s{sB}, 6')
        A(f's_add_u32 s{sT0}, s{sT0}, {WS_DBG + 0x400000}')
        A(f'buffer_store_dword v{vT0}, v{vD3}, {WS}, s{sT0} offen')
    A('s_endpgm')
    A.label('bulk_abort')
    A(f'v_mov_b32 v{vT0}, 9')
    A(f'v_mov_b32 v{vT1}, 4')
    A(f'buffer_store_dword v{vT0}, v{vT1}, {R4}, 0 offen')
    A.label('bulk_end')
    A('s_endpgm')
```

```python
from k7_common import *
NEG = -1.0e30
L_MEM = 0
L_Q   = 10240
L_K   = L_Q + 2048
L_O   = L_K + 2048
L_QX  = L_O + 8192
L_KX  = L_QX + 2048
L_XN  = 40960
LDS_BYTES = 163840
assert L_KX + 8192 <= L_XN
sWS, sWT, sC2 = 4, 8, 12
sKXm, sQXr = 14, 15
sCnt = 16
sPar, sQok = 28, 29
sW, sG, sJ, sH, sA, sStep, sTO, sXw = 30, 31, 32, 33, 34, 35, 36, 37
sX3r, sX1, sX2, sX3w, sVXr, sX2L, sXr, sT0, sT1, sOF, sNH = 38, 39, 40, 41, 42, 44, 45, 46, 47, 48, 49
sX3G, sX1H, sDB, sXNg, sHoff, sT2 = 50, 51, 52, 53, 54, 55
sST = 56
sWarm, sLrng, sZn, sZo = 88, 89, 90, 91
vDbg, vX2tab = 0, 1
vX3ld, vMemR, vX1st, vV1st, vQKld, vQKw, vQr, vKr, vVMld, vOw = 2, 3, 4, 5, 6, 7, 8, 9, 10, 11
vX2st, vSR, vOFst, vL16, vKXr, vXNr, vXA, vM2, vM = 12, 13, 14, 15, 16, 17, 18, 19, 20
vR = 21
vT0, vT1, vT2, vT3, vRinv, vRinv1 = 30, 31, 32, 33, 34, 35
vPL = 36
vBias = 40
vLS = 48
vVE = 52
vWO = 56
vKX = 104
vVX = 136
vS = 144
vAcc = 156
vAcc2 = 160
vP = 164
vVM4 = 168
vXACC = 172
vOFR = 184
vSent4 = 188
vRG = 192
vPS = 224
vQS = 248
aSel, aOne, aSelH, aOneM = 240, 244, 248, 252
WS = f's[{sWS}:{sWS+3}]'

class Stamp:
    def __init__(self, A, on): self.A, self.on, self.n = A, on, 0
    def __call__(self, lvl=2):
        if self.on >= lvl:
            self.A(f'{"s_memrealtime" if self.on == 3 else "s_memtime"} s[{sST+2*self.n}:{sST+2*self.n+1}]')
            self.A('s_waitcnt lgkmcnt(0)')
            self.n += 1
    def flush(self):
        if not self.on: return
        A = self.A
        for k in range(self.n): A(f'v_writelane_b32 v{vT3}, s{sST+2*k}, {k}')
        for k in range(5): A(f'v_writelane_b32 v{vT3}, s{sCnt+k}, {10+k}')
        A(f'v_writelane_b32 v{vT3}, s100, 15')
        A(f's_lshl_b32 s{sT0}, s{sStep}, 6')
        A(f's_add_u32 s{sT0}, s{sT0}, s{sDB}')
        A(f'buffer_store_dword v{vT3}, v{vDbg}, {WS}, s{sT0} offen')

def slot_list(add):
    return [
    f's_add_u32 s{sT0}, s{sStep}, {add}',
    f's_and_b32 s{sT1}, s{sT0}, 63',
    f's_and_b32 s{sT0}, s{sT0}, 3',
    f's_mul_i32 s{sX3r}, s{sT0}, {X3_SLOT}',
    f's_add_u32 s{sX3r}, s{sX3r}, s{sX3G}',
    f'v_readlane_b32 s{sX2}, v{vX2tab}, s{sT1}',
    f's_mul_i32 s{sX2L}, s{sT0}, {X2_SLOT}',
    f's_add_u32 s{sX2L}, s{sX2L}, {WS_X2L}',
    f's_mul_i32 s{sX1}, s{sT0}, {X1_SLOT}',
    f's_add_u32 s{sX1}, s{sX1}, s{sX1H}',
    f's_add_u32 s{sT0}, s{sT0}, 1',
    f's_and_b32 s{sT0}, s{sT0}, 3',
    f's_mul_i32 s{sX3w}, s{sT0}, {X3_SLOT}',
    f's_add_u32 s{sX3w}, s{sX3w}, s{sX3G}']
def reset_list(fl):
    S4 = f'v[{vSent4}:{vSent4+3}]'
    o = [f's_add_u32 s{sT2}, s{sStep}, 2', f's_and_b32 s{sT2}, s{sT2}, 3',
         f's_mul_i32 s{sT0}, s{sT2}, {X2_SLOT}', f's_add_u32 s{sT0}, s{sT0}, {WS_X2L}']
    for i in range(3):
        o.append(f'buffer_store_dwordx4 {S4}, v{vR if i < 2 else vR+1}, {WS}, s{sT0} offen{fl}')
        if i < 2: o.append(f's_add_u32 s{sT0}, s{sT0}, 32768')
    o += [f's_mul_i32 s{sT1}, s{sT2}, {X1_SLOT}', f's_add_u32 s{sT1}, s{sT1}, s{sX1H}',
          f'buffer_store_dwordx4 {S4}, v{vR+2}, {WS}, s{sT1} offen{fl}',
          f'buffer_store_dwordx4 {S4}, v{vR+2}, {WS}, s{sT1} offen offset:1024{fl}',
          f's_add_u32 s{sT2}, s{sT2}, 1', f's_and_b32 s{sT2}, s{sT2}, 3',
          f's_mul_i32 s{sT1}, s{sT2}, {X3_SLOT}', f's_add_u32 s{sT1}, s{sT1}, s{sX3G}',
          f'buffer_store_dwordx4 {S4}, v{vR+3}, {WS}, s{sT1} offen{fl}']
    return o
def kv_list():
    return [f's_add_u32 m0, s{sKXm}, {L_KX}', f's_add_u32 s{sVXr}, s{sXr}, 8192',
            f'buffer_load_dwordx4 v{vL16}, {WS}, s{sXr} offen sc1 lds',
            f'buffer_load_dwordx4 v{vL16}, {WS}, s{sXr} offen offset:1024 sc1 lds',
            f'buffer_load_dwordx4 v[{vVX}:{vVX+3}], v{vL16}, {WS}, s{sVXr} offen sc1',
            f'buffer_load_dwordx4 v[{vVX+4}:{vVX+7}], v{vL16}, {WS}, s{sVXr} offen offset:1024 sc1',
            f's_add_u32 s{sXr}, s{sXr}, {XSEG}']
def qx_list():
    return [f's_mov_b32 m0, {L_QX}', 's_nop 0',
            f'buffer_load_dwordx4 v{vL16}, {WS}, s{sQXr} offen sc1 lds',
            f'buffer_load_dwordx4 v{vL16}, {WS}, s{sQXr} offen offset:1024 sc1 lds',
            f's_add_u32 s{sQXr}, s{sQXr}, {XSEG}']
def bounded(A, top, code):
    A(f's_sub_u32 s{sTO}, s{sTO}, 1')
    A(f's_cbranch_scc0 {top}')
    A(f's_mov_b32 s{sT0}, {code}')
    A('s_branch chain_abort')
def slow_poll(A, lab, back, issue, consume, nl, code, cnt):
    A.label(lab)
    for k in (0, 1):
        if cnt is not None: A(f's_add_u32 s{cnt}, s{cnt}, 1')
        emit(A, issue(k))
        A(f's_waitcnt vmcnt({nl})')
        emit(A, consume(1 - k))
        A(f's_cbranch_vccz {back}')
    bounded(A, lab, code)
def qp_wait(A, lab, back):
    A.label(lab)
    A(f'buffer_load_dword v{vT0}, v{vR}, {WS}, 0 offen sc1')
    A('s_waitcnt vmcnt(0)')
    for sh in (2, 1):
        A(f'v_min_i32_dpp v{vT0}, v{vT0}, v{vT0} row_ror:{sh} row_mask:0xf bank_mask:0xf')
        A('s_nop 1')
    A(f'v_readfirstlane_b32 s{sQok}, v{vT0}')
    A(f's_cmp_ge_i32 s{sQok}, s{sT1}')
    A(f's_cbranch_scc1 {back}')
    bounded(A, lab, 9)

def gen_loop(A, tag, fl, role, stamps, P):
    wv = dict(D=0, A=1, B=2, E=2, C=3)[role]
    st = Stamp(A, stamps)
    isA = role in 'AD'
    recv = not isA
    NU = 2 if role == 'E' else 1
    N3 = 3 if isA else 2
    cn = (lambda k: sCnt + k) if stamps else (lambda k: None)
    br = lambda nm: f's_cbranch_vccnz {nm}_{tag}' if nm not in P.get('nock', '') else 's_nop 2'
    tails = []
    def x3_issue(k):
        r = vPS + 12*k
        return [f'buffer_load_dwordx4 v[{r+4*i}:{r+4*i+3}], v{vX3ld}, {WS}, s{sX3r} offen offset:{1024*i} sc1' for i in range(N3)]
    def x3_consume(k):
        r = vPS + 12*k
        return [f'ds_write_b128 v{vX3ld}, v[{r+4*i}:{r+4*i+3}] offset:{1024*i}' for i in range(N3)] + \
               check_sent(range(r, r+4*N3), vT0) + ['s_waitcnt lgkmcnt(0)']
    def qk_issue(k):
        return [f'buffer_load_dwordx4 v[{vQS+4*k}:{vQS+4*k+3}], v{vQKld}, {WS}, s{sX1} offen sc1']
    def qk_consume(k):
        return [f'ds_write_b128 v{vQKw}, v[{vQS+4*k}:{vQS+4*k+3}]'] + check_sent(range(vQS+4*k, vQS+4*k+4), vT0) + ['s_waitcnt lgkmcnt(0)']
    def x2_issue():
        return [f'buffer_load_dwordx4 v[{vKX+16*u+4*L}:{vKX+16*u+4*L+3}], v{vR+4*u+L}, {WS}, s{sX2 if L < 3 else sX2L} offen sc1'
                for L in range(4) for u in range(NU)]
    def x2_consume():
        mf = [M32(v(vAcc, 4), a(aSel if i < 4 else aSelH, 4), v(vKX+4*i, 4), '0' if i == 0 else v(vAcc, 4)) for i in range(4*NU)]
        return weave(mf, check_sent(range(vKX, vKX+16*NU), vT0)) + ['s_nop 3']
    top_young = N3

    A.label(f'entry_{tag}')
    emit(A, x3_issue(0))
    A('s_waitcnt vmcnt(0)')
    emit(A, x3_issue(1))
    if stamps:
        A('s_memrealtime s[96:97]')
        A('s_waitcnt lgkmcnt(0)')
    A.label(f'loop_{tag}')
    if stamps: A('s_memrealtime s[100:101]')
    st(1)
    A(f's_waitcnt vmcnt({top_young})')
    emit(A, x3_consume(0))
    A(br('x3s'))
    A.label(f'x3ok_{tag}')
    tails.append(lambda: slow_poll(A, f'x3s_{tag}', f'x3ok_{tag}', x3_issue, x3_consume, N3, 1, cn(0)))
    A('s_barrier')
    st()
    MF = lambda i: (vRG + 4*i) if i < 8 else (vS + 4*(i-8))
    for i in range(10): A(f'ds_read_b128 v[{MF(i)}:{MF(i)+3}], v{vMemR} offset:{1024*i}')
    for i in range(10):
        A(f's_waitcnt lgkmcnt({9-i})')
        A(M32(v(vAcc, 4), a(8*i, 4), v(MF(i), 4), '0' if i == 0 else v(vAcc, 4)))
        A(M32(v(vAcc2, 4), a(8*i+4, 4), v(MF(i), 4), '0' if i == 0 else v(vAcc2, 4)))
    vm = [M32(v(vVE, 4), v(MF(i), 4), a(80+4*i, 4), '0' if i == 0 else v(vVE, 4)) for i in range(10)]
    emit(A, vm[:3])
    for r in range(4): A(f'v_add_f32_dpp v{vAcc+r}, v{vAcc2+r}, v{vAcc+r} row_ror:8 row_mask:0xf bank_mask:0xf')
    if isA:
        A(f'v_pk_mul_f32 v[{vAcc}:{vAcc+1}], v[{vAcc}:{vAcc+1}], s[{sC2}:{sC2+1}]')
        A(f'v_pk_mul_f32 v[{vAcc+2}:{vAcc+3}], v[{vAcc+2}:{vAcc+3}], s[{sC2}:{sC2+1}]')
    A(f'v_cvt_pk_bf16_f32 v{vT0}, v{vAcc}, v{vAcc+1}')
    A(f'v_cvt_pk_bf16_f32 v{vT1}, v{vAcc+2}, v{vAcc+3}')
    A(f'v_min_u32 v{vT0}, -2, v{vT0}')
    A(f'v_min_u32 v{vT1}, -2, v{vT1}')
    A(f'buffer_store_dwordx2 v[{vT0}:{vT1}], v{vX1st}, {WS}, s{sX1} offen{fl}')
    st(3)
    emit(A, weave(vm[3:], [(P['qkA'], qk_issue(0)[0])]))
    for k in range(8): A(f'ds_read_b128 v[{vKX+4*k}:{vKX+4*k+3}], v{vL16} offset:{L_KX + 1024*k}')
    A(f'v_cvt_pk_bf16_f32 v{vT2}, v{vVE}, v{vVE+1}')
    A(f'v_cvt_pk_bf16_f32 v{vT3}, v{vVE+2}, v{vVE+3}')
    A(f'v_min_u32 v{vT2}, -2, v{vT2}')
    A(f'v_min_u32 v{vT3}, -2, v{vT3}')
    A(f'buffer_store_dwordx2 v[{vT2}:{vT3}], v{vV1st}, {WS}, s{sX1} offen{fl}')
    if P['qkgap']: A.nop(P['qkgap'])
    emit(A, qk_issue(1))
    st()
    A('s_waitcnt vmcnt(2)')
    emit(A, qk_consume(0))
    A(br('qks'))
    A.label(f'qkok_{tag}')
    tails.append(lambda: slow_poll(A, f'qks_{tag}', f'qkok_{tag}', qk_issue, qk_consume, 1, 2, cn(1)))
    vm_ld = f'buffer_load_dwordx4 v[{vVM4}:{vVM4+3}], v{vVMld}, {WS}, s{sX1} offen sc1'
    A(vm_ld)
    A('s_barrier')
    st()
    QF, KF = vRG, vRG + 16
    for t in range(4): A(f'ds_read_b128 v[{QF+4*t}:{QF+4*t+3}], v{vQr} offset:{512*t}')
    for t in range(4): A(f'ds_read_b128 v[{KF+4*t}:{KF+4*t+3}], v{vKr} offset:{512*t}')
    def smf(i, t):
        src = (vKX + 4*t, vKX + 16 + 4*t, KF + 4*t)[i]
        return M32(v(vS+4*i, 4), v(src, 4), v(QF+4*t, 4), (v(vBias+4*i, 4) if i < 2 else '0') if t == 0 else v(vS+4*i, 4))
    E = lambda r: f'v_exp_f32 v{vS+r}, v{vS+r}'
    C = lambda d, r: f'v_cvt_pk_bf16_f32 v{d}, v{vS+r}, v{vS+r+1}'
    for t in range(4):
        A(f's_waitcnt lgkmcnt({7-t})')
        A(smf(0, t))
    for t in range(4):
        A(f's_waitcnt lgkmcnt({3-t})')
        A(smf(2, t))
        if t >= 2: A(E(t - 2))
    A(smf(1, 0)); A(E(2))
    A(smf(1, 1)); A(E(3))
    A(smf(1, 2)); A(E(8))
    A(smf(1, 3)); A(E(9))
    A(E(10)); A(E(11))
    if P.get('att'): st()
    A('s_waitcnt vmcnt(0)')
    if P.get('att'): st()
    emit(A, check_sent(range(vVM4, vVM4+4), vT2))
    A(C(vPL, 8)); A(C(vPL+1, 10))
    A(E(4))
    A(br('pvs'))
    A.label(f'pvok_{tag}')
    def pv_slow():
        A.label(f'pvs_{tag}')
        if stamps: A(f's_add_u32 s{sCnt+2}, s{sCnt+2}, 1')
        A(vm_ld)
        A('s_waitcnt vmcnt(0)')
        emit(A, check_sent(range(vVM4, vVM4+4), vT2))
        A(f's_cbranch_vccz pvok_{tag}')
        bounded(A, f'pvs_{tag}', 3)
    tails.append(pv_slow)
    pvm = [M16(v(vAcc, 4), v(vVM4, 2), v(vPL, 2), '0'), M16(v(vAcc2, 4), v(vVM4+2, 2), v(vPL, 2), '0'),
           M16(v(vLS, 4), a(aOneM, 2), v(vPL, 2), '0')]
    A(pvm[0]); A(E(5))
    if role == 'A' and P['tatt']: A(f'buffer_load_dword v{vM2+0 if False else vXA}, v{vR+4}, {WS}, s{sWarm} offen sc1')
    A(pvm[1]); A(E(6))
    A(pvm[2]); A(E(7))
    A(C(vP, 0)); A(C(vP+1, 2)); A(C(vP+2, 4)); A(C(vP+3, 6))
    A('s_nop 1')
    if P.get('att'): st()
    D = vPS
    NTL = 3 if isA else 2
    def pv_fin():
        A(M32(v(vAcc, 4), v(vVX, 4), v(vP, 4), v(vAcc, 4)))
        A(M32(v(vAcc2, 4), v(vVX+4, 4), v(vP, 4), v(vAcc2, 4)))
        A(M32(v(vLS, 4), a(aOne, 4), v(vP, 4), v(vLS, 4)))
        A.nop(P['pvnop'])
        A(f'v_cvt_pk_bf16_f32 v{vOFR}, v{vAcc}, v{vAcc+1}')
        A(f'v_cvt_pk_bf16_f32 v{vOFR+1}, v{vAcc+2}, v{vAcc+3}')
        A(f'v_cvt_pk_bf16_f32 v{vOFR+2}, v{vAcc2}, v{vAcc2+1}')
        A(f'v_cvt_pk_bf16_f32 v{vOFR+3}, v{vAcc2+2}, v{vAcc2+3}')
        A(f'ds_write_b128 v{vOw}, v[{vOFR}:{vOFR+3}]')
        A(f'v_rcp_f32 v{vRinv}, v{vLS}')
        for k in range(NTL): A(M32(v(D+4*k, 4), v(vWO+16*k+4*wv, 4), v(vOFR, 4), '0'))
    pv_fin()
    A(f'v_subrev_u32 v{vT0}, {f2u(2.0**-60):#x}, v{vLS}')
    A(f'v_cmp_le_u32 vcc, s{sLrng}, v{vT0}')
    A(f'v_mov_b32 v{vRinv1}, v{vRinv}')
    A(f's_cmp_eq_u32 s{sStep}, {NSEG-1}')
    A('s_waitcnt lgkmcnt(0)')
    A(br('smx'))
    A.label(f'smok_{tag}')
    def sm_slow():
        A.label(f'smx_{tag}')
        if stamps: A(f's_add_u32 s{sCnt+4}, s{sCnt+4}, 1')
        for i in range(3):
            for t in range(4): A(smf(i, t))
        A.nop(8)
        A(f'v_max3_f32 v{vM}, v{vS}, v{vS+1}, v{vS+2}')
        for r in range(3, 11, 2): A(f'v_max3_f32 v{vM}, v{vM}, v{vS+r}, v{vS+r+1}')
        A(f'v_max_f32 v{vM}, v{vM}, v{vS+11}')
        for sw in ('16', '32'):
            A(f'v_mov_b32 v{vT0}, v{vM}')
            A.nop(2)
            A(f'v_permlane{sw}_swap_b32 v{vT0}, v{vM}')
            A.nop(1)
            A(f'v_max_f32 v{vM}, v{vM}, v{vT0}')
        for r in range(12): A(f'v_sub_f32 v{vS+r}, v{vS+r}, v{vM}')
        for r in range(12): A(E(r))
        A.nop(1)
        A(C(vP, 0)); A(C(vP+1, 2)); A(C(vP+2, 4)); A(C(vP+3, 6)); A(C(vPL, 8)); A(C(vPL+1, 10))
        A.nop(2)
        emit(A, pvm)
        A.nop(6)
        pv_fin()
        A.nop(1)
        A(f'v_mov_b32 v{vRinv1}, v{vRinv}')
        A(f's_cmp_eq_u32 s{sStep}, {NSEG-1}')
        A('s_waitcnt lgkmcnt(0)')
        A(f's_branch smok_{tag}')
    tails.append(sm_slow)
    A(f's_cbranch_scc1 last_{tag}')
    A('s_barrier')
    st()
    OF4 = vRG
    TS = [t for t in range(4) if t != wv]
    for t in TS: A(f'ds_read_b128 v[{OF4+4*t}:{OF4+4*t+3}], v{vL16} offset:{L_O + 1024*t}')
    R = vS
    RI = f'v[{vRinv}:{vRinv1}]'
    def scale_cvt(k):
        return [f'v_pk_mul_f32 v[{D+4*k}:{D+4*k+1}], v[{D+4*k}:{D+4*k+1}], {RI}',
                f'v_pk_mul_f32 v[{D+4*k+2}:{D+4*k+3}], v[{D+4*k+2}:{D+4*k+3}], {RI}',
                f'v_cvt_pk_bf16_f32 v{D+4*k}, v{D+4*k}, v{D+4*k+1}',
                f'v_cvt_pk_bf16_f32 v{D+4*k+1}, v{D+4*k+2}, v{D+4*k+3}']
    mind = lambda d, s_, ctl: f'v_min_u32_dpp v{d}, v{s_}, v{vM2} ' + ctl.replace(' bank', ' row_mask:0xf bank')
    export = []
    for r in (0, 2):
        export.append(f'v_pk_mul_f32 v[{vAcc+r}:{vAcc+r+1}], v[{vAcc+r}:{vAcc+r+1}], {RI}')
        export.append(f'v_pk_mul_f32 v[{vAcc2+r}:{vAcc2+r+1}], v[{vAcc2+r}:{vAcc2+r+1}], {RI}')
    export += [f'v_cvt_pk_bf16_f32 v{vOFR}, v{vAcc}, v{vAcc+1}', f'v_cvt_pk_bf16_f32 v{vOFR+1}, v{vAcc+2}, v{vAcc+3}',
               f'v_cvt_pk_bf16_f32 v{vOFR+2}, v{vAcc2}, v{vAcc2+1}', f'v_cvt_pk_bf16_f32 v{vOFR+3}, v{vAcc2+2}, v{vAcc2+3}',
               f'buffer_store_dwordx4 v[{vOFR}:{vOFR+3}], v{vOFst}, {WS}, s{sOF} offen sc1',
               f's_add_u32 s{sOF}, s{sOF}, {2*128*1024}']
    emit(A, export[:6])
    op = []
    for n, k in enumerate([2, 0, 1] if isA else [0, 1]):
        for i, t in enumerate(TS):
            if n == 0: op.append(f's_waitcnt lgkmcnt({2-i})')
            op.append(M32(v(D+4*k, 4), v(vWO+16*k+4*t, 4), v(OF4+4*t, 4), v(D+4*k, 4)))
    ident = 'quad_perm:[0,1,2,3] bank_mask:0x3'
    if isA:
        single = scale_cvt(2) + ['s_nop 0', mind(R, D+8, 'row_shr:8 bank_mask:0xc'), mind(R+1, D+9, 'row_shr:8 bank_mask:0xc'),
                                 mind(R+2, D+8, 'row_shr:7 bank_mask:0xc'), mind(R+3, D+9, 'row_shr:7 bank_mask:0xc')]
        emit(A, weave(op, export[6:8] + [(6, x) for x in single], per=3))
    else:
        emit(A, weave(op, export[6:8]))
    emit(A, scale_cvt(0))
    A.nop(2)
    A(mind(R, D, ident)); A(mind(R+1, D+1, ident))
    emit(A, scale_cvt(1))
    A.nop(1)
    A(mind(R+2, D+4, ident)); A(mind(R+3, D+5, ident))
    A(f'buffer_store_dwordx4 v[{R}:{R+3}], v{vSR}, {WS}, s{sX2} offen sc1')
    A(f'buffer_store_dwordx4 v[{R}:{R+3}], v{vX2st}, {WS}, s{sX2L} offen{fl}')
    st()
    pre = kv_list()
    late = list(export[8:])
    if role == 'D':
        A(f's_cmp_eq_u32 s{sStep}, s{sZn}')
        A(f's_cbranch_scc1 z1_{tag}')
        A.label(f'z1ok_{tag}')
        def z1():
            A.label(f'z1_{tag}')
            A(f'v_lshrrev_b32 v{vT2}, 1, v{vL16}')
            A(f'buffer_load_dwordx2 v[{vT0}:{vT1}], v{vT2}, {WS}, s{sZo} offen sc1')
            A('s_waitcnt vmcnt(0)')
            emit(A, check_sent([vT0, vT1], vT0))
            A(f's_cbranch_vccz z2_{tag}')
            bounded(A, f'z1_{tag}', 8)
            A.label(f'z2_{tag}')
            A(f's_add_u32 s{sZo}, s{sZo}, 512')
            A(f's_lshl_b32 s{sZn}, s{sZn}, 2')
            A(f's_add_u32 s{sZn}, s{sZn}, 1')
            A(f's_branch z1ok_{tag}')
        tails.append(z1)
        late += reset_list(fl)
        late += [f's_lshl_b32 s{sT0}, s{sStep}, 7', f's_add_u32 s{sT0}, s{sT0}, {WS_PROG - 256}',
                 f'buffer_store_dword v{vM2}, v{vR+5}, {WS}, s{sT0} offen sc1']
    if role == 'A':
        A(f's_add_u32 s{sT1}, s{sStep}, {4 + P["tatt"]}')
        A(f's_lshr_b32 s{sT1}, s{sT1}, 1')
        A(f's_cmp_lt_i32 s{sQok}, s{sT1}')
        A(f's_cbranch_scc1 qp_{tag}')
        A.label(f'qpok_{tag}')
        tails.append(lambda: qp_wait(A, f'qp_{tag}', f'qpok_{tag}'))
        touch = [f'buffer_load_dword v{vM}, v{vR+4}, {WS}, s{sWarm} offen sc1', f's_add_u32 s{sWarm}, s{sWarm}, {XSEG}']
        if P.get('notouch') or P['tatt']: touch = touch[1:]
        dl = []
        n = P['tdel']
        while n > 0: dl.append(f's_nop {min(n,16)-1}'); n -= 16
        pre = (touch + qx_list() + pre) if P['tfirst'] else (qx_list() + pre + dl + touch)
    if recv:
        emit(A, pre)
        A.nop(P['pollA'])
        emit(A, x2_issue())
        emit(A, late)
        st()
        A(f's_waitcnt vmcnt({nvm(late)})')
        emit(A, x2_consume())
        A(br('x2s'))
        A.label(f'x2ok_{tag}')
        def x2_slow():
            A.label(f'x2s_{tag}')
            if stamps: A(f's_add_u32 s{sCnt+3}, s{sCnt+3}, 1')
            emit(A, x2_issue())
            A('s_waitcnt vmcnt(0)')
            emit(A, x2_consume())
            A(f's_cbranch_vccz x2ok_{tag}')
            bounded(A, f'x2s_{tag}', 4)
        tails.append(x2_slow)
        st()
        for r in range(4): A(f'v_add_f32_dpp v{vAcc2+r}, v{vAcc+r}, v{vAcc+r} row_ror:8 row_mask:0xf bank_mask:0xf')
        A(f'v_cvt_pk_bf16_f32 v{vT0}, v{vAcc2}, v{vAcc2+1}')
        A(f'v_cvt_pk_bf16_f32 v{vT1}, v{vAcc2+2}, v{vAcc2+3}')
        A(f'v_min_u32 v{vT0}, -2, v{vT0}')
        A(f'v_min_u32 v{vT1}, -2, v{vT1}')
        A(f'buffer_store_dwordx2 v[{vT0}:{vT1}], v{vR+8}, {WS}, s{sX3w} offen{fl}')
    else:
        emit(A, pre + late)
        st(); st()
    sl = slot_list(1)
    if not recv: emit(A, sl)
    A('s_barrier')
    st.flush()
    if recv: emit(A, sl[:5])
    emit(A, x3_issue(0))
    if recv: emit(A, sl[5:])
    A(f's_add_u32 s{sStep}, s{sStep}, 1')
    A.nop(P['x3gap'])
    emit(A, x3_issue(1))
    A(f's_branch loop_{tag}')
    A.label(f'last_{tag}')
    emit(A, export)
    if role == 'D':
        A(f's_mov_b32 s{sT0}, {WS_PROG + 61*128}')
        A(f'buffer_store_dword v{vM2}, v{vR+5}, {WS}, s{sT0} offen sc1')
    A('s_waitcnt vmcnt(0)')
    A('s_barrier')
    if role == 'D':
        A(f's_lshl_b32 s{sT0}, s{sG}, 5')
        A(f's_add_u32 s{sT0}, s{sT0}, s{sJ}')
        A(f's_lshl_b32 s{sT0}, s{sT0}, 2')
        A(f's_add_u32 s{sT0}, s{sT0}, {WS_FLAG}')
        A(f'v_cmp_eq_u32 vcc, 0, v{vL16}')
        A(f'v_mov_b32 v{vT0}, {OOB:#x}')
        A('s_nop 1')
        A(f'v_cndmask_b32 v{vT0}, v{vT0}, 0, vcc')
        A(f'buffer_store_dword v{vM2}, v{vT0}, {WS}, s{sT0} offen sc1')
    if stamps:
        A('s_memrealtime s[98:99]')
        A('s_waitcnt lgkmcnt(0)')
        A(f'v_writelane_b32 v{vT3}, s{sST}, 0')
        for k, r in enumerate((94, 96, 98, 76, 78, 80, 82, 84, 86)): A(f'v_writelane_b32 v{vT3}, s{r}, {1+k}')
        A(f's_add_u32 s{sT0}, s{sDB}, {63*64}')
        A(f'buffer_store_dword v{vT3}, v{vDbg}, {WS}, s{sT0} offen')
    A('s_endpgm')
    for t in tails: t()

DEFAULT_P = dict(tatt=1, tdel=0, tfirst=0, pollA=80, qkA=5, qkgap=0, x3A=4, x3B=8, x3gap=8, pvnop=6)

def gen_chain(A, stamps, P):
    wt = f's[{sWT}:{sWT+3}]'
    npst = [0]
    def pst():
        if stamps == 1:
            A(f's_memrealtime s[{76+2*npst[0]}:{77+2*npst[0]}]'); A('s_waitcnt lgkmcnt(0)'); npst[0] += 1
    if stamps: A('s_memrealtime s[94:95]')
    A('s_load_dwordx4 s[16:19], s[0:1], 16')
    A('s_load_dwordx4 s[20:23], s[0:1], 32')
    A('s_load_dwordx4 s[24:27], s[0:1], 96')
    F = 232
    X = VX(A, vRG, F, 3)
    A(f'v_lshrrev_b32 v{F+3}, 6, v0')
    A(f'v_and_b32 v{F}, 63, v0')
    A(f'v_readfirstlane_b32 s{sW}, v{F+3}')
    A(f'v_bfe_u32 v{F+1}, v0, 4, 2')
    A(f'v_and_b32 v{F+2}, 15, v0')
    A(f's_and_b32 s{sG}, s2, 3')
    A(f's_lshr_b32 s{sJ}, s2, 3')
    A(f's_lshr_b32 s{sH}, s{sJ}, 2')
    A(f's_lshl_b32 s3, s{sG}, 3')
    A(f's_add_u32 s{sH}, s{sH}, s3')
    A(f's_and_b32 s{sA}, s{sJ}, 3')
    A(f's_and_b32 s{sPar}, s{sA}, 1')
    A(f's_mov_b32 s{sTO}, 0x40000')
    for i, sr in enumerate((sA, sH, sJ, sG)): A(f'v_mov_b32 v{F+4+i}, s{sr}')
    A(f'v_mov_b32 v{F+8}, v0')
    L, g, c, w, a_, h, j, G, tid = [X.reg(F+i) for i in range(9)]
    X.set(vL16, L*16)
    L16 = X.reg(vL16)
    TQ, TA_, TV, TO1, TO2 = [vXACC + i for i in range(5)]
    X.set(TQ, (L >> 2)*8192 + (((L >> 1) & 1) ^ ((L >> 5) & 1))*32 + (L & 1)*16 + h*256 + a_*64)
    A('s_waitcnt lgkmcnt(0)')
    srd(A, sWS, 26, WS_SIZE)
    A(f's_lshl_b32 s3, s{sG}, 5')
    A(f's_add_u32 s3, s3, s{sJ}')
    A('s_cmp_ge_u32 s3, 22')
    A('s_cbranch_scc1 no_cal')
    A(f's_cmp_lg_u32 s{sW}, 0')
    A('s_cbranch_scc1 cal_done')
    X.set(vT1, X.sel(('eq', tid, 0), 0, OOB))
    srd(A, sWT, 24, 256)
    A('s_sub_u32 s60, 0, s26')
    A('s_and_b32 s60, s60, 0x1fffff')
    A(f's_lshl_b32 s61, s{sJ}, 21')
    A('s_add_u32 s60, s60, s61')
    A(f's_add_u32 s60, s60, {WS_X2 + 0x1f8000}')
    A('s_mov_b32 s62, -1')
    A('s_mov_b32 s63, -1')
    for rep in range(P['calrep']):
        for hf in range(2):
            A(f's_add_u32 s61, s60, {hf*8192 + (rep&1)*4096}')
            A(f'v_mov_b32 v{vT0}, 0')
            A('s_memtime s[64:65]')
            A('s_waitcnt lgkmcnt(0)')
            A(f'buffer_atomic_or v{vT0}, v{vT1}, {WS}, s61 offen sc0')
            A('s_waitcnt vmcnt(0)')
            A('s_memtime s[66:67]')
            A('s_waitcnt lgkmcnt(0)')
            A('s_sub_u32 s64, s66, s64')
            A(f's_min_u32 s{62+hf}, s{62+hf}, s64')
    A('s_cmp_lt_u32 s63, s62')
    A('s_cselect_b32 s61, 1, 0')
    A(f's_lshl_b32 s61, s61, s{sJ}')
    A(f'v_mov_b32 v{vT0}, s61')
    A(f'buffer_atomic_or v{vT0}, v{vT1}, {wt}, 0 offen offset:{DBG_MASK}')
    A('s_waitcnt vmcnt(0)')
    arrive(A, wt, vT0, vT1, 61, 'cal_done')
    A.label('cal_done')
    A('s_barrier')
    A.label('no_cal')
    for m, ptr in enumerate((16, 18, 20)):
        srd(A, sWT, ptr, DM * 4096 * 2)
        A(f's_lshl_b32 s63, s{sW}, 10')
        A(f's_add_u32 s63, s63, {40960*(m+1)}')
        A(f's_mul_i32 s64, s{sW}, {16*8192}')
        for i in range(10):
            A('s_mov_b32 m0, s63')
            A(f's_add_u32 s63, s63, 4096')
            A(f'buffer_load_dwordx4 v{TQ}, {wt}, s64 offen lds')
            A(f's_add_u32 s64, s64, {64*8192}')
    srd(A, sWT, 22, 4096 * DM * 2)
    A(f's_mul_i32 s64, s{sH}, {128*1280}')
    A(f's_mul_i32 s3, s{sA}, 320')
    A(f's_add_u32 s64, s64, s3')
    A(f's_lshl_b32 s63, s{sW}, 10')
    for i in range(10):
        cid = tid + 256*i
        row = (cid*3277) >> 16
        X.set(vT0, row*1280 + (cid - row*20)*16)
        A('s_mov_b32 m0, s63')
        A(f's_add_u32 s63, s63, 4096')
        A(f'buffer_load_dwordx4 v{vT0}, {wt}, s64 offen lds')
    for q in range(4): X.set(vSent4+q, -1)
    X.set(vM2, -2)
    clt8 = ('lt', c, 8); glt2 = ('lt', g, 2); wlt2 = ('lt', w, 2); w0 = ('eq', w, 0)
    X.set(vT0, 0x3f803f80)
    for q in range(4): A(f'v_accvgpr_write_b32 a{aOne+q}, v{vT0}')
    X.set(vT0, X.sel(glt2, 0x3f803f80, 0))
    for q in range(2): A(f'v_accvgpr_write_b32 a{aOneM+q}, v{vT0}')
    slot = lambda: (g*8 + (c & 7))*16
    X.set(vX3ld, X.sel(wlt2, w*3072, w*2048 + 2048) + L16)
    X.set(vMemR, slot() + (c >> 3)*512)
    X.set(vKr, slot() + L_K)
    X.set(vQr, X.sel(clt8, L_Q, L_QX) + slot())
    tq = lambda: (a_ & 2) + (w & 1)
    tt = lambda: a_ & 1
    X.set(vX1st, X.sel(clt8, tq()*1024 + (w >> 1)*512 + slot() + tt()*8, OOB))
    X.set(vV1st, X.sel(('eq', g >> 1, w >> 1), a_*1024 + L16 + (w & 1)*8 + 4096, OOB))
    X.set(vVMld, w*1024 + L16 + 4096)
    X.set(vQKld, w*1024 + L16)
    X.set(vOw, w*1024 + L16 + L_O)
    X.set(vQKw, X.sel(glt2, L_Q, L_K - 512) + w*512 + L16)
    X.set(vT0, (a_*20 + w*4 + (c >> 1))*4096 + ((c & 1)*4 + g)*16)
    X.set(vT1, (a_*20 + 16 + w*2 + ((c >> 2) & 1))*4096 + (((c >> 1) & 1)*4 + g)*16)
    X.set(vT1, X.sel(('eq', (c & 1) + (w & 2), 0), X.reg(vT1), OOB))
    X.set(vX2st, X.sel(clt8, X.reg(vT0), X.reg(vT1)) + h*128)
    xs = X.reg(vX2st)
    X.set(vSR, X.sel(('lt', xs, OOB), (xs >> 13)*16384 + (xs & 8191), OOB))
    X.set(vOFst, X.sel(clt8, OOB, ((a_ >> 1)*128 + h*4 + w)*1024 + tt()*128 + L16 - 128))
    X.set(vT0, X.sel(('lt', j, 16), j*3 + (w & 1)*2, j*2 + 16 + (w & 1)))
    U = X.reg(vT0)
    x2a = lambda Uq, Lq: (Uq*4096 if Lq == 3 else (Uq >> 1)*16384 + (Uq & 1)*4096) + L16 + ((G + (Lq+1)) & 3)*1024
    lo = [None]*9
    lo[0] = lambda: X.sel(w0, (a_*20 + (L >> 3))*4096 + h*128 + (L & 7)*16, h*16 + (L & 3)*4 + WS_QP)
    lo[1] = lambda: X.sel(('lt', L, 32), X.reg(vR), OOB)
    lo[2] = lambda: a_*2048 + L16
    lo[3] = lambda: X.sel(('lt', L, 20), j*320 + L16, OOB)
    lo[4] = lambda: X.sel(('lt', L, 32), a_*4096 + L*128, X.sel(('lt', L, 48), a_*2048 + L*128 + (16384 - 4096), OOB))
    lo[5] = lambda: X.sel(('eq', L + j + G, 0), 0, OOB)
    lo[6] = lambda: 0
    lo[7] = lambda: 0
    for i in range(8):
        X.set(vR+i, X.sel(wlt2, lo[i](), x2a(U + (i >> 2), i & 3)))
    X.set(vRinv1, U + (g >> 1))
    UL = X.reg(vRinv1)
    X.set(vT1, (UL*3277) >> 16)
    ua = X.reg(vT1)
    X.set(vT2, UL - ua*20)
    u = X.reg(vT2)
    gp = lambda: c & 3
    r1 = lambda: (c >> 2) & 1
    g1 = lambda: g & 1
    X.set(vT3, (ua*5 + (u >> 2))*512 + ((g1()*2 + (gp() >> 1))*8 + (u & 3)*2 + r1())*16)
    X.set(vRinv, (ua*5 + 4)*512 + (((u & 2) + (gp() >> 1))*8 + (u & 1)*4 + r1()*2 + g1())*16)
    X.set(vT3, X.sel(('lt', u, 16), X.reg(vT3), X.reg(vRinv)) + (gp() & 1)*8)
    X.set(vRinv, X.sel(('eq', (j >> 4) + (w & 1), 0), 0, g >> 1))
    X.set(vR+8, X.sel(('eq', (c >> 3) + X.reg(vRinv), 0), X.reg(vT3), OOB))
    for q in range(8):
        X.set(vT1, X.sel(('eq', c >> 1, q), X.sel(('eq', c & 1, 0), 0x3f80, 0x3f800000), 0))
        A(f'v_accvgpr_write_b32 a{aSel+q if q < 4 else aSelH+q-4}, v{vT1}')
    X.set(vT1, X.sel(clt8, 63, a_*8 + c - 8))
    for kt in range(2):
        for r in range(4):
            X.set(vBias+4*kt+r, X.sel(('gt', g*4 + (16*kt + r), X.reg(vT1)), f2u(NEG), 0))
    trb = lambda: (g*8 + ((L >> 2) & 3))*64 + ((w & 1) ^ (g & 1))*32 + (L & 3)*8
    X.set(TA_, trb() + (w >> 1)*40960 + 40960)
    X.set(TV, trb() + (w >> 1)*2048 + 122880)
    wob = lambda: (g*4 + ((L >> 2) & 3))*320 + (L & 3)*8
    X.set(TO1, wob() + w*64)
    X.set(TO2, wob() + (w & 1)*32 + 256)
    X.set(vP+1, X.sel(('eq', tid, 0), 0, OOB))
    X.set(vP+2, (L & 31)*4)
    X.set(vDbg, X.sel(('lt', L, 16), L*4, OOB))
    A(f's_mov_b32 s{sOF}, {WS_OF}')
    A(f's_cmp_lt_u32 s{sJ}, 16')
    A(f's_cselect_b32 s{sNH}, 3, 2')
    A(f's_mov_b32 s{sC2}, {f2u(QSCALE):#x}')
    A(f's_mov_b32 s{sC2+1}, {f2u(QSCALE):#x}')
    A(f's_mul_i32 s{sX3G}, s{sG}, {X3_G}')
    A(f's_add_u32 s{sX3G}, s{sX3G}, {WS_X3}')
    A(f's_lshl_b32 s{sX1H}, s{sH}, 13')
    A(f's_add_u32 s{sX1H}, s{sX1H}, {WS_X1}')
    A(f's_mul_i32 s{sHoff}, s{sH}, {XH}')
    A(f's_add_u32 s{sHoff}, s{sHoff}, {WS_KX}')
    A(f's_lshl_b32 s75, s{sG}, 5')
    A(f's_add_u32 s75, s75, s{sJ}')
    A(f's_lshl_b32 s{sDB}, s75, 2')
    A(f's_add_u32 s{sDB}, s{sDB}, s{sW}')
    A(f's_lshl_b32 s{sDB}, s{sDB}, 12')
    A(f's_add_u32 s{sDB}, s{sDB}, {WS_DBG:#x}')
    A(f's_lshl_b32 s{sKXm}, s{sW}, 11')
    A(f's_lshl_b32 s{sQXr}, s{sA}, 11')
    A(f's_add_u32 s{sQXr}, s{sQXr}, s{sHoff}')
    A(f's_add_u32 s{sQXr}, s{sQXr}, 16384')
    A(f's_add_u32 s{sXr}, s{sHoff}, s{sKXm}')
    A(f's_mov_b32 s{sLrng}, {f2u(2.0**64) - f2u(2.0**-60):#x}')
    A(f's_add_u32 s{sWarm}, s{sHoff}, {XSEG}')
    pst()
    A('s_waitcnt vmcnt(0)')
    A('s_barrier')
    pst()
    for t in range(20):
        A(f'ds_read_b64_tr_b16 a[{4*t}:{4*t+1}], v{TA_} offset:{2048*t}')
        A(f'ds_read_b64_tr_b16 a[{4*t+2}:{4*t+3}], v{TA_} offset:{2048*t+256}')
        if t % 4 == 3: A('s_waitcnt lgkmcnt(4)')
    for i in range(10):
        A(f'ds_read_b64_tr_b16 a[{80+4*i}:{80+4*i+1}], v{TV} offset:{4096*i}')
        A(f'ds_read_b64_tr_b16 a[{80+4*i+2}:{80+4*i+3}], v{TV} offset:{4096*i+256}')
        if i % 4 == 3: A('s_waitcnt lgkmcnt(4)')
    for k in range(3):
        for t in range(4):
            r, o = (TO1, 32*320*t + 32*k) if k < 2 else (TO2, 32*320*t)
            A(f'ds_read_b64_tr_b16 v[{vWO+16*k+4*t}:{vWO+16*k+4*t+1}], v{r} offset:{o}')
            A(f'ds_read_b64_tr_b16 v[{vWO+16*k+4*t+2}:{vWO+16*k+4*t+3}], v{r} offset:{o+16*320}')
        A('s_waitcnt lgkmcnt(0)')
    pst()
    srd(A, sWT, 24, 256)
    wait_start(A, wt, vT0, 74, sTO, 'start_ok', 'chain_abort10', sleep=4)
    pst()
    x2_table(A, X, L, vX2tab, 74, 26, vT1)
    A(f's_getreg_b32 s74, hwreg(HW_REG_XCC_ID, 0, 4)')
    A(f's_lshl_b32 s3, s75, 2')
    A(f's_add_u32 s3, s3, {WS_TAB}')
    A(f'v_mov_b32 v{vT1}, s74')
    A(f'buffer_store_dword v{vT1}, v{vP+1}, {WS}, s3 offen sc1')
    A(f's_cmp_lg_u32 s{sW}, 1')
    A('s_cbranch_scc1 qp0_ok')
    A(f's_mov_b32 s{sT1}, 1')
    qp_wait(A, 'qp0', 'qp0_ok')
    A.label('qp0_ok')
    pst()
    A(f's_mov_b32 s{sZn}, 1')
    A(f's_mov_b32 s{sZo}, {WS_ZFLAG}')
    A('s_barrier')
    A(f's_lshl_b32 s3, s{sG}, 7')
    A(f's_add_u32 s3, s3, {WS_TAB}')
    A.label('tab_poll')
    A(f'buffer_load_dword v{vT0}, v{vP+2}, {WS}, s3 offen sc1')
    A('s_waitcnt vmcnt(0)')
    A(f'v_cmp_eq_u32 vcc, -1, v{vT0}')
    A('s_cbranch_vccz tab_ok')
    bounded(A, 'tab_poll', 5)
    A.label('tab_ok')
    pst()
    A(f'v_cmp_ne_u32 s[68:69], v{vT1}, v{vT0}')
    A(f's_mov_b32 s{sStep}, 0')
    emit(A, kv_list())
    A(f's_cmp_lg_u32 s{sW}, 1')
    A('s_cbranch_scc1 no_q0')
    emit(A, qx_list())
    A(f'buffer_load_dword v{vM}, v{vR+4}, {WS}, s{sWarm} offen sc1')
    A(f's_add_u32 s{sWarm}, s{sWarm}, {XSEG}')
    A.label('no_q0')
    emit(A, slot_list(0))
    for k in range(5): A(f's_mov_b32 s{sCnt+k}, 0')
    for mode in ('f', 's'):
        if mode == 'f':
            A('s_cmp_lg_u64 s[68:69], 0')
            A('s_cbranch_scc1 disp_s')
        else:
            A.label('disp_s')
        A(f's_cmp_eq_u32 s{sW}, 0')
        A(f's_cbranch_scc1 j_{mode}D')
        A(f's_cmp_eq_u32 s{sW}, 1')
        A(f's_cbranch_scc1 j_{mode}A')
        A(f's_cmp_eq_u32 s{sW}, 3')
        A(f's_cbranch_scc1 j_{mode}C')
        A(f's_cmp_eq_u32 s{sNH}, 3')
        A(f's_cbranch_scc1 j_{mode}E')
        A(f's_branch entry_{mode}B')
        for r in 'ADEC':
            A.label(f'j_{mode}{r}')
            A(f's_branch entry_{mode}{r}')
    for mode, fl in (('f', ''), ('s', ' sc1')):
        for role in 'DABEC':
            gen_loop(A, mode + role, fl, role, stamps, P)
    A.label('chain_abort10')
    A(f's_mov_b32 s{sT0}, 10')
    A.label('chain_abort')
    srd(A, sWT, 24, 256)
    A(f'v_mov_b32 v{vT0}, s{sT0}')
    A(f'v_mov_b32 v{vT1}, 0')
    A(f'buffer_store_dword v{vT0}, v{vT1}, {wt}, 0 offen')
    A('s_endpgm')
```

```python
S_TOK, DM, NH, DH, NM, SEG, NSEG, FF = 2048, 640, 32, 128, 8, 32, 64, 1728
WS_SIZE = 0x10000000
WS_XN   = 0x0
RING    = 4
WS_X3   = 0x300000
X3_G    = 10240
X3_SLOT = 4 * X3_G
WS_X1   = WS_X3 + RING * X3_SLOT
X1_H    = 8192
X1_SLOT = 32 * X1_H
WS_TAB  = WS_X1 + RING * X1_SLOT
WS_FLAG = WS_TAB + 0x400
WS_GFLAG = WS_TAB + 0x800
WS_ZFLAG = WS_TAB + 0xc00
WS_QP   = WS_TAB + 0x1400
WS_PROG = WS_TAB + 0x2000
X2_SLOT = 80 * 32 * 128
WS_X2L  = WS_TAB + 0x4000
WS_FILL_END = WS_X2L + RING * X2_SLOT
WS_FILL_BEG = WS_X3 + X3_SLOT
WS_X2   = 0x800000
XH      = 24576
XSEG    = 32 * XH
WS_KX   = 0x3800000
WS_OF   = WS_KX + 66 * XSEG
WS_G    = WS_OF + 128 * 128 * 1024
WS_DBG  = 0xF000000
OOB     = 0x40000000
assert WS_FILL_END <= WS_X2 and WS_X2 + 23 * 0x200000 <= WS_KX and WS_G + 4*128*40960 <= WS_DBG
DBG_CNT = 64
DBG_MASK = 72
DBG_GO = 192
```

```python
import sys, json
from g import *
from layout import *
import k8_chain as k7_chain, k8_bulk as k7_bulk
NAME = 'recurrent_scan__memory_aug_recurrent_mem_tr__glu_gated_swiglu__prompt'
def build(stamps=0, P=None, aslist=True):
    P = dict(dict(k7_chain.DEFAULT_P, calrep=7, cpfb=6), **(P or {}))
    hdr = open(f'cdna_kernels/{NAME}.s.ref').read().split('\n')
    hdr = [l for l in hdr if l.startswith(';') and '@launch' not in l and 'Override' not in l and 'grid=ceil' not in l]
    kn = NAME + '_kernel'
    launch = f'; @launch {"kernel="+kn+" " if aslist else ""}grid=(256,1,1) block=(256,1,1) lds={k7_chain.LDS_BYTES}'
    A = Asm()
    A.raw('.amdgcn_target "amdgcn-amd-amdhsa--gfx950"')
    A.raw('.text')
    kernel_begin(A, kn)
    A('s_cmp_ge_u32 s2, 256')
    A('s_cbranch_scc0 k_go')
    A('s_endpgm')
    A.label('k_go')
    A('s_and_b32 s3, s2, 4')
    A('s_cbranch_scc0 chain_go')
    A('s_branch bulk_entry')
    A.label('chain_go')
    k7_chain.gen_chain(A, stamps, P)
    k7_bulk.gen_bulk(A, stamps, P)
    return '\n'.join(hdr + [launch]) + '\n' + A.text() + '.section .rodata,"a"\n' + kernel_desc(kn, 512, 256, 102)
if __name__ == '__main__':
    out = sys.argv[1]
    stamps = int(sys.argv[2]) if len(sys.argv) > 2 else 0
    P = json.loads(sys.argv[3]) if len(sys.argv) > 3 else None
    open(out, 'w').write(build(stamps=stamps, P=P, aslist='cdna_kernels' not in out))
```

```python
from k7_common import *
LOG2E = math.log2(math.e)
sWS, sR1, sR2, sR3, sR4 = 4, 8, 12, 16, 20
sM = 92
sC2 = 24
sW, sB, sN, sO1, sO2, sLB, sT0, sT1, sTO, sTile, sNG, sRB, sZs, sQ = 30, 31, 32, 33, 34, 35, 36, 37, 38, 39, 40, 41, 42, 43
WS = f's[{sWS}:{sWS+3}]'
R1, R2, R3, R4 = [f's[{r}:{r+3}]' for r in (sR1, sR2, sR3, sR4)]
vL16, vD1, vD2, vD3, vR1, vT0, vT1, vT2, vT3 = 1, 2, 3, 4, 5, 6, 7, 8, 9
vGo, vXo, vRw, vRr, vFl, vZt, vZf = 10, 11, 12, 13, 14, 15, 16
vZu = 17
vH = 24
vA1 = 32
vWF = 64
vY = 84
vR1b = 100
vR2n = 112
vOF = 112
F = 244

def rbf2(A, x, y, t):
    A(f'v_cvt_pk_bf16_f32 v{t}, v{x}, v{y}')
    A(f'v_lshlrev_b32 v{x}, 16, v{t}')
    A(f'v_and_b32 v{y}, 0xffff0000, v{t}')
def rbf(A, x):
    A(f'v_cvt_pk_bf16_f32 v{x}, v{x}, v{x}')
    A(f'v_and_b32 v{x}, 0xffff0000, v{x}')
def silu(A, x, t):
    A(f'v_mul_f32 v{t}, {f2u(-LOG2E):#x}, v{x}')
    A(f'v_exp_f32 v{t}, v{t}')
    A('s_nop 0')
    A(f'v_add_f32 v{t}, 1.0, v{t}')
    A(f'v_rcp_f32 v{t}, v{t}')
    A('s_nop 0')
    A(f'v_mul_f32 v{x}, v{x}, v{t}')
def xsum_g(A, x, t):
    for sw in ('16', '32'):
        A(f'v_mov_b32 v{t}, v{x}')
        A.nop(2)
        A(f'v_permlane{sw}_swap_b32 v{t}, v{x}')
        A.nop(1)
        A(f'v_add_f32 v{x}, v{x}, v{t}')
def spin_flags(A, lab, ok, off, sleep):
    A.label(lab)
    A(f's_mov_b32 s{sT0}, {off}')
    A(f'buffer_load_dwordx2 v[{vT0}:{vT1}], v{vFl}, {WS}, s{sT0} offen sc1')
    A('s_waitcnt vmcnt(0)')
    emit(A, check_sent([vT0, vT1], vT0))
    A(f's_cbranch_vccz {ok}')
    A(f's_sleep {sleep}')
    A(f's_sub_u32 s{sTO}, s{sTO}, 1')
    A(f's_cbranch_scc0 {lab}')
    A('s_branch bulk_abort')

def gen_bulk(A, stamps, P):
    nst = [0]
    def st():
        if stamps:
            A(f's_memrealtime s[{70+2*nst[0]}:{71+2*nst[0]}]'); A('s_waitcnt lgkmcnt(0)'); nst[0] += 1
    A.label('bulk_entry')
    st()
    A('s_load_dwordx4 s[44:47], s[0:1], 64')
    A('s_load_dwordx4 s[48:51], s[0:1], 80')
    A('s_load_dwordx4 s[52:55], s[0:1], 96')
    A('s_load_dwordx2 s[56:57], s[0:1], 40')
    A('s_load_dwordx4 s[60:63], s[0:1], 0')
    A('s_load_dwordx4 s[88:91], s[0:1], 16')
    A('s_load_dwordx2 s[58:59], s[0:1], 32')
    X = VX(A, 200, F, 3)
    A(f'v_lshrrev_b32 v{F+3}, 6, v0')
    A(f'v_and_b32 v{F}, 63, v0')
    A(f'v_readfirstlane_b32 s{sW}, v{F+3}')
    A(f'v_bfe_u32 v{F+1}, v0, 4, 2')
    A(f'v_and_b32 v{F+2}, 15, v0')
    A(f's_lshr_b32 s{sB}, s2, 3')
    A(f's_lshl_b32 s{sB}, s{sB}, 2')
    A(f's_and_b32 s{sQ}, s2, 3')
    A(f's_add_u32 s{sB}, s{sB}, s{sQ}')
    A(f'v_mov_b32 v{F+4}, s{sB}')
    A(f's_lshl_b32 s{sM}, s{sQ}, 5')
    A(f's_lshr_b32 s3, s{sB}, 2')
    A(f's_add_u32 s{sM}, s{sM}, s3')
    A(f'v_mov_b32 v{F+5}, s{sM}')
    L, g, c, w, b, m_ = [X.reg(F+i) for i in range(6)]
    tid = X.reg(0)
    A(f's_mov_b32 s{sTO}, 0x400000')
    X.set(vL16, L*16)
    L16 = X.reg(vL16)
    n_ = lambda: m_ >> 1
    X.set(vT0, (n_()*32 + c)*1280 + w*320 + g*16)
    X.set(vD1, (L >> 3)*8192 + ((((L >> 1) & 3) ^ (((L >> 4) & 1) | ((w & 1) << 1)))*2 + (L & 1))*16 + (m_ >> 2)*256 + (m_ & 2)*64)
    A('s_waitcnt lgkmcnt(0)')
    srd(A, sWS, 54, WS_SIZE)
    srd(A, sR1, 60, S_TOK*DM*2)
    srd(A, sR4, 52, 256)
    X.set(vZf, X.sel(('eq', tid, 0), 0, OOB))
    X.set(vFl, L*8)
    A(f's_and_b32 s3, s{sM}, 1')
    A('s_cbranch_scc0 b_arrived')
    XR, XR2, FL = 32, 112, 64
    A('s_movk_i32 s26, 0x5000')
    for t in range(5):
        A(f'buffer_load_dwordx4 v[{XR+4*t}:{XR+4*t+3}], v{vT0}, {R1}, 0 offen offset:{64*t}')
    for t in range(5):
        A(f'buffer_load_dwordx4 v[{XR2+4*t}:{XR2+4*t+3}], v{vT0}, {R1}, s26 offen offset:{64*t}')
    for q in range(4): A(f'v_mov_b32 v{vH+q}, -1')
    X.set(vT1, X.sel(('lt', tid, 16), n_()*256 + tid*16 + WS_TAB, OOB))
    A(f'buffer_store_dwordx4 v[{vH}:{vH+3}], v{vT1}, {WS}, 0 offen sc1')
    X.set(vT1, n_()*40960 + w*5120 + L16 + WS_XN)
    X.set(vRw, w*64 + c*4)
    X.set(vRr, c*4)
    A(f's_mov_b32 s{sN}, 0')
    A('s_waitcnt vmcnt(1)')
    A.label('ln_loop')
    for k in range(20):
        A(f'v_lshlrev_b32 v{FL+2*k}, 16, v{XR+k}')
        A(f'v_and_b32 v{FL+2*k+1}, 0xffff0000, v{XR+k}')
    A(f'v_add_f32 v{vT2}, v{FL}, v{FL+1}')
    for k in range(2, 40): A(f'v_add_f32 v{vT2}, v{vT2}, v{FL+k}')
    def wg_sum(dst, off):
        xsum_g(A, vT2, vT3)
        A(f'ds_write_b32 v{vRw}, v{vT2} offset:{off}')
        A('s_waitcnt lgkmcnt(0)')
        A('s_barrier')
        for k in range(4): A(f'ds_read_b32 v{dst+k}, v{vRr} offset:{off+64*k}')
        A('s_waitcnt lgkmcnt(0)')
        A(f'v_add_f32 v{dst}, v{dst}, v{dst+1}')
        A(f'v_add_f32 v{dst+2}, v{dst+2}, v{dst+3}')
        A(f'v_add_f32 v{dst}, v{dst}, v{dst+2}')
        A(f'v_mul_f32 v{dst}, {f2u(1.0/640):#x}, v{dst}')
    MN, VR = 104, 108
    wg_sum(MN, 0)
    A(f'v_sub_f32 v{vT3}, v{FL}, v{MN}')
    A(f'v_mul_f32 v{vT2}, v{vT3}, v{vT3}')
    for k in range(1, 40):
        A(f'v_sub_f32 v{vT3}, v{FL+k}, v{MN}')
        A(f'v_fmac_f32 v{vT2}, v{vT3}, v{vT3}')
    wg_sum(VR, 256)
    rbf(A, VR)
    A(f'v_add_f32 v{VR}, 0x3727c5ac, v{VR}')
    rbf(A, VR)
    A(f'v_sqrt_f32 v{VR}, v{VR}')
    A.nop(1)
    rbf(A, VR)
    A(f'v_rcp_f32 v{VR}, v{VR}')
    rbf(A, MN)
    A(f'v_mov_b32 v{MN+1}, v{MN}')
    A(f'v_mov_b32 v{VR+1}, v{VR}')
    YR = 136
    for k in range(20):
        A(f'v_pk_add_f32 v[{FL+2*k}:{FL+2*k+1}], v[{FL+2*k}:{FL+2*k+1}], v[{MN}:{MN+1}] neg_lo:[0,1] neg_hi:[0,1]')
        rbf2(A, FL+2*k, FL+2*k+1, vT3)
        A(f'v_pk_mul_f32 v[{FL+2*k}:{FL+2*k+1}], v[{FL+2*k}:{FL+2*k+1}], v[{VR}:{VR+1}]')
        A(f'v_cvt_pk_bf16_f32 v{YR+k}, v{FL+2*k}, v{FL+2*k+1}')
    A(f'v_add_u32 v{vT2}, 4096, v{vT1}')
    for t in range(5):
        A(f'buffer_store_dwordx4 v[{YR+4*t}:{YR+4*t+3}], v{vT1 if t < 4 else vT2}, {WS}, 0 offen offset:{1024*(t%4)} sc1')
    for k in range(20): A(f'v_mov_b32 v{XR+k}, v{XR2+k}')
    A(f'v_add_u32 v{vT1}, 20480, v{vT1}')
    A(f's_add_u32 s{sN}, s{sN}, 1')
    A(f's_cmp_lt_u32 s{sN}, 2')
    A('s_cbranch_scc1 ln_loop')
    A('s_waitcnt vmcnt(0)')
    A('s_barrier')
    A(f's_cmp_lg_u32 s{sW}, 0')
    A('s_cbranch_scc1 b_arrived')
    arrive_s(A, 52, 26, 'b_arrived')
    A.label('b_arrived')
    def stage(ptr, base):
        srd(A, sR2, ptr, DM*4096*2)
        A(f's_lshl_b32 s{sT0}, s{sW}, 10')
        A(f's_add_u32 s{sT0}, s{sT0}, {base}')
        A(f's_lshl_b32 s{sT1}, s{sW}, 16')
        for i in range(20):
            A(f's_mov_b32 m0, s{sT0}')
            A(f's_add_u32 s{sT0}, s{sT0}, 4096')
            A(f'buffer_load_dwordx4 v{vD1}, {R2}, s{sT1} offen lds')
            A(f's_add_u32 s{sT1}, s{sT1}, {4*65536}')
    stage(88, 0)
    stage(90, 81920)
    srd(A, sR2, 58, DM*4096*2)
    for i in range(3):
        X.set(vT1, X.sel(('lt', tid + 256*i, 640), (tid + 256*i)*8192 + (m_ >> 2)*256 + (m_ & 2)*64, OOB))
        A(f'buffer_load_dword v{112+i}, v{vT1}, {R2}, 0 offen')
    trb = lambda le: (g*8 + ((L >> 2) & 3))*128 + (le ^ (((L >> 3) & 1) | ((g & 1) << 1)))*32 + (L & 3)*8
    def trload(abase, R0):
        A(f'v_add_u32 v{vT3}, 0x10000, v{R0}')
        for t in range(20):
            r, o = (R0, 4096*t) if t < 16 else (vT3, 4096*(t-16))
            A(f'ds_read_b64_tr_b16 a[{abase+4*t}:{abase+4*t+1}], v{r} offset:{o}')
            A(f'ds_read_b64_tr_b16 a[{abase+4*t+2}:{abase+4*t+3}], v{r} offset:{o+512}')
            if t % 4 == 3: A('s_waitcnt lgkmcnt(4)')
    X.set(vR1, trb(w & 1) + (w >> 1)*81920)
    X.set(vD3, trb((w & 1) + 2) + (w >> 1)*81920)
    A('s_waitcnt vmcnt(3)')
    A('s_barrier')
    trload(0, vR1)
    trload(160, vD3)
    A('s_waitcnt lgkmcnt(0)')
    A('s_barrier')
    stage(58, 81920)
    X.set(vR1, trb(w) + 81920)
    A(f's_and_b32 s{sT0}, s{sB}, 15')
    A(f's_mul_i32 s{sT0}, s{sT0}, 5')
    A(f'v_mov_b32 v{vT0}, s{sT0}')
    for u in range(5):
        uu = X.reg(vT0) + u
        X.set(vZu+u, (uu >> 1)*16384 + (uu & 1)*4096 + tid*16)
    A('s_waitcnt vmcnt(0)')
    A('s_barrier')
    trload(80, vR1)
    A(f's_lshr_b32 s{sZs}, s{sB}, 4')
    def fill(nph, flag):
        for q in range(4): A(f'v_mov_b32 v{vH+q}, -1')
        for ph in range(nph):
            A(f'v_readlane_b32 s{sT0}, v{vZt}, s{sZs}')
            if flag == 0:
                A(f's_cmp_lt_u32 s{sZs}, 3')
                A(f's_cselect_b32 s{sT0}, {OOB:#x}, s{sT0}')
            A(f's_add_u32 s{sZs}, s{sZs}, 8')
            A.nop(4)
            for u in range(5):
                A(f'buffer_store_dwordx4 v[{vH}:{vH+3}], v{vZu+u}, {WS}, s{sT0} offen sc1')
        A('s_waitcnt vmcnt(0)')
        A('s_barrier')
        A(f's_lshl_b32 s{sT0}, s{sB}, 2')
        A(f's_add_u32 s{sT0}, s{sT0}, {WS_ZFLAG + 512*flag}')
        A(f'buffer_store_dword v{vZf}, v{vZf}, {WS}, s{sT0} offen sc1')
    A(f's_cmp_lt_u32 s{sW}, 2')
    A(f's_cselect_b32 s{sC2}, {f2u(QSCALE):#x}, 1.0')
    A(f's_mov_b32 s{sC2+1}, s{sC2}')
    tq = lambda: (m_ & 2) + (w & 1)
    X.set(vGo, X.sel(('lt', w, 2), (c >> 3)*2048 + tq()*512 + (g*8 + (c & 7))*16 + 16384, tq()*1024 + L16))
    X.set(vXo, ((m_ & 2)*2 + w)*1024 + L16 + 8192)
    X.set(vRr, X.sel(('eq', tid, 0), m_*4 + WS_QP, OOB))
    A(f's_and_b32 s3, s{sM}, 1')
    A(f's_mul_i32 s{sO1}, s3, 40960')
    A(f's_mul_i32 s{sLB}, s{sW}, 5120')
    A(f's_add_u32 s{sO1}, s{sO1}, s{sLB}')
    A(f's_mul_i32 s{sO2}, s3, {XSEG}')
    A(f's_lshr_b32 s3, s{sM}, 2')
    A(f's_mul_i32 s3, s3, {XH}')
    A(f's_add_u32 s{sO2}, s{sO2}, s3')
    A(f's_add_u32 s{sO2}, s{sO2}, {WS_KX}')
    A(f's_mov_b32 s{sN}, 0')
    RG, XA, PK, PV = 40, 72, 84, 88
    def x_dma(buf, adv):
        o = [f's_add_u32 m0, s{sLB}, {20480*buf}', f's_add_u32 s{sT0}, s{sO1}, 4096']
        o += [f'buffer_load_dwordx4 v{vL16}, {WS}, s{sO1} offen offset:{1024*k} sc1 lds' for k in range(4)]
        o += [f's_add_u32 m0, s{sLB}, {20480*buf + 4096}', f's_add_u32 s{sO1}, s{sO1}, {adv}',
              f'buffer_load_dwordx4 v{vL16}, {WS}, s{sT0} offen sc1 lds']
        return o
    def x_tile(tt, young):
        A(f's_waitcnt vmcnt({young})')
        A('s_barrier')
        fl = x_dma(1 - tt, 61440 if tt == 0 else 20480)
        if tt == 1:
            fl = [f'v_mov_b32 v{vT0}, s{sN}', f'buffer_store_dword v{vT0}, v{vRr}, {WS}, 0 offen sc1'] + fl
        o = []
        rd = lambda t: f'ds_read_b128 v[{RG+4*(t%8)}:{RG+4*(t%8)+3}], v{vL16} offset:{20480*tt + 1024*t}'
        for t in range(6): o.append(rd(t))
        for t in range(20):
            o.append(f's_waitcnt lgkmcnt({min(20, t + 6) - t - 1})')
            f = v(RG + 4*(t % 8), 4)
            o.append(M32(v(XA, 4), a(4*t, 4), f, '0' if t == 0 else v(XA, 4)))
            o.append(M32(v(XA+4, 4), a(160+4*t, 4), f, '0' if t == 0 else v(XA+4, 4)))
            o.append(M32(v(XA+8, 4), f, a(80+4*t, 4), '0' if t == 0 else v(XA+8, 4)))
            if t + 6 < 20: o.append(rd(t + 6))
        emit(A, weave(o, fl, per=1))
        if tt: A(f's_add_u32 s{sT1}, s{sO2}, 4096')
        A.nop(6)
        for r in range(0, 8, 2): A(f'v_pk_mul_f32 v[{XA+r}:{XA+r+1}], v[{XA+r}:{XA+r+1}], s[{sC2}:{sC2+1}]')
        for r in range(4): A(f'v_cvt_pk_bf16_f32 v{PK+r}, v{XA+2*r}, v{XA+2*r+1}')
        A(f'buffer_store_dwordx4 v[{PK}:{PK+3}], v{vGo}, {WS}, s{sT1 if tt else sO2} offen sc1')
        for r in range(2): A(f'v_cvt_pk_bf16_f32 v{PV+2*tt+r}, v{XA+8+2*r}, v{XA+8+2*r+1}')
        if tt:
            A(f'buffer_store_dwordx4 v[{PV}:{PV+3}], v{vXo}, {WS}, s{sO2} offen sc1')
            A(f's_add_u32 s{sO2}, s{sO2}, {2*XSEG}')
            A(f's_add_u32 s{sN}, s{sN}, 1')
    wait_start(A, R4, vT0, 26, sTO, 'b_start', 'bulk_abort', sleep=2)
    emit(A, x_dma(0, 20480))
    x2_table(A, X, L, vZt, 26, 54, vT1)
    st()
    A('s_waitcnt vmcnt(0) lgkmcnt(0)')
    A.label('q_loop')
    x_tile(0, 2); x_tile(1, 1)
    A(f's_cmp_eq_u32 s{sN}, 1')
    A('s_cbranch_scc1 q_fill0')
    A(f's_cmp_eq_u32 s{sN}, 6')
    A('s_cbranch_scc1 q_fill')
    A(f's_cmp_eq_u32 s{sN}, 16')
    A('s_cbranch_scc1 q_fill2')
    A.label('q_back')
    A(f's_cmp_lt_u32 s{sN}, 32')
    A('s_cbranch_scc1 q_loop')
    A('s_branch q_done')
    A.label('q_fill0')
    A('s_waitcnt vmcnt(0)')
    A('s_barrier')
    A(f'v_mov_b32 v{vT0}, 1')
    A(f'buffer_store_dword v{vT0}, v{vRr}, {WS}, 0 offen sc1')
    fill(1, 0)
    A('s_branch q_back')
    A.label('q_fill')
    fill(2, 1)
    A('s_branch q_back')
    A.label('q_fill2')
    fill(5, 2)
    A('s_branch q_back')
    A.label('q_done')
    A('s_waitcnt vmcnt(0)')
    A('s_barrier')
    A(f'v_mov_b32 v{vT0}, 64')
    A(f'buffer_store_dword v{vT0}, v{vRr}, {WS}, 0 offen sc1')
    st()
    srd(A, sR1, 44, DM*FF*2)
    srd(A, sR2, 46, DM*FF*2)
    srd(A, sR3, 48, FF*DM*2)
    jj, qq = (lambda: b >> 2), (lambda: b & 3)
    X.set(vT2, X.sel(('lt', tid, 160), ((tid >> 3)*32 + jj())*3456 + ((tid & 7)*4 + qq())*128, OOB))
    A(f'buffer_load_dword v{vWF}, v{vT2}, {R1}, 0 offen')
    A(f'buffer_load_dword v{vWF+1}, v{vT2}, {R2}, 0 offen')
    X.set(vT3, (tid*6554) >> 16)
    rr = X.reg(vT3)
    X.set(vT2, X.sel(('lt', tid, 140), (((rr >> 1)*4 + qq())*64 + (rr & 1)*32 + jj())*1280 + (tid - rr*10)*128, OOB))
    A(f'buffer_load_dword v{vWF+2}, v{vT2}, {R3}, 0 offen')
    A(f's_and_b32 s{sTile}, s{sB}, 0x7c')
    A(f's_add_u32 s{sTile}, s{sTile}, s{sW}')
    A(f's_mul_i32 s{sT0}, s{sTile}, 20480')
    for t in range(20):
        if t and t % 4 == 0: A(f's_add_u32 s{sT0}, s{sT0}, 4096')
        A(f'buffer_load_dwordx4 a[{4*t}:{4*t+3}], v{vL16}, {WS}, s{sT0} offen offset:{1024*(t%4)} sc1')
    st()
    X.set(vD1, (w*8 + (L >> 3))*3456 + ((((L >> 1) & 3) ^ (((L >> 4) & 1) | ((w & 1) << 1)))*2 + (L & 1))*16)
    for i, dst in enumerate((vD2, vD3)):
        X.set(dst, (w*8 + (L >> 4) + 4*i)*1280 + ((((L >> 1) & 7) ^ ((L >> 4) + 4*i))*2 + (L & 1))*16)
    for tl in range(4):
        X.set(vR1b+tl, (g*8 + ((L >> 2) & 3))*128 + ((((L >> 3) & 1) | ((g & 1) << 1)) ^ tl)*32 + (L & 3)*8)
        X.set(vR1b+4+tl, X.reg(vR1b+tl) + 65536)
    for n in range(8):
        X.set(vR2n+n, (g*4 + ((L >> 2) & 3))*256 + ((((g & 1)*4 + ((L >> 2) & 3)) ^ n)*32) + (L & 3)*8)
        X.set(vR2n+8+n, X.reg(vR2n+n) + 65536)
    A(f'v_mov_b32 v{vT0}, 0')
    for r in range(160): A(f'v_accvgpr_write_b32 a{80+r}, v{vT0}')
    A(f's_cmp_lt_u32 s{sQ}, 3')
    A(f's_cselect_b32 s{sN}, 7, 6')
    A(f's_lshl_b32 s{sO1}, s{sQ}, 7')
    A(f's_mul_i32 s{sO2}, s{sQ}, {64*1280}')
    A(f's_lshl_b32 s{sLB}, s{sW}, 10')
    A(f's_lshl_b32 s{sRB}, s{sW}, 11')
    NS, NC = 15, 30
    def issue(ci, nxt):
        o = []; lb = (ci % NS) * 8192
        if ci < 20:
            for m, sr in enumerate((R1, R2)):
                o.append(f's_add_u32 m0, s{sLB}, {lb + m*4096}')
                o.append(f's_add_u32 s{sT0}, s{sO1}, {ci*32*3456 + nxt*512}')
                o.append(f'buffer_load_dwordx4 v{vD1}, {sr}, s{sT0} offen lds')
        else:
            hb, cc = (ci - 20) // 5, (ci - 20) % 5
            for i in range(2):
                o.append(f's_add_u32 m0, s{sRB}, {lb + i*1024}')
                o.append(f's_add_u32 s{sT0}, s{sO2}, {hb*32*1280 + cc*256}')
                o.append(f'buffer_load_dwordx4 v{vD2 if i == 0 else vD3}, {R3}, s{sT0} offen lds')
        return o
    A('s_waitcnt vmcnt(0)')
    for ci in range(NS - 1): emit(A, issue(ci, 0))
    A.label('ffn_loop')
    for ci in range(NC):
        A(f's_waitcnt vmcnt({2*(NS-2)})')
        A('s_barrier')
        lb = (ci % NS) * 8192
        hi = 1 if lb >= 65536 else 0
        lb -= hi*65536
        nx = issue((ci + NS - 1) % NC, 1 if ci + NS - 1 >= NC else 0)
        mf = []
        if ci < 20:
            for n in range(8):
                m, tl = n >> 2, n & 3
                r = vWF + 4*n
                A(f'ds_read_b64_tr_b16 v[{r}:{r+1}], v{vR1b+4*hi+tl} offset:{lb + m*4096}')
                A(f'ds_read_b64_tr_b16 v[{r+2}:{r+3}], v{vR1b+4*hi+tl} offset:{lb + m*4096 + 512}')
            for n in range(8):
                mf.append(f's_waitcnt lgkmcnt({2*(7-n)})')
                mf.append(M32(v(vA1+4*n, 4), v(vWF+4*n, 4), a(4*ci, 4), '0' if ci == 0 else v(vA1+4*n, 4)))
        else:
            hb, cc = (ci - 20) // 5, (ci - 20) % 5
            for n in range(8):
                r = vWF + 4*n
                A(f'ds_read_b64_tr_b16 v[{r}:{r+1}], v{vR2n+8*hi+n} offset:{lb}')
                A(f'ds_read_b64_tr_b16 v[{r+2}:{r+3}], v{vR2n+8*hi+n} offset:{lb + 4096}')
            if ci == 20:
                for tl in range(4):
                    for r in (0, 2):
                        gx, ux = vA1 + 4*tl + r, vA1 + 16 + 4*tl + r
                        rbf2(A, gx, gx+1, vT0); rbf2(A, ux, ux+1, vT0)
                        silu(A, gx, vT0); silu(A, gx+1, vT1)
                        rbf2(A, gx, gx+1, vT0)
                        A(f'v_mul_f32 v{gx}, v{gx}, v{ux}')
                        A(f'v_mul_f32 v{gx+1}, v{gx+1}, v{ux+1}')
                        A(f'v_cvt_pk_bf16_f32 v{vH+2*tl+r//2}, v{gx}, v{gx+1}')
                A('s_nop 0')
            for n in range(8):
                ct = cc*8 + n
                mf.append(f's_waitcnt lgkmcnt({2*(7-n)})')
                mf.append(M32(a(80+4*ct, 4), v(vWF+4*n, 4), v(vH+4*hb, 4), a(80+4*ct, 4)))
        emit(A, weave(mf, nx, per=1))
    A(f's_add_u32 s{sO1}, s{sO1}, 512')
    A(f's_add_u32 s{sO2}, s{sO2}, {256*1280}')
    A(f's_sub_u32 s{sN}, s{sN}, 1')
    A(f's_cmp_lg_u32 s{sN}, 0')
    A('s_cbranch_scc1 ffn_loop')
    A('s_waitcnt vmcnt(0)')
    A('s_barrier')
    st()
    A(f's_lshl_b32 s{sT0}, s{sQ}, 7')
    A(f's_add_u32 s{sT0}, s{sT0}, s{sTile}')
    A(f's_mul_i32 s{sT0}, s{sT0}, 40960')
    A(f's_add_u32 s{sT0}, s{sT0}, {WS_G}')
    for ct in range(40):
        if ct and ct % 4 == 0: A(f's_add_u32 s{sT0}, s{sT0}, 4096')
        A(f'buffer_store_dwordx4 a[{80+4*ct}:{80+4*ct+3}], v{vL16}, {WS}, s{sT0} offen offset:{1024*(ct%4)} sc1')
    A('s_waitcnt vmcnt(0)')
    A('s_barrier')
    A(f's_lshl_b32 s{sT0}, s{sB}, 2')
    A(f's_add_u32 s{sT0}, s{sT0}, {WS_GFLAG}')
    A(f'buffer_store_dword v{vZf}, v{vZf}, {WS}, s{sT0} offen sc1')
    A(f's_cmp_ge_u32 s{sB}, 120')
    A('s_cbranch_scc1 bulk_end')
    A(f's_mul_i32 s{sTile}, s{sB}, 3277')
    A(f's_lshr_b32 s{sTile}, s{sTile}, 16')
    A(f's_mul_i32 s3, s{sTile}, 20')
    A(f's_sub_u32 s{sNG}, s{sB}, s3')
    srd(A, sR1, 56, 4096*DM*2)
    srd(A, sR2, 60, S_TOK*DM*2)
    srd(A, sR3, 50, S_TOK*DM*2)
    X.set(vD1, (L >> 2)*1280 + (L & 3)*16)
    X.set(vR1, w*40960 + (g*4 + ((L >> 2) & 3))*64 + (L & 3)*8)
    A(f's_mul_i32 s{sO1}, s{sW}, {1024*1280}')
    A(f's_lshl_b32 s3, s{sNG}, 6')
    A(f's_add_u32 s{sO1}, s{sO1}, s3')
    A(f's_mul_i32 s{sLB}, s{sW}, 40960')
    for rnd in range(2):
        for i in range(32):
            A(f's_add_u32 m0, s{sLB}, {1024*i}')
            A(f's_add_u32 s{sT1}, s{sO1}, {(rnd*512 + i*16)*1280}')
            A(f'buffer_load_dwordx4 v{vD1}, {R1}, s{sT1} offen lds')
        A('s_waitcnt vmcnt(0)')
        for t in range(16):
            for tl in range(2):
                r = ((rnd*16 + t)*2 + tl)*4
                A(f'ds_read_b64_tr_b16 a[{r}:{r+1}], v{vR1} offset:{t*2048 + tl*32}')
                A(f'ds_read_b64_tr_b16 a[{r+2}:{r+3}], v{vR1} offset:{t*2048 + tl*32 + 1024}')
            if t % 2 == 1: A('s_waitcnt lgkmcnt(4)')
        A('s_waitcnt lgkmcnt(0)')
    X.set(vRw, w*2048 + L16)
    X.set(vRr, (w & 1)*1024 + L16)
    X.set(vD2, w*32768 + L16)
    X.set(vGo, (w & 1)*1024 + L16)
    X.set(vXo, c*1280 + (w & 1)*32 + g*8)
    if stamps: X.set(vD3, X.sel(('lt', tid, 8), tid*4, OOB))
    spin_flags(A, 'g_poll', 'g_ok', WS_GFLAG, 8)
    A.label('g_ok')
    A('s_barrier')
    st()
    A(f's_mov_b32 s{sRB}, 0')
    A.label('op_loop')
    A(f's_lshr_b32 s{sT0}, s{sTile}, 1')
    A(f's_cmp_ge_u32 s{sT0}, 62')
    A('s_cbranch_scc1 op_final')
    A(f's_lshl_b32 s{sT0}, s{sT0}, 7')
    A(f's_add_u32 s{sT0}, s{sT0}, {WS_PROG}')
    A(f'v_mov_b32 v{vT2}, 0')
    A.label('p_poll')
    A(f'buffer_load_dword v{vT0}, v{vT2}, {WS}, s{sT0} offen sc1')
    A('s_waitcnt vmcnt(0)')
    A(f'v_cmp_eq_u32 vcc, -1, v{vT0}')
    A('s_cbranch_vccz op_go')
    A('s_sleep 8')
    A(f's_sub_u32 s{sTO}, s{sTO}, 1')
    A('s_cbranch_scc0 p_poll')
    A('s_branch bulk_abort')
    spin_flags(A, 'op_final', 'op_go', WS_FLAG, 2)
    A.label('op_go')
    A(f's_lshl_b32 s{sT0}, s{sTile}, 17')
    A(f's_add_u32 s{sT0}, s{sT0}, {WS_OF}')
    for t in range(32):
        if t and t % 4 == 0: A(f's_add_u32 s{sT0}, s{sT0}, 4096')
        A(f'buffer_load_dwordx4 v[{vOF+4*t}:{vOF+4*t+3}], v{vD2}, {WS}, s{sT0} offen offset:{1024*(t%4)} sc1')
    A(f's_mul_i32 s{sT0}, s{sTile}, 20480')
    A(f's_lshl_b32 s{sT1}, s{sNG}, 10')
    A(f's_add_u32 s{sT1}, s{sT1}, s{sT0}')
    A(f's_lshl_b32 s{sT1}, s{sT1}, 1')
    A(f's_add_u32 s{sT1}, s{sT1}, {WS_G}')
    for q in range(4):
        A(f'buffer_load_dwordx4 v[{vY+4*q}:{vY+4*q+3}], v{vGo}, {WS}, s{sT1} offen sc1')
        if q < 3: A(f's_add_u32 s{sT1}, s{sT1}, {128*40960}')
    A(f's_lshl_b32 s{sT1}, s{sNG}, 6')
    A(f's_add_u32 s{sO2}, s{sT1}, s{sT0}')
    A(f'buffer_load_dwordx2 v[{vH+2}:{vH+3}], v{vXo}, {R2}, s{sO2} offen')
    for t in range(32):
        A(f's_waitcnt vmcnt({36-t})')
        for tl in range(2):
            A(M32(v(vA1+4*tl, 4), a((2*t+tl)*4, 4), v(vOF+4*t, 4), '0' if t == 0 else v(vA1+4*tl, 4)))
    A(f'v_add_u32 v{vT2}, s{sRB}, v{vRw}')
    A(f'v_add_u32 v{vT3}, s{sRB}, v{vRr}')
    A.nop(6)
    A(f'ds_write_b128 v{vT2}, v[{vA1}:{vA1+3}]')
    A(f'ds_write_b128 v{vT2}, v[{vA1+4}:{vA1+7}] offset:1024')
    A(f's_xor_b32 s{sRB}, s{sRB}, 8192')
    A('s_waitcnt lgkmcnt(0)')
    A('s_barrier')
    A(f's_cmp_ge_u32 s{sW}, 2')
    A('s_cbranch_scc1 op_next')
    for p in range(4): A(f'ds_read_b128 v[{vWF+4*p}:{vWF+4*p+3}], v{vT3} offset:{2048*p}')
    A('s_waitcnt vmcnt(0) lgkmcnt(0)')
    for r in range(4):
        for bs in (vWF, vY):
            A(f'v_add_f32 v{bs+r}, v{bs+r}, v{bs+4+r}')
            A(f'v_add_f32 v{bs+8+r}, v{bs+8+r}, v{bs+12+r}')
            A(f'v_add_f32 v{bs+r}, v{bs+r}, v{bs+8+r}')
    for r in (0, 2):
        s0, s1 = vWF+r, vWF+r+1
        rbf2(A, vY+r, vY+r+1, vT0)
        silu(A, vY+r, vT0); silu(A, vY+r+1, vT1)
        rbf2(A, vY+r, vY+r+1, vT0)
        rbf2(A, s0, s1, vT0)
        A(f'v_mul_f32 v{s0}, v{s0}, v{vY+r}')
        A(f'v_mul_f32 v{s1}, v{s1}, v{vY+r+1}')
        rbf2(A, s0, s1, vT0)
        A(f'v_lshlrev_b32 v{vT0}, 16, v{vH+2+r//2}')
        A(f'v_and_b32 v{vT1}, 0xffff0000, v{vH+2+r//2}')
        A(f'v_add_f32 v{s0}, v{s0}, v{vT0}')
        A(f'v_add_f32 v{s1}, v{s1}, v{vT1}')
        A(f'v_cvt_pk_bf16_f32 v{vWF+16+r//2}, v{s0}, v{s1}')
    A(f'buffer_store_dwordx2 v[{vWF+16}:{vWF+17}], v{vXo}, {R3}, s{sO2} offen')
    A.label('op_next')
    A(f's_add_u32 s{sTile}, s{sTile}, 6')
    A(f's_cmp_lt_u32 s{sTile}, 128')
    A('s_cbranch_scc1 op_loop')
    if stamps:
        A('s_waitcnt vmcnt(0)')
        st()
        for q in range(nst[0]): A(f'v_writelane_b32 v{vT0}, s{70+2*q}, {q}')
        A(f's_lshl_b32 s{sT0}, s{sB}, 6')
        A(f's_add_u32 s{sT0}, s{sT0}, {WS_DBG + 0x400000}')
        A(f'buffer_store_dword v{vT0}, v{vD3}, {WS}, s{sT0} offen')
    A('s_endpgm')
    A.label('bulk_abort')
    A(f'v_mov_b32 v{vT0}, 9')
    A(f'v_mov_b32 v{vT1}, 4')
    A(f'buffer_store_dword v{vT0}, v{vT1}, {R4}, 0 offen')
    A.label('bulk_end')
    A('s_endpgm')
```

```python
from k7_common import *
NEG = -1.0e30
L_MEM = 0
L_Q   = 10240
L_K   = L_Q + 2048
L_O   = L_K + 2048
L_QX  = L_O + 8192
L_KX  = L_QX + 2048
L_XN  = 40960
LDS_BYTES = 163840
assert L_KX + 8192 <= L_XN
sWS, sWT, sC2 = 4, 8, 12
sKXm, sQXr = 14, 15
sCnt = 16
sPar, sQok = 28, 29
sW, sG, sJ, sH, sA, sStep, sTO, sXw = 30, 31, 32, 33, 34, 35, 36, 37
sX3r, sX1, sX2, sX3w, sVXr, sX2L, sXr, sT0, sT1, sOF, sNH = 38, 39, 40, 41, 42, 44, 45, 46, 47, 48, 49
sX3G, sX1H, sDB, sXNg, sHoff, sT2 = 50, 51, 52, 53, 54, 55
sST = 56
sWarm, sLrng, sZn, sZo = 88, 89, 90, 91
vDbg, vX2tab = 0, 1
vX3ld, vMemR, vX1st, vV1st, vQKld, vQKw, vQr, vKr, vVMld, vOw = 2, 3, 4, 5, 6, 7, 8, 9, 10, 11
vX2st, vSR, vOFst, vL16, vKXr, vXNr, vXA, vM2, vM = 12, 13, 14, 15, 16, 17, 18, 19, 20
vR = 21
vT0, vT1, vT2, vT3, vRinv, vRinv1 = 30, 31, 32, 33, 34, 35
vPL = 36
vBias = 40
vLS = 48
vVE = 52
vWO = 56
vKX = 104
vVX = 136
vS = 144
vAcc = 156
vAcc2 = 160
vP = 164
vVM4 = 168
vXACC = 172
vOFR = 184
vSent4 = 188
vRG = 192
vPS = 224
vQS = 248
aSel, aOne, aSelH, aOneM = 240, 244, 248, 252
WS = f's[{sWS}:{sWS+3}]'

class Stamp:
    def __init__(self, A, on): self.A, self.on, self.n = A, on, 0
    def __call__(self, lvl=2):
        if self.on >= lvl:
            self.A(f'{"s_memrealtime" if self.on == 3 else "s_memtime"} s[{sST+2*self.n}:{sST+2*self.n+1}]')
            self.A('s_waitcnt lgkmcnt(0)')
            self.n += 1
    def flush(self):
        if not self.on: return
        A = self.A
        for k in range(self.n): A(f'v_writelane_b32 v{vT3}, s{sST+2*k}, {k}')
        for k in range(5): A(f'v_writelane_b32 v{vT3}, s{sCnt+k}, {10+k}')
        A(f'v_writelane_b32 v{vT3}, s100, 15')
        A(f's_lshl_b32 s{sT0}, s{sStep}, 6')
        A(f's_add_u32 s{sT0}, s{sT0}, s{sDB}')
        A(f'buffer_store_dword v{vT3}, v{vDbg}, {WS}, s{sT0} offen')

def slot_list(add):
    return [
    f's_add_u32 s{sT0}, s{sStep}, {add}',
    f's_and_b32 s{sT1}, s{sT0}, 63',
    f's_and_b32 s{sT0}, s{sT0}, 3',
    f's_mul_i32 s{sX3r}, s{sT0}, {X3_SLOT}',
    f's_add_u32 s{sX3r}, s{sX3r}, s{sX3G}',
    f'v_readlane_b32 s{sX2}, v{vX2tab}, s{sT1}',
    f's_mul_i32 s{sX2L}, s{sT0}, {X2_SLOT}',
    f's_add_u32 s{sX2L}, s{sX2L}, {WS_X2L}',
    f's_mul_i32 s{sX1}, s{sT0}, {X1_SLOT}',
    f's_add_u32 s{sX1}, s{sX1}, s{sX1H}',
    f's_add_u32 s{sT0}, s{sT0}, 1',
    f's_and_b32 s{sT0}, s{sT0}, 3',
    f's_mul_i32 s{sX3w}, s{sT0}, {X3_SLOT}',
    f's_add_u32 s{sX3w}, s{sX3w}, s{sX3G}']
def reset_list(fl):
    S4 = f'v[{vSent4}:{vSent4+3}]'
    o = [f's_add_u32 s{sT2}, s{sStep}, 2', f's_and_b32 s{sT2}, s{sT2}, 3',
         f's_mul_i32 s{sT0}, s{sT2}, {X2_SLOT}', f's_add_u32 s{sT0}, s{sT0}, {WS_X2L}']
    for i in range(3):
        o.append(f'buffer_store_dwordx4 {S4}, v{vR if i < 2 else vR+1}, {WS}, s{sT0} offen{fl}')
        if i < 2: o.append(f's_add_u32 s{sT0}, s{sT0}, 32768')
    o += [f's_mul_i32 s{sT1}, s{sT2}, {X1_SLOT}', f's_add_u32 s{sT1}, s{sT1}, s{sX1H}',
          f'buffer_store_dwordx4 {S4}, v{vR+2}, {WS}, s{sT1} offen{fl}',
          f'buffer_store_dwordx4 {S4}, v{vR+2}, {WS}, s{sT1} offen offset:1024{fl}',
          f's_add_u32 s{sT2}, s{sT2}, 1', f's_and_b32 s{sT2}, s{sT2}, 3',
          f's_mul_i32 s{sT1}, s{sT2}, {X3_SLOT}', f's_add_u32 s{sT1}, s{sT1}, s{sX3G}',
          f'buffer_store_dwordx4 {S4}, v{vR+3}, {WS}, s{sT1} offen{fl}']
    return o
def kv_list():
    return [f's_add_u32 m0, s{sKXm}, {L_KX}', f's_add_u32 s{sVXr}, s{sXr}, 8192',
            f'buffer_load_dwordx4 v{vL16}, {WS}, s{sXr} offen sc1 lds',
            f'buffer_load_dwordx4 v{vL16}, {WS}, s{sXr} offen offset:1024 sc1 lds',
            f'buffer_load_dwordx4 v[{vVX}:{vVX+3}], v{vL16}, {WS}, s{sVXr} offen sc1',
            f'buffer_load_dwordx4 v[{vVX+4}:{vVX+7}], v{vL16}, {WS}, s{sVXr} offen offset:1024 sc1',
            f's_add_u32 s{sXr}, s{sXr}, {XSEG}']
def qx_list():
    return [f's_mov_b32 m0, {L_QX}', 's_nop 0',
            f'buffer_load_dwordx4 v{vL16}, {WS}, s{sQXr} offen sc1 lds',
            f'buffer_load_dwordx4 v{vL16}, {WS}, s{sQXr} offen offset:1024 sc1 lds',
            f's_add_u32 s{sQXr}, s{sQXr}, {XSEG}']
def bounded(A, top, code):
    A(f's_sub_u32 s{sTO}, s{sTO}, 1')
    A(f's_cbranch_scc0 {top}')
    A(f's_mov_b32 s{sT0}, {code}')
    A('s_branch chain_abort')
def slow_poll(A, lab, back, issue, consume, nl, code, cnt):
    A.label(lab)
    for k in (0, 1):
        if cnt is not None: A(f's_add_u32 s{cnt}, s{cnt}, 1')
        emit(A, issue(k))
        A(f's_waitcnt vmcnt({nl})')
        emit(A, consume(1 - k))
        A(f's_cbranch_vccz {back}')
    bounded(A, lab, code)
def qp_wait(A, lab, back, shifts=(2, 1)):
    A.label(lab)
    A(f'buffer_load_dword v{vT0}, v{vR}, {WS}, 0 offen sc1')
    A('s_waitcnt vmcnt(0)')
    for sh in shifts:
        A(f'v_min_i32_dpp v{vT0}, v{vT0}, v{vT0} row_ror:{sh} row_mask:0xf bank_mask:0xf')
        A('s_nop 1')
    A(f'v_readfirstlane_b32 s{sQok}, v{vT0}')
    A(f's_cmp_ge_i32 s{sQok}, s{sT1}')
    A(f's_cbranch_scc1 {back}')
    bounded(A, lab, 9)

def gen_loop(A, tag, fl, role, stamps, P):
    wv = dict(D=0, A=1, B=2, E=2, C=3)[role]
    st = Stamp(A, stamps)
    isA = role in 'AD'
    recv = not isA
    NU = 2 if role == 'E' else 1
    N3 = 3 if isA else 2
    cn = (lambda k: sCnt + k) if stamps else (lambda k: None)
    br = lambda nm: f's_cbranch_vccnz {nm}_{tag}' if nm not in P.get('nock', '') else 's_nop 2'
    tails = []
    def x3_issue(k):
        r = vPS + 12*k
        return [f'buffer_load_dwordx4 v[{r+4*i}:{r+4*i+3}], v{vX3ld}, {WS}, s{sX3r} offen offset:{1024*i} sc1' for i in range(N3)]
    def x3_consume(k):
        r = vPS + 12*k
        return [f'ds_write_b128 v{vX3ld}, v[{r+4*i}:{r+4*i+3}] offset:{1024*i}' for i in range(N3)] + \
               check_sent(range(r, r+4*N3), vT0) + ['s_waitcnt lgkmcnt(0)']
    def qk_issue(k):
        return [f'buffer_load_dwordx4 v[{vQS+4*k}:{vQS+4*k+3}], v{vQKld}, {WS}, s{sX1} offen sc1']
    def qk_consume(k):
        return [f'ds_write_b128 v{vQKw}, v[{vQS+4*k}:{vQS+4*k+3}]'] + check_sent(range(vQS+4*k, vQS+4*k+4), vT0) + ['s_waitcnt lgkmcnt(0)']
    def x2_issue():
        return [f'buffer_load_dwordx4 v[{vKX+16*u+4*L}:{vKX+16*u+4*L+3}], v{vR+4*u+L}, {WS}, s{sX2 if L < 3 else sX2L} offen sc1'
                for L in range(4) for u in range(NU)]
    def x2_consume():
        mf = [M32(v(vAcc, 4), a(aSel if i < 4 else aSelH, 4), v(vKX+4*i, 4), '0' if i == 0 else v(vAcc, 4)) for i in range(4*NU)]
        return weave(mf, check_sent(range(vKX, vKX+16*NU), vT0)) + ['s_nop 3']
    top_young = N3

    A.label(f'entry_{tag}')
    emit(A, x3_issue(0))
    A('s_waitcnt vmcnt(0)')
    emit(A, x3_issue(1))
    if stamps:
        A('s_memrealtime s[96:97]')
        A('s_waitcnt lgkmcnt(0)')
    A.label(f'loop_{tag}')
    if stamps: A('s_memrealtime s[100:101]')
    st(1)
    A(f's_waitcnt vmcnt({top_young})')
    emit(A, x3_consume(0))
    A(br('x3s'))
    A.label(f'x3ok_{tag}')
    tails.append(lambda: slow_poll(A, f'x3s_{tag}', f'x3ok_{tag}', x3_issue, x3_consume, N3, 1, cn(0)))
    A('s_barrier')
    st()
    MF = lambda i: (vRG + 4*i) if i < 8 else (vS + 4*(i-8))
    for i in range(10): A(f'ds_read_b128 v[{MF(i)}:{MF(i)+3}], v{vMemR} offset:{1024*i}')
    for i in range(10):
        A(f's_waitcnt lgkmcnt({9-i})')
        A(M32(v(vAcc, 4), a(8*i, 4), v(MF(i), 4), '0' if i == 0 else v(vAcc, 4)))
        A(M32(v(vAcc2, 4), a(8*i+4, 4), v(MF(i), 4), '0' if i == 0 else v(vAcc2, 4)))
    vm = [M32(v(vVE, 4), v(MF(i), 4), a(80+4*i, 4), '0' if i == 0 else v(vVE, 4)) for i in range(10)]
    emit(A, vm[:3])
    for r in range(4): A(f'v_add_f32_dpp v{vAcc+r}, v{vAcc2+r}, v{vAcc+r} row_ror:8 row_mask:0xf bank_mask:0xf')
    if isA:
        A(f'v_pk_mul_f32 v[{vAcc}:{vAcc+1}], v[{vAcc}:{vAcc+1}], s[{sC2}:{sC2+1}]')
        A(f'v_pk_mul_f32 v[{vAcc+2}:{vAcc+3}], v[{vAcc+2}:{vAcc+3}], s[{sC2}:{sC2+1}]')
    A(f'v_cvt_pk_bf16_f32 v{vT0}, v{vAcc}, v{vAcc+1}')
    A(f'v_cvt_pk_bf16_f32 v{vT1}, v{vAcc+2}, v{vAcc+3}')
    A(f'v_min_u32 v{vT0}, -2, v{vT0}')
    A(f'v_min_u32 v{vT1}, -2, v{vT1}')
    A(f'buffer_store_dwordx2 v[{vT0}:{vT1}], v{vX1st}, {WS}, s{sX1} offen{fl}')
    st(3)
    QR = [vQS, vQS+4, vXACC, vXACC+4]
    qi = lambda k: f'buffer_load_dwordx4 v[{QR[k]}:{QR[k]+3}], v{vQKld}, {WS}, s{sX1} offen sc1'
    qc = lambda k: [f'ds_write_b128 v{vQKw}, v[{QR[k]}:{QR[k]+3}]'] + check_sent(range(QR[k], QR[k]+4), vT0) + ['s_waitcnt lgkmcnt(0)']
    emit(A, weave(vm[3:], [(P['qkA'], qi(0))]))
    for k in range(8):
        A(f'ds_read_b128 v[{vKX+4*k}:{vKX+4*k+3}], v{vL16} offset:{L_KX + 1024*k}')
        if k == 3 and P['q4']: A(qi(2))
    A(f'v_cvt_pk_bf16_f32 v{vT2}, v{vVE}, v{vVE+1}')
    A(f'v_cvt_pk_bf16_f32 v{vT3}, v{vVE+2}, v{vVE+3}')
    A(f'v_min_u32 v{vT2}, -2, v{vT2}')
    A(f'v_min_u32 v{vT3}, -2, v{vT3}')
    A(f'buffer_store_dwordx2 v[{vT2}:{vT3}], v{vV1st}, {WS}, s{sX1} offen{fl}')
    if role == 'A':
        A(f's_add_u32 s{sT1}, s{sStep}, 3')
        A(f's_lshr_b32 s{sT1}, s{sT1}, 1')
        A(f's_cmp_lt_i32 s{sQok}, s{sT1}')
        A(f's_cbranch_scc1 qp_{tag}')
        A.label(f'qpok_{tag}')
        tails.append(lambda: qp_wait(A, f'qp_{tag}', f'qpok_{tag}'))
    if P['q4']:
        A(qi(3))
        A.nop(P['q4'])
    if P['qkgap']: A.nop(P['qkgap'])
    A(qi(1))
    st()
    A(f's_waitcnt vmcnt({4 if P["q4"] else 2})')
    emit(A, qc(0))
    A(br('qks'))
    A.label(f'qkok_{tag}')
    def qk_slow():
        A.label(f'qks_{tag}')
        if P['q4']:
            for k, n in ((2, 3), (3, 1)):
                if stamps: A(f's_add_u32 s{sCnt+1}, s{sCnt+1}, 1')
                A(f's_waitcnt vmcnt({n})')
                emit(A, qc(k))
                A(f's_cbranch_vccz qkok_{tag}')
        slow_poll(A, f'qkt_{tag}', f'qkok_{tag}', qk_issue, qk_consume, 1, 2, cn(1))
    tails.append(qk_slow)
    vm_ld = f'buffer_load_dwordx4 v[{vVM4}:{vVM4+3}], v{vVMld}, {WS}, s{sX1} offen sc1'
    A(vm_ld)
    A('s_barrier')
    st()
    QF, KF = vRG, vRG + 16
    for t in range(4): A(f'ds_read_b128 v[{QF+4*t}:{QF+4*t+3}], v{vQr} offset:{512*t}')
    for t in range(4): A(f'ds_read_b128 v[{KF+4*t}:{KF+4*t+3}], v{vKr} offset:{512*t}')
    def smf(i, t):
        src = (vKX + 4*t, vKX + 16 + 4*t, KF + 4*t)[i]
        return M32(v(vS+4*i, 4), v(src, 4), v(QF+4*t, 4), (v(vBias+4*i, 4) if i < 2 else '0') if t == 0 else v(vS+4*i, 4))
    E = lambda r: f'v_exp_f32 v{vS+r}, v{vS+r}'
    C = lambda d, r: f'v_cvt_pk_bf16_f32 v{d}, v{vS+r}, v{vS+r+1}'
    for t in range(4):
        A(f's_waitcnt lgkmcnt({7-t})')
        A(smf(0, t))
    for t in range(4):
        A(f's_waitcnt lgkmcnt({3-t})')
        A(smf(2, t))
        if t >= 2: A(E(t - 2))
    A(smf(1, 0)); A(E(2))
    A(smf(1, 1)); A(E(3))
    A(smf(1, 2)); A(E(8))
    A(smf(1, 3)); A(E(9))
    A(E(10)); A(E(11))
    if P.get('att'): st()
    A('s_waitcnt vmcnt(0)')
    if P.get('att'): st()
    emit(A, check_sent(range(vVM4, vVM4+4), vT2))
    A(C(vPL, 8)); A(C(vPL+1, 10))
    A(E(4))
    A(br('pvs'))
    A.label(f'pvok_{tag}')
    def pv_slow():
        A.label(f'pvs_{tag}')
        if stamps: A(f's_add_u32 s{sCnt+2}, s{sCnt+2}, 1')
        A(vm_ld)
        A('s_waitcnt vmcnt(0)')
        emit(A, check_sent(range(vVM4, vVM4+4), vT2))
        A(f's_cbranch_vccz pvok_{tag}')
        bounded(A, f'pvs_{tag}', 3)
    tails.append(pv_slow)
    pvm = [M16(v(vAcc, 4), v(vVM4, 2), v(vPL, 2), '0'), M16(v(vAcc2, 4), v(vVM4+2, 2), v(vPL, 2), '0'),
           M16(v(vLS, 4), a(aOneM, 2), v(vPL, 2), '0')]
    A(pvm[0]); A(E(5))
    if role == 'A' and P['tatt']: A(f'buffer_load_dword v{vM2+0 if False else vXA}, v{vR+4}, {WS}, s{sWarm} offen sc1')
    if role == 'D' and P['tlb']: A(f'buffer_load_dword v{vXA}, v{vR+6}, {WS}, s{sXw} offen sc1')
    A(pvm[1]); A(E(6))
    A(pvm[2]); A(E(7))
    A(C(vP, 0)); A(C(vP+1, 2)); A(C(vP+2, 4)); A(C(vP+3, 6))
    A('s_nop 1')
    if P.get('att'): st()
    D = vPS
    NTL = 3 if isA else 2
    def pv_fin():
        A(M32(v(vAcc, 4), v(vVX, 4), v(vP, 4), v(vAcc, 4)))
        A(M32(v(vAcc2, 4), v(vVX+4, 4), v(vP, 4), v(vAcc2, 4)))
        A(M32(v(vLS, 4), a(aOne, 4), v(vP, 4), v(vLS, 4)))
        A.nop(P['pvnop'])
        A(f'v_cvt_pk_bf16_f32 v{vOFR}, v{vAcc}, v{vAcc+1}')
        A(f'v_cvt_pk_bf16_f32 v{vOFR+1}, v{vAcc+2}, v{vAcc+3}')
        A(f'v_cvt_pk_bf16_f32 v{vOFR+2}, v{vAcc2}, v{vAcc2+1}')
        A(f'v_cvt_pk_bf16_f32 v{vOFR+3}, v{vAcc2+2}, v{vAcc2+3}')
        A(f'ds_write_b128 v{vOw}, v[{vOFR}:{vOFR+3}]')
        A(f'v_rcp_f32 v{vRinv}, v{vLS}')
        for k in range(NTL): A(M32(v(D+4*k, 4), v(vWO+16*k+4*wv, 4), v(vOFR, 4), '0'))
    pv_fin()
    A(f'v_subrev_u32 v{vT0}, {f2u(2.0**-60):#x}, v{vLS}')
    A(f'v_cmp_le_u32 vcc, s{sLrng}, v{vT0}')
    A(f'v_mov_b32 v{vRinv1}, v{vRinv}')
    A(f's_cmp_eq_u32 s{sStep}, {NSEG-1}')
    A('s_waitcnt lgkmcnt(0)')
    A(br('smx'))
    A.label(f'smok_{tag}')
    def sm_slow():
        A.label(f'smx_{tag}')
        if stamps: A(f's_add_u32 s{sCnt+4}, s{sCnt+4}, 1')
        for i in range(3):
            for t in range(4): A(smf(i, t))
        A.nop(8)
        A(f'v_max3_f32 v{vM}, v{vS}, v{vS+1}, v{vS+2}')
        for r in range(3, 11, 2): A(f'v_max3_f32 v{vM}, v{vM}, v{vS+r}, v{vS+r+1}')
        A(f'v_max_f32 v{vM}, v{vM}, v{vS+11}')
        for sw in ('16', '32'):
            A(f'v_mov_b32 v{vT0}, v{vM}')
            A.nop(2)
            A(f'v_permlane{sw}_swap_b32 v{vT0}, v{vM}')
            A.nop(1)
            A(f'v_max_f32 v{vM}, v{vM}, v{vT0}')
        for r in range(12): A(f'v_sub_f32 v{vS+r}, v{vS+r}, v{vM}')
        for r in range(12): A(E(r))
        A.nop(1)
        A(C(vP, 0)); A(C(vP+1, 2)); A(C(vP+2, 4)); A(C(vP+3, 6)); A(C(vPL, 8)); A(C(vPL+1, 10))
        A.nop(2)
        emit(A, pvm)
        A.nop(6)
        pv_fin()
        A.nop(1)
        A(f'v_mov_b32 v{vRinv1}, v{vRinv}')
        A(f's_cmp_eq_u32 s{sStep}, {NSEG-1}')
        A('s_waitcnt lgkmcnt(0)')
        A(f's_branch smok_{tag}')
    tails.append(sm_slow)
    A(f's_cbranch_scc1 last_{tag}')
    A('s_barrier')
    st()
    OF4 = vRG
    TS = [t for t in range(4) if t != wv]
    for t in TS: A(f'ds_read_b128 v[{OF4+4*t}:{OF4+4*t+3}], v{vL16} offset:{L_O + 1024*t}')
    R = vS
    RI = f'v[{vRinv}:{vRinv1}]'
    def scale_cvt(k):
        return [f'v_pk_mul_f32 v[{D+4*k}:{D+4*k+1}], v[{D+4*k}:{D+4*k+1}], {RI}',
                f'v_pk_mul_f32 v[{D+4*k+2}:{D+4*k+3}], v[{D+4*k+2}:{D+4*k+3}], {RI}',
                f'v_cvt_pk_bf16_f32 v{D+4*k}, v{D+4*k}, v{D+4*k+1}',
                f'v_cvt_pk_bf16_f32 v{D+4*k+1}, v{D+4*k+2}, v{D+4*k+3}']
    mind = lambda d, s_, ctl: f'v_min_u32_dpp v{d}, v{s_}, v{vM2} ' + ctl.replace(' bank', ' row_mask:0xf bank')
    export = []
    for r in (0, 2):
        export.append(f'v_pk_mul_f32 v[{vAcc+r}:{vAcc+r+1}], v[{vAcc+r}:{vAcc+r+1}], {RI}')
        export.append(f'v_pk_mul_f32 v[{vAcc2+r}:{vAcc2+r+1}], v[{vAcc2+r}:{vAcc2+r+1}], {RI}')
    export += [f'v_cvt_pk_bf16_f32 v{vOFR}, v{vAcc}, v{vAcc+1}', f'v_cvt_pk_bf16_f32 v{vOFR+1}, v{vAcc+2}, v{vAcc+3}',
               f'v_cvt_pk_bf16_f32 v{vOFR+2}, v{vAcc2}, v{vAcc2+1}', f'v_cvt_pk_bf16_f32 v{vOFR+3}, v{vAcc2+2}, v{vAcc2+3}',
               f'buffer_store_dwordx4 v[{vOFR}:{vOFR+3}], v{vOFst}, {WS}, s{sOF} offen sc1',
               f's_add_u32 s{sOF}, s{sOF}, {2*128*1024}']
    emit(A, export[:6])
    op = []
    for n, k in enumerate([2, 0, 1] if isA else [0, 1]):
        for i, t in enumerate(TS):
            if n == 0: op.append(f's_waitcnt lgkmcnt({2-i})')
            op.append(M32(v(D+4*k, 4), v(vWO+16*k+4*t, 4), v(OF4+4*t, 4), v(D+4*k, 4)))
    ident = 'quad_perm:[0,1,2,3] bank_mask:0x3'
    if isA:
        single = scale_cvt(2) + ['s_nop 0', mind(R, D+8, 'row_shr:8 bank_mask:0xc'), mind(R+1, D+9, 'row_shr:8 bank_mask:0xc'),
                                 mind(R+2, D+8, 'row_shr:7 bank_mask:0xc'), mind(R+3, D+9, 'row_shr:7 bank_mask:0xc')]
        emit(A, weave(op, export[6:8] + [(6, x) for x in single], per=3))
    else:
        emit(A, weave(op, export[6:8]))
    emit(A, scale_cvt(0))
    A.nop(2)
    A(mind(R, D, ident)); A(mind(R+1, D+1, ident))
    emit(A, scale_cvt(1))
    A.nop(1)
    A(mind(R+2, D+4, ident)); A(mind(R+3, D+5, ident))
    A(f'buffer_store_dwordx4 v[{R}:{R+3}], v{vSR}, {WS}, s{sX2} offen sc1')
    A(f'buffer_store_dwordx4 v[{R}:{R+3}], v{vX2st}, {WS}, s{sX2L} offen{fl}')
    st()
    pre = kv_list()
    late = list(export[8:])
    if role == 'D':
        A(f's_cmp_eq_u32 s{sStep}, s{sZn}')
        A(f's_cbranch_scc1 z1_{tag}')
        A.label(f'z1ok_{tag}')
        def z1():
            A.label(f'z1_{tag}')
            A(f'v_lshrrev_b32 v{vT2}, 1, v{vL16}')
            A(f'buffer_load_dwordx2 v[{vT0}:{vT1}], v{vT2}, {WS}, s{sZo} offen sc1')
            A('s_waitcnt vmcnt(0)')
            emit(A, check_sent([vT0, vT1], vT0))
            A(f's_cbranch_vccz z2_{tag}')
            bounded(A, f'z1_{tag}', 8)
            A.label(f'z2_{tag}')
            A(f's_add_u32 s{sZo}, s{sZo}, 512')
            A(f's_lshl_b32 s{sZn}, s{sZn}, 2')
            A(f's_add_u32 s{sZn}, s{sZn}, 1')
            A(f's_branch z1ok_{tag}')
        tails.append(z1)
        late += reset_list(fl)
        late += [f's_add_u32 s{sT0}, s{sStep}, 5', f's_min_u32 s{sT0}, s{sT0}, 63', f'v_readlane_b32 s{sXw}, v{vX2tab}, s{sT0}',
                 f's_xor_b32 s{sXw}, s{sXw}, 8192']
        late += [f's_lshl_b32 s{sT0}, s{sStep}, 7', f's_add_u32 s{sT0}, s{sT0}, {WS_PROG - 256}',
                 f'buffer_store_dword v{vM2}, v{vR+5}, {WS}, s{sT0} offen sc1']
    if role == 'A':
        touch = [f'buffer_load_dword v{vM}, v{vR+4}, {WS}, s{sWarm} offen sc1', f's_add_u32 s{sWarm}, s{sWarm}, {XSEG}']
        if P.get('notouch') or P['tatt']: touch = touch[1:]
        dl = []
        n = P['tdel']
        while n > 0: dl.append(f's_nop {min(n,16)-1}'); n -= 16
        pre = (touch + qx_list() + pre) if P['tfirst'] else (qx_list() + pre + dl + touch)
    if recv:
        emit(A, pre)
        A(f's_sleep {P["pollS"]}')
        emit(A, x2_issue())
        emit(A, late)
        st()
        A(f's_waitcnt vmcnt({nvm(late)})')
        emit(A, x2_consume())
        A(br('x2s'))
        A.label(f'x2ok_{tag}')
        def x2_slow():
            A.label(f'x2s_{tag}')
            if stamps: A(f's_add_u32 s{sCnt+3}, s{sCnt+3}, 1')
            emit(A, x2_issue())
            A('s_waitcnt vmcnt(0)')
            emit(A, x2_consume())
            A(f's_cbranch_vccz x2ok_{tag}')
            bounded(A, f'x2s_{tag}', 4)
        tails.append(x2_slow)
        st()
        for r in range(4): A(f'v_add_f32_dpp v{vAcc2+r}, v{vAcc+r}, v{vAcc+r} row_ror:8 row_mask:0xf bank_mask:0xf')
        A(f'v_cvt_pk_bf16_f32 v{vT0}, v{vAcc2}, v{vAcc2+1}')
        A(f'v_cvt_pk_bf16_f32 v{vT1}, v{vAcc2+2}, v{vAcc2+3}')
        A(f'v_min_u32 v{vT0}, -2, v{vT0}')
        A(f'v_min_u32 v{vT1}, -2, v{vT1}')
        A(f'buffer_store_dwordx2 v[{vT0}:{vT1}], v{vR+8}, {WS}, s{sX3w} offen{fl}')
    else:
        emit(A, pre + late)
        st(); st()
    sl = slot_list(1)
    if not recv: emit(A, sl)
    if P['nob4'] == 0: A('s_barrier')
    elif not recv: A.nop(P['nob4'] - (60 if role == 'D' else 0))
    st.flush()
    if recv: emit(A, sl[:5])
    A.nop(P['x3d'] if not recv else max(0, P['x3d'] - 8))
    emit(A, x3_issue(0))
    if recv: emit(A, sl[5:])
    A(f's_add_u32 s{sStep}, s{sStep}, 1')
    A('s_sleep 1')
    emit(A, x3_issue(1))
    A(f's_branch loop_{tag}')
    A.label(f'last_{tag}')
    emit(A, export)
    if role == 'D':
        A(f's_mov_b32 s{sT0}, {WS_PROG + 61*128}')
        A(f'buffer_store_dword v{vM2}, v{vR+5}, {WS}, s{sT0} offen sc1')
    A('s_waitcnt vmcnt(0)')
    A('s_barrier')
    if role == 'D':
        A(f's_lshl_b32 s{sT0}, s{sG}, 5')
        A(f's_add_u32 s{sT0}, s{sT0}, s{sJ}')
        A(f's_lshl_b32 s{sT0}, s{sT0}, 2')
        A(f's_add_u32 s{sT0}, s{sT0}, {WS_FLAG}')
        A(f'v_cmp_eq_u32 vcc, 0, v{vL16}')
        A(f'v_mov_b32 v{vT0}, {OOB:#x}')
        A('s_nop 1')
        A(f'v_cndmask_b32 v{vT0}, v{vT0}, 0, vcc')
        A(f'buffer_store_dword v{vM2}, v{vT0}, {WS}, s{sT0} offen sc1')
    if stamps:
        A('s_memrealtime s[98:99]')
        A('s_waitcnt lgkmcnt(0)')
        A(f'v_writelane_b32 v{vT3}, s{sST}, 0')
        for k, r in enumerate((94, 96, 98, 76, 78, 80, 82, 84, 86)): A(f'v_writelane_b32 v{vT3}, s{r}, {1+k}')
        A(f's_add_u32 s{sT0}, s{sDB}, {63*64}')
        A(f'buffer_store_dword v{vT3}, v{vDbg}, {WS}, s{sT0} offen')
    A('s_endpgm')
    for t in tails: t()

DEFAULT_P = dict(pollS=5, q4=0, x3d=0, nob4=0, tlb=1, tatt=1, tdel=0, tfirst=0, pollA=80, qkA=5, qkgap=0, x3A=4, x3B=8, x3gap=16, pvnop=6)

def gen_chain(A, stamps, P):
    wt = f's[{sWT}:{sWT+3}]'
    npst = [0]
    def pst():
        if stamps == 1:
            A(f's_memrealtime s[{76+2*npst[0]}:{77+2*npst[0]}]'); A('s_waitcnt lgkmcnt(0)'); npst[0] += 1
    if stamps: A('s_memrealtime s[94:95]')
    A('s_load_dwordx4 s[16:19], s[0:1], 16')
    A('s_load_dwordx4 s[20:23], s[0:1], 32')
    A('s_load_dwordx4 s[24:27], s[0:1], 96')
    A('s_load_dwordx2 s[72:73], s[0:1], 8')
    F = 232
    X = VX(A, vRG, F, 3)
    A(f'v_lshrrev_b32 v{F+3}, 6, v0')
    A(f'v_and_b32 v{F}, 63, v0')
    A(f'v_readfirstlane_b32 s{sW}, v{F+3}')
    A(f'v_bfe_u32 v{F+1}, v0, 4, 2')
    A(f'v_and_b32 v{F+2}, 15, v0')
    A(f's_and_b32 s{sG}, s2, 3')
    A(f's_lshr_b32 s{sJ}, s2, 3')
    A(f's_lshr_b32 s{sH}, s{sJ}, 2')
    A(f's_lshl_b32 s3, s{sG}, 3')
    A(f's_add_u32 s{sH}, s{sH}, s3')
    A(f's_and_b32 s{sA}, s{sJ}, 3')
    A(f's_and_b32 s{sPar}, s{sA}, 1')
    A(f's_mov_b32 s{sTO}, 0x40000')
    for i, sr in enumerate((sA, sH, sJ, sG)): A(f'v_mov_b32 v{F+4+i}, s{sr}')
    A(f'v_mov_b32 v{F+8}, v0')
    L, g, c, w, a_, h, j, G, tid = [X.reg(F+i) for i in range(9)]
    X.set(vL16, L*16)
    L16 = X.reg(vL16)
    TQ, TA_, TV, TO1, TO2 = [vXACC + i for i in range(5)]
    X.set(TQ, (L >> 2)*8192 + (((L >> 1) & 1) ^ ((L >> 5) & 1))*32 + (L & 1)*16 + h*256 + a_*64)
    A('s_waitcnt lgkmcnt(0)')
    srd(A, sWS, 26, WS_SIZE)
    A(f's_lshl_b32 s3, s{sG}, 5')
    A(f's_add_u32 s3, s3, s{sJ}')
    A(f's_lshl_b32 s60, s{sW}, 7')
    A('s_add_u32 s3, s3, s60')
    A('s_cmp_ge_u32 s3, 22')
    A('s_cbranch_scc1 cal_done')
    A('s_sub_u32 s60, 0, s26')
    A('s_and_b32 s60, s60, 0x1fffff')
    A(f's_lshl_b32 s61, s{sJ}, 21')
    A('s_add_u32 s60, s60, s61')
    A(f's_add_u32 s60, s60, {WS_X2 + 0x1f8000}')
    A('s_add_u32 s70, s26, s60')
    A('s_addc_u32 s71, s27, 0')
    A('s_mov_b32 s62, -1')
    A('s_mov_b32 s63, -1')
    for rep in range(P['calrep']):
        for hf in range(2):
            A('s_mov_b32 s61, 0')
            A('s_memtime s[64:65]')
            A('s_waitcnt lgkmcnt(0)')
            A(f's_atomic_or s61, s[70:71], {hf*8192 + (rep&1)*4096} glc')
            A('s_waitcnt lgkmcnt(0)')
            A('s_memtime s[66:67]')
            A('s_waitcnt lgkmcnt(0)')
            A('s_sub_u32 s64, s66, s64')
            A(f's_min_u32 s{62+hf}, s{62+hf}, s64')
    A('s_cmp_lt_u32 s63, s62')
    A('s_cselect_b32 s61, 1, 0')
    A(f's_lshl_b32 s61, s61, s{sJ}')
    A(f's_atomic_or s61, s[24:25], {DBG_MASK} glc')
    A('s_waitcnt lgkmcnt(0)')
    arrive_s(A, 24, 61, 'cal_done')
    A.label('cal_done')
    for m, ptr in enumerate((16, 18, 20)):
        srd(A, sWT, ptr, DM * 4096 * 2)
        A(f's_lshl_b32 s63, s{sW}, 10')
        A(f's_add_u32 s63, s63, {40960*(m+1)}')
        A(f's_mul_i32 s64, s{sW}, {16*8192}')
        for i in range(10):
            A('s_mov_b32 m0, s63')
            A(f's_add_u32 s63, s63, 4096')
            A(f'buffer_load_dwordx4 v{TQ}, {wt}, s64 offen lds')
            A(f's_add_u32 s64, s64, {64*8192}')
    srd(A, sWT, 22, 4096 * DM * 2)
    A(f's_mul_i32 s64, s{sH}, {128*1280}')
    A(f's_mul_i32 s3, s{sA}, 320')
    A(f's_add_u32 s64, s64, s3')
    A(f's_lshl_b32 s63, s{sW}, 10')
    for i in range(10):
        cid = tid + 256*i
        row = (cid*3277) >> 16
        X.set(vT0, row*1280 + (cid - row*20)*16)
        A('s_mov_b32 m0, s63')
        A(f's_add_u32 s63, s63, 4096')
        A(f'buffer_load_dwordx4 v{vT0}, {wt}, s64 offen lds')
    for q in range(4): X.set(vSent4+q, -1)
    S4 = f'v[{vSent4}:{vSent4+3}]'
    srd(A, sWT, 72, NM*DM*2)
    idn = lambda: j*20 + tid
    X.set(vT2, X.sel(('lt', tid, 20), (idn() & 7)*1280 + (idn() >> 3)*16, OOB))
    A(f'buffer_load_dwordx4 v[{vS}:{vS+3}], v{vT2}, {wt}, 0 offen')
    per = -(-(WS_FILL_END - WS_FILL_BEG) // (128 * 4096))
    X.set(vT1, (G*32 + j)*(per*4096) + tid*16 + WS_FILL_BEG)
    A(f's_mov_b32 s{sWS+2}, {WS_FILL_END:#x}')
    for r in range(per):
        A(f'buffer_store_dwordx4 {S4}, v{vT1}, {WS}, 0 offen sc1')
        A(f'v_add_u32 v{vT1}, 4096, v{vT1}')
    A(f's_mov_b32 s{sWS+2}, {WS_SIZE:#x}')
    A('s_sub_u32 s60, 0, s26')
    A('s_and_b32 s60, s60, 0x1fffff')
    A(f's_add_u32 s60, s60, {WS_X2}')
    X.set(vT1, X.sel(('lt', G*32 + j, 120), (G*32 + j)*16384 + tid*16, OOB))
    for r in range(4):
        A(f'buffer_store_dwordx4 {S4}, v{vT1}, {WS}, s60 offen sc1')
        A('s_add_u32 s60, s60, 4096')
    X.set(vS+4, X.sel(('lt', tid, 20), idn()*16 + G*X3_G + WS_X3, OOB))
    X.set(vM2, -2)
    clt8 = ('lt', c, 8); glt2 = ('lt', g, 2); wlt2 = ('lt', w, 2); w0 = ('eq', w, 0)
    X.set(vT0, 0x3f803f80)
    for q in range(4): A(f'v_accvgpr_write_b32 a{aOne+q}, v{vT0}')
    X.set(vT0, X.sel(glt2, 0x3f803f80, 0))
    for q in range(2): A(f'v_accvgpr_write_b32 a{aOneM+q}, v{vT0}')
    slot = lambda: (g*8 + (c & 7))*16
    X.set(vX3ld, X.sel(wlt2, w*3072, w*2048 + 2048) + L16)
    X.set(vMemR, slot() + (c >> 3)*512)
    X.set(vKr, slot() + L_K)
    X.set(vQr, X.sel(clt8, L_Q, L_QX) + slot())
    tq = lambda: (a_ & 2) + (w & 1)
    tt = lambda: a_ & 1
    X.set(vX1st, X.sel(clt8, tq()*1024 + (w >> 1)*512 + slot() + tt()*8, OOB))
    X.set(vV1st, X.sel(('eq', g >> 1, w >> 1), a_*1024 + L16 + (w & 1)*8 + 4096, OOB))
    X.set(vVMld, w*1024 + L16 + 4096)
    X.set(vQKld, w*1024 + L16)
    X.set(vOw, w*1024 + L16 + L_O)
    X.set(vQKw, X.sel(glt2, L_Q, L_K - 512) + w*512 + L16)
    X.set(vT0, (a_*20 + w*4 + (c >> 1))*4096 + ((c & 1)*4 + g)*16)
    X.set(vT1, (a_*20 + 16 + w*2 + ((c >> 2) & 1))*4096 + (((c >> 1) & 1)*4 + g)*16)
    X.set(vT1, X.sel(('eq', (c & 1) + (w & 2), 0), X.reg(vT1), OOB))
    X.set(vX2st, X.sel(clt8, X.reg(vT0), X.reg(vT1)) + h*128)
    xs = X.reg(vX2st)
    X.set(vSR, X.sel(('lt', xs, OOB), (xs >> 13)*16384 + (xs & 8191), OOB))
    X.set(vOFst, X.sel(clt8, OOB, ((a_ >> 1)*128 + h*4 + w)*1024 + tt()*128 + L16 - 128))
    X.set(vT0, X.sel(('lt', j, 16), j*3 + (w & 1)*2, j*2 + 16 + (w & 1)))
    U = X.reg(vT0)
    x2a = lambda Uq, Lq: (Uq*4096 if Lq == 3 else (Uq >> 1)*16384 + (Uq & 1)*4096) + L16 + ((G + (Lq+1)) & 3)*1024
    lo = [None]*9
    lo[0] = lambda: X.sel(w0, (a_*20 + (L >> 3))*4096 + h*128 + (L & 7)*16, h*16 + (L & 3)*4 + WS_QP)
    lo[1] = lambda: X.sel(('lt', L, 32), X.reg(vR), OOB)
    lo[2] = lambda: a_*2048 + L16
    lo[3] = lambda: X.sel(('lt', L, 20), j*320 + L16, OOB)
    lo[4] = lambda: X.sel(('lt', L, 32), a_*4096 + L*128, X.sel(('lt', L, 48), a_*2048 + L*128 + (16384 - 4096), OOB))
    lo[5] = lambda: X.sel(('eq', L + j + G, 0), 0, OOB)
    lo[6] = lambda: X.sel(('eq', L, 0), 0, OOB)
    lo[7] = lambda: 0
    for i in range(8):
        X.set(vR+i, X.sel(wlt2, lo[i](), x2a(U + (i >> 2), i & 3)))
    X.set(vRinv1, U + (g >> 1))
    UL = X.reg(vRinv1)
    X.set(vT1, (UL*3277) >> 16)
    ua = X.reg(vT1)
    X.set(vT2, UL - ua*20)
    u = X.reg(vT2)
    gp = lambda: c & 3
    r1 = lambda: (c >> 2) & 1
    g1 = lambda: g & 1
    X.set(vT3, (ua*5 + (u >> 2))*512 + ((g1()*2 + (gp() >> 1))*8 + (u & 3)*2 + r1())*16)
    X.set(vRinv, (ua*5 + 4)*512 + (((u & 2) + (gp() >> 1))*8 + (u & 1)*4 + r1()*2 + g1())*16)
    X.set(vT3, X.sel(('lt', u, 16), X.reg(vT3), X.reg(vRinv)) + (gp() & 1)*8)
    X.set(vRinv, X.sel(('eq', (j >> 4) + (w & 1), 0), 0, g >> 1))
    X.set(vR+8, X.sel(('eq', (c >> 3) + X.reg(vRinv), 0), X.reg(vT3), OOB))
    for q in range(8):
        X.set(vT1, X.sel(('eq', c >> 1, q), X.sel(('eq', c & 1, 0), 0x3f80, 0x3f800000), 0))
        A(f'v_accvgpr_write_b32 a{aSel+q if q < 4 else aSelH+q-4}, v{vT1}')
    X.set(vT1, X.sel(clt8, 63, a_*8 + c - 8))
    for kt in range(2):
        for r in range(4):
            X.set(vBias+4*kt+r, X.sel(('gt', g*4 + (16*kt + r), X.reg(vT1)), f2u(NEG), 0))
    trb = lambda: (g*8 + ((L >> 2) & 3))*64 + ((w & 1) ^ (g & 1))*32 + (L & 3)*8
    X.set(TA_, trb() + (w >> 1)*40960 + 40960)
    X.set(TV, trb() + (w >> 1)*2048 + 122880)
    wob = lambda: (g*4 + ((L >> 2) & 3))*320 + (L & 3)*8
    X.set(TO1, wob() + w*64)
    X.set(TO2, wob() + (w & 1)*32 + 256)
    X.set(vP+1, X.sel(('eq', tid, 0), 0, OOB))
    X.set(vP+2, (L & 31)*4)
    X.set(vDbg, X.sel(('lt', L, 16), L*4, OOB))
    A(f's_mov_b32 s{sOF}, {WS_OF}')
    A(f's_cmp_lt_u32 s{sJ}, 16')
    A(f's_cselect_b32 s{sNH}, 3, 2')
    A(f's_mov_b32 s{sC2}, {f2u(QSCALE):#x}')
    A(f's_mov_b32 s{sC2+1}, {f2u(QSCALE):#x}')
    A(f's_mul_i32 s{sX3G}, s{sG}, {X3_G}')
    A(f's_add_u32 s{sX3G}, s{sX3G}, {WS_X3}')
    A(f's_lshl_b32 s{sX1H}, s{sH}, 13')
    A(f's_add_u32 s{sX1H}, s{sX1H}, {WS_X1}')
    A(f's_mul_i32 s{sHoff}, s{sH}, {XH}')
    A(f's_add_u32 s{sHoff}, s{sHoff}, {WS_KX}')
    A(f's_lshl_b32 s75, s{sG}, 5')
    A(f's_add_u32 s75, s75, s{sJ}')
    A(f's_lshl_b32 s{sDB}, s75, 2')
    A(f's_add_u32 s{sDB}, s{sDB}, s{sW}')
    A(f's_lshl_b32 s{sDB}, s{sDB}, 12')
    A(f's_add_u32 s{sDB}, s{sDB}, {WS_DBG:#x}')
    A(f's_lshl_b32 s{sKXm}, s{sW}, 11')
    A(f's_lshl_b32 s{sQXr}, s{sA}, 11')
    A(f's_add_u32 s{sQXr}, s{sQXr}, s{sHoff}')
    A(f's_add_u32 s{sQXr}, s{sQXr}, 16384')
    A(f's_add_u32 s{sXr}, s{sHoff}, s{sKXm}')
    A(f's_mov_b32 s{sLrng}, {f2u(2.0**64) - f2u(2.0**-60):#x}')
    A(f's_add_u32 s{sWarm}, s{sHoff}, {XSEG}')
    pst()
    A('s_waitcnt vmcnt(0)')
    for k in range(4): A(f'v_min_u32 v{vS+k}, -2, v{vS+k}')
    A(f'buffer_store_dwordx4 v[{vS}:{vS+3}], v{vS+4}, {WS}, 0 offen sc1')
    A('s_barrier')
    pst()
    for t in range(20):
        A(f'ds_read_b64_tr_b16 a[{4*t}:{4*t+1}], v{TA_} offset:{2048*t}')
        A(f'ds_read_b64_tr_b16 a[{4*t+2}:{4*t+3}], v{TA_} offset:{2048*t+256}')
        if t % 4 == 3: A('s_waitcnt lgkmcnt(4)')
    for i in range(10):
        A(f'ds_read_b64_tr_b16 a[{80+4*i}:{80+4*i+1}], v{TV} offset:{4096*i}')
        A(f'ds_read_b64_tr_b16 a[{80+4*i+2}:{80+4*i+3}], v{TV} offset:{4096*i+256}')
        if i % 4 == 3: A('s_waitcnt lgkmcnt(4)')
    for k in range(3):
        for t in range(4):
            r, o = (TO1, 32*320*t + 32*k) if k < 2 else (TO2, 32*320*t)
            A(f'ds_read_b64_tr_b16 v[{vWO+16*k+4*t}:{vWO+16*k+4*t+1}], v{r} offset:{o}')
            A(f'ds_read_b64_tr_b16 v[{vWO+16*k+4*t+2}:{vWO+16*k+4*t+3}], v{r} offset:{o+16*320}')
        A('s_waitcnt lgkmcnt(0)')
    pst()
    srd(A, sWT, 24, 256)
    wait_start(A, wt, vT0, 74, sTO, 'start_ok', 'chain_abort10', sleep=4)
    pst()
    x2_table(A, X, L, vX2tab, 74, 26, vT1)
    A(f's_getreg_b32 s74, hwreg(HW_REG_XCC_ID, 0, 4)')
    A(f's_lshl_b32 s3, s75, 2')
    A(f's_add_u32 s3, s3, {WS_TAB}')
    A(f'v_mov_b32 v{vT1}, s74')
    A(f'buffer_store_dword v{vT1}, v{vP+1}, {WS}, s3 offen sc1')
    A(f's_cmp_lg_u32 s{sW}, 1')
    A('s_cbranch_scc1 qp0_ok')
    A(f's_mov_b32 s{sT1}, 1')
    qp_wait(A, 'qp0', 'qp0_ok', shifts=(2,))
    A.label('qp0_ok')
    A(f's_mov_b32 s{sQok}, 0')
    pst()
    A(f's_mov_b32 s{sZn}, 1')
    A(f's_mov_b32 s{sZo}, {WS_ZFLAG}')
    A('s_barrier')
    A(f's_lshl_b32 s3, s{sG}, 7')
    A(f's_add_u32 s3, s3, {WS_TAB}')
    A(f's_mov_b32 s60, {WS_TAB}')
    A(f'v_lshrrev_b32 v{vT2}, 1, v{vL16}')
    A.label('tab_poll')
    A(f'buffer_load_dwordx2 v[{vRinv}:{vRinv1}], v{vT2}, {WS}, s60 offen sc1')
    A(f'buffer_load_dword v{vT0}, v{vP+2}, {WS}, s3 offen sc1')
    A('s_waitcnt vmcnt(0)')
    emit(A, check_sent([vRinv, vRinv1, vT0], vT3))
    A('s_cbranch_vccz tab_ok')
    bounded(A, 'tab_poll', 5)
    A.label('tab_ok')
    pst()
    A(f'v_cmp_ne_u32 s[68:69], v{vT1}, v{vT0}')
    A(f's_mov_b32 s{sStep}, 0')
    emit(A, kv_list())
    A(f's_cmp_lg_u32 s{sW}, 1')
    A('s_cbranch_scc1 no_q0')
    emit(A, qx_list())
    A(f'buffer_load_dword v{vM}, v{vR+4}, {WS}, s{sWarm} offen sc1')
    A(f's_add_u32 s{sWarm}, s{sWarm}, {XSEG}')
    A.label('no_q0')
    emit(A, slot_list(0))
    A(f'v_readlane_b32 s{sXw}, v{vX2tab}, 4')
    A(f's_xor_b32 s{sXw}, s{sXw}, 8192')
    for k in range(5): A(f's_mov_b32 s{sCnt+k}, 0')
    for mode in ('f', 's'):
        if mode == 'f':
            A('s_cmp_lg_u64 s[68:69], 0')
            A('s_cbranch_scc1 disp_s')
        else:
            A.label('disp_s')
        A(f's_cmp_eq_u32 s{sW}, 0')
        A(f's_cbranch_scc1 j_{mode}D')
        A(f's_cmp_eq_u32 s{sW}, 1')
        A(f's_cbranch_scc1 j_{mode}A')
        A(f's_cmp_eq_u32 s{sW}, 3')
        A(f's_cbranch_scc1 j_{mode}C')
        A(f's_cmp_eq_u32 s{sNH}, 3')
        A(f's_cbranch_scc1 j_{mode}E')
        A(f's_branch entry_{mode}B')
        for r in 'ADEC':
            A.label(f'j_{mode}{r}')
            A(f's_branch entry_{mode}{r}')
    for mode, fl in (('f', ''), ('s', ' sc1')):
        for role in 'DABEC':
            gen_loop(A, mode + role, fl, role, stamps, P)
    A.label('chain_abort10')
    A(f's_mov_b32 s{sT0}, 10')
    A.label('chain_abort')
    srd(A, sWT, 24, 256)
    A(f'v_mov_b32 v{vT0}, s{sT0}')
    A(f'v_mov_b32 v{vT1}, 0')
    A(f'buffer_store_dword v{vT0}, v{vT1}, {wt}, 0 offen')
    A('s_endpgm')
```

```python
S_TOK, DM, NH, DH, NM, SEG, NSEG, FF = 2048, 640, 32, 128, 8, 32, 64, 1728
WS_SIZE = 0x10000000
WS_XN   = 0x0
RING    = 4
WS_X3   = 0x300000
X3_G    = 10240
X3_SLOT = 4 * X3_G
WS_X1   = WS_X3 + RING * X3_SLOT
X1_H    = 8192
X1_SLOT = 32 * X1_H
X2_SLOT = 80 * 32 * 128
WS_X2L  = WS_X1 + RING * X1_SLOT
WS_FILL_END = WS_X2L + RING * X2_SLOT
WS_TAB  = WS_FILL_END
WS_FLAG = WS_TAB + 0x400
WS_GFLAG = WS_TAB + 0x800
WS_ZFLAG = WS_TAB + 0xc00
WS_QP   = WS_TAB + 0x1400
WS_DCNT = WS_TAB + 0x1800
WS_PROG = WS_TAB + 0x2000
WS_FILL_BEG = WS_X3 + X3_SLOT
WS_X2   = 0x800000
XH      = 24576
XSEG    = 32 * XH
WS_KX   = 0x3800000
WS_OF   = WS_KX + 66 * XSEG
WS_G    = WS_OF + 128 * 128 * 1024
WS_DBG  = 0xF000000
OOB     = 0x40000000
assert WS_TAB + 0x4000 <= WS_X2 and WS_X2 + 23 * 0x200000 <= WS_KX and WS_G + 4*128*40960 <= WS_DBG
DBG_CNT = 64
DBG_MASK = 72
DBG_GO = 192
DBG_ROT = 200
```

```python
from g import *
from layout import *
import struct, math
def f2u(x): return struct.unpack('<I', struct.pack('<f', x))[0]
QSCALE = (128 ** -0.5) * math.log2(math.e)
def M32(d, a_, b_, c_): return f'v_mfma_f32_16x16x32_bf16 {d}, {a_}, {b_}, {c_}'
def M16(d, a_, b_, c_): return f'v_mfma_f32_16x16x16_bf16 {d}, {a_}, {b_}, {c_}'
def check_sent(regs, t):
    regs = list(regs); o = []
    if len(regs) == 2:
        o.append(f'v_max_u32 v{t}, v{regs[0]}, v{regs[1]}')
    else:
        o.append(f'v_max3_u32 v{t}, v{regs[0]}, v{regs[1]}, v{regs[2]}')
        rest = regs[3:]
        while rest:
            if len(rest) >= 2:
                o.append(f'v_max3_u32 v{t}, v{t}, v{rest[0]}, v{rest[1]}'); rest = rest[2:]
            else:
                o.append(f'v_max_u32 v{t}, v{t}, v{rest[0]}'); rest = rest[1:]
    o.append(f'v_cmp_eq_u32 vcc, -1, v{t}')
    return o
def emit(A, lst):
    for l in lst:
        if l.endswith(':'): A.label(l[:-1])
        else: A(l)
def nvm(lst):
    n = 0
    for l in lst:
        if isinstance(l, tuple): l = l[1]
        if l.startswith('buffer_'): n += 1
    return n
def weave(prim, fill, per=2):
    out = []; fill = list(fill); n = 0
    for p in prim:
        out.append(p)
        if p.startswith('v_mfma'):
            n += 1; k = 0
            while fill and k < per:
                f = fill[0]
                if isinstance(f, tuple):
                    if f[0] > n: break
                    f = f[1]
                out.append(f); fill.pop(0)
                k += 0.67 if f.startswith('s_') else 1
    for f in fill:
        out.append(f[1] if isinstance(f, tuple) else f)
    return out
def wait_start(A, dsrd, vt, sdst, sto, okl, abort, sleep=2):
    top = A.newlabel('ws')
    A.label(top)
    A(f'v_mov_b32 v{vt}, 0')
    A(f'buffer_load_dword v{vt}, v{vt}, {dsrd}, 0 offen offset:{DBG_GO} sc1')
    A('s_waitcnt vmcnt(0)')
    A(f'v_readfirstlane_b32 s{sdst}, v{vt}')
    A(f's_cmp_lt_i32 s{sdst}, 0')
    A(f's_cbranch_scc1 {okl}')
    A(f's_sleep {sleep}')
    A(f's_sub_u32 s{sto}, s{sto}, 1')
    A(f's_cbranch_scc0 {top}')
    A(f's_branch {abort}')
    A.label(okl)
def x2_table(A, X, L, dst, smask, sws_lo, t):
    X.set(t, (L*21846) >> 16)
    A(f'v_lshrrev_b32 v{dst}, v{t}, s{smask}' if False else f'v_mov_b32 v{dst}, s{smask}')
    A(f'v_lshrrev_b32 v{dst}, v{t}, v{dst}')
    X.set(dst, (X.reg(t) << 21) + (L - X.reg(t)*3)*655360 + ((X.reg(dst) & 1) << 13))
    A(f's_sub_u32 s3, 0, s{sws_lo}')
    A('s_and_b32 s3, s3, 0x1fffff')
    A(f's_add_u32 s3, s3, {WS_X2}')
    A(f'v_add_u32 v{dst}, s3, v{dst}')

N_ARRIVE = 64 + 22
def arrive(A, dsrd, vt, vz, stmp, done):
    A(f'v_mov_b32 v{vt}, 1')
    A(f'buffer_atomic_add v{vt}, v{vz}, {dsrd}, 0 offen offset:{DBG_CNT} sc0')
    A('s_waitcnt vmcnt(0)')
    A(f'v_readfirstlane_b32 s{stmp}, v{vt}')
    A(f's_cmp_lg_u32 s{stmp}, {N_ARRIVE-1}')
    A(f's_cbranch_scc1 {done}')
    A(f'v_mov_b32 v{vt}, 0')
    A(f'buffer_atomic_or v{vt}, v{vz}, {dsrd}, 0 offen offset:{DBG_MASK} sc0')
    A('s_waitcnt vmcnt(0)')
    A(f'v_or_b32 v{vt}, 0x80000000, v{vt}')
    A(f'buffer_store_dword v{vt}, v{vz}, {dsrd}, 0 offen offset:{DBG_GO} sc1')

def arrive_s(A, sbase, stmp, done):
    A(f's_mov_b32 s{stmp}, 1')
    A(f's_atomic_add s{stmp}, s[{sbase}:{sbase+1}], {DBG_CNT} glc')
    A('s_waitcnt lgkmcnt(0)')
    A(f's_cmp_lg_u32 s{stmp}, {N_ARRIVE-1}')
    A(f's_cbranch_scc1 {done}')
    A(f's_mov_b32 s{stmp}, 0')
    A(f's_atomic_or s{stmp}, s[{sbase}:{sbase+1}], {DBG_MASK} glc')
    A('s_waitcnt lgkmcnt(0)')
    A(f's_or_b32 s{stmp}, s{stmp}, 0x80000000')
    A(f's_atomic_or s{stmp}, s[{sbase}:{sbase+1}], {DBG_GO}')
    A('s_waitcnt lgkmcnt(0)')

def code_prefetch(A, vt, lines):
    A('s_getpc_b64 s[64:65]')
    A('s_lshr_b32 s3, s2, 3')
    A(f's_mul_i32 s3, s3, {lines*128}')
    A(f'v_lshlrev_b32 v{vt}, 7, v0')
    A(f'v_add_u32 v{vt}, s3, v{vt}')
    A(f'v_cmp_gt_u32 vcc, {lines}, v0')
    A('s_and_saveexec_b64 s[66:67], vcc')
    lab = A.newlabel('cpf')
    A(f's_cbranch_execz {lab}')
    A(f'global_load_dword v{vt+1}, v{vt}, s[64:65]')
    A.label(lab)
    A('s_mov_b64 exec, s[66:67]')

def lin_touch(A, X, tid, vt, srdn, ptrs):
    A('s_mul_i32 s3, s2, 20480')
    X.set(vt, X.sel(('lt', tid, 160), tid*128, OOB))
    for i, p in enumerate(ptrs):
        srd(A, srdn, p, DM*4096*2)
        A(f'buffer_load_dword v{vt+1+i}, v{vt}, s[{srdn}:{srdn+3}], s3 offen')
```

```python
from k7_common import *
LOG2E = math.log2(math.e)
sWS, sR1, sR2, sR3, sR4 = 4, 8, 12, 16, 20
sM = 92
sC2 = 24
sW, sB, sN, sO1, sO2, sLB, sT0, sT1, sTO, sTile, sNG, sRB, sZs, sQ = 30, 31, 32, 33, 34, 35, 36, 37, 38, 39, 40, 41, 42, 43
WS = f's[{sWS}:{sWS+3}]'
R1, R2, R3, R4 = [f's[{r}:{r+3}]' for r in (sR1, sR2, sR3, sR4)]
vL16, vD1, vD2, vD3, vR1, vT0, vT1, vT2, vT3 = 1, 2, 3, 4, 5, 6, 7, 8, 9
vGo, vXo, vRw, vRr, vFl, vZt, vZf = 10, 11, 12, 13, 14, 15, 16
vZu = 17
vH = 24
vA1 = 32
vWF = 64
vY = 84
vR1b = 100
vR2n = 112
vOF = 112
F = 244

def rbf2(A, x, y, t):
    A(f'v_cvt_pk_bf16_f32 v{t}, v{x}, v{y}')
    A(f'v_lshlrev_b32 v{x}, 16, v{t}')
    A(f'v_and_b32 v{y}, 0xffff0000, v{t}')
def rbf(A, x):
    A(f'v_cvt_pk_bf16_f32 v{x}, v{x}, v{x}')
    A(f'v_and_b32 v{x}, 0xffff0000, v{x}')
def silu(A, x, t):
    A(f'v_mul_f32 v{t}, {f2u(-LOG2E):#x}, v{x}')
    A(f'v_exp_f32 v{t}, v{t}')
    A('s_nop 0')
    A(f'v_add_f32 v{t}, 1.0, v{t}')
    A(f'v_rcp_f32 v{t}, v{t}')
    A('s_nop 0')
    A(f'v_mul_f32 v{x}, v{x}, v{t}')
def xsum_g(A, x, t):
    for sw in ('16', '32'):
        A(f'v_mov_b32 v{t}, v{x}')
        A.nop(2)
        A(f'v_permlane{sw}_swap_b32 v{t}, v{x}')
        A.nop(1)
        A(f'v_add_f32 v{x}, v{x}, v{t}')
def spin_flags(A, lab, ok, off, sleep):
    A.label(lab)
    A(f's_mov_b32 s{sT0}, {off}')
    A(f'buffer_load_dwordx2 v[{vT0}:{vT1}], v{vFl}, {WS}, s{sT0} offen sc1')
    A('s_waitcnt vmcnt(0)')
    emit(A, check_sent([vT0, vT1], vT0))
    A(f's_cbranch_vccz {ok}')
    A(f's_sleep {sleep}')
    A(f's_sub_u32 s{sTO}, s{sTO}, 1')
    A(f's_cbranch_scc0 {lab}')
    A('s_branch bulk_abort')

def gen_bulk(A, stamps, P):
    nst = [0]
    def st():
        if stamps:
            A(f's_memrealtime s[{70+2*nst[0]}:{71+2*nst[0]}]'); A('s_waitcnt lgkmcnt(0)'); nst[0] += 1
    A.label('bulk_entry')
    st()
    if P['cpf']: code_prefetch(A, 252, P['cpfb'])
    A('s_load_dwordx4 s[44:47], s[0:1], 64')
    A('s_load_dwordx4 s[48:51], s[0:1], 80')
    A('s_load_dwordx4 s[52:55], s[0:1], 96')
    A('s_load_dwordx2 s[56:57], s[0:1], 40')
    A('s_load_dwordx4 s[60:63], s[0:1], 0')
    A('s_load_dwordx4 s[88:91], s[0:1], 16')
    A('s_load_dwordx2 s[58:59], s[0:1], 32')
    X = VX(A, 200, F, 3)
    A(f'v_lshrrev_b32 v{F+3}, 6, v0')
    A(f'v_and_b32 v{F}, 63, v0')
    A(f'v_readfirstlane_b32 s{sW}, v{F+3}')
    A(f'v_bfe_u32 v{F+1}, v0, 4, 2')
    A(f'v_and_b32 v{F+2}, 15, v0')
    A(f's_lshr_b32 s{sB}, s2, 3')
    A(f's_lshl_b32 s{sB}, s{sB}, 2')
    A(f's_and_b32 s{sQ}, s2, 3')
    A(f's_add_u32 s{sB}, s{sB}, s{sQ}')
    A(f'v_mov_b32 v{F+4}, s{sB}')
    A(f's_lshl_b32 s{sM}, s{sQ}, 5')
    A(f's_lshr_b32 s3, s{sB}, 2')
    A(f's_add_u32 s{sM}, s{sM}, s3')
    A(f'v_mov_b32 v{F+5}, s{sM}')
    L, g, c, w, b, m_ = [X.reg(F+i) for i in range(6)]
    tid = X.reg(0)
    A(f's_mov_b32 s{sTO}, 0x400000')
    X.set(vL16, L*16)
    L16 = X.reg(vL16)
    n_ = lambda: m_ >> 1
    X.set(vT0, (n_()*32 + c)*1280 + w*320 + g*16)
    X.set(vD1, (L >> 3)*8192 + ((((L >> 1) & 3) ^ (((L >> 4) & 1) | ((w & 1) << 1)))*2 + (L & 1))*16 + (m_ >> 2)*256 + (m_ & 2)*64)
    A('s_waitcnt lgkmcnt(0)')
    srd(A, sWS, 54, WS_SIZE)
    srd(A, sR1, 60, S_TOK*DM*2)
    srd(A, sR4, 52, 256)
    X.set(vZf, X.sel(('eq', tid, 0), 0, OOB))
    X.set(vFl, L*8)
    A(f's_and_b32 s3, s{sM}, 1')
    A('s_cbranch_scc0 b_even')
    XR, XR2, FL = 32, 112, 64
    A('s_movk_i32 s26, 0x5000')
    for t in range(5):
        A(f'buffer_load_dwordx4 v[{XR+4*t}:{XR+4*t+3}], v{vT0}, {R1}, 0 offen offset:{64*t}')
    for t in range(5):
        A(f'buffer_load_dwordx4 v[{XR2+4*t}:{XR2+4*t+3}], v{vT0}, {R1}, s26 offen offset:{64*t}')
    if P['lin']: lin_touch(A, X, tid, 160, sR2, (88, 90, 58, 56))
    for q in range(4): A(f'v_mov_b32 v{vH+q}, -1')
    X.set(vT1, X.sel(('lt', tid, 16), n_()*256 + tid*16 + WS_TAB, OOB))
    A(f'buffer_store_dwordx4 v[{vH}:{vH+3}], v{vT1}, {WS}, 0 offen sc1')
    X.set(vT1, n_()*40960 + w*5120 + L16 + WS_XN)
    X.set(vRw, w*64 + c*4)
    X.set(vRr, c*4)
    A(f's_mov_b32 s{sN}, 0')
    A(f's_waitcnt vmcnt({5 if P["lin"] else 1})')
    A.label('ln_loop')
    for k in range(20):
        A(f'v_lshlrev_b32 v{FL+2*k}, 16, v{XR+k}')
        A(f'v_and_b32 v{FL+2*k+1}, 0xffff0000, v{XR+k}')
    A(f'v_add_f32 v{vT2}, v{FL}, v{FL+1}')
    for k in range(2, 40): A(f'v_add_f32 v{vT2}, v{vT2}, v{FL+k}')
    def wg_sum(dst, off):
        xsum_g(A, vT2, vT3)
        A(f'ds_write_b32 v{vRw}, v{vT2} offset:{off}')
        A('s_waitcnt lgkmcnt(0)')
        A('s_barrier')
        for k in range(4): A(f'ds_read_b32 v{dst+k}, v{vRr} offset:{off+64*k}')
        A('s_waitcnt lgkmcnt(0)')
        A(f'v_add_f32 v{dst}, v{dst}, v{dst+1}')
        A(f'v_add_f32 v{dst+2}, v{dst+2}, v{dst+3}')
        A(f'v_add_f32 v{dst}, v{dst}, v{dst+2}')
        A(f'v_mul_f32 v{dst}, {f2u(1.0/640):#x}, v{dst}')
    MN, VR = 104, 108
    wg_sum(MN, 0)
    A(f'v_sub_f32 v{vT3}, v{FL}, v{MN}')
    A(f'v_mul_f32 v{vT2}, v{vT3}, v{vT3}')
    for k in range(1, 40):
        A(f'v_sub_f32 v{vT3}, v{FL+k}, v{MN}')
        A(f'v_fmac_f32 v{vT2}, v{vT3}, v{vT3}')
    wg_sum(VR, 256)
    rbf(A, VR)
    A(f'v_add_f32 v{VR}, 0x3727c5ac, v{VR}')
    rbf(A, VR)
    A(f'v_sqrt_f32 v{VR}, v{VR}')
    A.nop(1)
    rbf(A, VR)
    A(f'v_rcp_f32 v{VR}, v{VR}')
    rbf(A, MN)
    A(f'v_mov_b32 v{MN+1}, v{MN}')
    A(f'v_mov_b32 v{VR+1}, v{VR}')
    YR = 136
    for k in range(20):
        A(f'v_pk_add_f32 v[{FL+2*k}:{FL+2*k+1}], v[{FL+2*k}:{FL+2*k+1}], v[{MN}:{MN+1}] neg_lo:[0,1] neg_hi:[0,1]')
        rbf2(A, FL+2*k, FL+2*k+1, vT3)
        A(f'v_pk_mul_f32 v[{FL+2*k}:{FL+2*k+1}], v[{FL+2*k}:{FL+2*k+1}], v[{VR}:{VR+1}]')
        A(f'v_cvt_pk_bf16_f32 v{YR+k}, v{FL+2*k}, v{FL+2*k+1}')
    A(f'v_add_u32 v{vT2}, 4096, v{vT1}')
    for t in range(5):
        A(f'buffer_store_dwordx4 v[{YR+4*t}:{YR+4*t+3}], v{vT1 if t < 4 else vT2}, {WS}, 0 offen offset:{1024*(t%4)} sc1')
    for k in range(20): A(f'v_mov_b32 v{XR+k}, v{XR2+k}')
    A(f'v_add_u32 v{vT1}, 20480, v{vT1}')
    A(f's_add_u32 s{sN}, s{sN}, 1')
    A(f's_cmp_lt_u32 s{sN}, 2')
    A('s_cbranch_scc1 ln_loop')
    A('s_waitcnt vmcnt(0)')
    A('s_barrier')
    A(f's_cmp_lg_u32 s{sW}, 0')
    A('s_cbranch_scc1 b_arrived')
    arrive_s(A, 52, 26, 'b_arrived')
    A('s_branch b_arrived')
    A.label('b_even')
    if P['lin']: lin_touch(A, X, tid, 160, sR2, (88, 90, 58, 56))
    A.label('b_arrived')
    def stage(ptr, base):
        srd(A, sR2, ptr, DM*4096*2)
        A(f's_lshl_b32 s{sT0}, s{sW}, 10')
        A(f's_add_u32 s{sT0}, s{sT0}, {base}')
        A(f's_lshl_b32 s{sT1}, s{sW}, 16')
        for i in range(20):
            A(f's_mov_b32 m0, s{sT0}')
            A(f's_add_u32 s{sT0}, s{sT0}, 4096')
            A(f'buffer_load_dwordx4 v{vD1}, {R2}, s{sT1} offen lds')
            A(f's_add_u32 s{sT1}, s{sT1}, {4*65536}')
    stage(88, 0)
    stage(90, 81920)
    srd(A, sR2, 58, DM*4096*2)
    for i in range(3):
        X.set(vT1, X.sel(('lt', tid + 256*i, 640), (tid + 256*i)*8192 + (m_ >> 2)*256 + (m_ & 2)*64, OOB))
        A(f'buffer_load_dword v{112+i}, v{vT1}, {R2}, 0 offen')
    trb = lambda le: (g*8 + ((L >> 2) & 3))*128 + (le ^ (((L >> 3) & 1) | ((g & 1) << 1)))*32 + (L & 3)*8
    def trload(abase, R0):
        A(f'v_add_u32 v{vT3}, 0x10000, v{R0}')
        for t in range(20):
            r, o = (R0, 4096*t) if t < 16 else (vT3, 4096*(t-16))
            A(f'ds_read_b64_tr_b16 a[{abase+4*t}:{abase+4*t+1}], v{r} offset:{o}')
            A(f'ds_read_b64_tr_b16 a[{abase+4*t+2}:{abase+4*t+3}], v{r} offset:{o+512}')
            if t % 4 == 3: A('s_waitcnt lgkmcnt(4)')
    X.set(vR1, trb(w & 1) + (w >> 1)*81920)
    X.set(vD3, trb((w & 1) + 2) + (w >> 1)*81920)
    A('s_waitcnt vmcnt(3)')
    A('s_barrier')
    trload(0, vR1)
    trload(160, vD3)
    A('s_waitcnt lgkmcnt(0)')
    A('s_barrier')
    stage(58, 81920)
    X.set(vR1, trb(w) + 81920)
    A(f's_and_b32 s{sT0}, s{sB}, 15')
    A(f's_mul_i32 s{sT0}, s{sT0}, 5')
    A(f'v_mov_b32 v{vT0}, s{sT0}')
    for u in range(5):
        uu = X.reg(vT0) + u
        X.set(vZu+u, (uu >> 1)*16384 + (uu & 1)*4096 + tid*16)
    A('s_waitcnt vmcnt(0)')
    A('s_barrier')
    trload(80, vR1)
    A(f's_lshr_b32 s{sZs}, s{sB}, 4')
    def fill(nph, flag):
        for q in range(4): A(f'v_mov_b32 v{vH+q}, -1')
        for ph in range(nph):
            A(f'v_readlane_b32 s{sT0}, v{vZt}, s{sZs}')
            if flag == 0:
                A(f's_cmp_lt_u32 s{sZs}, 3')
                A(f's_cselect_b32 s{sT0}, {OOB:#x}, s{sT0}')
            A(f's_add_u32 s{sZs}, s{sZs}, 8')
            A.nop(4)
            for u in range(5):
                A(f'buffer_store_dwordx4 v[{vH}:{vH+3}], v{vZu+u}, {WS}, s{sT0} offen sc1')
        A('s_waitcnt vmcnt(0)')
        A('s_barrier')
        A(f's_lshl_b32 s{sT0}, s{sB}, 2')
        A(f's_add_u32 s{sT0}, s{sT0}, {WS_ZFLAG + 512*flag}')
        A(f'buffer_store_dword v{vZf}, v{vZf}, {WS}, s{sT0} offen sc1')
    A(f's_cmp_lt_u32 s{sW}, 2')
    A(f's_cselect_b32 s{sC2}, {f2u(QSCALE):#x}, 1.0')
    A(f's_mov_b32 s{sC2+1}, s{sC2}')
    tq = lambda: (m_ & 2) + (w & 1)
    X.set(vGo, X.sel(('lt', w, 2), (c >> 3)*2048 + tq()*512 + (g*8 + (c & 7))*16 + 16384, tq()*1024 + L16))
    X.set(vXo, ((m_ & 2)*2 + w)*1024 + L16 + 8192)
    X.set(vRr, X.sel(('eq', tid, 0), m_*4 + WS_QP, OOB))
    A(f's_and_b32 s3, s{sM}, 1')
    A(f's_mul_i32 s{sO1}, s3, 40960')
    A(f's_mul_i32 s{sLB}, s{sW}, 5120')
    A(f's_add_u32 s{sO1}, s{sO1}, s{sLB}')
    A(f's_mul_i32 s{sO2}, s3, {XSEG}')
    A(f's_lshr_b32 s3, s{sM}, 2')
    A(f's_mul_i32 s3, s3, {XH}')
    A(f's_add_u32 s{sO2}, s{sO2}, s3')
    A(f's_add_u32 s{sO2}, s{sO2}, {WS_KX}')
    A(f's_mov_b32 s{sN}, 0')
    RG, XA, PK, PV = 40, 72, 84, 88
    def x_dma(buf, adv):
        o = [f's_add_u32 m0, s{sLB}, {20480*buf}', f's_add_u32 s{sT0}, s{sO1}, 4096']
        o += [f'buffer_load_dwordx4 v{vL16}, {WS}, s{sO1} offen offset:{1024*k} sc1 lds' for k in range(4)]
        o += [f's_add_u32 m0, s{sLB}, {20480*buf + 4096}', f's_add_u32 s{sO1}, s{sO1}, {adv}',
              f'buffer_load_dwordx4 v{vL16}, {WS}, s{sT0} offen sc1 lds']
        return o
    def x_tile(tt, young):
        A(f's_waitcnt vmcnt({young})')
        A('s_barrier')
        fl = x_dma(1 - tt, 61440 if tt == 0 else 20480)
        if tt == 1:
            fl = [f'v_mov_b32 v{vT0}, s{sN}', f'buffer_store_dword v{vT0}, v{vRr}, {WS}, 0 offen sc1'] + fl
        o = []
        rd = lambda t: f'ds_read_b128 v[{RG+4*(t%8)}:{RG+4*(t%8)+3}], v{vL16} offset:{20480*tt + 1024*t}'
        for t in range(6): o.append(rd(t))
        for t in range(20):
            o.append(f's_waitcnt lgkmcnt({min(20, t + 6) - t - 1})')
            f = v(RG + 4*(t % 8), 4)
            o.append(M32(v(XA, 4), a(4*t, 4), f, '0' if t == 0 else v(XA, 4)))
            o.append(M32(v(XA+4, 4), a(160+4*t, 4), f, '0' if t == 0 else v(XA+4, 4)))
            o.append(M32(v(XA+8, 4), f, a(80+4*t, 4), '0' if t == 0 else v(XA+8, 4)))
            if t + 6 < 20: o.append(rd(t + 6))
        emit(A, weave(o, fl, per=1))
        if tt: A(f's_add_u32 s{sT1}, s{sO2}, 4096')
        A.nop(6)
        for r in range(0, 8, 2): A(f'v_pk_mul_f32 v[{XA+r}:{XA+r+1}], v[{XA+r}:{XA+r+1}], s[{sC2}:{sC2+1}]')
        for r in range(4): A(f'v_cvt_pk_bf16_f32 v{PK+r}, v{XA+2*r}, v{XA+2*r+1}')
        A(f'buffer_store_dwordx4 v[{PK}:{PK+3}], v{vGo}, {WS}, s{sT1 if tt else sO2} offen sc1')
        for r in range(2): A(f'v_cvt_pk_bf16_f32 v{PV+2*tt+r}, v{XA+8+2*r}, v{XA+8+2*r+1}')
        if tt:
            A(f'buffer_store_dwordx4 v[{PV}:{PV+3}], v{vXo}, {WS}, s{sO2} offen sc1')
            A(f's_add_u32 s{sO2}, s{sO2}, {2*XSEG}')
            A(f's_add_u32 s{sN}, s{sN}, 1')
    wait_start(A, R4, vT0, 26, sTO, 'b_start', 'bulk_abort', sleep=2)
    emit(A, x_dma(0, 20480))
    x2_table(A, X, L, vZt, 26, 54, vT1)
    st()
    A('s_waitcnt vmcnt(0) lgkmcnt(0)')
    A.label('q_loop')
    x_tile(0, 2); x_tile(1, 1)
    A(f's_cmp_eq_u32 s{sN}, 1')
    A('s_cbranch_scc1 q_fill0')
    A(f's_cmp_eq_u32 s{sN}, 6')
    A('s_cbranch_scc1 q_fill')
    A(f's_cmp_eq_u32 s{sN}, 16')
    A('s_cbranch_scc1 q_fill2')
    A.label('q_back')
    A(f's_cmp_lt_u32 s{sN}, 32')
    A('s_cbranch_scc1 q_loop')
    A('s_branch q_done')
    A.label('q_fill0')
    A('s_waitcnt vmcnt(0)')
    A('s_barrier')
    A(f'v_mov_b32 v{vT0}, 1')
    A(f'buffer_store_dword v{vT0}, v{vRr}, {WS}, 0 offen sc1')
    fill(1, 0)
    A('s_branch q_back')
    A.label('q_fill')
    fill(2, 1)
    A('s_branch q_back')
    A.label('q_fill2')
    fill(5, 2)
    A('s_branch q_back')
    A.label('q_done')
    A('s_waitcnt vmcnt(0)')
    A('s_barrier')
    A(f'v_mov_b32 v{vT0}, 64')
    A(f'buffer_store_dword v{vT0}, v{vRr}, {WS}, 0 offen sc1')
    st()
    srd(A, sR1, 44, DM*FF*2)
    srd(A, sR2, 46, DM*FF*2)
    srd(A, sR3, 48, FF*DM*2)
    jj, qq = (lambda: b >> 2), (lambda: b & 3)
    X.set(vT2, X.sel(('lt', tid, 160), ((tid >> 3)*32 + jj())*3456 + ((tid & 7)*4 + qq())*128, OOB))
    A(f'buffer_load_dword v{vWF}, v{vT2}, {R1}, 0 offen')
    A(f'buffer_load_dword v{vWF+1}, v{vT2}, {R2}, 0 offen')
    X.set(vT3, (tid*6554) >> 16)
    rr = X.reg(vT3)
    X.set(vT2, X.sel(('lt', tid, 140), (((rr >> 1)*4 + qq())*64 + (rr & 1)*32 + jj())*1280 + (tid - rr*10)*128, OOB))
    A(f'buffer_load_dword v{vWF+2}, v{vT2}, {R3}, 0 offen')
    A(f's_and_b32 s{sTile}, s{sB}, 0x7c')
    A(f's_add_u32 s{sTile}, s{sTile}, s{sW}')
    A(f's_mul_i32 s{sT0}, s{sTile}, 20480')
    for t in range(20):
        if t and t % 4 == 0: A(f's_add_u32 s{sT0}, s{sT0}, 4096')
        A(f'buffer_load_dwordx4 a[{4*t}:{4*t+3}], v{vL16}, {WS}, s{sT0} offen offset:{1024*(t%4)} sc1')
    st()
    X.set(vD1, (w*8 + (L >> 3))*3456 + ((((L >> 1) & 3) ^ (((L >> 4) & 1) | ((w & 1) << 1)))*2 + (L & 1))*16)
    for i, dst in enumerate((vD2, vD3)):
        X.set(dst, (w*8 + (L >> 4) + 4*i)*1280 + ((((L >> 1) & 7) ^ ((L >> 4) + 4*i))*2 + (L & 1))*16)
    for tl in range(4):
        X.set(vR1b+tl, (g*8 + ((L >> 2) & 3))*128 + ((((L >> 3) & 1) | ((g & 1) << 1)) ^ tl)*32 + (L & 3)*8)
        X.set(vR1b+4+tl, X.reg(vR1b+tl) + 65536)
    for n in range(8):
        X.set(vR2n+n, (g*4 + ((L >> 2) & 3))*256 + ((((g & 1)*4 + ((L >> 2) & 3)) ^ n)*32) + (L & 3)*8)
        X.set(vR2n+8+n, X.reg(vR2n+n) + 65536)
    A(f'v_mov_b32 v{vT0}, 0')
    for r in range(160): A(f'v_accvgpr_write_b32 a{80+r}, v{vT0}')
    A(f's_cmp_lt_u32 s{sQ}, 3')
    A(f's_cselect_b32 s{sN}, 7, 6')
    A(f's_lshl_b32 s{sO1}, s{sQ}, 7')
    A(f's_mul_i32 s{sO2}, s{sQ}, {64*1280}')
    A(f's_lshl_b32 s{sLB}, s{sW}, 10')
    A(f's_lshl_b32 s{sRB}, s{sW}, 11')
    NS, NC = 15, 30
    def issue(ci, nxt):
        o = []; lb = (ci % NS) * 8192
        if ci < 20:
            for m, sr in enumerate((R1, R2)):
                o.append(f's_add_u32 m0, s{sLB}, {lb + m*4096}')
                o.append(f's_add_u32 s{sT0}, s{sO1}, {ci*32*3456 + nxt*512}')
                o.append(f'buffer_load_dwordx4 v{vD1}, {sr}, s{sT0} offen lds')
        else:
            hb, cc = (ci - 20) // 5, (ci - 20) % 5
            for i in range(2):
                o.append(f's_add_u32 m0, s{sRB}, {lb + i*1024}')
                o.append(f's_add_u32 s{sT0}, s{sO2}, {hb*32*1280 + cc*256}')
                o.append(f'buffer_load_dwordx4 v{vD2 if i == 0 else vD3}, {R3}, s{sT0} offen lds')
        return o
    A('s_waitcnt vmcnt(0)')
    for ci in range(NS - 1): emit(A, issue(ci, 0))
    A.label('ffn_loop')
    for ci in range(NC):
        A(f's_waitcnt vmcnt({2*(NS-2)})')
        A('s_barrier')
        lb = (ci % NS) * 8192
        hi = 1 if lb >= 65536 else 0
        lb -= hi*65536
        nx = issue((ci + NS - 1) % NC, 1 if ci + NS - 1 >= NC else 0)
        mf = []
        if ci < 20:
            for n in range(8):
                m, tl = n >> 2, n & 3
                r = vWF + 4*n
                A(f'ds_read_b64_tr_b16 v[{r}:{r+1}], v{vR1b+4*hi+tl} offset:{lb + m*4096}')
                A(f'ds_read_b64_tr_b16 v[{r+2}:{r+3}], v{vR1b+4*hi+tl} offset:{lb + m*4096 + 512}')
            for n in range(8):
                mf.append(f's_waitcnt lgkmcnt({2*(7-n)})')
                mf.append(M32(v(vA1+4*n, 4), v(vWF+4*n, 4), a(4*ci, 4), '0' if ci == 0 else v(vA1+4*n, 4)))
        else:
            hb, cc = (ci - 20) // 5, (ci - 20) % 5
            for n in range(8):
                r = vWF + 4*n
                A(f'ds_read_b64_tr_b16 v[{r}:{r+1}], v{vR2n+8*hi+n} offset:{lb}')
                A(f'ds_read_b64_tr_b16 v[{r+2}:{r+3}], v{vR2n+8*hi+n} offset:{lb + 4096}')
            if ci == 20:
                for tl in range(4):
                    for r in (0, 2):
                        gx, ux = vA1 + 4*tl + r, vA1 + 16 + 4*tl + r
                        rbf2(A, gx, gx+1, vT0); rbf2(A, ux, ux+1, vT0)
                        silu(A, gx, vT0); silu(A, gx+1, vT1)
                        rbf2(A, gx, gx+1, vT0)
                        A(f'v_mul_f32 v{gx}, v{gx}, v{ux}')
                        A(f'v_mul_f32 v{gx+1}, v{gx+1}, v{ux+1}')
                        A(f'v_cvt_pk_bf16_f32 v{vH+2*tl+r//2}, v{gx}, v{gx+1}')
                A('s_nop 0')
            for n in range(8):
                ct = cc*8 + n
                mf.append(f's_waitcnt lgkmcnt({2*(7-n)})')
                mf.append(M32(a(80+4*ct, 4), v(vWF+4*n, 4), v(vH+4*hb, 4), a(80+4*ct, 4)))
        emit(A, weave(mf, nx, per=1))
    A(f's_add_u32 s{sO1}, s{sO1}, 512')
    A(f's_add_u32 s{sO2}, s{sO2}, {256*1280}')
    A(f's_sub_u32 s{sN}, s{sN}, 1')
    A(f's_cmp_lg_u32 s{sN}, 0')
    A('s_cbranch_scc1 ffn_loop')
    A('s_waitcnt vmcnt(0)')
    A('s_barrier')
    st()
    A(f's_lshl_b32 s{sT0}, s{sQ}, 7')
    A(f's_add_u32 s{sT0}, s{sT0}, s{sTile}')
    A(f's_mul_i32 s{sT0}, s{sT0}, 40960')
    A(f's_add_u32 s{sT0}, s{sT0}, {WS_G}')
    for ct in range(40):
        if ct and ct % 4 == 0: A(f's_add_u32 s{sT0}, s{sT0}, 4096')
        A(f'buffer_store_dwordx4 a[{80+4*ct}:{80+4*ct+3}], v{vL16}, {WS}, s{sT0} offen offset:{1024*(ct%4)} sc1')
    A('s_waitcnt vmcnt(0)')
    A('s_barrier')
    A(f's_lshl_b32 s{sT0}, s{sB}, 2')
    A(f's_add_u32 s{sT0}, s{sT0}, {WS_GFLAG}')
    A(f'buffer_store_dword v{vZf}, v{vZf}, {WS}, s{sT0} offen sc1')
    A(f's_cmp_ge_u32 s{sB}, 120')
    A('s_cbranch_scc1 bulk_end')
    A(f's_mul_i32 s{sTile}, s{sB}, 3277')
    A(f's_lshr_b32 s{sTile}, s{sTile}, 16')
    A(f's_mul_i32 s3, s{sTile}, 20')
    A(f's_sub_u32 s{sNG}, s{sB}, s3')
    srd(A, sR1, 56, 4096*DM*2)
    srd(A, sR2, 60, S_TOK*DM*2)
    srd(A, sR3, 50, S_TOK*DM*2)
    X.set(vD1, (L >> 2)*1280 + (L & 3)*16)
    X.set(vR1, w*40960 + (g*4 + ((L >> 2) & 3))*64 + (L & 3)*8)
    A(f's_mul_i32 s{sO1}, s{sW}, {1024*1280}')
    A(f's_lshl_b32 s3, s{sNG}, 6')
    A(f's_add_u32 s{sO1}, s{sO1}, s3')
    A(f's_mul_i32 s{sLB}, s{sW}, 40960')
    for rnd in range(2):
        for i in range(32):
            A(f's_add_u32 m0, s{sLB}, {1024*i}')
            A(f's_add_u32 s{sT1}, s{sO1}, {(rnd*512 + i*16)*1280}')
            A(f'buffer_load_dwordx4 v{vD1}, {R1}, s{sT1} offen lds')
        A('s_waitcnt vmcnt(0)')
        for t in range(16):
            for tl in range(2):
                r = ((rnd*16 + t)*2 + tl)*4
                A(f'ds_read_b64_tr_b16 a[{r}:{r+1}], v{vR1} offset:{t*2048 + tl*32}')
                A(f'ds_read_b64_tr_b16 a[{r+2}:{r+3}], v{vR1} offset:{t*2048 + tl*32 + 1024}')
            if t % 2 == 1: A('s_waitcnt lgkmcnt(4)')
        A('s_waitcnt lgkmcnt(0)')
    X.set(vRw, w*2048 + L16)
    X.set(vRr, (w & 1)*1024 + L16)
    X.set(vD2, w*32768 + L16)
    X.set(vGo, (w & 1)*1024 + L16)
    X.set(vXo, c*1280 + (w & 1)*32 + g*8)
    if stamps: X.set(vD3, X.sel(('lt', tid, 8), tid*4, OOB))
    spin_flags(A, 'g_poll', 'g_ok', WS_GFLAG, 8)
    A.label('g_ok')
    A('s_barrier')
    st()
    A(f's_mov_b32 s{sRB}, 0')
    A.label('op_loop')
    A(f's_lshr_b32 s{sT0}, s{sTile}, 1')
    A(f's_cmp_ge_u32 s{sT0}, 62')
    A('s_cbranch_scc1 op_final')
    A(f's_lshl_b32 s{sT0}, s{sT0}, 7')
    A(f's_add_u32 s{sT0}, s{sT0}, {WS_PROG}')
    A(f'v_mov_b32 v{vT2}, 0')
    A.label('p_poll')
    A(f'buffer_load_dword v{vT0}, v{vT2}, {WS}, s{sT0} offen sc1')
    A('s_waitcnt vmcnt(0)')
    A(f'v_cmp_eq_u32 vcc, -1, v{vT0}')
    A('s_cbranch_vccz op_go')
    A('s_sleep 8')
    A(f's_sub_u32 s{sTO}, s{sTO}, 1')
    A('s_cbranch_scc0 p_poll')
    A('s_branch bulk_abort')
    spin_flags(A, 'op_final', 'op_go', WS_FLAG, 2)
    A.label('op_go')
    A(f's_lshl_b32 s{sT0}, s{sTile}, 17')
    A(f's_add_u32 s{sT0}, s{sT0}, {WS_OF}')
    for t in range(32):
        if t and t % 4 == 0: A(f's_add_u32 s{sT0}, s{sT0}, 4096')
        A(f'buffer_load_dwordx4 v[{vOF+4*t}:{vOF+4*t+3}], v{vD2}, {WS}, s{sT0} offen offset:{1024*(t%4)} sc1')
    A(f's_mul_i32 s{sT0}, s{sTile}, 20480')
    A(f's_lshl_b32 s{sT1}, s{sNG}, 10')
    A(f's_add_u32 s{sT1}, s{sT1}, s{sT0}')
    A(f's_lshl_b32 s{sT1}, s{sT1}, 1')
    A(f's_add_u32 s{sT1}, s{sT1}, {WS_G}')
    for q in range(4):
        A(f'buffer_load_dwordx4 v[{vY+4*q}:{vY+4*q+3}], v{vGo}, {WS}, s{sT1} offen sc1')
        if q < 3: A(f's_add_u32 s{sT1}, s{sT1}, {128*40960}')
    A(f's_lshl_b32 s{sT1}, s{sNG}, 6')
    A(f's_add_u32 s{sO2}, s{sT1}, s{sT0}')
    A(f'buffer_load_dwordx2 v[{vH+2}:{vH+3}], v{vXo}, {R2}, s{sO2} offen')
    for t in range(32):
        A(f's_waitcnt vmcnt({36-t})')
        for tl in range(2):
            A(M32(v(vA1+4*tl, 4), a((2*t+tl)*4, 4), v(vOF+4*t, 4), '0' if t == 0 else v(vA1+4*tl, 4)))
    A(f'v_add_u32 v{vT2}, s{sRB}, v{vRw}')
    A(f'v_add_u32 v{vT3}, s{sRB}, v{vRr}')
    A.nop(6)
    A(f'ds_write_b128 v{vT2}, v[{vA1}:{vA1+3}]')
    A(f'ds_write_b128 v{vT2}, v[{vA1+4}:{vA1+7}] offset:1024')
    A(f's_xor_b32 s{sRB}, s{sRB}, 8192')
    A('s_waitcnt lgkmcnt(0)')
    A('s_barrier')
    A(f's_cmp_ge_u32 s{sW}, 2')
    A('s_cbranch_scc1 op_next')
    for p in range(4): A(f'ds_read_b128 v[{vWF+4*p}:{vWF+4*p+3}], v{vT3} offset:{2048*p}')
    A('s_waitcnt vmcnt(0) lgkmcnt(0)')
    for r in range(4):
        for bs in (vWF, vY):
            A(f'v_add_f32 v{bs+r}, v{bs+r}, v{bs+4+r}')
            A(f'v_add_f32 v{bs+8+r}, v{bs+8+r}, v{bs+12+r}')
            A(f'v_add_f32 v{bs+r}, v{bs+r}, v{bs+8+r}')
    for r in (0, 2):
        s0, s1 = vWF+r, vWF+r+1
        rbf2(A, vY+r, vY+r+1, vT0)
        silu(A, vY+r, vT0); silu(A, vY+r+1, vT1)
        rbf2(A, vY+r, vY+r+1, vT0)
        rbf2(A, s0, s1, vT0)
        A(f'v_mul_f32 v{s0}, v{s0}, v{vY+r}')
        A(f'v_mul_f32 v{s1}, v{s1}, v{vY+r+1}')
        rbf2(A, s0, s1, vT0)
        A(f'v_lshlrev_b32 v{vT0}, 16, v{vH+2+r//2}')
        A(f'v_and_b32 v{vT1}, 0xffff0000, v{vH+2+r//2}')
        A(f'v_add_f32 v{s0}, v{s0}, v{vT0}')
        A(f'v_add_f32 v{s1}, v{s1}, v{vT1}')
        A(f'v_cvt_pk_bf16_f32 v{vWF+16+r//2}, v{s0}, v{s1}')
    A(f'buffer_store_dwordx2 v[{vWF+16}:{vWF+17}], v{vXo}, {R3}, s{sO2} offen')
    A.label('op_next')
    A(f's_add_u32 s{sTile}, s{sTile}, 6')
    A(f's_cmp_lt_u32 s{sTile}, 128')
    A('s_cbranch_scc1 op_loop')
    if stamps:
        A('s_waitcnt vmcnt(0)')
        st()
        for q in range(nst[0]): A(f'v_writelane_b32 v{vT0}, s{70+2*q}, {q}')
        A(f's_lshl_b32 s{sT0}, s{sB}, 6')
        A(f's_add_u32 s{sT0}, s{sT0}, {WS_DBG + 0x400000}')
        A(f'buffer_store_dword v{vT0}, v{vD3}, {WS}, s{sT0} offen')
    A('s_endpgm')
    A.label('bulk_abort')
    A(f'v_mov_b32 v{vT0}, 9')
    A(f'v_mov_b32 v{vT1}, 4')
    A(f'buffer_store_dword v{vT0}, v{vT1}, {R4}, 0 offen')
    A.label('bulk_end')
    A('s_endpgm')
```

```python
from k7_common import *
NEG = -1.0e30
L_MEM = 0
L_Q   = 10240
L_K   = L_Q + 2048
L_O   = L_K + 2048
L_QX  = L_O + 8192
L_KX  = L_QX + 2048
L_XN  = 40960
LDS_BYTES = 163840
assert L_KX + 8192 <= L_XN
sWS, sWT, sC2 = 4, 8, 12
sKXm, sQXr = 14, 15
sCnt = 16
sPar, sQok = 28, 29
sW, sG, sJ, sH, sA, sStep, sTO, sXw = 30, 31, 32, 33, 34, 35, 36, 37
sX3r, sX1, sX2, sX3w, sVXr, sX2L, sXr, sT0, sT1, sOF, sNH = 38, 39, 40, 41, 42, 44, 45, 46, 47, 48, 49
sX3G, sX1H, sDB, sXNg, sHoff, sT2 = 50, 51, 52, 53, 54, 55
sST = 56
sWarm, sLrng, sZn, sZo = 88, 89, 90, 91
vDbg, vX2tab = 0, 1
vX3ld, vMemR, vX1st, vV1st, vQKld, vQKw, vQr, vKr, vVMld, vOw = 2, 3, 4, 5, 6, 7, 8, 9, 10, 11
vX2st, vSR, vOFst, vL16, vKXr, vXNr, vXA, vM2, vM = 12, 13, 14, 15, 16, 17, 18, 19, 20
vR = 21
vT0, vT1, vT2, vT3, vRinv, vRinv1 = 30, 31, 32, 33, 34, 35
vPL = 36
vBias = 40
vLS = 48
vVE = 52
vWO = 56
vKX = 104
vVX = 136
vS = 144
vAcc = 156
vAcc2 = 160
vP = 164
vVM4 = 168
vXACC = 172
vMW = 180
vOFR = 184
vSent4 = 188
vRG = 192
vPS = 224
vQS = 248
aSel, aOne, aSelH, aOneM = 240, 244, 248, 252
WS = f's[{sWS}:{sWS+3}]'

class Stamp:
    def __init__(self, A, on): self.A, self.on, self.n = A, on, 0
    def __call__(self, lvl=2):
        if self.on >= lvl:
            self.A(f'{"s_memrealtime" if self.on == 3 else "s_memtime"} s[{sST+2*self.n}:{sST+2*self.n+1}]')
            self.A('s_waitcnt lgkmcnt(0)')
            self.n += 1
    def flush(self):
        if not self.on: return
        A = self.A
        for k in range(self.n): A(f'v_writelane_b32 v{vT3}, s{sST+2*k}, {k}')
        for k in range(5): A(f'v_writelane_b32 v{vT3}, s{sCnt+k}, {10+k}')
        A(f'v_writelane_b32 v{vT3}, s100, 15')
        A(f's_lshl_b32 s{sT0}, s{sStep}, 6')
        A(f's_add_u32 s{sT0}, s{sT0}, s{sDB}')
        A(f'buffer_store_dword v{vT3}, v{vDbg}, {WS}, s{sT0} offen')

def slot_list(add):
    return [
    f's_add_u32 s{sT0}, s{sStep}, {add}',
    f's_and_b32 s{sT1}, s{sT0}, 63',
    f's_and_b32 s{sT0}, s{sT0}, 3',
    f's_mul_i32 s{sX3r}, s{sT0}, {X3_SLOT}',
    f's_add_u32 s{sX3r}, s{sX3r}, s{sX3G}',
    f'v_readlane_b32 s{sX2}, v{vX2tab}, s{sT1}',
    f's_mul_i32 s{sX2L}, s{sT0}, {X2_SLOT}',
    f's_add_u32 s{sX2L}, s{sX2L}, {WS_X2L}',
    f's_mul_i32 s{sX1}, s{sT0}, {X1_SLOT}',
    f's_add_u32 s{sX1}, s{sX1}, s{sX1H}',
    f's_add_u32 s{sT0}, s{sT0}, 1',
    f's_and_b32 s{sT0}, s{sT0}, 3',
    f's_mul_i32 s{sX3w}, s{sT0}, {X3_SLOT}',
    f's_add_u32 s{sX3w}, s{sX3w}, s{sX3G}']
def reset_list(fl):
    S4 = f'v[{vSent4}:{vSent4+3}]'
    o = [f's_add_u32 s{sT2}, s{sStep}, 2', f's_and_b32 s{sT2}, s{sT2}, 3',
         f's_mul_i32 s{sT0}, s{sT2}, {X2_SLOT}', f's_add_u32 s{sT0}, s{sT0}, {WS_X2L}']
    for i in range(3):
        o.append(f'buffer_store_dwordx4 {S4}, v{vR if i < 2 else vR+1}, {WS}, s{sT0} offen{fl}')
        if i < 2: o.append(f's_add_u32 s{sT0}, s{sT0}, 32768')
    o += [f's_mul_i32 s{sT1}, s{sT2}, {X1_SLOT}', f's_add_u32 s{sT1}, s{sT1}, s{sX1H}',
          f'buffer_store_dwordx4 {S4}, v{vR+2}, {WS}, s{sT1} offen{fl}',
          f'buffer_store_dwordx4 {S4}, v{vR+2}, {WS}, s{sT1} offen offset:1024{fl}',
          f's_add_u32 s{sT2}, s{sT2}, 1', f's_and_b32 s{sT2}, s{sT2}, 3',
          f's_mul_i32 s{sT1}, s{sT2}, {X3_SLOT}', f's_add_u32 s{sT1}, s{sT1}, s{sX3G}',
          f'buffer_store_dwordx4 {S4}, v{vR+3}, {WS}, s{sT1} offen{fl}']
    return o
def kv_list():
    return [f's_add_u32 m0, s{sKXm}, {L_KX}', f's_add_u32 s{sVXr}, s{sXr}, 8192',
            f'buffer_load_dwordx4 v{vL16}, {WS}, s{sXr} offen sc1 lds',
            f'buffer_load_dwordx4 v{vL16}, {WS}, s{sXr} offen offset:1024 sc1 lds',
            f'buffer_load_dwordx4 v[{vVX}:{vVX+3}], v{vL16}, {WS}, s{sVXr} offen sc1',
            f'buffer_load_dwordx4 v[{vVX+4}:{vVX+7}], v{vL16}, {WS}, s{sVXr} offen offset:1024 sc1',
            f's_add_u32 s{sXr}, s{sXr}, {XSEG}']
def qx_list():
    return [f's_mov_b32 m0, {L_QX}', 's_nop 0',
            f'buffer_load_dwordx4 v{vL16}, {WS}, s{sQXr} offen sc1 lds',
            f'buffer_load_dwordx4 v{vL16}, {WS}, s{sQXr} offen offset:1024 sc1 lds',
            f's_add_u32 s{sQXr}, s{sQXr}, {XSEG}']
def bounded(A, top, code):
    A(f's_sub_u32 s{sTO}, s{sTO}, 1')
    A(f's_cbranch_scc0 {top}')
    A(f's_mov_b32 s{sT0}, {code}')
    A('s_branch chain_abort')
def slow_poll(A, lab, back, issue, consume, nl, code, cnt):
    A.label(lab)
    for k in (0, 1):
        if cnt is not None: A(f's_add_u32 s{cnt}, s{cnt}, 1')
        emit(A, issue(k))
        A(f's_waitcnt vmcnt({nl})')
        emit(A, consume(1 - k))
        A(f's_cbranch_vccz {back}')
    bounded(A, lab, code)
def qp_wait(A, lab, back, shifts=(2, 1)):
    A.label(lab)
    A(f'buffer_load_dword v{vT0}, v{vR+5}, {WS}, 0 offen sc1')
    A('s_waitcnt vmcnt(0)')
    for sh in shifts:
        A(f'v_min_i32_dpp v{vT0}, v{vT0}, v{vT0} row_ror:{sh} row_mask:0xf bank_mask:0xf')
        A('s_nop 1')
    A(f'v_readfirstlane_b32 s{sQok}, v{vT0}')
    A(f's_cmp_ge_i32 s{sQok}, s{sT1}')
    A(f's_cbranch_scc1 {back}')
    bounded(A, lab, 9)

def gen_loop(A, tag, fl, role, stamps, P):
    wv = dict(D=0, A=1, E=1, B=2, C=3)[role]
    st = Stamp(A, stamps)
    isA = role in 'ADE'
    recv = role in 'BCE'
    NU = 1
    N3 = 3 if isA else 2
    cn = (lambda k: sCnt + k) if stamps else (lambda k: None)
    br = lambda nm: f's_cbranch_vccnz {nm}_{tag}' if nm not in P.get('nock', '') else 's_nop 2'
    tails = []
    def x3_issue(k):
        r = vPS + 12*k
        return [f'buffer_load_dwordx4 v[{r+4*i}:{r+4*i+3}], v{vX3ld}, {WS}, s{sX3r} offen offset:{1024*i} sc1' for i in range(N3)]
    def x3_consume(k):
        r = vPS + 12*k
        return [f'ds_write_b128 v{vX3ld}, v[{r+4*i}:{r+4*i+3}] offset:{1024*i}' for i in range(N3)] + \
               check_sent(range(r, r+4*N3), vT0) + ['s_waitcnt lgkmcnt(0)']
    def qk_issue(k):
        return [f'buffer_load_dwordx4 v[{vQS+4*k}:{vQS+4*k+3}], v{vQKld}, {WS}, s{sX1} offen sc1']
    def qk_consume(k):
        return [f'ds_write_b128 v{vQKw}, v[{vQS+4*k}:{vQS+4*k+3}]'] + check_sent(range(vQS+4*k, vQS+4*k+4), vT0) + ['s_waitcnt lgkmcnt(0)']
    def x2_issue():
        return [f'buffer_load_dwordx4 v[{vKX+16*u+4*L}:{vKX+16*u+4*L+3}], v{vR+4*u+L}, {WS}, s{sX2 if L < 3 else sX2L} offen sc1'
                for L in range(4) for u in range(NU)]
    def x2_consume():
        mf = [M32(v(vAcc, 4), a(aSel if i < 4 else aSelH, 4), v(vKX+4*i, 4), '0' if i == 0 else v(vAcc, 4)) for i in range(4*NU)]
        return weave(mf, check_sent(range(vKX, vKX+16*NU), vT0)) + ['s_nop 3']
    top_young = N3

    A.label(f'entry_{tag}')
    emit(A, x3_issue(0))
    A('s_waitcnt vmcnt(0)')
    emit(A, x3_issue(1))
    if stamps:
        A('s_memrealtime s[96:97]')
        A('s_waitcnt lgkmcnt(0)')
    if P['al'] >= 0:
        A(f's_branch loop_{tag}')
        A.raw('.p2align 6')
        for _ in range(P['al']): A('s_nop 0')
    A.label(f'loop_{tag}')
    if stamps: A('s_memrealtime s[100:101]')
    st(1)
    A(f's_waitcnt vmcnt({top_young})')
    emit(A, x3_consume(0))
    A(br('x3s'))
    A.label(f'x3ok_{tag}')
    def x3_light():
        NSET = P['x3l']
        base = [vPS, vPS+12, vKX, vKX+12]
        iss = lambda k: [f'buffer_load_dwordx4 v[{base[k]+4*i}:{base[k]+4*i+3}], v{vX3ld}, {WS}, s{sX3r} offen offset:{1024*i} sc1' for i in range(N3)]
        A.label(f'x3s_{tag}')
        for k in range(2, NSET): emit(A, iss(k))
        A.label(f'x3t_{tag}')
        for k in range(NSET):
            kk = (k + 1) % NSET
            if stamps: A(f's_add_u32 s{sCnt}, s{sCnt}, 1')
            emit(A, iss(k))
            A(f's_waitcnt vmcnt({N3*(NSET-1)})')
            emit(A, check_sent(range(base[kk], base[kk]+4*N3), vT0))
            A(f's_cbranch_vccz x3w{kk}_{tag}')
        bounded(A, f'x3t_{tag}', 1)
        for k in range(NSET):
            A.label(f'x3w{k}_{tag}')
            for i in range(N3): A(f'ds_write_b128 v{vX3ld}, v[{base[k]+4*i}:{base[k]+4*i+3}] offset:{1024*i}')
            A('s_waitcnt lgkmcnt(0)')
            A(f's_branch x3ok_{tag}')
    if P['x3l']: tails.append(x3_light)
    else: tails.append(lambda: slow_poll(A, f'x3s_{tag}', f'x3ok_{tag}', x3_issue, x3_consume, N3, 1, cn(0)))
    A('s_barrier')
    st()
    MF = lambda i: (vRG + 4*i) if i < 8 else (vS + 4*(i-8))
    for i in range(10): A(f'ds_read_b128 v[{MF(i)}:{MF(i)+3}], v{vMemR} offset:{1024*i}')
    for i in range(10):
        A(f's_waitcnt lgkmcnt({9-i})')
        A(M32(v(vAcc, 4), a(8*i, 4), v(MF(i), 4), '0' if i == 0 else v(vAcc, 4)))
        A(M32(v(vAcc2, 4), a(8*i+4, 4), v(MF(i), 4), '0' if i == 0 else v(vAcc2, 4)))
    vm = [M32(v(vVE, 4), v(MF(i), 4), a(80+4*i, 4), '0' if i == 0 else v(vVE, 4)) for i in range(10)]
    emit(A, vm[:3])
    for r in range(4): A(f'v_add_f32_dpp v{vAcc+r}, v{vAcc2+r}, v{vAcc+r} row_ror:8 row_mask:0xf bank_mask:0xf')
    if isA:
        A(f'v_pk_mul_f32 v[{vAcc}:{vAcc+1}], v[{vAcc}:{vAcc+1}], s[{sC2}:{sC2+1}]')
        A(f'v_pk_mul_f32 v[{vAcc+2}:{vAcc+3}], v[{vAcc+2}:{vAcc+3}], s[{sC2}:{sC2+1}]')
    A(f'v_cvt_pk_bf16_f32 v{vT0}, v{vAcc}, v{vAcc+1}')
    A(f'v_cvt_pk_bf16_f32 v{vT1}, v{vAcc+2}, v{vAcc+3}')
    A(f'v_min_u32 v{vT0}, -2, v{vT0}')
    A(f'v_min_u32 v{vT1}, -2, v{vT1}')
    A(f'buffer_store_dwordx2 v[{vT0}:{vT1}], v{vX1st}, {WS}, s{sX1} offen{fl}')
    st(3)
    QR = [vQS, vQS+4, vXACC, vXACC+4]
    qi = lambda k: f'buffer_load_dwordx4 v[{QR[k]}:{QR[k]+3}], v{vQKld}, {WS}, s{sX1} offen sc1'
    qc = lambda k: [f'ds_write_b128 v{vQKw}, v[{QR[k]}:{QR[k]+3}]'] + check_sent(range(QR[k], QR[k]+4), vT0) + ['s_waitcnt lgkmcnt(0)']
    emit(A, weave(vm[3:], [(P['qkA'], qi(0))]))
    if P['x3l'] > 2: A('s_waitcnt vmcnt(2)')
    for k in range(8):
        A(f'ds_read_b128 v[{vKX+4*k}:{vKX+4*k+3}], v{vL16} offset:{L_KX + 1024*k}')
        if k == 3 and P['q4']: A(qi(2))
    A(f'v_cvt_pk_bf16_f32 v{vT2}, v{vVE}, v{vVE+1}')
    A(f'v_cvt_pk_bf16_f32 v{vT3}, v{vVE+2}, v{vVE+3}')
    A(f'v_min_u32 v{vT2}, -2, v{vT2}')
    A(f'v_min_u32 v{vT3}, -2, v{vT3}')
    A(f'buffer_store_dwordx2 v[{vT2}:{vT3}], v{vV1st}, {WS}, s{sX1} offen{fl}')
    if wv == 1:
        A(f's_add_u32 s{sT1}, s{sStep}, 3')
        A(f's_lshr_b32 s{sT1}, s{sT1}, 1')
        A(f's_cmp_lt_i32 s{sQok}, s{sT1}')
        A(f's_cbranch_scc1 qp_{tag}')
        A.label(f'qpok_{tag}')
        tails.append(lambda: qp_wait(A, f'qp_{tag}', f'qpok_{tag}'))
    if P['q4']:
        A(qi(3))
        A.nop(P['q4'])
    if P['qkgap']: A.nop(P['qkgap'])
    A(qi(1))
    for _ in range(P.get('wm1', 0)): A(M32(v(vLS, 4), a(aOne, 4), a(aOne, 4), '0'))
    st()
    A(f's_waitcnt vmcnt({4 if P["q4"] else 2})')
    emit(A, qc(0))
    A(br('qks'))
    A.label(f'qkok_{tag}')
    def qk_slow():
        A.label(f'qks_{tag}')
        if P['q4']:
            for k, n in ((2, 3), (3, 1)):
                if stamps: A(f's_add_u32 s{sCnt+1}, s{sCnt+1}, 1')
                A(f's_waitcnt vmcnt({n})')
                emit(A, qc(k))
                A(f's_cbranch_vccz qkok_{tag}')
        slow_poll(A, f'qkt_{tag}', f'qkok_{tag}', qk_issue, qk_consume, 1, 2, cn(1))
    tails.append(qk_slow)
    vm_ld = f'buffer_load_dwordx4 v[{vVM4}:{vVM4+3}], v{vVMld}, {WS}, s{sX1} offen sc1'
    A(vm_ld)
    A('s_barrier')
    st()
    QF, KF = vRG, vRG + 16
    for t in range(4): A(f'ds_read_b128 v[{QF+4*t}:{QF+4*t+3}], v{vQr} offset:{512*t}')
    for t in range(4): A(f'ds_read_b128 v[{KF+4*t}:{KF+4*t+3}], v{vKr} offset:{512*t}')
    def smf(i, t):
        src = (vKX + 4*t, vKX + 16 + 4*t, KF + 4*t)[i]
        return M32(v(vS+4*i, 4), v(src, 4), v(QF+4*t, 4), (v(vBias+4*i, 4) if i < 2 else '0') if t == 0 else v(vS+4*i, 4))
    E = lambda r: f'v_exp_f32 v{vS+r}, v{vS+r}'
    C = lambda d, r: f'v_cvt_pk_bf16_f32 v{d}, v{vS+r}, v{vS+r+1}'
    for t in range(4):
        A(f's_waitcnt lgkmcnt({7-t})')
        A(smf(0, t))
    for t in range(4):
        A(f's_waitcnt lgkmcnt({3-t})')
        A(smf(2, t))
        if t >= 2: A(E(t - 2))
    A(smf(1, 0)); A(E(2))
    A(smf(1, 1)); A(E(3))
    A(smf(1, 2)); A(E(8))
    A(smf(1, 3)); A(E(9))
    A(E(10)); A(E(11))
    if P.get('att'): st()
    A('s_waitcnt vmcnt(0)')
    if P.get('att'): st()
    emit(A, check_sent(range(vVM4, vVM4+4), vT2))
    A(C(vPL, 8)); A(C(vPL+1, 10))
    A(E(4))
    A(br('pvs'))
    A.label(f'pvok_{tag}')
    def pv_slow():
        A.label(f'pvs_{tag}')
        if stamps: A(f's_add_u32 s{sCnt+2}, s{sCnt+2}, 1')
        A(vm_ld)
        A('s_waitcnt vmcnt(0)')
        emit(A, check_sent(range(vVM4, vVM4+4), vT2))
        A(f's_cbranch_vccz pvok_{tag}')
        bounded(A, f'pvs_{tag}', 3)
    tails.append(pv_slow)
    pvm = [M16(v(vAcc, 4), v(vVM4, 2), v(vPL, 2), '0'), M16(v(vAcc2, 4), v(vVM4+2, 2), v(vPL, 2), '0'),
           M16(v(vLS, 4), a(aOneM, 2), v(vPL, 2), '0')]
    A(pvm[0]); A(E(5))
    if wv == 1 and P['tatt']: A(f'buffer_load_dword v{vM2+0 if False else vXA}, v{vR+4}, {WS}, s{sWarm} offen sc1')
    if role == 'D' and P['tlb']: A(f'buffer_load_dword v{vXA}, v{vR+6}, {WS}, s{sXw} offen sc1')
    A(pvm[1]); A(E(6))
    if P['pt'] & 1: A(f'buffer_load_dword v{vXNr}, v{vSR}, {WS}, s{sX2} offen sc1')
    A(pvm[2]); A(E(7))
    if recv and P['pt'] & 2: A(f'buffer_load_dword v{vXNr}, v{vKXr}, {WS}, s{sX2} offen sc1')
    A(C(vP, 0)); A(C(vP+1, 2)); A(C(vP+2, 4)); A(C(vP+3, 6))
    A('s_nop 1')
    if P.get('att'): st()
    D = vPS
    NTL = 3 if isA else 2
    def pv_fin():
        A(M32(v(vAcc, 4), v(vVX, 4), v(vP, 4), v(vAcc, 4)))
        A(M32(v(vAcc2, 4), v(vVX+4, 4), v(vP, 4), v(vAcc2, 4)))
        A(M32(v(vLS, 4), a(aOne, 4), v(vP, 4), v(vLS, 4)))
        A.nop(P['pvnop'])
        A(f'v_cvt_pk_bf16_f32 v{vOFR}, v{vAcc}, v{vAcc+1}')
        A(f'v_cvt_pk_bf16_f32 v{vOFR+1}, v{vAcc+2}, v{vAcc+3}')
        A(f'v_cvt_pk_bf16_f32 v{vOFR+2}, v{vAcc2}, v{vAcc2+1}')
        A(f'v_cvt_pk_bf16_f32 v{vOFR+3}, v{vAcc2+2}, v{vAcc2+3}')
        A(f'ds_write_b128 v{vOw}, v[{vOFR}:{vOFR+3}]')
        A(f'v_rcp_f32 v{vRinv}, v{vLS}')
        for k in range(NTL): A(M32(v(D+4*k, 4), v(vWO+16*k+4*wv, 4), v(vOFR, 4), '0'))
    pv_fin()
    A(f'v_subrev_u32 v{vT0}, {f2u(2.0**-60):#x}, v{vLS}')
    A(f'v_cmp_le_u32 vcc, s{sLrng}, v{vT0}')
    A(f'v_mov_b32 v{vRinv1}, v{vRinv}')
    A(f's_cmp_eq_u32 s{sStep}, {NSEG-1}')
    A('s_waitcnt lgkmcnt(0)')
    A(br('smx'))
    A.label(f'smok_{tag}')
    def sm_slow():
        A.label(f'smx_{tag}')
        if stamps: A(f's_add_u32 s{sCnt+4}, s{sCnt+4}, 1')
        for i in range(3):
            for t in range(4): A(smf(i, t))
        A.nop(8)
        A(f'v_max3_f32 v{vM}, v{vS}, v{vS+1}, v{vS+2}')
        for r in range(3, 11, 2): A(f'v_max3_f32 v{vM}, v{vM}, v{vS+r}, v{vS+r+1}')
        A(f'v_max_f32 v{vM}, v{vM}, v{vS+11}')
        for sw in ('16', '32'):
            A(f'v_mov_b32 v{vT0}, v{vM}')
            A.nop(2)
            A(f'v_permlane{sw}_swap_b32 v{vT0}, v{vM}')
            A.nop(1)
            A(f'v_max_f32 v{vM}, v{vM}, v{vT0}')
        for r in range(12): A(f'v_sub_f32 v{vS+r}, v{vS+r}, v{vM}')
        for r in range(12): A(E(r))
        A.nop(1)
        A(C(vP, 0)); A(C(vP+1, 2)); A(C(vP+2, 4)); A(C(vP+3, 6)); A(C(vPL, 8)); A(C(vPL+1, 10))
        A.nop(2)
        emit(A, pvm)
        A.nop(6)
        pv_fin()
        A.nop(1)
        A(f'v_mov_b32 v{vRinv1}, v{vRinv}')
        A(f's_cmp_eq_u32 s{sStep}, {NSEG-1}')
        A('s_waitcnt lgkmcnt(0)')
        A(f's_branch smok_{tag}')
    tails.append(sm_slow)
    A(f's_cbranch_scc1 last_{tag}')
    A('s_barrier')
    st()
    OF4 = vRG
    TS = [t for t in range(4) if t != wv]
    for t in TS: A(f'ds_read_b128 v[{OF4+4*t}:{OF4+4*t+3}], v{vL16} offset:{L_O + 1024*t}')
    R = vS
    RI = f'v[{vRinv}:{vRinv1}]'
    def scale_cvt(k):
        return [f'v_pk_mul_f32 v[{D+4*k}:{D+4*k+1}], v[{D+4*k}:{D+4*k+1}], {RI}',
                f'v_pk_mul_f32 v[{D+4*k+2}:{D+4*k+3}], v[{D+4*k+2}:{D+4*k+3}], {RI}',
                f'v_cvt_pk_bf16_f32 v{D+4*k}, v{D+4*k}, v{D+4*k+1}',
                f'v_cvt_pk_bf16_f32 v{D+4*k+1}, v{D+4*k+2}, v{D+4*k+3}']
    mind = lambda d, s_, ctl: f'v_min_u32_dpp v{d}, v{s_}, v{vM2} ' + ctl.replace(' bank', ' row_mask:0xf bank')
    export = []
    for r in (0, 2):
        export.append(f'v_pk_mul_f32 v[{vAcc+r}:{vAcc+r+1}], v[{vAcc+r}:{vAcc+r+1}], {RI}')
        export.append(f'v_pk_mul_f32 v[{vAcc2+r}:{vAcc2+r+1}], v[{vAcc2+r}:{vAcc2+r+1}], {RI}')
    export += [f'v_cvt_pk_bf16_f32 v{vOFR}, v{vAcc}, v{vAcc+1}', f'v_cvt_pk_bf16_f32 v{vOFR+1}, v{vAcc+2}, v{vAcc+3}',
               f'v_cvt_pk_bf16_f32 v{vOFR+2}, v{vAcc2}, v{vAcc2+1}', f'v_cvt_pk_bf16_f32 v{vOFR+3}, v{vAcc2+2}, v{vAcc2+3}',
               f'buffer_store_dwordx4 v[{vOFR}:{vOFR+3}], v{vOFst}, {WS}, s{sOF} offen sc1',
               f's_add_u32 s{sOF}, s{sOF}, {2*128*1024}']
    emit(A, export[:6])
    op = []
    for n, k in enumerate([2, 0, 1] if isA else [0, 1]):
        for i, t in enumerate(TS):
            if n == 0: op.append(f's_waitcnt lgkmcnt({2-i})')
            op.append(M32(v(D+4*k, 4), v(vWO+16*k+4*t, 4), v(OF4+4*t, 4), v(D+4*k, 4)))
    ident = 'quad_perm:[0,1,2,3] bank_mask:0x3'
    if isA:
        single = scale_cvt(2) + ['s_nop 0', mind(R, D+8, 'row_shr:8 bank_mask:0xc'), mind(R+1, D+9, 'row_shr:8 bank_mask:0xc'),
                                 mind(R+2, D+8, 'row_shr:7 bank_mask:0xc'), mind(R+3, D+9, 'row_shr:7 bank_mask:0xc')]
        emit(A, weave(op, export[6:8] + [(6, x) for x in single], per=3))
    else:
        emit(A, weave(op, export[6:8]))
    emit(A, scale_cvt(0))
    A.nop(2)
    A(mind(R, D, ident)); A(mind(R+1, D+1, ident))
    emit(A, scale_cvt(1))
    A.nop(1)
    A(mind(R+2, D+4, ident)); A(mind(R+3, D+5, ident))
    A(f'buffer_store_dwordx4 v[{R}:{R+3}], v{vSR}, {WS}, s{sX2} offen sc1')
    A(f'buffer_store_dwordx4 v[{R}:{R+3}], v{vX2st}, {WS}, s{sX2L} offen{fl}')
    st()
    pre = kv_list() if not P.get('nokv') else []
    late = list(export[8:])
    if role == 'D':
        A(f's_cmp_eq_u32 s{sStep}, s{sZn}')
        A(f's_cbranch_scc1 z1_{tag}')
        A.label(f'z1ok_{tag}')
        def z1():
            A.label(f'z1_{tag}')
            A(f'v_lshrrev_b32 v{vT2}, 1, v{vL16}')
            A(f'buffer_load_dwordx2 v[{vT0}:{vT1}], v{vT2}, {WS}, s{sZo} offen sc1')
            A('s_waitcnt vmcnt(0)')
            emit(A, check_sent([vT0, vT1], vT0))
            A(f's_cbranch_vccz z2_{tag}')
            bounded(A, f'z1_{tag}', 8)
            A.label(f'z2_{tag}')
            A(f's_add_u32 s{sZo}, s{sZo}, 512')
            A(f's_lshl_b32 s{sZn}, s{sZn}, 2')
            A(f's_add_u32 s{sZn}, s{sZn}, 1')
            A(f's_branch z1ok_{tag}')
        tails.append(z1)
        late += reset_list(fl)
        late += [f's_add_u32 s{sT0}, s{sStep}, 5', f's_min_u32 s{sT0}, s{sT0}, 63', f'v_readlane_b32 s{sXw}, v{vX2tab}, s{sT0}',
                 f's_xor_b32 s{sXw}, s{sXw}, 8192']
        late += [f's_lshl_b32 s{sT0}, s{sStep}, 7', f's_add_u32 s{sT0}, s{sT0}, {WS_PROG - 256}',
                 f'buffer_store_dword v{vM2}, v{vR+5}, {WS}, s{sT0} offen sc1']
    if wv == 1:
        touch = [f'buffer_load_dword v{vM}, v{vR+4}, {WS}, s{sWarm} offen sc1', f's_add_u32 s{sWarm}, s{sWarm}, {XSEG}']
        if P.get('notouch') or P['tatt']: touch = touch[1:]
        dl = []
        n = P['tdel']
        while n > 0: dl.append(f's_nop {min(n,16)-1}'); n -= 16
        pre = (touch + qx_list() + pre) if P['tfirst'] else (qx_list() + pre + dl + touch)
    if recv:
        emit(A, pre)
        A(f's_sleep {P["pollS"] - (P["pollE"] if isA else 0)}')
        emit(A, x2_issue())
        emit(A, late)
        st()
        if P.get('diag'):
            A(f's_waitcnt vmcnt({nvm(late) + 4*NU + 4})'); st()
            A(f's_waitcnt vmcnt({nvm(late) + 4*NU})'); st()
        A(f's_waitcnt vmcnt({nvm(late)})')
        emit(A, x2_consume())
        A(br('x2s'))
        A.label(f'x2ok_{tag}')
        def x2_slow():
            A.label(f'x2s_{tag}')
            if stamps: A(f's_add_u32 s{sCnt+3}, s{sCnt+3}, 1')
            emit(A, x2_issue())
            A('s_waitcnt vmcnt(0)')
            emit(A, x2_consume())
            A(f's_cbranch_vccz x2ok_{tag}')
            bounded(A, f'x2s_{tag}', 4)
        tails.append(x2_slow)
        st()
        for r in range(4): A(f'v_add_f32_dpp v{vAcc2+r}, v{vAcc+r}, v{vAcc+r} row_ror:8 row_mask:0xf bank_mask:0xf')
        A(f'v_cvt_pk_bf16_f32 v{vT0}, v{vAcc2}, v{vAcc2+1}')
        A(f'v_cvt_pk_bf16_f32 v{vT1}, v{vAcc2+2}, v{vAcc2+3}')
        A(f'v_min_u32 v{vT0}, -2, v{vT0}')
        A(f'v_min_u32 v{vT1}, -2, v{vT1}')
        A(f'buffer_store_dwordx2 v[{vT0}:{vT1}], v{vR+8}, {WS}, s{sX3w} offen{fl}')
    else:
        emit(A, pre)
        if P['lateS']: A(f's_sleep {P["lateS"]}')
        emit(A, late)
        st(); st()
    sl = slot_list(1)
    if not recv: emit(A, sl)
    if P['nob4'] == 0: A('s_barrier')
    elif not recv: A.nop(P['nob4'] - (60 if role == 'D' else 0))
    st.flush()
    if recv: emit(A, sl[:5])
    A.nop(P['x3d'] if not recv else max(0, P['x3d'] - 8))
    emit(A, x3_issue(0))
    if recv: emit(A, sl[5:])
    A(f's_add_u32 s{sStep}, s{sStep}, 1')
    A('s_sleep 1')
    emit(A, x3_issue(1))
    for _ in range(P.get('wm3', 0)): A(M32(v(vVE, 4), a(aOne, 4), a(aOne, 4), '0'))
    A(f's_branch loop_{tag}')
    A.label(f'last_{tag}')
    emit(A, export)
    if role == 'D':
        A(f's_mov_b32 s{sT0}, {WS_PROG + 61*128}')
        A(f'buffer_store_dword v{vM2}, v{vR+5}, {WS}, s{sT0} offen sc1')
    A('s_waitcnt vmcnt(0)')
    A('s_barrier')
    if role == 'D':
        A(f's_lshl_b32 s{sT0}, s{sG}, 5')
        A(f's_add_u32 s{sT0}, s{sT0}, s{sJ}')
        A(f's_lshl_b32 s{sT0}, s{sT0}, 2')
        A(f's_add_u32 s{sT0}, s{sT0}, {WS_FLAG}')
        A(f'v_cmp_eq_u32 vcc, 0, v{vL16}')
        A(f'v_mov_b32 v{vT0}, {OOB:#x}')
        A('s_nop 1')
        A(f'v_cndmask_b32 v{vT0}, v{vT0}, 0, vcc')
        A(f'buffer_store_dword v{vM2}, v{vT0}, {WS}, s{sT0} offen sc1')
    if stamps:
        A('s_memrealtime s[98:99]')
        A('s_waitcnt lgkmcnt(0)')
        A(f'v_writelane_b32 v{vT3}, s{sST}, 0')
        for k, r in enumerate((94, 96, 98, 76, 78, 80, 82, 84, 86)): A(f'v_writelane_b32 v{vT3}, s{r}, {1+k}')
        A(f's_add_u32 s{sT0}, s{sDB}, {63*64}')
        A(f'buffer_store_dword v{vT3}, v{vDbg}, {WS}, s{sT0} offen')
    A('s_endpgm')
    for t in tails: t()

DEFAULT_P = dict(pollE=2, al=0, x3l=0, lateS=0, pt=0, lin=0, cpf=1, pollS=5, q4=0, x3d=0, nob4=0, tlb=1, tatt=1, tdel=0, tfirst=0, pollA=80, qkA=5, qkgap=0, x3A=4, x3B=8, x3gap=16, pvnop=6)

def gen_chain(A, stamps, P):
    wt = f's[{sWT}:{sWT+3}]'
    npst = [0]
    def pst():
        if stamps == 1:
            A(f's_memrealtime s[{76+2*npst[0]}:{77+2*npst[0]}]'); A('s_waitcnt lgkmcnt(0)'); npst[0] += 1
    if stamps: A('s_memrealtime s[94:95]')
    if P['cpf']: code_prefetch(A, 250, 8)
    A('s_load_dwordx4 s[16:19], s[0:1], 16')
    A('s_load_dwordx4 s[20:23], s[0:1], 32')
    A('s_load_dwordx4 s[24:27], s[0:1], 96')
    A('s_load_dwordx2 s[72:73], s[0:1], 8')
    F = 232
    X = VX(A, vRG, F, 3)
    A(f'v_lshrrev_b32 v{F+3}, 6, v0')
    A(f'v_and_b32 v{F}, 63, v0')
    A(f'v_readfirstlane_b32 s{sW}, v{F+3}')
    A(f'v_bfe_u32 v{F+1}, v0, 4, 2')
    A(f'v_and_b32 v{F+2}, 15, v0')
    A(f's_and_b32 s{sG}, s2, 3')
    A(f's_lshr_b32 s{sJ}, s2, 3')
    A(f's_lshr_b32 s{sH}, s{sJ}, 2')
    A(f's_lshl_b32 s3, s{sG}, 3')
    A(f's_add_u32 s{sH}, s{sH}, s3')
    A(f's_and_b32 s{sA}, s{sJ}, 3')
    A(f's_and_b32 s{sPar}, s{sA}, 1')
    A(f's_mov_b32 s{sTO}, 0x40000')
    for i, sr in enumerate((sA, sH, sJ, sG)): A(f'v_mov_b32 v{F+4+i}, s{sr}')
    A(f'v_mov_b32 v{F+8}, v0')
    L, g, c, w, a_, h, j, G, tid = [X.reg(F+i) for i in range(9)]
    X.set(vL16, L*16)
    L16 = X.reg(vL16)
    def frag_addr(dst, it):
        X.set(vT1, ((it >> 3)*3277) >> 16)
        ua = X.reg(vT1)
        X.set(vT2, (it >> 3) - ua*20)
        u = X.reg(vT2)
        g1, r1, gh = (lambda: (it >> 2) & 1), (lambda: (it >> 1) & 1), (lambda: it & 1)
        X.set(vT3, (ua*5 + (u >> 2))*512 + ((g1()*2 + gh())*8 + (u & 3)*2 + r1())*16)
        X.set(dst, (ua*5 + 4)*512 + (((u & 2) + gh())*8 + (u & 1)*4 + r1()*2 + g1())*16)
        X.set(dst, X.sel(('lt', u, 16), X.reg(vT3), X.reg(dst)))
    TQ, TA_, TV, TO1, TO2 = [vXACC + i for i in range(5)]
    X.set(TQ, (L >> 2)*8192 + (((L >> 1) & 1) ^ ((L >> 5) & 1))*32 + (L & 1)*16 + h*256 + a_*64)
    A('s_waitcnt lgkmcnt(0)')
    srd(A, sWS, 26, WS_SIZE)
    if P['lin']: lin_touch(A, X, tid, vKX, sWT, (16, 18, 20, 22))
    A(f's_lshl_b32 s3, s{sG}, 5')
    A(f's_add_u32 s3, s3, s{sJ}')
    A(f's_lshl_b32 s60, s{sW}, 7')
    A('s_add_u32 s3, s3, s60')
    A('s_cmp_ge_u32 s3, 22')
    A('s_cbranch_scc1 cal_done')
    A('s_sub_u32 s60, 0, s26')
    A('s_and_b32 s60, s60, 0x1fffff')
    A(f's_lshl_b32 s61, s{sJ}, 21')
    A('s_add_u32 s60, s60, s61')
    A(f's_add_u32 s60, s60, {WS_X2 + 0x1f8000}')
    A('s_add_u32 s70, s26, s60')
    A('s_addc_u32 s71, s27, 0')
    A('s_mov_b32 s62, -1')
    A('s_mov_b32 s63, -1')
    for rep in range(P['calrep']):
        for hf in range(2):
            A('s_mov_b32 s61, 0')
            A('s_memtime s[64:65]')
            A('s_waitcnt lgkmcnt(0)')
            A(f's_atomic_or s61, s[70:71], {hf*8192 + (rep&1)*4096} glc')
            A('s_waitcnt lgkmcnt(0)')
            A('s_memtime s[66:67]')
            A('s_waitcnt lgkmcnt(0)')
            A('s_sub_u32 s64, s66, s64')
            A(f's_min_u32 s{62+hf}, s{62+hf}, s64')
    A('s_cmp_lt_u32 s63, s62')
    A('s_cselect_b32 s61, 1, 0')
    A(f's_lshl_b32 s61, s61, s{sJ}')
    A(f's_atomic_or s61, s[24:25], {DBG_MASK} glc')
    A('s_waitcnt lgkmcnt(0)')
    arrive_s(A, 24, 61, 'cal_done')
    A.label('cal_done')
    for m, ptr in enumerate((16, 18, 20)):
        srd(A, sWT, ptr, DM * 4096 * 2)
        A(f's_lshl_b32 s63, s{sW}, 10')
        A(f's_add_u32 s63, s63, {40960*(m+1)}')
        A(f's_mul_i32 s64, s{sW}, {16*8192}')
        for i in range(10):
            A('s_mov_b32 m0, s63')
            A(f's_add_u32 s63, s63, 4096')
            A(f'buffer_load_dwordx4 v{TQ}, {wt}, s64 offen lds')
            A(f's_add_u32 s64, s64, {64*8192}')
    srd(A, sWT, 22, 4096 * DM * 2)
    A(f's_mul_i32 s64, s{sH}, {128*1280}')
    A(f's_mul_i32 s3, s{sA}, 320')
    A(f's_add_u32 s64, s64, s3')
    A(f's_lshl_b32 s63, s{sW}, 10')
    for i in range(10):
        cid = tid + 256*i
        row = (cid*3277) >> 16
        X.set(vT0, row*1280 + (cid - row*20)*16)
        A('s_mov_b32 m0, s63')
        A(f's_add_u32 s63, s63, 4096')
        A(f'buffer_load_dwordx4 v{vT0}, {wt}, s64 offen lds')
    for q in range(4): X.set(vSent4+q, -1)
    S4 = f'v[{vSent4}:{vSent4+3}]'
    srd(A, sWT, 72, NM*DM*2)
    idn = lambda: j*20 + tid
    X.set(vT2, X.sel(('lt', tid, 20), (idn() & 7)*1280 + (idn() >> 3)*16, OOB))
    A(f'buffer_load_dwordx4 v[{vS}:{vS+3}], v{vT2}, {wt}, 0 offen')
    per = -(-(WS_FILL_END - WS_FILL_BEG) // (128 * 4096))
    X.set(vT1, (G*32 + j)*(per*4096) + tid*16 + WS_FILL_BEG)
    A(f's_mov_b32 s{sWS+2}, {WS_FILL_END:#x}')
    for r in range(per):
        A(f'buffer_store_dwordx4 {S4}, v{vT1}, {WS}, 0 offen sc1')
        A(f'v_add_u32 v{vT1}, 4096, v{vT1}')
    A(f's_mov_b32 s{sWS+2}, {WS_SIZE:#x}')
    A('s_sub_u32 s60, 0, s26')
    A('s_and_b32 s60, s60, 0x1fffff')
    A(f's_add_u32 s60, s60, {WS_X2}')
    X.set(vT1, X.sel(('lt', G*32 + j, 120), (G*32 + j)*16384 + tid*16, OOB))
    for r in range(4):
        A(f'buffer_store_dwordx4 {S4}, v{vT1}, {WS}, s60 offen sc1')
        A('s_add_u32 s60, s60, 4096')
    X.set(vS+4, X.sel(('lt', tid, 20), idn()*16 + G*X3_G + WS_X3, OOB))
    X.set(vM2, -2)
    clt8 = ('lt', c, 8); glt2 = ('lt', g, 2); wlt2 = ('lt', w, 2); w0 = ('eq', w, 0)
    X.set(vT0, 0x3f803f80)
    for q in range(4): A(f'v_accvgpr_write_b32 a{aOne+q}, v{vT0}')
    X.set(vT0, X.sel(glt2, 0x3f803f80, 0))
    for q in range(2): A(f'v_accvgpr_write_b32 a{aOneM+q}, v{vT0}')
    slot = lambda: (g*8 + (c & 7))*16
    X.set(vX3ld, X.sel(wlt2, w*3072, w*2048 + 2048) + L16)
    X.set(vMemR, slot() + (c >> 3)*512)
    X.set(vKr, slot() + L_K)
    X.set(vQr, X.sel(clt8, L_Q, L_QX) + slot())
    tq = lambda: (a_ & 2) + (w & 1)
    tt = lambda: a_ & 1
    X.set(vX1st, X.sel(clt8, tq()*1024 + (w >> 1)*512 + slot() + tt()*8, OOB))
    X.set(vV1st, X.sel(('eq', g >> 1, w >> 1), a_*1024 + L16 + (w & 1)*8 + 4096, OOB))
    X.set(vVMld, w*1024 + L16 + 4096)
    X.set(vQKld, w*1024 + L16)
    X.set(vOw, w*1024 + L16 + L_O)
    X.set(vQKw, X.sel(glt2, L_Q, L_K - 512) + w*512 + L16)
    X.set(vT0, (a_*20 + w*4 + (c >> 1))*4096 + ((c & 1)*4 + g)*16)
    X.set(vT1, (a_*20 + 16 + w*2 + ((c >> 2) & 1))*4096 + (((c >> 1) & 1)*4 + g)*16)
    X.set(vT1, X.sel(('eq', (c & 1) + (w & 2), 0), X.reg(vT1), OOB))
    X.set(vX2st, X.sel(clt8, X.reg(vT0), X.reg(vT1)) + h*128)
    xs = X.reg(vX2st)
    X.set(vSR, X.sel(('lt', xs, OOB), (xs >> 13)*16384 + (xs & 8191), OOB))
    X.set(vOFst, X.sel(clt8, OOB, ((a_ >> 1)*128 + h*4 + w)*1024 + tt()*128 + L16 - 128))
    X.set(vT0, X.sel(('lt', j, 16), j*3 + X.sel(wlt2, 2, w & 1), j*2 + 16 + (w & 1)))
    U = X.reg(vT0)
    x2a = lambda Uq, Lq: (Uq*4096 if Lq == 3 else (Uq >> 1)*16384 + (Uq & 1)*4096) + L16 + ((G + (Lq+1)) & 3)*1024
    lo = [lambda: (a_*20 + (L >> 3))*4096 + h*128 + (L & 7)*16,
          lambda: X.sel(('lt', L, 32), X.reg(vR), OOB),
          lambda: a_*2048 + L16,
          lambda: X.sel(('lt', L, 20), j*320 + L16, OOB)]
    for i in range(4):
        X.set(vR+i, X.sel(w0, lo[i](), x2a(U, i)))
    X.set(vR+4, X.sel(('lt', L, 32), a_*4096 + L*128, X.sel(('lt', L, 48), a_*2048 + L*128 + (16384 - 4096), OOB)))
    X.set(vR+5, X.sel(w0, X.sel(('eq', L + j + G, 0), 0, OOB), h*16 + (L & 3)*4 + WS_QP))
    X.set(vR+6, X.sel(('eq', L, 0), 0, OOB))
    X.set(vKXr, X.sel(('lt', L, 2), ((U + L) >> 1)*16384 + ((U + L) & 1)*4096 + G*1024, OOB))
    X.set(vRinv1, (U + (g >> 1))*8 + (g & 1)*4 + ((c & 7) >> 1))
    frag_addr(vRinv, X.reg(vRinv1))
    X.set(vR+8, X.sel(('eq', (c >> 3) + (g >> 1), 0), X.reg(vRinv) + (c & 1)*8, OOB))
    for q in range(8):
        X.set(vT1, X.sel(('eq', c >> 1, q), X.sel(('eq', c & 1, 0), 0x3f80, 0x3f800000), 0))
        A(f'v_accvgpr_write_b32 a{aSel+q if q < 4 else aSelH+q-4}, v{vT1}')
    X.set(vT1, X.sel(clt8, 63, a_*8 + c - 8))
    for kt in range(2):
        for r in range(4):
            X.set(vBias+4*kt+r, X.sel(('gt', g*4 + (16*kt + r), X.reg(vT1)), f2u(NEG), 0))
    trb = lambda: (g*8 + ((L >> 2) & 3))*64 + ((w & 1) ^ (g & 1))*32 + (L & 3)*8
    X.set(TA_, trb() + (w >> 1)*40960 + 40960)
    X.set(TV, trb() + (w >> 1)*2048 + 122880)
    wob = lambda: (g*4 + ((L >> 2) & 3))*320 + (L & 3)*8
    X.set(TO1, wob() + w*64)
    X.set(TO2, wob() + (w & 1)*32 + 256)
    X.set(vP+1, X.sel(('eq', tid, 0), 0, OOB))
    X.set(vP+2, (L & 31)*4)
    X.set(vDbg, X.sel(('lt', L, 16), L*4, OOB))
    A(f's_mov_b32 s{sOF}, {WS_OF}')
    A(f's_cmp_lt_u32 s{sJ}, 16')
    A(f's_cselect_b32 s{sNH}, 3, 2')
    A(f's_mov_b32 s{sC2}, {f2u(QSCALE):#x}')
    A(f's_mov_b32 s{sC2+1}, {f2u(QSCALE):#x}')
    A(f's_mul_i32 s{sX3G}, s{sG}, {X3_G}')
    A(f's_add_u32 s{sX3G}, s{sX3G}, {WS_X3}')
    A(f's_lshl_b32 s{sX1H}, s{sH}, 13')
    A(f's_add_u32 s{sX1H}, s{sX1H}, {WS_X1}')
    A(f's_mul_i32 s{sHoff}, s{sH}, {XH}')
    A(f's_add_u32 s{sHoff}, s{sHoff}, {WS_KX}')
    A(f's_lshl_b32 s75, s{sG}, 5')
    A(f's_add_u32 s75, s75, s{sJ}')
    A(f's_lshl_b32 s{sDB}, s75, 2')
    A(f's_add_u32 s{sDB}, s{sDB}, s{sW}')
    A(f's_lshl_b32 s{sDB}, s{sDB}, 12')
    A(f's_add_u32 s{sDB}, s{sDB}, {WS_DBG:#x}')
    A(f's_lshl_b32 s{sKXm}, s{sW}, 11')
    A(f's_lshl_b32 s{sQXr}, s{sA}, 11')
    A(f's_add_u32 s{sQXr}, s{sQXr}, s{sHoff}')
    A(f's_add_u32 s{sQXr}, s{sQXr}, 16384')
    A(f's_add_u32 s{sXr}, s{sHoff}, s{sKXm}')
    A(f's_mov_b32 s{sLrng}, {f2u(2.0**64) - f2u(2.0**-60):#x}')
    A(f's_add_u32 s{sWarm}, s{sHoff}, {XSEG}')
    pst()
    A('s_waitcnt vmcnt(0)')
    for k in range(4): A(f'v_min_u32 v{vS+k}, -2, v{vS+k}')
    A(f'buffer_store_dwordx4 v[{vS}:{vS+3}], v{vS+4}, {WS}, 0 offen sc1')
    A('s_barrier')
    pst()
    for t in range(20):
        A(f'ds_read_b64_tr_b16 a[{4*t}:{4*t+1}], v{TA_} offset:{2048*t}')
        A(f'ds_read_b64_tr_b16 a[{4*t+2}:{4*t+3}], v{TA_} offset:{2048*t+256}')
        if t % 4 == 3: A('s_waitcnt lgkmcnt(4)')
    for i in range(10):
        A(f'ds_read_b64_tr_b16 a[{80+4*i}:{80+4*i+1}], v{TV} offset:{4096*i}')
        A(f'ds_read_b64_tr_b16 a[{80+4*i+2}:{80+4*i+3}], v{TV} offset:{4096*i+256}')
        if i % 4 == 3: A('s_waitcnt lgkmcnt(4)')
    for k in range(3):
        for t in range(4):
            r, o = (TO1, 32*320*t + 32*k) if k < 2 else (TO2, 32*320*t)
            A(f'ds_read_b64_tr_b16 v[{vWO+16*k+4*t}:{vWO+16*k+4*t+1}], v{r} offset:{o}')
            A(f'ds_read_b64_tr_b16 v[{vWO+16*k+4*t+2}:{vWO+16*k+4*t+3}], v{r} offset:{o+16*320}')
        A('s_waitcnt lgkmcnt(0)')
    pst()
    srd(A, sWT, 24, 256)
    wait_start(A, wt, vT0, 74, sTO, 'start_ok', 'chain_abort10', sleep=4)
    pst()
    x2_table(A, X, L, vX2tab, 74, 26, vT1)
    A(f's_getreg_b32 s74, hwreg(HW_REG_XCC_ID, 0, 4)')
    A(f's_lshl_b32 s3, s75, 2')
    A(f's_add_u32 s3, s3, {WS_TAB}')
    A(f'v_mov_b32 v{vT1}, s74')
    A(f'buffer_store_dword v{vT1}, v{vP+1}, {WS}, s3 offen sc1')
    A(f's_cmp_lg_u32 s{sW}, 1')
    A('s_cbranch_scc1 qp0_ok')
    A(f's_mov_b32 s{sT1}, 1')
    qp_wait(A, 'qp0', 'qp0_ok', shifts=(2,))
    A.label('qp0_ok')
    A(f's_mov_b32 s{sQok}, 0')
    pst()
    A(f's_mov_b32 s{sZn}, 1')
    A(f's_mov_b32 s{sZo}, {WS_ZFLAG}')
    A('s_barrier')
    A(f's_lshl_b32 s3, s{sG}, 7')
    A(f's_add_u32 s3, s3, {WS_TAB}')
    A(f's_mov_b32 s60, {WS_TAB}')
    A(f'v_lshrrev_b32 v{vT2}, 1, v{vL16}')
    A.label('tab_poll')
    A(f'buffer_load_dwordx2 v[{vRinv}:{vRinv1}], v{vT2}, {WS}, s60 offen sc1')
    A(f'buffer_load_dword v{vT0}, v{vP+2}, {WS}, s3 offen sc1')
    A('s_waitcnt vmcnt(0)')
    emit(A, check_sent([vRinv, vRinv1, vT0], vT3))
    A('s_cbranch_vccz tab_ok')
    bounded(A, 'tab_poll', 5)
    A.label('tab_ok')
    pst()
    A(f'v_cmp_ne_u32 s[68:69], v{vT1}, v{vT0}')
    A(f's_mov_b32 s{sStep}, 0')
    emit(A, kv_list())
    A(f's_cmp_lg_u32 s{sW}, 1')
    A('s_cbranch_scc1 no_q0')
    emit(A, qx_list())
    A(f'buffer_load_dword v{vM}, v{vR+4}, {WS}, s{sWarm} offen sc1')
    A(f's_add_u32 s{sWarm}, s{sWarm}, {XSEG}')
    A.label('no_q0')
    emit(A, slot_list(0))
    A(f'v_readlane_b32 s{sXw}, v{vX2tab}, 4')
    A(f's_xor_b32 s{sXw}, s{sXw}, 8192')
    for k in range(5): A(f's_mov_b32 s{sCnt+k}, 0')
    for mode in ('f', 's'):
        if mode == 'f':
            A('s_cmp_lg_u64 s[68:69], 0')
            A('s_cbranch_scc1 disp_s')
        else:
            A.label('disp_s')
        A(f's_cmp_eq_u32 s{sW}, 0')
        A(f's_cbranch_scc1 j_{mode}D')
        A(f's_cmp_eq_u32 s{sW}, 2')
        A(f's_cbranch_scc1 j_{mode}B')
        A(f's_cmp_eq_u32 s{sW}, 3')
        A(f's_cbranch_scc1 j_{mode}C')
        A(f's_cmp_eq_u32 s{sNH}, 3')
        A(f's_cbranch_scc1 j_{mode}E')
        A(f's_branch entry_{mode}A')
        for r in 'BDEC':
            A.label(f'j_{mode}{r}')
            A(f's_branch entry_{mode}{r}')
    for mode, fl in (('f', ''), ('s', ' sc1')):
        for role in 'DABEC':
            gen_loop(A, mode + role, fl, role, stamps, P)
    A.label('chain_abort10')
    A(f's_mov_b32 s{sT0}, 10')
    A.label('chain_abort')
    srd(A, sWT, 24, 256)
    A(f'v_mov_b32 v{vT0}, s{sT0}')
    A(f'v_mov_b32 v{vT1}, 0')
    A(f'buffer_store_dword v{vT0}, v{vT1}, {wt}, 0 offen')
    A('s_endpgm')
```

```python
from k7_common import *
LOG2E = math.log2(math.e)
sWS, sR1, sR2, sR3, sR4 = 4, 8, 12, 16, 20
sM = 92
sC2 = 24
sW, sB, sN, sO1, sO2, sLB, sT0, sT1, sTO, sTile, sNG, sRB, sZs, sQ = 30, 31, 32, 33, 34, 35, 36, 37, 38, 39, 40, 41, 42, 43
WS = f's[{sWS}:{sWS+3}]'
R1, R2, R3, R4 = [f's[{r}:{r+3}]' for r in (sR1, sR2, sR3, sR4)]
vL16, vD1, vD2, vD3, vR1, vT0, vT1, vT2, vT3 = 1, 2, 3, 4, 5, 6, 7, 8, 9
vGo, vXo, vRw, vRr, vFl, vZt, vZf = 10, 11, 12, 13, 14, 15, 16
vZu = 17
vH = 24
vA1 = 32
vWF = 64
vY = 84
vR1b = 100
vR2n = 112
vOF = 112
F = 244

def rbf2(A, x, y, t):
    A(f'v_cvt_pk_bf16_f32 v{t}, v{x}, v{y}')
    A(f'v_lshlrev_b32 v{x}, 16, v{t}')
    A(f'v_and_b32 v{y}, 0xffff0000, v{t}')
def rbf(A, x):
    A(f'v_cvt_pk_bf16_f32 v{x}, v{x}, v{x}')
    A(f'v_and_b32 v{x}, 0xffff0000, v{x}')
def silu(A, x, t):
    A(f'v_mul_f32 v{t}, {f2u(-LOG2E):#x}, v{x}')
    A(f'v_exp_f32 v{t}, v{t}')
    A('s_nop 0')
    A(f'v_add_f32 v{t}, 1.0, v{t}')
    A(f'v_rcp_f32 v{t}, v{t}')
    A('s_nop 0')
    A(f'v_mul_f32 v{x}, v{x}, v{t}')
def xsum_g(A, x, t):
    for sw in ('16', '32'):
        A(f'v_mov_b32 v{t}, v{x}')
        A.nop(2)
        A(f'v_permlane{sw}_swap_b32 v{t}, v{x}')
        A.nop(1)
        A(f'v_add_f32 v{x}, v{x}, v{t}')
def spin_flags(A, lab, ok, off, sleep):
    A.label(lab)
    A(f's_mov_b32 s{sT0}, {off}')
    A(f'buffer_load_dwordx2 v[{vT0}:{vT1}], v{vFl}, {WS}, s{sT0} offen sc1')
    A('s_waitcnt vmcnt(0)')
    emit(A, check_sent([vT0, vT1], vT0))
    A(f's_cbranch_vccz {ok}')
    A(f's_sleep {sleep}')
    A(f's_sub_u32 s{sTO}, s{sTO}, 1')
    A(f's_cbranch_scc0 {lab}')
    A('s_branch bulk_abort')

def gen_bulk(A, stamps, P):
    nst = [0]
    def st():
        if stamps:
            A(f's_memrealtime s[{70+2*nst[0]}:{71+2*nst[0]}]'); A('s_waitcnt lgkmcnt(0)'); nst[0] += 1
    A.label('bulk_entry')
    st()
    if P['cpf']: code_prefetch(A, 252, P['cpfb'])
    A('s_load_dwordx4 s[44:47], s[0:1], 64')
    A('s_load_dwordx4 s[48:51], s[0:1], 80')
    A('s_load_dwordx4 s[52:55], s[0:1], 96')
    A('s_load_dwordx2 s[56:57], s[0:1], 40')
    A('s_load_dwordx4 s[60:63], s[0:1], 0')
    A('s_load_dwordx4 s[88:91], s[0:1], 16')
    A('s_load_dwordx2 s[58:59], s[0:1], 32')
    X = VX(A, 200, F, 3)
    A(f'v_lshrrev_b32 v{F+3}, 6, v0')
    A(f'v_and_b32 v{F}, 63, v0')
    A(f'v_readfirstlane_b32 s{sW}, v{F+3}')
    A(f'v_bfe_u32 v{F+1}, v0, 4, 2')
    A(f'v_and_b32 v{F+2}, 15, v0')
    A(f's_lshr_b32 s{sB}, s2, 3')
    A(f's_lshl_b32 s{sB}, s{sB}, 2')
    A(f's_and_b32 s{sQ}, s2, 3')
    A(f's_add_u32 s{sB}, s{sB}, s{sQ}')
    A(f'v_mov_b32 v{F+4}, s{sB}')
    A(f's_lshl_b32 s{sM}, s{sQ}, 5')
    A(f's_lshr_b32 s3, s{sB}, 2')
    A(f's_add_u32 s{sM}, s{sM}, s3')
    A(f'v_mov_b32 v{F+5}, s{sM}')
    L, g, c, w, b, m_ = [X.reg(F+i) for i in range(6)]
    tid = X.reg(0)
    A(f's_mov_b32 s{sTO}, 0x400000')
    X.set(vL16, L*16)
    L16 = X.reg(vL16)
    n_ = lambda: m_ >> 1
    X.set(vT0, (n_()*32 + c)*1280 + w*320 + g*16)
    X.set(vD1, (L >> 3)*8192 + ((((L >> 1) & 3) ^ (((L >> 4) & 1) | ((w & 1) << 1)))*2 + (L & 1))*16 + (m_ >> 2)*256 + (m_ & 2)*64)
    A('s_waitcnt lgkmcnt(0)')
    srd(A, sWS, 54, WS_SIZE)
    srd(A, sR1, 60, S_TOK*DM*2)
    srd(A, sR4, 52, 256)
    X.set(vZf, X.sel(('eq', tid, 0), 0, OOB))
    X.set(vFl, L*8)
    A(f's_and_b32 s3, s{sM}, 1')
    A('s_cbranch_scc0 b_even')
    XR, XR2, FL = 32, 112, 64
    A('s_movk_i32 s26, 0x5000')
    for t in range(5):
        A(f'buffer_load_dwordx4 v[{XR+4*t}:{XR+4*t+3}], v{vT0}, {R1}, 0 offen offset:{64*t}')
    for t in range(5):
        A(f'buffer_load_dwordx4 v[{XR2+4*t}:{XR2+4*t+3}], v{vT0}, {R1}, s26 offen offset:{64*t}')
    if P['lin']: lin_touch(A, X, tid, 160, sR2, (88, 90, 58, 56))
    if P.get('rot'): rot_verify(A, 52, 26, sTO, 'bulk_abort')
    for q in range(4): A(f'v_mov_b32 v{vH+q}, -1')
    X.set(vT1, X.sel(('lt', tid, 16), n_()*256 + tid*16 + WS_TAB, OOB))
    A(f'buffer_store_dwordx4 v[{vH}:{vH+3}], v{vT1}, {WS}, 0 offen sc1')
    X.set(vT1, n_()*40960 + w*5120 + L16 + WS_XN)
    X.set(vRw, w*64 + c*4)
    X.set(vRr, c*4)
    A(f's_mov_b32 s{sN}, 0')
    A(f's_waitcnt vmcnt({5 if P["lin"] else 1})')
    A.label('ln_loop')
    for k in range(20):
        A(f'v_lshlrev_b32 v{FL+2*k}, 16, v{XR+k}')
        A(f'v_and_b32 v{FL+2*k+1}, 0xffff0000, v{XR+k}')
    A(f'v_add_f32 v{vT2}, v{FL}, v{FL+1}')
    for k in range(2, 40): A(f'v_add_f32 v{vT2}, v{vT2}, v{FL+k}')
    def wg_sum(dst, off):
        xsum_g(A, vT2, vT3)
        A(f'ds_write_b32 v{vRw}, v{vT2} offset:{off}')
        A('s_waitcnt lgkmcnt(0)')
        A('s_barrier')
        for k in range(4): A(f'ds_read_b32 v{dst+k}, v{vRr} offset:{off+64*k}')
        A('s_waitcnt lgkmcnt(0)')
        A(f'v_add_f32 v{dst}, v{dst}, v{dst+1}')
        A(f'v_add_f32 v{dst+2}, v{dst+2}, v{dst+3}')
        A(f'v_add_f32 v{dst}, v{dst}, v{dst+2}')
        A(f'v_mul_f32 v{dst}, {f2u(1.0/640):#x}, v{dst}')
    MN, VR = 104, 108
    wg_sum(MN, 0)
    A(f'v_sub_f32 v{vT3}, v{FL}, v{MN}')
    A(f'v_mul_f32 v{vT2}, v{vT3}, v{vT3}')
    for k in range(1, 40):
        A(f'v_sub_f32 v{vT3}, v{FL+k}, v{MN}')
        A(f'v_fmac_f32 v{vT2}, v{vT3}, v{vT3}')
    wg_sum(VR, 256)
    rbf(A, VR)
    A(f'v_add_f32 v{VR}, 0x3727c5ac, v{VR}')
    rbf(A, VR)
    A(f'v_sqrt_f32 v{VR}, v{VR}')
    A.nop(1)
    rbf(A, VR)
    A(f'v_rcp_f32 v{VR}, v{VR}')
    rbf(A, MN)
    A(f'v_mov_b32 v{MN+1}, v{MN}')
    A(f'v_mov_b32 v{VR+1}, v{VR}')
    YR = 136
    for k in range(20):
        A(f'v_pk_add_f32 v[{FL+2*k}:{FL+2*k+1}], v[{FL+2*k}:{FL+2*k+1}], v[{MN}:{MN+1}] neg_lo:[0,1] neg_hi:[0,1]')
        rbf2(A, FL+2*k, FL+2*k+1, vT3)
        A(f'v_pk_mul_f32 v[{FL+2*k}:{FL+2*k+1}], v[{FL+2*k}:{FL+2*k+1}], v[{VR}:{VR+1}]')
        A(f'v_cvt_pk_bf16_f32 v{YR+k}, v{FL+2*k}, v{FL+2*k+1}')
    A(f'v_add_u32 v{vT2}, 4096, v{vT1}')
    for t in range(5):
        A(f'buffer_store_dwordx4 v[{YR+4*t}:{YR+4*t+3}], v{vT1 if t < 4 else vT2}, {WS}, 0 offen offset:{1024*(t%4)} sc1')
    for k in range(20): A(f'v_mov_b32 v{XR+k}, v{XR2+k}')
    A(f'v_add_u32 v{vT1}, 20480, v{vT1}')
    A(f's_add_u32 s{sN}, s{sN}, 1')
    A(f's_cmp_lt_u32 s{sN}, 2')
    A('s_cbranch_scc1 ln_loop')
    A('s_waitcnt vmcnt(0)')
    A('s_barrier')
    A(f's_cmp_lg_u32 s{sW}, 0')
    A('s_cbranch_scc1 b_arrived')
    arrive_s(A, 52, 26, 'b_arrived')
    A('s_branch b_arrived')
    A.label('b_even')
    if P['coop']:
        for i in range(3):
            X.set(112+i, X.sel(('lt', tid + 256*i, 640), (((m_ >> 1) & 15)*40 + ((tid + 256*i) >> 4))*8192 + (m_ >> 5)*2048 + (tid & 15)*128, OOB))
        for mm, ptr in enumerate((88, 90, 58)):
            srd(A, sR2, ptr, DM*4096*2)
            for i in range(3): A(f'buffer_load_dword v{116+3*mm+i}, v{112+i}, {R2}, 0 offen')
    for _ in range(P['bdel']): A('s_sleep 32')
    if P['lin']: lin_touch(A, X, tid, 160, sR2, (88, 90, 58, 56))
    A.label('b_arrived')
    def stage(ptr, base):
        srd(A, sR2, ptr, DM*4096*2)
        A(f's_lshl_b32 s{sT0}, s{sW}, 10')
        A(f's_add_u32 s{sT0}, s{sT0}, {base}')
        A(f's_lshl_b32 s{sT1}, s{sW}, 16')
        for i in range(20):
            A(f's_mov_b32 m0, s{sT0}')
            A(f's_add_u32 s{sT0}, s{sT0}, 4096')
            A(f'buffer_load_dwordx4 v{vD1}, {R2}, s{sT1} offen lds')
            A(f's_add_u32 s{sT1}, s{sT1}, {4*65536}')
    stage(88, 0)
    stage(90, 81920)
    if not P['coop']:
        srd(A, sR2, 58, DM*4096*2)
        for i in range(3):
            X.set(vT1, X.sel(('lt', tid + 256*i, 640), (tid + 256*i)*8192 + (m_ >> 2)*256 + (m_ & 2)*64, OOB))
            A(f'buffer_load_dword v{112+i}, v{vT1}, {R2}, 0 offen')
    if P.get('rot'): rot_verify(A, 52, 26, sTO, 'bulk_abort')
    trb = lambda le: (g*8 + ((L >> 2) & 3))*128 + (le ^ (((L >> 3) & 1) | ((g & 1) << 1)))*32 + (L & 3)*8
    def trload(abase, R0):
        A(f'v_add_u32 v{vT3}, 0x10000, v{R0}')
        for t in range(20):
            r, o = (R0, 4096*t) if t < 16 else (vT3, 4096*(t-16))
            A(f'ds_read_b64_tr_b16 a[{abase+4*t}:{abase+4*t+1}], v{r} offset:{o}')
            A(f'ds_read_b64_tr_b16 a[{abase+4*t+2}:{abase+4*t+3}], v{r} offset:{o+512}')
            if t % 4 == 3: A('s_waitcnt lgkmcnt(4)')
    X.set(vR1, trb(w & 1) + (w >> 1)*81920)
    X.set(vD3, trb((w & 1) + 2) + (w >> 1)*81920)
    A(f's_waitcnt vmcnt({0 if P["coop"] else 3})')
    A('s_barrier')
    trload(0, vR1)
    trload(160, vD3)
    A('s_waitcnt lgkmcnt(0)')
    A('s_barrier')
    stage(58, 81920)
    X.set(vR1, trb(w) + 81920)
    A(f's_and_b32 s{sT0}, s{sB}, 15')
    A(f's_mul_i32 s{sT0}, s{sT0}, 5')
    A(f'v_mov_b32 v{vT0}, s{sT0}')
    for u in range(5):
        uu = X.reg(vT0) + u
        X.set(vZu+u, (uu >> 1)*16384 + (uu & 1)*4096 + tid*16)
    A('s_waitcnt vmcnt(0)')
    A('s_barrier')
    trload(80, vR1)
    A(f's_lshr_b32 s{sZs}, s{sB}, 4')
    def fill(nph, flag):
        for q in range(4): A(f'v_mov_b32 v{vH+q}, -1')
        for ph in range(nph):
            A(f'v_readlane_b32 s{sT0}, v{vZt}, s{sZs}')
            if flag == 0:
                A(f's_cmp_lt_u32 s{sZs}, 3')
                A(f's_cselect_b32 s{sT0}, {OOB:#x}, s{sT0}')
            A(f's_add_u32 s{sZs}, s{sZs}, 8')
            A.nop(4)
            for u in range(5):
                A(f'buffer_store_dwordx4 v[{vH}:{vH+3}], v{vZu+u}, {WS}, s{sT0} offen sc1')
        A('s_waitcnt vmcnt(0)')
        A('s_barrier')
        A(f's_lshl_b32 s{sT0}, s{sB}, 2')
        A(f's_add_u32 s{sT0}, s{sT0}, {WS_ZFLAG + 512*flag}')
        A(f'buffer_store_dword v{vZf}, v{vZf}, {WS}, s{sT0} offen sc1')
    A(f's_cmp_lt_u32 s{sW}, 2')
    A(f's_cselect_b32 s{sC2}, {f2u(QSCALE):#x}, 1.0')
    A(f's_mov_b32 s{sC2+1}, s{sC2}')
    tq = lambda: (m_ & 2) + (w & 1)
    X.set(vGo, X.sel(('lt', w, 2), (c >> 3)*2048 + tq()*512 + (g*8 + (c & 7))*16 + 16384, tq()*1024 + L16))
    X.set(vXo, ((m_ & 2)*2 + w)*1024 + L16 + 8192)
    X.set(vRr, X.sel(('eq', tid, 0), m_*4 + WS_QP, OOB))
    A(f's_and_b32 s3, s{sM}, 1')
    A(f's_mul_i32 s{sO1}, s3, 40960')
    A(f's_mul_i32 s{sLB}, s{sW}, 5120')
    A(f's_add_u32 s{sO1}, s{sO1}, {40960*P["ns0"]}')
    A(f's_add_u32 s{sO1}, s{sO1}, s{sLB}')
    A(f's_mul_i32 s{sO2}, s3, {XSEG}')
    A(f's_lshr_b32 s3, s{sM}, 2')
    A(f's_mul_i32 s3, s3, {XH}')
    A(f's_add_u32 s{sO2}, s{sO2}, s3')
    A(f's_add_u32 s{sO2}, s{sO2}, {WS_KX + XSEG*P["ns0"]}')
    A(f's_mov_b32 s{sN}, {P["ns0"]//2}')
    RG, XA, PK, PV = 40, 72, 84, 88
    def x_dma(buf, adv):
        o = [f's_add_u32 m0, s{sLB}, {20480*buf}', f's_add_u32 s{sT0}, s{sO1}, 4096']
        o += [f'buffer_load_dwordx4 v{vL16}, {WS}, s{sO1} offen offset:{1024*k} sc1 lds' for k in range(4)]
        o += [f's_add_u32 m0, s{sLB}, {20480*buf + 4096}', f's_add_u32 s{sO1}, s{sO1}, {adv}',
              f'buffer_load_dwordx4 v{vL16}, {WS}, s{sT0} offen sc1 lds']
        return o
    def x_tile(tt, young):
        A(f's_waitcnt vmcnt({young})')
        A('s_barrier')
        fl = x_dma(1 - tt, 61440 if tt == 0 else 20480)
        if tt == 1:
            fl = [f'v_mov_b32 v{vT0}, s{sN}', f'buffer_store_dword v{vT0}, v{vRr}, {WS}, 0 offen sc1'] + fl
        o = []
        rd = lambda t: f'ds_read_b128 v[{RG+4*(t%8)}:{RG+4*(t%8)+3}], v{vL16} offset:{20480*tt + 1024*t}'
        for t in range(6): o.append(rd(t))
        for t in range(20):
            o.append(f's_waitcnt lgkmcnt({min(20, t + 6) - t - 1})')
            f = v(RG + 4*(t % 8), 4)
            o.append(M32(v(XA, 4), a(4*t, 4), f, '0' if t == 0 else v(XA, 4)))
            o.append(M32(v(XA+4, 4), a(160+4*t, 4), f, '0' if t == 0 else v(XA+4, 4)))
            o.append(M32(v(XA+8, 4), f, a(80+4*t, 4), '0' if t == 0 else v(XA+8, 4)))
            if t + 6 < 20: o.append(rd(t + 6))
        emit(A, weave(o, fl, per=1))
        if tt: A(f's_add_u32 s{sT1}, s{sO2}, 4096')
        A.nop(6)
        for r in range(0, 8, 2): A(f'v_pk_mul_f32 v[{XA+r}:{XA+r+1}], v[{XA+r}:{XA+r+1}], s[{sC2}:{sC2+1}]')
        for r in range(4): A(f'v_cvt_pk_bf16_f32 v{PK+r}, v{XA+2*r}, v{XA+2*r+1}')
        A(f'buffer_store_dwordx4 v[{PK}:{PK+3}], v{vGo}, {WS}, s{sT1 if tt else sO2} offen sc1')
        for r in range(2): A(f'v_cvt_pk_bf16_f32 v{PV+2*tt+r}, v{XA+8+2*r}, v{XA+8+2*r+1}')
        if tt:
            A(f'buffer_store_dwordx4 v[{PV}:{PV+3}], v{vXo}, {WS}, s{sO2} offen sc1')
            A(f's_add_u32 s{sO2}, s{sO2}, {2*XSEG}')
            A(f's_add_u32 s{sN}, s{sN}, 1')
    wait_start(A, R4, vT0, 26, sTO, 'b_start', 'bulk_abort', sleep=2)
    emit(A, x_dma(0, 20480))
    x2_table(A, X, L, vZt, 26, 54, vT1)
    st()
    if P['ns0']: fill(1, 0)
    A('s_waitcnt vmcnt(0) lgkmcnt(0)')
    A.label('q_loop')
    x_tile(0, 2); x_tile(1, 1)
    A(f's_cmp_eq_u32 s{sN}, {P["ns0"]//2 + 1}')
    A('s_cbranch_scc1 q_fill0')
    A(f's_cmp_eq_u32 s{sN}, 6')
    A('s_cbranch_scc1 q_fill')
    A(f's_cmp_eq_u32 s{sN}, 16')
    A('s_cbranch_scc1 q_fill2')
    A.label('q_back')
    A(f's_cmp_lt_u32 s{sN}, 32')
    A('s_cbranch_scc1 q_loop')
    A('s_branch q_done')
    A.label('q_fill0')
    A('s_waitcnt vmcnt(0)')
    A('s_barrier')
    A(f'v_mov_b32 v{vT0}, s{sN}')
    A(f'buffer_store_dword v{vT0}, v{vRr}, {WS}, 0 offen sc1')
    if not P['ns0']: fill(1, 0)
    A('s_branch q_back')
    A.label('q_fill')
    fill(2, 1)
    A('s_branch q_back')
    A.label('q_fill2')
    fill(5, 2)
    A('s_branch q_back')
    A.label('q_done')
    A('s_waitcnt vmcnt(0)')
    A('s_barrier')
    A(f'v_mov_b32 v{vT0}, 64')
    A(f'buffer_store_dword v{vT0}, v{vRr}, {WS}, 0 offen sc1')
    st()
    srd(A, sR1, 44, DM*FF*2)
    srd(A, sR2, 46, DM*FF*2)
    srd(A, sR3, 48, FF*DM*2)
    jj, qq = (lambda: b >> 2), (lambda: b & 3)
    X.set(vT2, X.sel(('lt', tid, 160), ((tid >> 3)*32 + jj())*3456 + ((tid & 7)*4 + qq())*128, OOB))
    A(f'buffer_load_dword v{vWF}, v{vT2}, {R1}, 0 offen')
    A(f'buffer_load_dword v{vWF+1}, v{vT2}, {R2}, 0 offen')
    X.set(vT3, (tid*6554) >> 16)
    rr = X.reg(vT3)
    X.set(vT2, X.sel(('lt', tid, 140), (((rr >> 1)*4 + qq())*64 + (rr & 1)*32 + jj())*1280 + (tid - rr*10)*128, OOB))
    A(f'buffer_load_dword v{vWF+2}, v{vT2}, {R3}, 0 offen')
    A(f's_and_b32 s{sTile}, s{sB}, 0x7c')
    A(f's_add_u32 s{sTile}, s{sTile}, s{sW}')
    A(f's_mul_i32 s{sT0}, s{sTile}, 20480')
    for t in range(20):
        if t and t % 4 == 0: A(f's_add_u32 s{sT0}, s{sT0}, 4096')
        A(f'buffer_load_dwordx4 a[{4*t}:{4*t+3}], v{vL16}, {WS}, s{sT0} offen offset:{1024*(t%4)} sc1')
    st()
    X.set(vD1, (w*8 + (L >> 3))*3456 + ((((L >> 1) & 3) ^ (((L >> 4) & 1) | ((w & 1) << 1)))*2 + (L & 1))*16)
    for i, dst in enumerate((vD2, vD3)):
        X.set(dst, (w*8 + (L >> 4) + 4*i)*1280 + ((((L >> 1) & 7) ^ ((L >> 4) + 4*i))*2 + (L & 1))*16)
    for tl in range(4):
        X.set(vR1b+tl, (g*8 + ((L >> 2) & 3))*128 + ((((L >> 3) & 1) | ((g & 1) << 1)) ^ tl)*32 + (L & 3)*8)
        X.set(vR1b+4+tl, X.reg(vR1b+tl) + 65536)
    for n in range(8):
        X.set(vR2n+n, (g*4 + ((L >> 2) & 3))*256 + ((((g & 1)*4 + ((L >> 2) & 3)) ^ n)*32) + (L & 3)*8)
        X.set(vR2n+8+n, X.reg(vR2n+n) + 65536)
    A(f'v_mov_b32 v{vT0}, 0')
    for r in range(160): A(f'v_accvgpr_write_b32 a{80+r}, v{vT0}')
    A(f's_cmp_lt_u32 s{sQ}, 3')
    A(f's_cselect_b32 s{sN}, 7, 6')
    A(f's_lshl_b32 s{sO1}, s{sQ}, 7')
    A(f's_mul_i32 s{sO2}, s{sQ}, {64*1280}')
    A(f's_lshl_b32 s{sLB}, s{sW}, 10')
    A(f's_lshl_b32 s{sRB}, s{sW}, 11')
    NS, NC = 15, 30
    def issue(ci, nxt):
        o = []; lb = (ci % NS) * 8192
        if ci < 20:
            for m, sr in enumerate((R1, R2)):
                o.append(f's_add_u32 m0, s{sLB}, {lb + m*4096}')
                o.append(f's_add_u32 s{sT0}, s{sO1}, {ci*32*3456 + nxt*512}')
                o.append(f'buffer_load_dwordx4 v{vD1}, {sr}, s{sT0} offen lds')
        else:
            hb, cc = (ci - 20) // 5, (ci - 20) % 5
            for i in range(2):
                o.append(f's_add_u32 m0, s{sRB}, {lb + i*1024}')
                o.append(f's_add_u32 s{sT0}, s{sO2}, {hb*32*1280 + cc*256}')
                o.append(f'buffer_load_dwordx4 v{vD2 if i == 0 else vD3}, {R3}, s{sT0} offen lds')
        return o
    A('s_waitcnt vmcnt(0)')
    for ci in range(NS - 1): emit(A, issue(ci, 0))
    A.label('ffn_loop')
    for ci in range(NC):
        A(f's_waitcnt vmcnt({2*(NS-2)})')
        A('s_barrier')
        lb = (ci % NS) * 8192
        hi = 1 if lb >= 65536 else 0
        lb -= hi*65536
        nx = issue((ci + NS - 1) % NC, 1 if ci + NS - 1 >= NC else 0)
        mf = []
        if ci < 20:
            for n in range(8):
                m, tl = n >> 2, n & 3
                r = vWF + 4*n
                A(f'ds_read_b64_tr_b16 v[{r}:{r+1}], v{vR1b+4*hi+tl} offset:{lb + m*4096}')
                A(f'ds_read_b64_tr_b16 v[{r+2}:{r+3}], v{vR1b+4*hi+tl} offset:{lb + m*4096 + 512}')
            for n in range(8):
                mf.append(f's_waitcnt lgkmcnt({2*(7-n)})')
                mf.append(M32(v(vA1+4*n, 4), v(vWF+4*n, 4), a(4*ci, 4), '0' if ci == 0 else v(vA1+4*n, 4)))
        else:
            hb, cc = (ci - 20) // 5, (ci - 20) % 5
            for n in range(8):
                r = vWF + 4*n
                A(f'ds_read_b64_tr_b16 v[{r}:{r+1}], v{vR2n+8*hi+n} offset:{lb}')
                A(f'ds_read_b64_tr_b16 v[{r+2}:{r+3}], v{vR2n+8*hi+n} offset:{lb + 4096}')
            if ci == 20:
                for tl in range(4):
                    for r in (0, 2):
                        gx, ux = vA1 + 4*tl + r, vA1 + 16 + 4*tl + r
                        rbf2(A, gx, gx+1, vT0); rbf2(A, ux, ux+1, vT0)
                        silu(A, gx, vT0); silu(A, gx+1, vT1)
                        rbf2(A, gx, gx+1, vT0)
                        A(f'v_mul_f32 v{gx}, v{gx}, v{ux}')
                        A(f'v_mul_f32 v{gx+1}, v{gx+1}, v{ux+1}')
                        A(f'v_cvt_pk_bf16_f32 v{vH+2*tl+r//2}, v{gx}, v{gx+1}')
                A('s_nop 0')
            for n in range(8):
                ct = cc*8 + n
                mf.append(f's_waitcnt lgkmcnt({2*(7-n)})')
                mf.append(M32(a(80+4*ct, 4), v(vWF+4*n, 4), v(vH+4*hb, 4), a(80+4*ct, 4)))
        emit(A, weave(mf, nx, per=1))
    A(f's_add_u32 s{sO1}, s{sO1}, 512')
    A(f's_add_u32 s{sO2}, s{sO2}, {256*1280}')
    A(f's_sub_u32 s{sN}, s{sN}, 1')
    A(f's_cmp_lg_u32 s{sN}, 0')
    A('s_cbranch_scc1 ffn_loop')
    A('s_waitcnt vmcnt(0)')
    A('s_barrier')
    st()
    A(f's_lshl_b32 s{sT0}, s{sQ}, 7')
    A(f's_add_u32 s{sT0}, s{sT0}, s{sTile}')
    A(f's_mul_i32 s{sT0}, s{sT0}, 40960')
    A(f's_add_u32 s{sT0}, s{sT0}, {WS_G}')
    for ct in range(40):
        if ct and ct % 4 == 0: A(f's_add_u32 s{sT0}, s{sT0}, 4096')
        A(f'buffer_store_dwordx4 a[{80+4*ct}:{80+4*ct+3}], v{vL16}, {WS}, s{sT0} offen offset:{1024*(ct%4)} sc1')
    A('s_waitcnt vmcnt(0)')
    A('s_barrier')
    A(f's_lshl_b32 s{sT0}, s{sB}, 2')
    A(f's_add_u32 s{sT0}, s{sT0}, {WS_GFLAG}')
    A(f'buffer_store_dword v{vZf}, v{vZf}, {WS}, s{sT0} offen sc1')
    A(f's_cmp_ge_u32 s{sB}, 120')
    A('s_cbranch_scc1 bulk_end')
    A(f's_mul_i32 s{sTile}, s{sB}, 3277')
    A(f's_lshr_b32 s{sTile}, s{sTile}, 16')
    A(f's_mul_i32 s3, s{sTile}, 20')
    A(f's_sub_u32 s{sNG}, s{sB}, s3')
    srd(A, sR1, 56, 4096*DM*2)
    srd(A, sR2, 60, S_TOK*DM*2)
    srd(A, sR3, 50, S_TOK*DM*2)
    X.set(vD1, (L >> 2)*1280 + (L & 3)*16)
    X.set(vR1, w*40960 + (g*4 + ((L >> 2) & 3))*64 + (L & 3)*8)
    A(f's_mul_i32 s{sO1}, s{sW}, {1024*1280}')
    A(f's_lshl_b32 s3, s{sNG}, 6')
    A(f's_add_u32 s{sO1}, s{sO1}, s3')
    A(f's_mul_i32 s{sLB}, s{sW}, 40960')
    for rnd in range(2):
        for i in range(32):
            A(f's_add_u32 m0, s{sLB}, {1024*i}')
            A(f's_add_u32 s{sT1}, s{sO1}, {(rnd*512 + i*16)*1280}')
            A(f'buffer_load_dwordx4 v{vD1}, {R1}, s{sT1} offen lds')
        A('s_waitcnt vmcnt(0)')
        for t in range(16):
            for tl in range(2):
                r = ((rnd*16 + t)*2 + tl)*4
                A(f'ds_read_b64_tr_b16 a[{r}:{r+1}], v{vR1} offset:{t*2048 + tl*32}')
                A(f'ds_read_b64_tr_b16 a[{r+2}:{r+3}], v{vR1} offset:{t*2048 + tl*32 + 1024}')
            if t % 2 == 1: A('s_waitcnt lgkmcnt(4)')
        A('s_waitcnt lgkmcnt(0)')
    X.set(vRw, w*2048 + L16)
    X.set(vRr, (w & 1)*1024 + L16)
    X.set(vD2, w*32768 + L16)
    X.set(vGo, (w & 1)*1024 + L16)
    X.set(vXo, c*1280 + (w & 1)*32 + g*8)
    if stamps: X.set(vD3, X.sel(('lt', tid, 8), tid*4, OOB))
    spin_flags(A, 'g_poll', 'g_ok', WS_GFLAG, 8)
    A.label('g_ok')
    A('s_barrier')
    st()
    A(f's_mov_b32 s{sRB}, 0')
    A.label('op_loop')
    A(f's_lshr_b32 s{sT0}, s{sTile}, 1')
    A(f's_cmp_ge_u32 s{sT0}, 62')
    A('s_cbranch_scc1 op_final')
    A(f's_lshl_b32 s{sT0}, s{sT0}, 7')
    A(f's_add_u32 s{sT0}, s{sT0}, {WS_PROG}')
    A(f'v_mov_b32 v{vT2}, 0')
    A.label('p_poll')
    A(f'buffer_load_dword v{vT0}, v{vT2}, {WS}, s{sT0} offen sc1')
    A('s_waitcnt vmcnt(0)')
    A(f'v_cmp_eq_u32 vcc, -1, v{vT0}')
    A('s_cbranch_vccz op_go')
    A('s_sleep 8')
    A(f's_sub_u32 s{sTO}, s{sTO}, 1')
    A('s_cbranch_scc0 p_poll')
    A('s_branch bulk_abort')
    spin_flags(A, 'op_final', 'op_go', WS_FLAG, P.get('fsl', 2))
    A.label('op_go')
    A(f's_lshl_b32 s{sT0}, s{sTile}, 17')
    A(f's_add_u32 s{sT0}, s{sT0}, {WS_OF}')
    for t in range(32):
        if t and t % 4 == 0: A(f's_add_u32 s{sT0}, s{sT0}, 4096')
        A(f'buffer_load_dwordx4 v[{vOF+4*t}:{vOF+4*t+3}], v{vD2}, {WS}, s{sT0} offen offset:{1024*(t%4)} sc1')
    A(f's_mul_i32 s{sT0}, s{sTile}, 20480')
    A(f's_lshl_b32 s{sT1}, s{sNG}, 10')
    A(f's_add_u32 s{sT1}, s{sT1}, s{sT0}')
    A(f's_lshl_b32 s{sT1}, s{sT1}, 1')
    A(f's_add_u32 s{sT1}, s{sT1}, {WS_G}')
    for q in range(4):
        A(f'buffer_load_dwordx4 v[{vY+4*q}:{vY+4*q+3}], v{vGo}, {WS}, s{sT1} offen sc1')
        if q < 3: A(f's_add_u32 s{sT1}, s{sT1}, {128*40960}')
    A(f's_lshl_b32 s{sT1}, s{sNG}, 6')
    A(f's_add_u32 s{sO2}, s{sT1}, s{sT0}')
    A(f'buffer_load_dwordx2 v[{vH+2}:{vH+3}], v{vXo}, {R2}, s{sO2} offen')
    for t in range(32):
        A(f's_waitcnt vmcnt({36-t})')
        for tl in range(2):
            A(M32(v(vA1+4*tl, 4), a((2*t+tl)*4, 4), v(vOF+4*t, 4), '0' if t == 0 else v(vA1+4*tl, 4)))
    A(f'v_add_u32 v{vT2}, s{sRB}, v{vRw}')
    A(f'v_add_u32 v{vT3}, s{sRB}, v{vRr}')
    A.nop(6)
    A(f'ds_write_b128 v{vT2}, v[{vA1}:{vA1+3}]')
    A(f'ds_write_b128 v{vT2}, v[{vA1+4}:{vA1+7}] offset:1024')
    A(f's_xor_b32 s{sRB}, s{sRB}, 8192')
    A('s_waitcnt lgkmcnt(0)')
    A('s_barrier')
    A(f's_cmp_ge_u32 s{sW}, 2')
    A('s_cbranch_scc1 op_next')
    for p in range(4): A(f'ds_read_b128 v[{vWF+4*p}:{vWF+4*p+3}], v{vT3} offset:{2048*p}')
    A('s_waitcnt vmcnt(0) lgkmcnt(0)')
    for r in range(4):
        for bs in (vWF, vY):
            A(f'v_add_f32 v{bs+r}, v{bs+r}, v{bs+4+r}')
            A(f'v_add_f32 v{bs+8+r}, v{bs+8+r}, v{bs+12+r}')
            A(f'v_add_f32 v{bs+r}, v{bs+r}, v{bs+8+r}')
    for r in (0, 2):
        s0, s1 = vWF+r, vWF+r+1
        rbf2(A, vY+r, vY+r+1, vT0)
        silu(A, vY+r, vT0); silu(A, vY+r+1, vT1)
        rbf2(A, vY+r, vY+r+1, vT0)
        rbf2(A, s0, s1, vT0)
        A(f'v_mul_f32 v{s0}, v{s0}, v{vY+r}')
        A(f'v_mul_f32 v{s1}, v{s1}, v{vY+r+1}')
        rbf2(A, s0, s1, vT0)
        A(f'v_lshlrev_b32 v{vT0}, 16, v{vH+2+r//2}')
        A(f'v_and_b32 v{vT1}, 0xffff0000, v{vH+2+r//2}')
        A(f'v_add_f32 v{s0}, v{s0}, v{vT0}')
        A(f'v_add_f32 v{s1}, v{s1}, v{vT1}')
        A(f'v_cvt_pk_bf16_f32 v{vWF+16+r//2}, v{s0}, v{s1}')
    A(f'buffer_store_dwordx2 v[{vWF+16}:{vWF+17}], v{vXo}, {R3}, s{sO2} offen{P.get("outfl", "")}')
    A.label('op_next')
    A(f's_add_u32 s{sTile}, s{sTile}, 6')
    A(f's_cmp_lt_u32 s{sTile}, 128')
    A('s_cbranch_scc1 op_loop')
    if stamps:
        A('s_waitcnt vmcnt(0)')
        st()
        for q in range(nst[0]): A(f'v_writelane_b32 v{vT0}, s{70+2*q}, {q}')
        A(f's_lshl_b32 s{sT0}, s{sB}, 6')
        A(f's_add_u32 s{sT0}, s{sT0}, {WS_DBG + 0x400000}')
        A(f'buffer_store_dword v{vT0}, v{vD3}, {WS}, s{sT0} offen')
        if P.get('dbgout'):
            A(f'v_mov_b32 v{vT0}, s{70+2*(nst[0]-1)}')
            A(f'buffer_atomic_umax v{vT0}, v{vZf}, {R4}, 0 offen offset:8')
    A('s_endpgm')
    A.label('bulk_abort')
    A(f'v_mov_b32 v{vT0}, 9')
    A(f'v_mov_b32 v{vT1}, 4')
    A(f'buffer_store_dword v{vT0}, v{vT1}, {R4}, 0 offen')
    A.label('bulk_end')
    A('s_endpgm')
```

```python
from k7_common import *
NEG = -1.0e30
L_MEM = 0
L_Q   = 10240
L_K   = L_Q + 2048
L_O   = L_K + 2048
L_QX  = L_O + 8192
L_KX  = L_QX + 2048
L_XN  = 40960
LDS_BYTES = 163840
assert L_KX + 8192 <= L_XN
sWS, sWT, sC2 = 4, 8, 12
sKXm, sQXr = 14, 15
sCnt = 16
sPar, sQok = 28, 29
sW, sG, sJ, sH, sA, sStep, sTO, sXw = 30, 31, 32, 33, 34, 35, 36, 37
sX3r, sX1, sX2, sX3w, sVXr, sX2L, sXr, sT0, sT1, sOF, sNH = 38, 39, 40, 41, 42, 44, 45, 46, 47, 48, 49
sX3G, sX1H, sDB, sXNg, sHoff, sT2 = 50, 51, 52, 53, 54, 55
sST = 56
sWarm, sLrng, sZn, sZo = 88, 89, 90, 91
vDbg, vX2tab = 0, 1
vX3ld, vMemR, vX1st, vV1st, vQKld, vQKw, vQr, vKr, vVMld, vOw = 2, 3, 4, 5, 6, 7, 8, 9, 10, 11
vX2st, vSR, vOFst, vL16, vKXr, vXNr, vXA, vM2, vM = 12, 13, 14, 15, 16, 17, 18, 19, 20
vR = 21
vT0, vT1, vT2, vT3, vRinv, vRinv1 = 30, 31, 32, 33, 34, 35
vPL = 36
vBias = 40
vLS = 48
vVE = 52
vWO = 56
vKX = 104
vVX = 136
vS = 144
vAcc = 156
vAcc2 = 160
vP = 164
vVM4 = 168
vXACC = 172
vMW = 180
vOFR = 184
vSent4 = 188
vRG = 192
vPS = 224
vQS = 248
aSel, aOne, aSelH, aOneM = 240, 244, 248, 252
WS = f's[{sWS}:{sWS+3}]'

class Stamp:
    def __init__(self, A, on): self.A, self.on, self.n = A, on, 0
    def __call__(self, lvl=2):
        if self.on >= lvl:
            self.A(f'{"s_memrealtime" if self.on == 3 else "s_memtime"} s[{sST+2*self.n}:{sST+2*self.n+1}]')
            self.A('s_waitcnt lgkmcnt(0)')
            self.n += 1
    def flush(self):
        if not self.on: return
        A = self.A
        for k in range(self.n): A(f'v_writelane_b32 v{vT3}, s{sST+2*k}, {k}')
        for k in range(5): A(f'v_writelane_b32 v{vT3}, s{sCnt+k}, {10+k}')
        A(f'v_writelane_b32 v{vT3}, s100, 15')
        A(f's_lshl_b32 s{sT0}, s{sStep}, 6')
        A(f's_add_u32 s{sT0}, s{sT0}, s{sDB}')
        A(f'buffer_store_dword v{vT3}, v{vDbg}, {WS}, s{sT0} offen')

def slot_list(add):
    return [
    f's_add_u32 s{sT0}, s{sStep}, {add}',
    f's_and_b32 s{sT1}, s{sT0}, 63',
    f's_and_b32 s{sT0}, s{sT0}, 3',
    f's_mul_i32 s{sX3r}, s{sT0}, {X3_SLOT}',
    f's_add_u32 s{sX3r}, s{sX3r}, s{sX3G}',
    f'v_readlane_b32 s{sX2}, v{vX2tab}, s{sT1}',
    f's_mul_i32 s{sX2L}, s{sT0}, {X2_SLOT}',
    f's_add_u32 s{sX2L}, s{sX2L}, {WS_X2L}',
    f's_mul_i32 s{sX1}, s{sT0}, {X1_SLOT}',
    f's_add_u32 s{sX1}, s{sX1}, s{sX1H}',
    f's_add_u32 s{sT0}, s{sT0}, 1',
    f's_and_b32 s{sT0}, s{sT0}, 3',
    f's_mul_i32 s{sX3w}, s{sT0}, {X3_SLOT}',
    f's_add_u32 s{sX3w}, s{sX3w}, s{sX3G}']
def reset_list(fl):
    S4 = f'v[{vSent4}:{vSent4+3}]'
    o = [f's_add_u32 s{sT2}, s{sStep}, 2', f's_and_b32 s{sT2}, s{sT2}, 3',
         f's_mul_i32 s{sT0}, s{sT2}, {X2_SLOT}', f's_add_u32 s{sT0}, s{sT0}, {WS_X2L}']
    for i in range(3):
        o.append(f'buffer_store_dwordx4 {S4}, v{vR if i < 2 else vR+1}, {WS}, s{sT0} offen{fl}')
        if i < 2: o.append(f's_add_u32 s{sT0}, s{sT0}, 32768')
    o += [f's_mul_i32 s{sT1}, s{sT2}, {X1_SLOT}', f's_add_u32 s{sT1}, s{sT1}, s{sX1H}',
          f'buffer_store_dwordx4 {S4}, v{vR+2}, {WS}, s{sT1} offen{fl}',
          f'buffer_store_dwordx4 {S4}, v{vR+2}, {WS}, s{sT1} offen offset:1024{fl}',
          f's_add_u32 s{sT2}, s{sT2}, 1', f's_and_b32 s{sT2}, s{sT2}, 3',
          f's_mul_i32 s{sT1}, s{sT2}, {X3_SLOT}', f's_add_u32 s{sT1}, s{sT1}, s{sX3G}',
          f'buffer_store_dwordx4 {S4}, v{vR+3}, {WS}, s{sT1} offen{fl}']
    return o
def kv_list():
    return [f's_add_u32 m0, s{sKXm}, {L_KX}', f's_add_u32 s{sVXr}, s{sXr}, 8192',
            f'buffer_load_dwordx4 v{vL16}, {WS}, s{sXr} offen sc1 lds',
            f'buffer_load_dwordx4 v{vL16}, {WS}, s{sXr} offen offset:1024 sc1 lds',
            f'buffer_load_dwordx4 v[{vVX}:{vVX+3}], v{vL16}, {WS}, s{sVXr} offen sc1',
            f'buffer_load_dwordx4 v[{vVX+4}:{vVX+7}], v{vL16}, {WS}, s{sVXr} offen offset:1024 sc1',
            f's_add_u32 s{sXr}, s{sXr}, {XSEG}']
def qx_list():
    return [f's_mov_b32 m0, {L_QX}', 's_nop 0',
            f'buffer_load_dwordx4 v{vL16}, {WS}, s{sQXr} offen sc1 lds',
            f'buffer_load_dwordx4 v{vL16}, {WS}, s{sQXr} offen offset:1024 sc1 lds',
            f's_add_u32 s{sQXr}, s{sQXr}, {XSEG}']
def bounded(A, top, code):
    A(f's_sub_u32 s{sTO}, s{sTO}, 1')
    A(f's_cbranch_scc0 {top}')
    A(f's_mov_b32 s{sT0}, {code}')
    A('s_branch chain_abort')
def slow_poll(A, lab, back, issue, consume, nl, code, cnt):
    A.label(lab)
    for k in (0, 1):
        if cnt is not None: A(f's_add_u32 s{cnt}, s{cnt}, 1')
        emit(A, issue(k))
        A(f's_waitcnt vmcnt({nl})')
        emit(A, consume(1 - k))
        A(f's_cbranch_vccz {back}')
    bounded(A, lab, code)
def qp_wait(A, lab, back, shifts=(2, 1)):
    A.label(lab)
    A(f'buffer_load_dword v{vT0}, v{vR+5}, {WS}, 0 offen sc1')
    A('s_waitcnt vmcnt(0)')
    for sh in shifts:
        A(f'v_min_i32_dpp v{vT0}, v{vT0}, v{vT0} row_ror:{sh} row_mask:0xf bank_mask:0xf')
        A('s_nop 1')
    A(f'v_readfirstlane_b32 s{sQok}, v{vT0}')
    A(f's_cmp_ge_i32 s{sQok}, s{sT1}')
    A(f's_cbranch_scc1 {back}')
    bounded(A, lab, 9)

def gen_loop(A, tag, fl, role, stamps, P):
    wv = dict(D=0, A=1, E=1, B=2, C=3)[role]
    st = Stamp(A, stamps)
    isA = role in 'ADE'
    recv = role in 'BCE'
    NU = 1
    N3 = 3 if isA else 2
    cn = (lambda k: sCnt + k) if stamps else (lambda k: None)
    br = lambda nm: f's_cbranch_vccnz {nm}_{tag}' if nm not in P.get('nock', '') else 's_nop 2'
    tails = []
    def x3_issue(k):
        r = vPS + 12*k
        return [f'buffer_load_dwordx4 v[{r+4*i}:{r+4*i+3}], v{vX3ld}, {WS}, s{sX3r} offen offset:{1024*i} sc1' for i in range(N3)]
    def x3_consume(k):
        r = vPS + 12*k
        return [f'ds_write_b128 v{vX3ld}, v[{r+4*i}:{r+4*i+3}] offset:{1024*i}' for i in range(N3)] + \
               check_sent(range(r, r+4*N3), vT0) + ['s_waitcnt lgkmcnt(0)']
    def qk_issue(k):
        return [f'buffer_load_dwordx4 v[{vQS+4*k}:{vQS+4*k+3}], v{vQKld}, {WS}, s{sX1} offen sc1']
    def qk_consume(k):
        return [f'ds_write_b128 v{vQKw}, v[{vQS+4*k}:{vQS+4*k+3}]'] + check_sent(range(vQS+4*k, vQS+4*k+4), vT0) + ['s_waitcnt lgkmcnt(0)']
    def x2_issue():
        return [f'buffer_load_dwordx4 v[{vKX+16*u+4*L}:{vKX+16*u+4*L+3}], v{vR+4*u+L}, {WS}, s{sX2 if L < 3 else sX2L} offen sc1'
                for L in range(4) for u in range(NU)]
    def x2_consume():
        mf = [M32(v(vAcc, 4), a(aSel if i < 4 else aSelH, 4), v(vKX+4*i, 4), '0' if i == 0 else v(vAcc, 4)) for i in range(4*NU)]
        return weave(mf, check_sent(range(vKX, vKX+16*NU), vT0)) + ['s_nop 3']
    top_young = N3

    A.label(f'entry_{tag}')
    emit(A, x3_issue(0))
    A('s_waitcnt vmcnt(0)')
    emit(A, x3_issue(1))
    if stamps:
        A('s_memrealtime s[96:97]')
        A('s_waitcnt lgkmcnt(0)')
    if P['al'] >= 0:
        A(f's_branch loop_{tag}')
        A.raw('.p2align 6')
        for _ in range(P['al']): A('s_nop 0')
    A.label(f'loop_{tag}')
    if stamps: A('s_memrealtime s[100:101]')
    st(1)
    A(f's_waitcnt vmcnt({top_young})')
    emit(A, x3_consume(0))
    A(br('x3s'))
    A.label(f'x3ok_{tag}')
    def x3_light():
        NSET = P['x3l']
        base = [vPS, vPS+12, vKX, vKX+12]
        iss = lambda k: [f'buffer_load_dwordx4 v[{base[k]+4*i}:{base[k]+4*i+3}], v{vX3ld}, {WS}, s{sX3r} offen offset:{1024*i} sc1' for i in range(N3)]
        A.label(f'x3s_{tag}')
        for k in range(2, NSET): emit(A, iss(k))
        A.label(f'x3t_{tag}')
        for k in range(NSET):
            kk = (k + 1) % NSET
            if stamps: A(f's_add_u32 s{sCnt}, s{sCnt}, 1')
            emit(A, iss(k))
            A(f's_waitcnt vmcnt({N3*(NSET-1)})')
            emit(A, check_sent(range(base[kk], base[kk]+4*N3), vT0))
            A(f's_cbranch_vccz x3w{kk}_{tag}')
        bounded(A, f'x3t_{tag}', 1)
        for k in range(NSET):
            A.label(f'x3w{k}_{tag}')
            for i in range(N3): A(f'ds_write_b128 v{vX3ld}, v[{base[k]+4*i}:{base[k]+4*i+3}] offset:{1024*i}')
            A('s_waitcnt lgkmcnt(0)')
            A(f's_branch x3ok_{tag}')
    if P['x3l']: tails.append(x3_light)
    else: tails.append(lambda: slow_poll(A, f'x3s_{tag}', f'x3ok_{tag}', x3_issue, x3_consume, N3, 1, cn(0)))
    A('s_barrier')
    st()
    MF = lambda i: (vRG + 4*i) if i < 8 else (vS + 4*(i-8))
    for i in range(10): A(f'ds_read_b128 v[{MF(i)}:{MF(i)+3}], v{vMemR} offset:{1024*i}')
    for i in range(10):
        A(f's_waitcnt lgkmcnt({9-i})')
        A(M32(v(vAcc, 4), a(8*i, 4), v(MF(i), 4), '0' if i == 0 else v(vAcc, 4)))
        A(M32(v(vAcc2, 4), a(8*i+4, 4), v(MF(i), 4), '0' if i == 0 else v(vAcc2, 4)))
    vm = [M32(v(vVE, 4), v(MF(i), 4), a(80+4*i, 4), '0' if i == 0 else v(vVE, 4)) for i in range(10)]
    emit(A, vm[:3])
    for r in range(4): A(f'v_add_f32_dpp v{vAcc+r}, v{vAcc2+r}, v{vAcc+r} row_ror:8 row_mask:0xf bank_mask:0xf')
    if isA:
        A(f'v_pk_mul_f32 v[{vAcc}:{vAcc+1}], v[{vAcc}:{vAcc+1}], s[{sC2}:{sC2+1}]')
        A(f'v_pk_mul_f32 v[{vAcc+2}:{vAcc+3}], v[{vAcc+2}:{vAcc+3}], s[{sC2}:{sC2+1}]')
    A(f'v_cvt_pk_bf16_f32 v{vT0}, v{vAcc}, v{vAcc+1}')
    A(f'v_cvt_pk_bf16_f32 v{vT1}, v{vAcc+2}, v{vAcc+3}')
    A(f'v_min_u32 v{vT0}, -2, v{vT0}')
    A(f'v_min_u32 v{vT1}, -2, v{vT1}')
    A(f'buffer_store_dwordx2 v[{vT0}:{vT1}], v{vX1st}, {WS}, s{sX1} offen{fl}')
    st(3)
    QR = [vQS, vQS+4, vXACC, vXACC+4]
    qi = lambda k: f'buffer_load_dwordx4 v[{QR[k]}:{QR[k]+3}], v{vQKld}, {WS}, s{sX1} offen sc1'
    qc = lambda k: [f'ds_write_b128 v{vQKw}, v[{QR[k]}:{QR[k]+3}]'] + check_sent(range(QR[k], QR[k]+4), vT0) + ['s_waitcnt lgkmcnt(0)']
    emit(A, weave(vm[3:], [(P['qkA'], qi(0))]))
    if P['x3l'] > 2: A('s_waitcnt vmcnt(2)')
    for k in range(8):
        A(f'ds_read_b128 v[{vKX+4*k}:{vKX+4*k+3}], v{vL16} offset:{L_KX + 1024*k}')
        if k == 3 and P['q4']: A(qi(2))
    A(f'v_cvt_pk_bf16_f32 v{vT2}, v{vVE}, v{vVE+1}')
    A(f'v_cvt_pk_bf16_f32 v{vT3}, v{vVE+2}, v{vVE+3}')
    A(f'v_min_u32 v{vT2}, -2, v{vT2}')
    A(f'v_min_u32 v{vT3}, -2, v{vT3}')
    A(f'buffer_store_dwordx2 v[{vT2}:{vT3}], v{vV1st}, {WS}, s{sX1} offen{fl}')
    if wv == 1:
        A(f's_add_u32 s{sT1}, s{sStep}, 3')
        A(f's_lshr_b32 s{sT1}, s{sT1}, 1')
        A(f's_cmp_lt_i32 s{sQok}, s{sT1}')
        A(f's_cbranch_scc1 qp_{tag}')
        A.label(f'qpok_{tag}')
        tails.append(lambda: qp_wait(A, f'qp_{tag}', f'qpok_{tag}'))
    if P['q4']:
        A(qi(3))
        A.nop(P['q4'])
    if P['qkgap']: A.nop(P['qkgap'])
    A(qi(1))
    for _ in range(P.get('wm1', 0)): A(M32(v(vLS, 4), a(aOne, 4), a(aOne, 4), '0'))
    st()
    A(f's_waitcnt vmcnt({4 if P["q4"] else 2})')
    emit(A, qc(0))
    A(br('qks'))
    A.label(f'qkok_{tag}')
    def qk_slow():
        A.label(f'qks_{tag}')
        if P['q4']:
            for k, n in ((2, 3), (3, 1)):
                if stamps: A(f's_add_u32 s{sCnt+1}, s{sCnt+1}, 1')
                A(f's_waitcnt vmcnt({n})')
                emit(A, qc(k))
                A(f's_cbranch_vccz qkok_{tag}')
        slow_poll(A, f'qkt_{tag}', f'qkok_{tag}', qk_issue, qk_consume, 1, 2, cn(1))
    tails.append(qk_slow)
    vm_ld = f'buffer_load_dwordx4 v[{vVM4}:{vVM4+3}], v{vVMld}, {WS}, s{sX1} offen sc1'
    if P['vpos'] in (0, 2): A(vm_ld)
    A('s_barrier')
    st()
    QF, KF = vRG, vRG + 16
    for t in range(4): A(f'ds_read_b128 v[{QF+4*t}:{QF+4*t+3}], v{vQr} offset:{512*t}')
    for t in range(4): A(f'ds_read_b128 v[{KF+4*t}:{KF+4*t+3}], v{vKr} offset:{512*t}')
    if P['vpos'] == 1: A(vm_ld)
    vm2 = f'buffer_load_dwordx4 v[{vXACC}:{vXACC+3}], v{vVMld}, {WS}, s{sX1} offen sc1'
    def smf(i, t):
        src = (vKX + 4*t, vKX + 16 + 4*t, KF + 4*t)[i]
        return M32(v(vS+4*i, 4), v(src, 4), v(QF+4*t, 4), (v(vBias+4*i, 4) if i < 2 else '0') if t == 0 else v(vS+4*i, 4))
    E = lambda r: f'v_exp_f32 v{vS+r}, v{vS+r}'
    C = lambda d, r: f'v_cvt_pk_bf16_f32 v{d}, v{vS+r}, v{vS+r+1}'
    for t in range(4):
        A(f's_waitcnt lgkmcnt({7-t})')
        A(smf(0, t))
    if P['vpos'] == 2: A(vm2)
    for t in range(4):
        A(f's_waitcnt lgkmcnt({3-t})')
        A(smf(2, t))
        if t >= 2: A(E(t - 2))
    A(smf(1, 0)); A(E(2))
    A(smf(1, 1)); A(E(3))
    A(smf(1, 2)); A(E(8))
    A(smf(1, 3)); A(E(9))
    A(E(10)); A(E(11))
    if P.get('att'): st()
    A(f's_waitcnt vmcnt({1 if P["vpos"] == 2 else 0})')
    if P.get('att'): st()
    emit(A, check_sent(range(vVM4, vVM4+4), vT2))
    A(C(vPL, 8)); A(C(vPL+1, 10))
    A(E(4))
    A(br('pvs'))
    A.label(f'pvok_{tag}')
    def pv_slow():
        A.label(f'pvs_{tag}')
        if P['vpos'] == 2:
            if stamps: A(f's_add_u32 s{sCnt+2}, s{sCnt+2}, 1')
            A('s_waitcnt vmcnt(0)')
            emit(A, check_sent(range(vXACC, vXACC+4), vT2))
            for r in range(4): A(f'v_mov_b32 v{vVM4+r}, v{vXACC+r}')
            A('s_nop 0')
            A(f's_cbranch_vccz pvok_{tag}')
        A.label(f'pvt_{tag}')
        if stamps: A(f's_add_u32 s{sCnt+2}, s{sCnt+2}, 1')
        A(vm_ld)
        A('s_waitcnt vmcnt(0)')
        emit(A, check_sent(range(vVM4, vVM4+4), vT2))
        A(f's_cbranch_vccz pvok_{tag}')
        bounded(A, f'pvt_{tag}', 3)
    tails.append(pv_slow)
    pvm = [M16(v(vAcc, 4), v(vVM4, 2), v(vPL, 2), '0'), M16(v(vAcc2, 4), v(vVM4+2, 2), v(vPL, 2), '0'),
           M16(v(vLS, 4), a(aOneM, 2), v(vPL, 2), '0')]
    A(pvm[0]); A(E(5))
    if wv == 1 and P['tatt']: A(f'buffer_load_dword v{vM2+0 if False else vXA}, v{vR+4}, {WS}, s{sWarm} offen sc1')
    if role == 'D' and P['tlb']: A(f'buffer_load_dword v{vXA}, v{vR+6}, {WS}, s{sXw} offen sc1')
    A(pvm[1]); A(E(6))
    if P['pt'] & 1: A(f'buffer_load_dword v{vXNr}, v{vSR}, {WS}, s{sX2} offen sc1')
    A(pvm[2]); A(E(7))
    if recv and P['pt'] & 2: A(f'buffer_load_dword v{vXNr}, v{vKXr}, {WS}, s{sX2} offen sc1')
    A(C(vP, 0)); A(C(vP+1, 2)); A(C(vP+2, 4)); A(C(vP+3, 6))
    A('s_nop 1')
    if P.get('att'): st()
    D = vPS
    NTL = 3 if isA else 2
    def pv_fin():
        A(M32(v(vAcc, 4), v(vVX, 4), v(vP, 4), v(vAcc, 4)))
        A(M32(v(vAcc2, 4), v(vVX+4, 4), v(vP, 4), v(vAcc2, 4)))
        A(M32(v(vLS, 4), a(aOne, 4), v(vP, 4), v(vLS, 4)))
        A.nop(P['pvnop'])
        A(f'v_cvt_pk_bf16_f32 v{vOFR}, v{vAcc}, v{vAcc+1}')
        A(f'v_cvt_pk_bf16_f32 v{vOFR+1}, v{vAcc+2}, v{vAcc+3}')
        A(f'v_cvt_pk_bf16_f32 v{vOFR+2}, v{vAcc2}, v{vAcc2+1}')
        A(f'v_cvt_pk_bf16_f32 v{vOFR+3}, v{vAcc2+2}, v{vAcc2+3}')
        A(f'ds_write_b128 v{vOw}, v[{vOFR}:{vOFR+3}]')
        A(f'v_rcp_f32 v{vRinv}, v{vLS}')
        for k in range(NTL): A(M32(v(D+4*k, 4), v(vWO+16*k+4*wv, 4), v(vOFR, 4), '0'))
    pv_fin()
    A(f'v_subrev_u32 v{vT0}, {f2u(2.0**-60):#x}, v{vLS}')
    A(f'v_cmp_le_u32 vcc, s{sLrng}, v{vT0}')
    A(f'v_mov_b32 v{vRinv1}, v{vRinv}')
    A(f's_cmp_eq_u32 s{sStep}, {NSEG-1}')
    A('s_waitcnt lgkmcnt(0)')
    A(br('smx'))
    A.label(f'smok_{tag}')
    def sm_slow():
        A.label(f'smx_{tag}')
        if stamps: A(f's_add_u32 s{sCnt+4}, s{sCnt+4}, 1')
        for i in range(3):
            for t in range(4): A(smf(i, t))
        A.nop(8)
        A(f'v_max3_f32 v{vM}, v{vS}, v{vS+1}, v{vS+2}')
        for r in range(3, 11, 2): A(f'v_max3_f32 v{vM}, v{vM}, v{vS+r}, v{vS+r+1}')
        A(f'v_max_f32 v{vM}, v{vM}, v{vS+11}')
        for sw in ('16', '32'):
            A(f'v_mov_b32 v{vT0}, v{vM}')
            A.nop(2)
            A(f'v_permlane{sw}_swap_b32 v{vT0}, v{vM}')
            A.nop(1)
            A(f'v_max_f32 v{vM}, v{vM}, v{vT0}')
        for r in range(12): A(f'v_sub_f32 v{vS+r}, v{vS+r}, v{vM}')
        for r in range(12): A(E(r))
        A.nop(1)
        A(C(vP, 0)); A(C(vP+1, 2)); A(C(vP+2, 4)); A(C(vP+3, 6)); A(C(vPL, 8)); A(C(vPL+1, 10))
        A.nop(2)
        emit(A, pvm)
        A.nop(6)
        pv_fin()
        A.nop(1)
        A(f'v_mov_b32 v{vRinv1}, v{vRinv}')
        A(f's_cmp_eq_u32 s{sStep}, {NSEG-1}')
        A('s_waitcnt lgkmcnt(0)')
        A(f's_branch smok_{tag}')
    tails.append(sm_slow)
    A(f's_cbranch_scc1 last_{tag}')
    A('s_barrier')
    st()
    OF4 = vRG
    TS = [t for t in range(4) if t != wv]
    for t in TS: A(f'ds_read_b128 v[{OF4+4*t}:{OF4+4*t+3}], v{vL16} offset:{L_O + 1024*t}')
    R = vS
    RI = f'v[{vRinv}:{vRinv1}]'
    def scale_cvt(k):
        return [f'v_pk_mul_f32 v[{D+4*k}:{D+4*k+1}], v[{D+4*k}:{D+4*k+1}], {RI}',
                f'v_pk_mul_f32 v[{D+4*k+2}:{D+4*k+3}], v[{D+4*k+2}:{D+4*k+3}], {RI}',
                f'v_cvt_pk_bf16_f32 v{D+4*k}, v{D+4*k}, v{D+4*k+1}',
                f'v_cvt_pk_bf16_f32 v{D+4*k+1}, v{D+4*k+2}, v{D+4*k+3}']
    mind = lambda d, s_, ctl: f'v_min_u32_dpp v{d}, v{s_}, v{vM2} ' + ctl.replace(' bank', ' row_mask:0xf bank')
    export = []
    for r in (0, 2):
        export.append(f'v_pk_mul_f32 v[{vAcc+r}:{vAcc+r+1}], v[{vAcc+r}:{vAcc+r+1}], {RI}')
        export.append(f'v_pk_mul_f32 v[{vAcc2+r}:{vAcc2+r+1}], v[{vAcc2+r}:{vAcc2+r+1}], {RI}')
    export += [f'v_cvt_pk_bf16_f32 v{vOFR}, v{vAcc}, v{vAcc+1}', f'v_cvt_pk_bf16_f32 v{vOFR+1}, v{vAcc+2}, v{vAcc+3}',
               f'v_cvt_pk_bf16_f32 v{vOFR+2}, v{vAcc2}, v{vAcc2+1}', f'v_cvt_pk_bf16_f32 v{vOFR+3}, v{vAcc2+2}, v{vAcc2+3}',
               f'buffer_store_dwordx4 v[{vOFR}:{vOFR+3}], v{vOFst}, {WS}, s{sOF} offen sc1',
               f's_add_u32 s{sOF}, s{sOF}, {2*128*1024}']
    emit(A, export[:6])
    op = []
    for n, k in enumerate([2, 0, 1] if isA else [0, 1]):
        for i, t in enumerate(TS):
            if n == 0: op.append(f's_waitcnt lgkmcnt({2-i})')
            op.append(M32(v(D+4*k, 4), v(vWO+16*k+4*t, 4), v(OF4+4*t, 4), v(D+4*k, 4)))
    ident = 'quad_perm:[0,1,2,3] bank_mask:0x3'
    if isA:
        single = scale_cvt(2) + ['s_nop 0', mind(R, D+8, 'row_shr:8 bank_mask:0xc'), mind(R+1, D+9, 'row_shr:8 bank_mask:0xc'),
                                 mind(R+2, D+8, 'row_shr:7 bank_mask:0xc'), mind(R+3, D+9, 'row_shr:7 bank_mask:0xc')]
        emit(A, weave(op, export[6:8] + [(6, x) for x in single], per=3))
    else:
        emit(A, weave(op, export[6:8]))
    emit(A, scale_cvt(0))
    A.nop(2)
    A(mind(R, D, ident)); A(mind(R+1, D+1, ident))
    emit(A, scale_cvt(1))
    A.nop(1)
    A(mind(R+2, D+4, ident)); A(mind(R+3, D+5, ident))
    A(f'buffer_store_dwordx4 v[{R}:{R+3}], v{vSR}, {WS}, s{sX2} offen sc1')
    A(f'buffer_store_dwordx4 v[{R}:{R+3}], v{vX2st}, {WS}, s{sX2L} offen{fl}')
    st()
    pre = kv_list() if not P.get('nokv') else []
    late = list(export[8:])
    if role == 'D':
        A(f's_cmp_eq_u32 s{sStep}, s{sZn}')
        A(f's_cbranch_scc1 z1_{tag}')
        A.label(f'z1ok_{tag}')
        def z1():
            A.label(f'z1_{tag}')
            A(f'v_lshrrev_b32 v{vT2}, 1, v{vL16}')
            A(f'buffer_load_dwordx2 v[{vT0}:{vT1}], v{vT2}, {WS}, s{sZo} offen sc1')
            A('s_waitcnt vmcnt(0)')
            emit(A, check_sent([vT0, vT1], vT0))
            A(f's_cbranch_vccz z2_{tag}')
            bounded(A, f'z1_{tag}', 8)
            A.label(f'z2_{tag}')
            A(f's_add_u32 s{sZo}, s{sZo}, 512')
            A(f's_cmp_eq_u32 s{sZn}, 2')
            A(f's_cselect_b32 s{sZn}, 7, 23')
            A(f's_branch z1ok_{tag}')
        tails.append(z1)
        late += reset_list(fl)
        late += [f's_add_u32 s{sT0}, s{sStep}, 5', f's_min_u32 s{sT0}, s{sT0}, 63', f'v_readlane_b32 s{sXw}, v{vX2tab}, s{sT0}',
                 f's_xor_b32 s{sXw}, s{sXw}, 8192']
        late += [f's_lshl_b32 s{sT0}, s{sStep}, 7', f's_add_u32 s{sT0}, s{sT0}, {WS_PROG - 256}',
                 f'buffer_store_dword v{vM2}, v{vR+5}, {WS}, s{sT0} offen sc1']
    if wv == 1:
        touch = [f'buffer_load_dword v{vM}, v{vR+4}, {WS}, s{sWarm} offen sc1', f's_add_u32 s{sWarm}, s{sWarm}, {XSEG}']
        if P.get('notouch') or P['tatt']: touch = touch[1:]
        dl = []
        n = P['tdel']
        while n > 0: dl.append(f's_nop {min(n,16)-1}'); n -= 16
        pre = (touch + qx_list() + pre) if P['tfirst'] else (qx_list() + pre + dl + touch)
    if recv:
        emit(A, pre)
        A(f's_sleep {P["pollS"] - (P["pollE"] if isA else 0)}')
        emit(A, x2_issue())
        emit(A, late)
        st()
        if P.get('diag'):
            A(f's_waitcnt vmcnt({nvm(late) + 4*NU + 4})'); st()
            A(f's_waitcnt vmcnt({nvm(late) + 4*NU})'); st()
        A(f's_waitcnt vmcnt({nvm(late)})')
        emit(A, x2_consume())
        A(br('x2s'))
        A.label(f'x2ok_{tag}')
        def x2_slow():
            A.label(f'x2s_{tag}')
            if stamps: A(f's_add_u32 s{sCnt+3}, s{sCnt+3}, 1')
            emit(A, x2_issue())
            A('s_waitcnt vmcnt(0)')
            emit(A, x2_consume())
            A(f's_cbranch_vccz x2ok_{tag}')
            bounded(A, f'x2s_{tag}', 4)
        tails.append(x2_slow)
        st()
        for r in range(4): A(f'v_add_f32_dpp v{vAcc2+r}, v{vAcc+r}, v{vAcc+r} row_ror:8 row_mask:0xf bank_mask:0xf')
        A(f'v_cvt_pk_bf16_f32 v{vT0}, v{vAcc2}, v{vAcc2+1}')
        A(f'v_cvt_pk_bf16_f32 v{vT1}, v{vAcc2+2}, v{vAcc2+3}')
        A(f'v_min_u32 v{vT0}, -2, v{vT0}')
        A(f'v_min_u32 v{vT1}, -2, v{vT1}')
        A(f'buffer_store_dwordx2 v[{vT0}:{vT1}], v{vR+8}, {WS}, s{sX3w} offen{fl}')
    else:
        emit(A, pre)
        if P['lateS']: A(f's_sleep {P["lateS"]}')
        emit(A, late)
        st(); st()
    sl = slot_list(1)
    if not recv: emit(A, sl)
    if P['nob4'] == 0: A('s_barrier')
    elif not recv: A.nop(P['nob4'] - (60 if role == 'D' else 0))
    st.flush()
    if recv: emit(A, sl[:5])
    A.nop(P['x3d'] if not recv else max(0, P['x3d'] - 8))
    emit(A, x3_issue(0))
    if recv: emit(A, sl[5:])
    A(f's_add_u32 s{sStep}, s{sStep}, 1')
    A('s_sleep 1')
    emit(A, x3_issue(1))
    for _ in range(P.get('wm3', 0)): A(M32(v(vVE, 4), a(aOne, 4), a(aOne, 4), '0'))
    A(f's_branch loop_{tag}')
    A.label(f'last_{tag}')
    emit(A, export)
    if role == 'D':
        A(f's_mov_b32 s{sT0}, {WS_PROG + 61*128}')
        A(f'buffer_store_dword v{vM2}, v{vR+5}, {WS}, s{sT0} offen sc1')
    A('s_waitcnt vmcnt(0)')
    A('s_barrier')
    if role == 'D':
        A(f's_lshl_b32 s{sT0}, s{sG}, 5')
        A(f's_add_u32 s{sT0}, s{sT0}, s{sJ}')
        A(f's_lshl_b32 s{sT0}, s{sT0}, 2')
        A(f's_add_u32 s{sT0}, s{sT0}, {WS_FLAG}')
        A(f'v_cmp_eq_u32 vcc, 0, v{vL16}')
        A(f'v_mov_b32 v{vT0}, {OOB:#x}')
        A('s_nop 1')
        A(f'v_cndmask_b32 v{vT0}, v{vT0}, 0, vcc')
        A(f'buffer_store_dword v{vM2}, v{vT0}, {WS}, s{sT0} offen sc1')
    if stamps:
        A('s_memrealtime s[98:99]')
        A('s_waitcnt lgkmcnt(0)')
        A(f'v_writelane_b32 v{vT3}, s{sST}, 0')
        for k, r in enumerate((94, 96, 98, 76, 78, 80, 82, 84, 86)): A(f'v_writelane_b32 v{vT3}, s{r}, {1+k}')
        A(f's_add_u32 s{sT0}, s{sDB}, {63*64}')
        A(f'buffer_store_dword v{vT3}, v{vDbg}, {WS}, s{sT0} offen')
    A('s_endpgm')
    for t in tails: t()

DEFAULT_P = dict(coop=0, ns0=0, bdel=0, vpos=0, pollE=2, al=0, x3l=0, lateS=0, pt=0, lin=0, cpf=1, pollS=5, q4=0, x3d=0, nob4=0, tlb=1, tatt=1, tdel=0, tfirst=0, pollA=80, qkA=5, qkgap=0, x3A=4, x3B=8, x3gap=16, pvnop=6)

def gen_chain(A, stamps, P):
    wt = f's[{sWT}:{sWT+3}]'
    npst = [0]
    def pst():
        if stamps == 1:
            A(f's_memrealtime s[{76+2*npst[0]}:{77+2*npst[0]}]'); A('s_waitcnt lgkmcnt(0)'); npst[0] += 1
    if stamps: A('s_memrealtime s[94:95]')
    if P['cpf']: code_prefetch(A, 250, 8)
    A('s_load_dwordx4 s[16:19], s[0:1], 16')
    A('s_load_dwordx4 s[20:23], s[0:1], 32')
    A('s_load_dwordx4 s[24:27], s[0:1], 96')
    A('s_load_dwordx2 s[72:73], s[0:1], 8')
    F = 232
    X = VX(A, vRG, F, 3)
    A(f'v_lshrrev_b32 v{F+3}, 6, v0')
    A(f'v_and_b32 v{F}, 63, v0')
    A(f'v_readfirstlane_b32 s{sW}, v{F+3}')
    A(f'v_bfe_u32 v{F+1}, v0, 4, 2')
    A(f'v_and_b32 v{F+2}, 15, v0')
    A(f's_and_b32 s{sG}, s2, 3')
    A(f's_lshr_b32 s{sJ}, s2, 3')
    A(f's_lshr_b32 s{sH}, s{sJ}, 2')
    A(f's_lshl_b32 s3, s{sG}, 3')
    A(f's_add_u32 s{sH}, s{sH}, s3')
    A(f's_and_b32 s{sA}, s{sJ}, 3')
    A(f's_and_b32 s{sPar}, s{sA}, 1')
    A(f's_mov_b32 s{sTO}, 0x40000')
    for i, sr in enumerate((sA, sH, sJ, sG)): A(f'v_mov_b32 v{F+4+i}, s{sr}')
    A(f'v_mov_b32 v{F+8}, v0')
    L, g, c, w, a_, h, j, G, tid = [X.reg(F+i) for i in range(9)]
    X.set(vL16, L*16)
    L16 = X.reg(vL16)
    def frag_addr(dst, it):
        X.set(vT1, ((it >> 3)*3277) >> 16)
        ua = X.reg(vT1)
        X.set(vT2, (it >> 3) - ua*20)
        u = X.reg(vT2)
        g1, r1, gh = (lambda: (it >> 2) & 1), (lambda: (it >> 1) & 1), (lambda: it & 1)
        X.set(vT3, (ua*5 + (u >> 2))*512 + ((g1()*2 + gh())*8 + (u & 3)*2 + r1())*16)
        X.set(dst, (ua*5 + 4)*512 + (((u & 2) + gh())*8 + (u & 1)*4 + r1()*2 + g1())*16)
        X.set(dst, X.sel(('lt', u, 16), X.reg(vT3), X.reg(dst)))
    TQ, TA_, TV, TO1, TO2 = [vXACC + i for i in range(5)]
    X.set(TQ, (L >> 2)*8192 + (((L >> 1) & 1) ^ ((L >> 5) & 1))*32 + (L & 1)*16 + h*256 + a_*64)
    A('s_waitcnt lgkmcnt(0)')
    srd(A, sWS, 26, WS_SIZE)
    if P['lin']: lin_touch(A, X, tid, vKX, sWT, (16, 18, 20, 22))
    A(f's_lshl_b32 s3, s{sG}, 5')
    A(f's_add_u32 s3, s3, s{sJ}')
    A(f's_lshl_b32 s60, s{sW}, 7')
    A('s_add_u32 s3, s3, s60')
    A('s_cmp_ge_u32 s3, 22')
    A('s_cbranch_scc1 cal_done')
    A('s_sub_u32 s60, 0, s26')
    A('s_and_b32 s60, s60, 0x1fffff')
    A(f's_lshl_b32 s61, s{sJ}, 21')
    A('s_add_u32 s60, s60, s61')
    A(f's_add_u32 s60, s60, {WS_X2 + 0x1f8000}')
    A('s_add_u32 s70, s26, s60')
    A('s_addc_u32 s71, s27, 0')
    A('s_mov_b32 s62, -1')
    A('s_mov_b32 s63, -1')
    for rep in range(P['calrep']):
        for hf in range(2):
            A('s_mov_b32 s61, 0')
            A('s_memtime s[64:65]')
            A('s_waitcnt lgkmcnt(0)')
            A(f's_atomic_or s61, s[70:71], {hf*8192 + (rep&1)*4096} glc')
            A('s_waitcnt lgkmcnt(0)')
            A('s_memtime s[66:67]')
            A('s_waitcnt lgkmcnt(0)')
            A('s_sub_u32 s64, s66, s64')
            A(f's_min_u32 s{62+hf}, s{62+hf}, s64')
    A('s_cmp_lt_u32 s63, s62')
    A('s_cselect_b32 s61, 1, 0')
    A(f's_lshl_b32 s61, s61, s{sJ}')
    A(f's_atomic_or s61, s[24:25], {DBG_MASK} glc')
    A('s_waitcnt lgkmcnt(0)')
    arrive_s(A, 24, 61, 'cal_done')
    A.label('cal_done')
    if P['coop']:
        for i in range(2):
            X.set(vKX+i, X.sel(('lt', tid + 256*i, 320), (j*20 + ((tid + 256*i) >> 4))*8192 + G*2048 + (tid & 15)*128, OOB))
        for m, ptr in enumerate((16, 18, 20)):
            srd(A, sWT, ptr, DM * 4096 * 2)
            for i in range(2): A(f'buffer_load_dword v{vKX+4+2*m+i}, v{vKX+i}, {wt}, 0 offen')
        srd(A, sWT, 22, 4096 * DM * 2)
        for i in range(2):
            X.set(vT1, X.sel(('lt', tid + 256*i, 320), (G*32 + j)*40960 + (tid + 256*i)*128, OOB))
            A(f'buffer_load_dword v{vKX+10+i}, v{vT1}, {wt}, 0 offen')
    for m, ptr in enumerate((16, 18, 20)):
        srd(A, sWT, ptr, DM * 4096 * 2)
        A(f's_lshl_b32 s63, s{sW}, 10')
        A(f's_add_u32 s63, s63, {40960*(m+1)}')
        A(f's_mul_i32 s64, s{sW}, {16*8192}')
        for i in range(10):
            A('s_mov_b32 m0, s63')
            A(f's_add_u32 s63, s63, 4096')
            A(f'buffer_load_dwordx4 v{TQ}, {wt}, s64 offen lds')
            A(f's_add_u32 s64, s64, {64*8192}')
    srd(A, sWT, 22, 4096 * DM * 2)
    A(f's_mul_i32 s64, s{sH}, {128*1280}')
    A(f's_mul_i32 s3, s{sA}, 320')
    A(f's_add_u32 s64, s64, s3')
    A(f's_lshl_b32 s63, s{sW}, 10')
    for i in range(10):
        cid = tid + 256*i
        row = (cid*3277) >> 16
        X.set(vT0, row*1280 + (cid - row*20)*16)
        A('s_mov_b32 m0, s63')
        A(f's_add_u32 s63, s63, 4096')
        A(f'buffer_load_dwordx4 v{vT0}, {wt}, s64 offen lds')
    for q in range(4): X.set(vSent4+q, -1)
    S4 = f'v[{vSent4}:{vSent4+3}]'
    srd(A, sWT, 72, NM*DM*2)
    idn = lambda: j*20 + tid
    X.set(vT2, X.sel(('lt', tid, 20), (idn() & 7)*1280 + (idn() >> 3)*16, OOB))
    A(f'buffer_load_dwordx4 v[{vS}:{vS+3}], v{vT2}, {wt}, 0 offen')
    per = -(-(WS_FILL_END - WS_FILL_BEG) // (128 * 4096))
    X.set(vT1, (G*32 + j)*(per*4096) + tid*16 + WS_FILL_BEG)
    A(f's_mov_b32 s{sWS+2}, {WS_FILL_END:#x}')
    for r in range(per):
        A(f'buffer_store_dwordx4 {S4}, v{vT1}, {WS}, 0 offen sc1')
        A(f'v_add_u32 v{vT1}, 4096, v{vT1}')
    A(f's_mov_b32 s{sWS+2}, {WS_SIZE:#x}')
    A('s_sub_u32 s60, 0, s26')
    A('s_and_b32 s60, s60, 0x1fffff')
    A(f's_add_u32 s60, s60, {WS_X2}')
    X.set(vT1, X.sel(('lt', G*32 + j, 120), (G*32 + j)*16384 + tid*16, OOB))
    for r in range(4):
        A(f'buffer_store_dwordx4 {S4}, v{vT1}, {WS}, s60 offen sc1')
        A('s_add_u32 s60, s60, 4096')
    X.set(vS+4, X.sel(('lt', tid, 20), idn()*16 + G*X3_G + WS_X3, OOB))
    X.set(vM2, -2)
    clt8 = ('lt', c, 8); glt2 = ('lt', g, 2); wlt2 = ('lt', w, 2); w0 = ('eq', w, 0)
    X.set(vT0, 0x3f803f80)
    for q in range(4): A(f'v_accvgpr_write_b32 a{aOne+q}, v{vT0}')
    X.set(vT0, X.sel(glt2, 0x3f803f80, 0))
    for q in range(2): A(f'v_accvgpr_write_b32 a{aOneM+q}, v{vT0}')
    slot = lambda: (g*8 + (c & 7))*16
    X.set(vX3ld, X.sel(wlt2, w*3072, w*2048 + 2048) + L16)
    X.set(vMemR, slot() + (c >> 3)*512)
    X.set(vKr, slot() + L_K)
    X.set(vQr, X.sel(clt8, L_Q, L_QX) + slot())
    tq = lambda: (a_ & 2) + (w & 1)
    tt = lambda: a_ & 1
    X.set(vX1st, X.sel(clt8, tq()*1024 + (w >> 1)*512 + slot() + tt()*8, OOB))
    X.set(vV1st, X.sel(('eq', g >> 1, w >> 1), a_*1024 + L16 + (w & 1)*8 + 4096, OOB))
    X.set(vVMld, w*1024 + L16 + 4096)
    X.set(vQKld, w*1024 + L16)
    X.set(vOw, w*1024 + L16 + L_O)
    X.set(vQKw, X.sel(glt2, L_Q, L_K - 512) + w*512 + L16)
    X.set(vT0, (a_*20 + w*4 + (c >> 1))*4096 + ((c & 1)*4 + g)*16)
    X.set(vT1, (a_*20 + 16 + w*2 + ((c >> 2) & 1))*4096 + (((c >> 1) & 1)*4 + g)*16)
    X.set(vT1, X.sel(('eq', (c & 1) + (w & 2), 0), X.reg(vT1), OOB))
    X.set(vX2st, X.sel(clt8, X.reg(vT0), X.reg(vT1)) + h*128)
    xs = X.reg(vX2st)
    X.set(vSR, X.sel(('lt', xs, OOB), (xs >> 13)*16384 + (xs & 8191), OOB))
    X.set(vOFst, X.sel(clt8, OOB, ((a_ >> 1)*128 + h*4 + w)*1024 + tt()*128 + L16 - 128))
    X.set(vT0, X.sel(('lt', j, 16), j*3 + X.sel(wlt2, 2, w & 1), j*2 + 16 + (w & 1)))
    U = X.reg(vT0)
    x2a = lambda Uq, Lq: (Uq*4096 if Lq == 3 else (Uq >> 1)*16384 + (Uq & 1)*4096) + L16 + ((G + (Lq+1)) & 3)*1024
    lo = [lambda: (a_*20 + (L >> 3))*4096 + h*128 + (L & 7)*16,
          lambda: X.sel(('lt', L, 32), X.reg(vR), OOB),
          lambda: a_*2048 + L16,
          lambda: X.sel(('lt', L, 20), j*320 + L16, OOB)]
    for i in range(4):
        X.set(vR+i, X.sel(w0, lo[i](), x2a(U, i)))
    X.set(vR+4, X.sel(('lt', L, 32), a_*4096 + L*128, X.sel(('lt', L, 48), a_*2048 + L*128 + (16384 - 4096), OOB)))
    X.set(vR+5, X.sel(w0, X.sel(('eq', L + j + G, 0), 0, OOB), h*16 + (L & 3)*4 + WS_QP))
    X.set(vR+6, X.sel(('eq', L, 0), 0, OOB))
    if P['pt']: X.set(vKXr, X.sel(('lt', L, 2), ((U + L) >> 1)*16384 + ((U + L) & 1)*4096 + G*1024, OOB))
    X.set(vRinv1, (U + (g >> 1))*8 + (g & 1)*4 + ((c & 7) >> 1))
    frag_addr(vRinv, X.reg(vRinv1))
    X.set(vR+8, X.sel(('eq', (c >> 3) + (g >> 1), 0), X.reg(vRinv) + (c & 1)*8, OOB))
    for q in range(4):
        X.set(vT1, X.sel(('eq', c >> 1, q), X.sel(('eq', c & 1, 0), 0x3f80, 0x3f800000), 0))
        A(f'v_accvgpr_write_b32 a{aSel+q if q < 4 else aSelH+q-4}, v{vT1}')
    X.set(vT1, X.sel(clt8, 63, a_*8 + c - 8))
    for kt in range(2):
        for r in range(4):
            X.set(vBias+4*kt+r, X.sel(('gt', g*4 + (16*kt + r), X.reg(vT1)), f2u(NEG), 0))
    trb = lambda: (g*8 + ((L >> 2) & 3))*64 + ((w & 1) ^ (g & 1))*32 + (L & 3)*8
    X.set(TA_, trb() + (w >> 1)*40960 + 40960)
    X.set(TV, trb() + (w >> 1)*2048 + 122880)
    wob = lambda: (g*4 + ((L >> 2) & 3))*320 + (L & 3)*8
    X.set(TO1, wob() + w*64)
    X.set(TO2, wob() + (w & 1)*32 + 256)
    X.set(vP+1, X.sel(('eq', tid, 0), 0, OOB))
    X.set(vP+2, (L & 31)*4)
    X.set(vDbg, X.sel(('lt', L, 16), L*4, OOB))
    A(f's_mov_b32 s{sOF}, {WS_OF}')
    A(f's_cmp_lt_u32 s{sJ}, 16')
    A(f's_cselect_b32 s{sNH}, 3, 2')
    A(f's_mov_b32 s{sC2}, {f2u(QSCALE):#x}')
    A(f's_mov_b32 s{sC2+1}, {f2u(QSCALE):#x}')
    A(f's_mul_i32 s{sX3G}, s{sG}, {X3_G}')
    A(f's_add_u32 s{sX3G}, s{sX3G}, {WS_X3}')
    A(f's_lshl_b32 s{sX1H}, s{sH}, 13')
    A(f's_add_u32 s{sX1H}, s{sX1H}, {WS_X1}')
    A(f's_mul_i32 s{sHoff}, s{sH}, {XH}')
    A(f's_add_u32 s{sHoff}, s{sHoff}, {WS_KX}')
    A(f's_lshl_b32 s75, s{sG}, 5')
    A(f's_add_u32 s75, s75, s{sJ}')
    A(f's_lshl_b32 s{sDB}, s75, 2')
    A(f's_add_u32 s{sDB}, s{sDB}, s{sW}')
    A(f's_lshl_b32 s{sDB}, s{sDB}, 12')
    A(f's_add_u32 s{sDB}, s{sDB}, {WS_DBG:#x}')
    A(f's_lshl_b32 s{sKXm}, s{sW}, 11')
    A(f's_lshl_b32 s{sQXr}, s{sA}, 11')
    A(f's_add_u32 s{sQXr}, s{sQXr}, s{sHoff}')
    A(f's_add_u32 s{sQXr}, s{sQXr}, 16384')
    A(f's_add_u32 s{sXr}, s{sHoff}, s{sKXm}')
    A(f's_mov_b32 s{sLrng}, {f2u(2.0**64) - f2u(2.0**-60):#x}')
    A(f's_add_u32 s{sWarm}, s{sHoff}, {XSEG}')
    pst()
    A('s_waitcnt vmcnt(0)')
    for k in range(4): A(f'v_min_u32 v{vS+k}, -2, v{vS+k}')
    A(f'buffer_store_dwordx4 v[{vS}:{vS+3}], v{vS+4}, {WS}, 0 offen sc1')
    A('s_barrier')
    pst()
    for t in range(20):
        A(f'ds_read_b64_tr_b16 a[{4*t}:{4*t+1}], v{TA_} offset:{2048*t}')
        A(f'ds_read_b64_tr_b16 a[{4*t+2}:{4*t+3}], v{TA_} offset:{2048*t+256}')
        if t % 4 == 3: A('s_waitcnt lgkmcnt(4)')
    for i in range(10):
        A(f'ds_read_b64_tr_b16 a[{80+4*i}:{80+4*i+1}], v{TV} offset:{4096*i}')
        A(f'ds_read_b64_tr_b16 a[{80+4*i+2}:{80+4*i+3}], v{TV} offset:{4096*i+256}')
        if i % 4 == 3: A('s_waitcnt lgkmcnt(4)')
    for k in range(3):
        for t in range(4):
            r, o = (TO1, 32*320*t + 32*k) if k < 2 else (TO2, 32*320*t)
            A(f'ds_read_b64_tr_b16 v[{vWO+16*k+4*t}:{vWO+16*k+4*t+1}], v{r} offset:{o}')
            A(f'ds_read_b64_tr_b16 v[{vWO+16*k+4*t+2}:{vWO+16*k+4*t+3}], v{r} offset:{o+16*320}')
        A('s_waitcnt lgkmcnt(0)')
    pst()
    srd(A, sWT, 24, 256)
    wait_start(A, wt, vT0, 74, sTO, 'start_ok', 'chain_abort10', sleep=4)
    pst()
    NS0 = 0
    x2_table(A, X, L, vX2tab, 74, 26, vT1)
    A(f's_getreg_b32 s74, hwreg(HW_REG_XCC_ID, 0, 4)')
    A(f's_lshl_b32 s3, s75, 2')
    A(f's_add_u32 s3, s3, {WS_TAB}')
    A(f'v_mov_b32 v{vT1}, s74')
    A(f'buffer_store_dword v{vT1}, v{vP+1}, {WS}, s3 offen sc1')
    if NS0 == 0:
        A(f's_cmp_lg_u32 s{sW}, 1')
        A('s_cbranch_scc1 qp0_ok')
        A(f's_mov_b32 s{sT1}, 1')
        qp_wait(A, 'qp0', 'qp0_ok', shifts=(2,))
        A.label('qp0_ok')
        A('s_barrier')
    A(f's_mov_b32 s{sQok}, {NS0 // 2}')
    pst()
    A(f's_mov_b32 s{sZn}, 2')
    A(f's_mov_b32 s{sZo}, {WS_ZFLAG}')
    A(f's_lshl_b32 s3, s{sG}, 7')
    A(f's_add_u32 s3, s3, {WS_TAB}')
    A(f's_mov_b32 s60, {WS_TAB}')
    A(f'v_lshrrev_b32 v{vT2}, 1, v{vL16}')
    A.label('tab_poll')
    A(f'buffer_load_dwordx2 v[{vRinv}:{vRinv1}], v{vT2}, {WS}, s60 offen sc1')
    A(f'buffer_load_dword v{vT0}, v{vP+2}, {WS}, s3 offen sc1')
    A('s_waitcnt vmcnt(0)')
    emit(A, check_sent([vRinv, vRinv1, vT0], vT3))
    A('s_cbranch_vccz tab_ok')
    bounded(A, 'tab_poll', 5)
    A.label('tab_ok')
    pst()
    A(f'v_cmp_ne_u32 s[68:69], v{vT1}, v{vT0}')
    A(f's_mov_b32 s{sStep}, 0')
    emit(A, kv_list())
    A(f's_cmp_lg_u32 s{sW}, 1')
    A('s_cbranch_scc1 no_q0')
    emit(A, qx_list())
    A(f'buffer_load_dword v{vM}, v{vR+4}, {WS}, s{sWarm} offen sc1')
    A(f's_add_u32 s{sWarm}, s{sWarm}, {XSEG}')
    A.label('no_q0')
    emit(A, slot_list(0))
    A(f'v_readlane_b32 s{sXw}, v{vX2tab}, 4')
    A(f's_xor_b32 s{sXw}, s{sXw}, 8192')
    for k in range(5): A(f's_mov_b32 s{sCnt+k}, 0')
    for mode in ('f', 's'):
        if mode == 'f':
            A('s_cmp_lg_u64 s[68:69], 0')
            A('s_cbranch_scc1 disp_s')
        else:
            A.label('disp_s')
        A(f's_cmp_eq_u32 s{sW}, 0')
        A(f's_cbranch_scc1 j_{mode}D')
        A(f's_cmp_eq_u32 s{sW}, 2')
        A(f's_cbranch_scc1 j_{mode}B')
        A(f's_cmp_eq_u32 s{sW}, 3')
        A(f's_cbranch_scc1 j_{mode}C')
        A(f's_cmp_eq_u32 s{sNH}, 3')
        A(f's_cbranch_scc1 j_{mode}E')
        A(f's_branch entry_{mode}A')
        for r in 'BDEC':
            A.label(f'j_{mode}{r}')
            A(f's_branch entry_{mode}{r}')
    for mode, fl in (('f', ''), ('s', ' sc1')):
        for role in 'DABEC':
            gen_loop(A, mode + role, fl, role, stamps, P)
    A.label('chain_abort10')
    A(f's_mov_b32 s{sT0}, 10')
    A.label('chain_abort')
    srd(A, sWT, 24, 256)
    A(f'v_mov_b32 v{vT0}, s{sT0}')
    A(f'v_mov_b32 v{vT1}, 0')
    A(f'buffer_store_dword v{vT0}, v{vT1}, {wt}, 0 offen')
    A('s_endpgm')
```

```python
from k7_common import *
NEG = -1.0e30
L_MEM = 0
L_Q   = 10240
L_K   = L_Q + 2048
L_O   = L_K + 2048
L_QX  = L_O + 8192
L_KX  = L_QX + 2048
L_XN  = 40960
LDS_BYTES = 163840
assert L_KX + 8192 <= L_XN
sWS, sWT, sC2 = 4, 8, 12
sKXm, sQXr = 14, 15
sCnt = 16
sPar, sQok = 28, 29
sW, sG, sJ, sH, sA, sStep, sTO, sXw = 30, 31, 32, 33, 34, 35, 36, 37
sX3r, sX1, sX2, sX3w, sVXr, sX2L, sXr, sT0, sT1, sOF, sNH = 38, 39, 40, 41, 42, 44, 45, 46, 47, 48, 49
sX3G, sX1H, sDB, sXNg, sHoff, sT2 = 50, 51, 52, 53, 54, 55
sST = 56
sWarm, sLrng, sZn, sZo = 88, 89, 90, 91
vDbg, vX2tab = 0, 1
vX3ld, vMemR, vX1st, vV1st, vQKld, vQKw, vQr, vKr, vVMld, vOw = 2, 3, 4, 5, 6, 7, 8, 9, 10, 11
vX2st, vSR, vOFst, vL16, vKXr, vXNr, vXA, vM2, vM = 12, 13, 14, 15, 16, 17, 18, 19, 20
vR = 21
vT0, vT1, vT2, vT3, vRinv, vRinv1 = 30, 31, 32, 33, 34, 35
vPL = 36
vBias = 40
vLS = 48
vVE = 52
vWO = 56
vKX = 104
vVX = 136
vS = 144
vAcc = 156
vAcc2 = 160
vP = 164
vVM4 = 168
vXACC = 172
vMW = 180
vOFR = 184
vSent4 = 188
vRG = 192
vPS = 224
vQS = 248
aSel, aOne, aSelH, aOneM = 240, 244, 248, 252
WS = f's[{sWS}:{sWS+3}]'

class Stamp:
    def __init__(self, A, on): self.A, self.on, self.n = A, on, 0
    def __call__(self, lvl=2):
        if self.on >= lvl:
            self.A(f'{"s_memrealtime" if self.on == 3 else "s_memtime"} s[{sST+2*self.n}:{sST+2*self.n+1}]')
            self.A('s_waitcnt lgkmcnt(0)')
            self.n += 1
    def flush(self):
        if not self.on: return
        A = self.A
        for k in range(self.n): A(f'v_writelane_b32 v{vT3}, s{sST+2*k}, {k}')
        for k in range(5): A(f'v_writelane_b32 v{vT3}, s{sCnt+k}, {10+k}')
        A(f'v_writelane_b32 v{vT3}, s100, 15')
        A(f's_lshl_b32 s{sT0}, s{sStep}, 6')
        A(f's_add_u32 s{sT0}, s{sT0}, s{sDB}')
        A(f'buffer_store_dword v{vT3}, v{vDbg}, {WS}, s{sT0} offen')

def slot_list(add):
    return [
    f's_add_u32 s{sT0}, s{sStep}, {add}',
    f's_and_b32 s{sT1}, s{sT0}, 63',
    f's_and_b32 s{sT0}, s{sT0}, 3',
    f's_mul_i32 s{sX3r}, s{sT0}, {X3_SLOT}',
    f's_add_u32 s{sX3r}, s{sX3r}, s{sX3G}',
    f'v_readlane_b32 s{sX2}, v{vX2tab}, s{sT1}',
    f's_mul_i32 s{sX2L}, s{sT0}, {X2_SLOT}',
    f's_add_u32 s{sX2L}, s{sX2L}, {WS_X2L}',
    f's_mul_i32 s{sX1}, s{sT0}, {X1_SLOT}',
    f's_add_u32 s{sX1}, s{sX1}, s{sX1H}',
    f's_add_u32 s{sT0}, s{sT0}, 1',
    f's_and_b32 s{sT0}, s{sT0}, 3',
    f's_mul_i32 s{sX3w}, s{sT0}, {X3_SLOT}',
    f's_add_u32 s{sX3w}, s{sX3w}, s{sX3G}']
def reset_list(fl):
    S4 = f'v[{vSent4}:{vSent4+3}]'
    o = [f's_add_u32 s{sT2}, s{sStep}, 2', f's_and_b32 s{sT2}, s{sT2}, 3',
         f's_mul_i32 s{sT0}, s{sT2}, {X2_SLOT}', f's_add_u32 s{sT0}, s{sT0}, {WS_X2L}']
    for i in range(3):
        o.append(f'buffer_store_dwordx4 {S4}, v{vR if i < 2 else vR+1}, {WS}, s{sT0} offen{fl}')
        if i < 2: o.append(f's_add_u32 s{sT0}, s{sT0}, 32768')
    o += [f's_mul_i32 s{sT1}, s{sT2}, {X1_SLOT}', f's_add_u32 s{sT1}, s{sT1}, s{sX1H}',
          f'buffer_store_dwordx4 {S4}, v{vR+2}, {WS}, s{sT1} offen{fl}',
          f'buffer_store_dwordx4 {S4}, v{vR+2}, {WS}, s{sT1} offen offset:1024{fl}',
          f's_add_u32 s{sT2}, s{sT2}, 1', f's_and_b32 s{sT2}, s{sT2}, 3',
          f's_mul_i32 s{sT1}, s{sT2}, {X3_SLOT}', f's_add_u32 s{sT1}, s{sT1}, s{sX3G}',
          f'buffer_store_dwordx4 {S4}, v{vR+3}, {WS}, s{sT1} offen{fl}']
    return o
def kv_list():
    return [f's_add_u32 m0, s{sKXm}, {L_KX}', f's_add_u32 s{sVXr}, s{sXr}, 8192',
            f'buffer_load_dwordx4 v{vL16}, {WS}, s{sXr} offen sc1 lds',
            f'buffer_load_dwordx4 v{vL16}, {WS}, s{sXr} offen offset:1024 sc1 lds',
            f'buffer_load_dwordx4 v[{vVX}:{vVX+3}], v{vL16}, {WS}, s{sVXr} offen sc1',
            f'buffer_load_dwordx4 v[{vVX+4}:{vVX+7}], v{vL16}, {WS}, s{sVXr} offen offset:1024 sc1',
            f's_add_u32 s{sXr}, s{sXr}, {XSEG}']
def qx_list():
    return [f's_mov_b32 m0, {L_QX}', 's_nop 0',
            f'buffer_load_dwordx4 v{vL16}, {WS}, s{sQXr} offen sc1 lds',
            f'buffer_load_dwordx4 v{vL16}, {WS}, s{sQXr} offen offset:1024 sc1 lds',
            f's_add_u32 s{sQXr}, s{sQXr}, {XSEG}']
def bounded(A, top, code):
    A(f's_sub_u32 s{sTO}, s{sTO}, 1')
    A(f's_cbranch_scc0 {top}')
    A(f's_mov_b32 s{sT0}, {code}')
    A('s_branch chain_abort')
def slow_poll(A, lab, back, issue, consume, nl, code, cnt):
    A.label(lab)
    for k in (0, 1):
        if cnt is not None: A(f's_add_u32 s{cnt}, s{cnt}, 1')
        emit(A, issue(k))
        if nl is not None: A(f's_waitcnt vmcnt({nl})')
        emit(A, consume(1 - k))
        A(f's_cbranch_vccz {back}')
    bounded(A, lab, code)
def qp_wait(A, lab, back, shifts=(2, 1)):
    A.label(lab)
    A(f'buffer_load_dword v{vT0}, v{vR+5}, {WS}, 0 offen sc1')
    A('s_waitcnt vmcnt(0)')
    for sh in shifts:
        A(f'v_min_i32_dpp v{vT0}, v{vT0}, v{vT0} row_ror:{sh} row_mask:0xf bank_mask:0xf')
        A('s_nop 1')
    A(f'v_readfirstlane_b32 s{sQok}, v{vT0}')
    A(f's_cmp_ge_i32 s{sQok}, s{sT1}')
    A(f's_cbranch_scc1 {back}')
    bounded(A, lab, 9)

def gen_loop(A, tag, fl, role, stamps, P):
    wv = dict(D=0, A=1, E=1, B=2, C=3)[role]
    st = Stamp(A, stamps)
    isA = role in 'ADE'
    recv = role in 'BCE'
    NU = 1
    N3 = 3 if isA else 2
    cn = (lambda k: sCnt + k) if stamps else (lambda k: None)
    br = lambda nm: f's_cbranch_vccnz {nm}_{tag}' if nm not in P.get('nock', '') else 's_nop 2'
    tails = []
    def x3_issue(k):
        r = vPS + 12*k
        return [f'buffer_load_dwordx4 v[{r+4*i}:{r+4*i+3}], v{vX3ld}, {WS}, s{sX3r} offen offset:{1024*i} sc1' for i in range(N3)]
    def x3_consume(k):
        o = []
        for i in range(N3):
            r = vPS + 12*k + 4*i
            o.append(f's_waitcnt vmcnt({2*N3 - 1 - i})')
            o.append(f'ds_write_b128 v{vX3ld}, v[{r}:{r+3}] offset:{1024*i}')
            o += [f'v_max3_u32 v{vT0}, v{r}, v{r+1}, v{r+2}', f'v_max_u32 v{vT0}, v{vT0}, v{r+3}'] if i == 0 else \
                 [f'v_max3_u32 v{vT0}, v{vT0}, v{r}, v{r+1}', f'v_max3_u32 v{vT0}, v{vT0}, v{r+2}, v{r+3}']
        return o + [f'v_cmp_eq_u32 vcc, -1, v{vT0}', 's_waitcnt lgkmcnt(0)']
    def qk_issue(k):
        return [f'buffer_load_dwordx4 v[{vQS+4*k}:{vQS+4*k+3}], v{vQKld}, {WS}, s{sX1} offen sc1']
    def qk_consume(k):
        return [f'ds_write_b128 v{vQKw}, v[{vQS+4*k}:{vQS+4*k+3}]'] + check_sent(range(vQS+4*k, vQS+4*k+4), vT0) + ['s_waitcnt lgkmcnt(0)']
    LO = (3, 0, 1, 2)
    def x2_issue():
        return [f'buffer_load_dwordx4 v[{vKX+4*L}:{vKX+4*L+3}], v{vR+L}, {WS}, s{sX2 if L < 3 else sX2L} offen sc1' for L in LO]
    def x2_consume(young):
        o = []
        for i, L in enumerate(LO):
            r = vKX + 4*L
            o.append(f's_waitcnt vmcnt({young + 3 - i})')
            o.append(M32(v(vAcc, 4), a(aSel, 4), v(r, 4), '0' if i == 0 else v(vAcc, 4)))
            o += [f'v_max3_u32 v{vT0}, v{r}, v{r+1}, v{r+2}', f'v_max_u32 v{vT0}, v{vT0}, v{r+3}'] if i == 0 else \
                 [f'v_max3_u32 v{vT0}, v{vT0}, v{r}, v{r+1}', f'v_max3_u32 v{vT0}, v{vT0}, v{r+2}, v{r+3}']
        return o + [f'v_cmp_eq_u32 vcc, -1, v{vT0}', 's_nop 3']
    top_young = N3

    A.label(f'entry_{tag}')
    emit(A, x3_issue(0))
    A('s_waitcnt vmcnt(0)')
    emit(A, x3_issue(1))
    if stamps:
        A('s_memrealtime s[96:97]')
        A('s_waitcnt lgkmcnt(0)')
    if P['al'] >= 0:
        A(f's_branch loop_{tag}')
        A.raw('.p2align 6')
        for _ in range(P['al']): A('s_nop 0')
    A.label(f'loop_{tag}')
    if stamps: A('s_memrealtime s[100:101]')
    st(1)
    emit(A, x3_consume(0))
    A(br('x3s'))
    A.label(f'x3ok_{tag}')
    def x3_light():
        NSET = P['x3l']
        base = [vPS, vPS+12, vKX, vKX+12]
        iss = lambda k: [f'buffer_load_dwordx4 v[{base[k]+4*i}:{base[k]+4*i+3}], v{vX3ld}, {WS}, s{sX3r} offen offset:{1024*i} sc1' for i in range(N3)]
        A.label(f'x3s_{tag}')
        for k in range(2, NSET): emit(A, iss(k))
        A.label(f'x3t_{tag}')
        for k in range(NSET):
            kk = (k + 1) % NSET
            if stamps: A(f's_add_u32 s{sCnt}, s{sCnt}, 1')
            emit(A, iss(k))
            A(f's_waitcnt vmcnt({N3*(NSET-1)})')
            emit(A, check_sent(range(base[kk], base[kk]+4*N3), vT0))
            A(f's_cbranch_vccz x3w{kk}_{tag}')
        bounded(A, f'x3t_{tag}', 1)
        for k in range(NSET):
            A.label(f'x3w{k}_{tag}')
            for i in range(N3): A(f'ds_write_b128 v{vX3ld}, v[{base[k]+4*i}:{base[k]+4*i+3}] offset:{1024*i}')
            A('s_waitcnt lgkmcnt(0)')
            A(f's_branch x3ok_{tag}')
    if P['x3l']: tails.append(x3_light)
    else: tails.append(lambda: slow_poll(A, f'x3s_{tag}', f'x3ok_{tag}', x3_issue, x3_consume, None, 1, cn(0)))
    A('s_barrier')
    st()
    MF = lambda i: (vRG + 4*i) if i < 8 else (vS + 4*(i-8))
    for i in range(10): A(f'ds_read_b128 v[{MF(i)}:{MF(i)+3}], v{vMemR} offset:{1024*i}')
    for i in range(10):
        A(f's_waitcnt lgkmcnt({9-i})')
        A(M32(v(vAcc, 4), a(8*i, 4), v(MF(i), 4), '0' if i == 0 else v(vAcc, 4)))
        A(M32(v(vAcc2, 4), a(8*i+4, 4), v(MF(i), 4), '0' if i == 0 else v(vAcc2, 4)))
    vm = [M32(v(vVE, 4), v(MF(i), 4), a(80+4*i, 4), '0' if i == 0 else v(vVE, 4)) for i in range(10)]
    NV = P['nv']
    emit(A, vm[:NV])
    if NV < 3: A('s_nop 1')
    for r in range(4): A(f'v_add_f32_dpp v{vAcc+r}, v{vAcc2+r}, v{vAcc+r} row_ror:8 row_mask:0xf bank_mask:0xf')
    if isA:
        A(f'v_pk_mul_f32 v[{vAcc}:{vAcc+1}], v[{vAcc}:{vAcc+1}], s[{sC2}:{sC2+1}]')
        A(f'v_pk_mul_f32 v[{vAcc+2}:{vAcc+3}], v[{vAcc+2}:{vAcc+3}], s[{sC2}:{sC2+1}]')
    A(f'v_cvt_pk_bf16_f32 v{vT0}, v{vAcc}, v{vAcc+1}')
    A(f'v_cvt_pk_bf16_f32 v{vT1}, v{vAcc+2}, v{vAcc+3}')
    A(f'v_min_u32 v{vT0}, -2, v{vT0}')
    A(f'v_min_u32 v{vT1}, -2, v{vT1}')
    A(f'buffer_store_dwordx2 v[{vT0}:{vT1}], v{vX1st}, {WS}, s{sX1} offen{fl}')
    st(3)
    QR = [vQS, vQS+4, vXACC, vXACC+4]
    qi = lambda k: f'buffer_load_dwordx4 v[{QR[k]}:{QR[k]+3}], v{vQKld}, {WS}, s{sX1} offen sc1'
    qc = lambda k: [f'ds_write_b128 v{vQKw}, v[{QR[k]}:{QR[k]+3}]'] + check_sent(range(QR[k], QR[k]+4), vT0) + ['s_waitcnt lgkmcnt(0)']
    late0 = P['qkA'] > 20
    emit(A, weave(vm[NV:], [] if late0 else [(P['qkA'], qi(0))]))
    if P['x3l'] > 2: A('s_waitcnt vmcnt(2)')
    for k in range(8):
        A(f'ds_read_b128 v[{vKX+4*k}:{vKX+4*k+3}], v{vL16} offset:{L_KX + 1024*k}')
        if k == 3 and P['q4']: A(qi(2))
    A(f'v_cvt_pk_bf16_f32 v{vT2}, v{vVE}, v{vVE+1}')
    A(f'v_cvt_pk_bf16_f32 v{vT3}, v{vVE+2}, v{vVE+3}')
    A(f'v_min_u32 v{vT2}, -2, v{vT2}')
    A(f'v_min_u32 v{vT3}, -2, v{vT3}')
    A(f'buffer_store_dwordx2 v[{vT2}:{vT3}], v{vV1st}, {WS}, s{sX1} offen{fl}')
    if wv == 1:
        A(f's_add_u32 s{sT1}, s{sStep}, 3')
        A(f's_lshr_b32 s{sT1}, s{sT1}, 1')
        A(f's_cmp_lt_i32 s{sQok}, s{sT1}')
        A(f's_cbranch_scc1 qp_{tag}')
        A.label(f'qpok_{tag}')
        tails.append(lambda: qp_wait(A, f'qp_{tag}', f'qpok_{tag}'))
    if P['q4']:
        A(qi(3))
        A.nop(P['q4'])
    if late0:
        A.nop(P['qkA'] - 20)
        A(qi(0))
    if P['qkgap']: A.nop(P['qkgap'])
    A(qi(1))
    for _ in range(P.get('wm1', 0)): A(M32(v(vLS, 4), a(aOne, 4), a(aOne, 4), '0'))
    st()
    A(f's_waitcnt vmcnt({4 if P["q4"] else 1 if late0 else 2})')
    emit(A, qc(0))
    A(br('qks'))
    A.label(f'qkok_{tag}')
    def qk_slow():
        A.label(f'qks_{tag}')
        if P['q4']:
            for k, n in ((2, 3), (3, 1)):
                if stamps: A(f's_add_u32 s{sCnt+1}, s{sCnt+1}, 1')
                A(f's_waitcnt vmcnt({n})')
                emit(A, qc(k))
                A(f's_cbranch_vccz qkok_{tag}')
        slow_poll(A, f'qkt_{tag}', f'qkok_{tag}', qk_issue, qk_consume, 1, 2, cn(1))
    tails.append(qk_slow)
    vm_ld = f'buffer_load_dwordx4 v[{vVM4}:{vVM4+3}], v{vVMld}, {WS}, s{sX1} offen sc1'
    if P['vpos'] in (0, 2): A(vm_ld)
    A('s_barrier')
    st()
    QF, KF = vRG, vRG + 16
    for t in range(4): A(f'ds_read_b128 v[{QF+4*t}:{QF+4*t+3}], v{vQr} offset:{512*t}')
    for t in range(4): A(f'ds_read_b128 v[{KF+4*t}:{KF+4*t+3}], v{vKr} offset:{512*t}')
    if P['vpos'] == 1: A(vm_ld)
    vm2 = f'buffer_load_dwordx4 v[{vXACC}:{vXACC+3}], v{vVMld}, {WS}, s{sX1} offen sc1'
    def smf(i, t):
        src = (vKX + 4*t, vKX + 16 + 4*t, KF + 4*t)[i]
        return M32(v(vS+4*i, 4), v(src, 4), v(QF+4*t, 4), (v(vBias+4*i, 4) if i < 2 else '0') if t == 0 else v(vS+4*i, 4))
    E = lambda r: f'v_exp_f32 v{vS+r}, v{vS+r}'
    C = lambda d, r: f'v_cvt_pk_bf16_f32 v{d}, v{vS+r}, v{vS+r+1}'
    for t in range(4):
        A(f's_waitcnt lgkmcnt({7-t})')
        A(smf(0, t))
    if P['vpos'] == 2: A(vm2)
    for t in range(4):
        A(f's_waitcnt lgkmcnt({3-t})')
        A(smf(2, t))
        if t >= 2: A(E(t - 2))
    A(smf(1, 0)); A(E(2))
    A(smf(1, 1)); A(E(3))
    A(smf(1, 2)); A(E(8))
    A(smf(1, 3)); A(E(9))
    A(E(10)); A(E(11))
    if P.get('att'): st()
    A(f's_waitcnt vmcnt({1 if P["vpos"] == 2 else 0})')
    if P.get('att'): st()
    emit(A, check_sent(range(vVM4, vVM4+4), vT2))
    A(C(vPL, 8)); A(C(vPL+1, 10))
    A(E(4))
    A(br('pvs'))
    A.label(f'pvok_{tag}')
    def pv_slow():
        A.label(f'pvs_{tag}')
        if P['vpos'] == 2:
            if stamps: A(f's_add_u32 s{sCnt+2}, s{sCnt+2}, 1')
            A('s_waitcnt vmcnt(0)')
            emit(A, check_sent(range(vXACC, vXACC+4), vT2))
            for r in range(4): A(f'v_mov_b32 v{vVM4+r}, v{vXACC+r}')
            A('s_nop 0')
            A(f's_cbranch_vccz pvok_{tag}')
        A.label(f'pvt_{tag}')
        if stamps: A(f's_add_u32 s{sCnt+2}, s{sCnt+2}, 1')
        A(vm_ld)
        A('s_waitcnt vmcnt(0)')
        emit(A, check_sent(range(vVM4, vVM4+4), vT2))
        A(f's_cbranch_vccz pvok_{tag}')
        bounded(A, f'pvt_{tag}', 3)
    tails.append(pv_slow)
    pvm = [M16(v(vAcc, 4), v(vVM4, 2), v(vPL, 2), '0'), M16(v(vAcc2, 4), v(vVM4+2, 2), v(vPL, 2), '0'),
           M16(v(vLS, 4), a(aOneM, 2), v(vPL, 2), '0')]
    A(pvm[0]); A(E(5))
    if wv == 1 and P['tatt']: A(f'buffer_load_dword v{vM2+0 if False else vXA}, v{vR+4}, {WS}, s{sWarm} offen sc1')
    if role == 'D' and P['tlb']: A(f'buffer_load_dword v{vXA}, v{vR+6}, {WS}, s{sXw} offen sc1')
    A(pvm[1]); A(E(6))
    if P['pt'] & 1: A(f'buffer_load_dword v{vXNr}, v{vSR}, {WS}, s{sX2} offen sc1')
    A(pvm[2]); A(E(7))
    if recv and P['pt'] & 2: A(f'buffer_load_dword v{vXNr}, v{vKXr}, {WS}, s{sX2} offen sc1')
    A(C(vP, 0)); A(C(vP+1, 2)); A(C(vP+2, 4)); A(C(vP+3, 6))
    A('s_nop 1')
    if P.get('att'): st()
    D = vPS
    NTL = 3 if isA else 2
    def pv_fin():
        A(M32(v(vAcc, 4), v(vVX, 4), v(vP, 4), v(vAcc, 4)))
        A(M32(v(vAcc2, 4), v(vVX+4, 4), v(vP, 4), v(vAcc2, 4)))
        A(M32(v(vLS, 4), a(aOne, 4), v(vP, 4), v(vLS, 4)))
        A.nop(P['pvnop'])
        A(f'v_cvt_pk_bf16_f32 v{vOFR}, v{vAcc}, v{vAcc+1}')
        A(f'v_cvt_pk_bf16_f32 v{vOFR+1}, v{vAcc+2}, v{vAcc+3}')
        A(f'v_cvt_pk_bf16_f32 v{vOFR+2}, v{vAcc2}, v{vAcc2+1}')
        A(f'v_cvt_pk_bf16_f32 v{vOFR+3}, v{vAcc2+2}, v{vAcc2+3}')
        A(f'ds_write_b128 v{vOw}, v[{vOFR}:{vOFR+3}]')
        A(f'v_rcp_f32 v{vRinv}, v{vLS}')
        for k in range(NTL): A(M32(v(D+4*k, 4), v(vWO+16*k+4*wv, 4), v(vOFR, 4), '0'))
    pv_fin()
    A(f'v_subrev_u32 v{vT0}, {f2u(2.0**-60):#x}, v{vLS}')
    A(f'v_cmp_le_u32 vcc, s{sLrng}, v{vT0}')
    A(f'v_mov_b32 v{vRinv1}, v{vRinv}')
    A(f's_cmp_eq_u32 s{sStep}, {NSEG-1}')
    A('s_waitcnt lgkmcnt(0)')
    A(br('smx'))
    A.label(f'smok_{tag}')
    def sm_slow():
        A.label(f'smx_{tag}')
        if stamps: A(f's_add_u32 s{sCnt+4}, s{sCnt+4}, 1')
        for i in range(3):
            for t in range(4): A(smf(i, t))
        A.nop(8)
        A(f'v_max3_f32 v{vM}, v{vS}, v{vS+1}, v{vS+2}')
        for r in range(3, 11, 2): A(f'v_max3_f32 v{vM}, v{vM}, v{vS+r}, v{vS+r+1}')
        A(f'v_max_f32 v{vM}, v{vM}, v{vS+11}')
        for sw in ('16', '32'):
            A(f'v_mov_b32 v{vT0}, v{vM}')
            A.nop(2)
            A(f'v_permlane{sw}_swap_b32 v{vT0}, v{vM}')
            A.nop(1)
            A(f'v_max_f32 v{vM}, v{vM}, v{vT0}')
        for r in range(12): A(f'v_sub_f32 v{vS+r}, v{vS+r}, v{vM}')
        for r in range(12): A(E(r))
        A.nop(1)
        A(C(vP, 0)); A(C(vP+1, 2)); A(C(vP+2, 4)); A(C(vP+3, 6)); A(C(vPL, 8)); A(C(vPL+1, 10))
        A.nop(2)
        emit(A, pvm)
        A.nop(6)
        pv_fin()
        A.nop(1)
        A(f'v_mov_b32 v{vRinv1}, v{vRinv}')
        A(f's_cmp_eq_u32 s{sStep}, {NSEG-1}')
        A('s_waitcnt lgkmcnt(0)')
        A(f's_branch smok_{tag}')
    tails.append(sm_slow)
    A(f's_cbranch_scc1 last_{tag}')
    A('s_barrier')
    st()
    OF4 = vRG
    TS = [t for t in range(4) if t != wv]
    for t in TS: A(f'ds_read_b128 v[{OF4+4*t}:{OF4+4*t+3}], v{vL16} offset:{L_O + 1024*t}')
    R = vS
    RI = f'v[{vRinv}:{vRinv1}]'
    def scale_cvt(k):
        return [f'v_pk_mul_f32 v[{D+4*k}:{D+4*k+1}], v[{D+4*k}:{D+4*k+1}], {RI}',
                f'v_pk_mul_f32 v[{D+4*k+2}:{D+4*k+3}], v[{D+4*k+2}:{D+4*k+3}], {RI}',
                f'v_cvt_pk_bf16_f32 v{D+4*k}, v{D+4*k}, v{D+4*k+1}',
                f'v_cvt_pk_bf16_f32 v{D+4*k+1}, v{D+4*k+2}, v{D+4*k+3}']
    mind = lambda d, s_, ctl: f'v_min_u32_dpp v{d}, v{s_}, v{vM2} ' + ctl.replace(' bank', ' row_mask:0xf bank')
    export = []
    for r in (0, 2):
        export.append(f'v_pk_mul_f32 v[{vAcc+r}:{vAcc+r+1}], v[{vAcc+r}:{vAcc+r+1}], {RI}')
        export.append(f'v_pk_mul_f32 v[{vAcc2+r}:{vAcc2+r+1}], v[{vAcc2+r}:{vAcc2+r+1}], {RI}')
    export += [f'v_cvt_pk_bf16_f32 v{vOFR}, v{vAcc}, v{vAcc+1}', f'v_cvt_pk_bf16_f32 v{vOFR+1}, v{vAcc+2}, v{vAcc+3}',
               f'v_cvt_pk_bf16_f32 v{vOFR+2}, v{vAcc2}, v{vAcc2+1}', f'v_cvt_pk_bf16_f32 v{vOFR+3}, v{vAcc2+2}, v{vAcc2+3}',
               f'buffer_store_dwordx4 v[{vOFR}:{vOFR+3}], v{vOFst}, {WS}, s{sOF} offen sc1',
               f's_add_u32 s{sOF}, s{sOF}, {2*128*1024}']
    emit(A, export[:6])
    op = []
    for n, k in enumerate([2, 0, 1] if isA else [0, 1]):
        for i, t in enumerate(TS):
            if n == 0: op.append(f's_waitcnt lgkmcnt({2-i})')
            op.append(M32(v(D+4*k, 4), v(vWO+16*k+4*t, 4), v(OF4+4*t, 4), v(D+4*k, 4)))
    ident = 'quad_perm:[0,1,2,3] bank_mask:0x3'
    if isA:
        single = scale_cvt(2) + ['s_nop 0', mind(R, D+8, 'row_shr:8 bank_mask:0xc'), mind(R+1, D+9, 'row_shr:8 bank_mask:0xc'),
                                 mind(R+2, D+8, 'row_shr:7 bank_mask:0xc'), mind(R+3, D+9, 'row_shr:7 bank_mask:0xc')]
        emit(A, weave(op, export[6:8] + [(6, x) for x in single], per=3))
    else:
        emit(A, weave(op, export[6:8]))
    emit(A, scale_cvt(0))
    A.nop(2)
    A(mind(R, D, ident)); A(mind(R+1, D+1, ident))
    emit(A, scale_cvt(1))
    A.nop(1)
    A(mind(R+2, D+4, ident)); A(mind(R+3, D+5, ident))
    A(f'buffer_store_dwordx4 v[{R}:{R+3}], v{vSR}, {WS}, s{sX2} offen sc1')
    A(f'buffer_store_dwordx4 v[{R}:{R+3}], v{vX2st}, {WS}, s{sX2L} offen{fl}')
    st()
    pre = kv_list() if not P.get('nokv') else []
    late = list(export[8:])
    if role == 'D':
        A(f's_cmp_eq_u32 s{sStep}, s{sZn}')
        A(f's_cbranch_scc1 z1_{tag}')
        A.label(f'z1ok_{tag}')
        def z1():
            A.label(f'z1_{tag}')
            A(f'v_lshrrev_b32 v{vT2}, 1, v{vL16}')
            A(f'buffer_load_dwordx2 v[{vT0}:{vT1}], v{vT2}, {WS}, s{sZo} offen sc1')
            A('s_waitcnt vmcnt(0)')
            emit(A, check_sent([vT0, vT1], vT0))
            A(f's_cbranch_vccz z2_{tag}')
            bounded(A, f'z1_{tag}', 8)
            A.label(f'z2_{tag}')
            A(f's_add_u32 s{sZo}, s{sZo}, 512')
            A(f's_cmp_eq_u32 s{sZn}, 2')
            A(f's_cselect_b32 s{sZn}, 7, 23')
            A(f's_branch z1ok_{tag}')
        tails.append(z1)
        late += reset_list(fl)
        late += [f's_add_u32 s{sT0}, s{sStep}, 5', f's_min_u32 s{sT0}, s{sT0}, 63', f'v_readlane_b32 s{sXw}, v{vX2tab}, s{sT0}',
                 f's_xor_b32 s{sXw}, s{sXw}, 8192']
        late += [f's_lshl_b32 s{sT0}, s{sStep}, 7', f's_add_u32 s{sT0}, s{sT0}, {WS_PROG - 256}',
                 f'buffer_store_dword v{vM2}, v{vR+5}, {WS}, s{sT0} offen sc1']
    if wv == 1:
        touch = [f'buffer_load_dword v{vM}, v{vR+4}, {WS}, s{sWarm} offen sc1', f's_add_u32 s{sWarm}, s{sWarm}, {XSEG}']
        if P.get('notouch') or P['tatt']: touch = touch[1:]
        dl = []
        n = P['tdel']
        while n > 0: dl.append(f's_nop {min(n,16)-1}'); n -= 16
        pre = (touch + qx_list() + pre) if P['tfirst'] else (qx_list() + pre + dl + touch)
    if recv:
        if not isA and P['kvS']: A(f's_sleep {P["kvS"]}')
        emit(A, pre)
        A(f's_sleep {P["pollS"] - (P["pollE"] if isA else P["kvS"])}')
        emit(A, x2_issue())
        emit(A, late)
        st()
        if P.get('diag'):
            A(f's_waitcnt vmcnt({nvm(late) + 4*NU + 4})'); st()
            A(f's_waitcnt vmcnt({nvm(late) + 4*NU})'); st()
        emit(A, x2_consume(nvm(late)))
        A(br('x2s'))
        A.label(f'x2ok_{tag}')
        def x2_slow():
            A.label(f'x2s_{tag}')
            if stamps: A(f's_add_u32 s{sCnt+3}, s{sCnt+3}, 1')
            emit(A, x2_issue())
            emit(A, x2_consume(0))
            A(f's_cbranch_vccz x2ok_{tag}')
            bounded(A, f'x2s_{tag}', 4)
        tails.append(x2_slow)
        st()
        for r in range(4): A(f'v_add_f32_dpp v{vAcc2+r}, v{vAcc+r}, v{vAcc+r} row_ror:8 row_mask:0xf bank_mask:0xf')
        A(f'v_cvt_pk_bf16_f32 v{vT0}, v{vAcc2}, v{vAcc2+1}')
        A(f'v_cvt_pk_bf16_f32 v{vT1}, v{vAcc2+2}, v{vAcc2+3}')
        A(f'v_min_u32 v{vT0}, -2, v{vT0}')
        A(f'v_min_u32 v{vT1}, -2, v{vT1}')
        A(f'buffer_store_dwordx2 v[{vT0}:{vT1}], v{vR+8}, {WS}, s{sX3w} offen{fl}')
    else:
        emit(A, pre)
        if P['lateS']: A(f's_sleep {P["lateS"]}')
        emit(A, late)
        st(); st()
    sl = slot_list(1)
    if not recv: emit(A, sl)
    if P['nob4'] == 0: A('s_barrier')
    elif not recv: A.nop(P['nob4'] - (60 if role == 'D' else 0))
    st.flush()
    if recv: emit(A, sl[:5])
    A.nop(P['x3d'] if not recv else max(0, P['x3d'] - 8))
    emit(A, x3_issue(0))
    if recv: emit(A, sl[5:])
    A(f's_add_u32 s{sStep}, s{sStep}, 1')
    A('s_sleep 1')
    emit(A, x3_issue(1))
    for _ in range(P.get('wm3', 0)): A(M32(v(vVE, 4), a(aOne, 4), a(aOne, 4), '0'))
    A(f's_branch loop_{tag}')
    A.label(f'last_{tag}')
    emit(A, export)
    if role == 'D':
        A(f's_mov_b32 s{sT0}, {WS_PROG + 61*128}')
        A(f'buffer_store_dword v{vM2}, v{vR+5}, {WS}, s{sT0} offen sc1')
    A('s_waitcnt vmcnt(0)')
    A('s_barrier')
    if role == 'D':
        A(f's_lshl_b32 s{sT0}, s{sG}, 5')
        A(f's_add_u32 s{sT0}, s{sT0}, s{sJ}')
        A(f's_lshl_b32 s{sT0}, s{sT0}, 2')
        A(f's_add_u32 s{sT0}, s{sT0}, {WS_FLAG}')
        A(f'v_cmp_eq_u32 vcc, 0, v{vL16}')
        A(f'v_mov_b32 v{vT0}, {OOB:#x}')
        A('s_nop 1')
        A(f'v_cndmask_b32 v{vT0}, v{vT0}, 0, vcc')
        A(f'buffer_store_dword v{vM2}, v{vT0}, {WS}, s{sT0} offen sc1')
    if stamps:
        A('s_memrealtime s[98:99]')
        A('s_waitcnt lgkmcnt(0)')
        A(f'v_writelane_b32 v{vT3}, s{sST}, 0')
        for k, r in enumerate((94, 96, 98, 76, 78, 80, 82, 84, 86)): A(f'v_writelane_b32 v{vT3}, s{r}, {1+k}')
        A(f's_add_u32 s{sT0}, s{sDB}, {63*64}')
        A(f'buffer_store_dword v{vT3}, v{vDbg}, {WS}, s{sT0} offen')
    A('s_endpgm')
    for t in tails: t()

DEFAULT_P = dict(kvS=2, nv=3, coop=0, ns0=0, bdel=0, vpos=0, pollE=2, al=0, x3l=0, lateS=0, pt=0, lin=0, cpf=1, pollS=5, q4=0, x3d=0, nob4=0, tlb=1, tatt=1, tdel=0, tfirst=0, pollA=80, qkA=5, qkgap=0, x3A=4, x3B=8, x3gap=16, pvnop=6)

def gen_chain(A, stamps, P):
    wt = f's[{sWT}:{sWT+3}]'
    npst = [0]
    def pst():
        if stamps == 1:
            A(f's_memrealtime s[{76+2*npst[0]}:{77+2*npst[0]}]'); A('s_waitcnt lgkmcnt(0)'); npst[0] += 1
    if stamps: A('s_memrealtime s[94:95]')
    if P['cpf']: code_prefetch(A, 250, 8)
    A('s_load_dwordx4 s[16:19], s[0:1], 16')
    A('s_load_dwordx4 s[20:23], s[0:1], 32')
    A('s_load_dwordx4 s[24:27], s[0:1], 96')
    A('s_load_dwordx2 s[72:73], s[0:1], 8')
    F = 232
    X = VX(A, vRG, F, 3)
    A(f'v_lshrrev_b32 v{F+3}, 6, v0')
    A(f'v_and_b32 v{F}, 63, v0')
    A(f'v_readfirstlane_b32 s{sW}, v{F+3}')
    A(f'v_bfe_u32 v{F+1}, v0, 4, 2')
    A(f'v_and_b32 v{F+2}, 15, v0')
    A(f's_and_b32 s{sG}, s2, 3')
    A(f's_lshr_b32 s{sJ}, s2, 3')
    A(f's_lshr_b32 s{sH}, s{sJ}, 2')
    A(f's_lshl_b32 s3, s{sG}, 3')
    A(f's_add_u32 s{sH}, s{sH}, s3')
    A(f's_and_b32 s{sA}, s{sJ}, 3')
    A(f's_and_b32 s{sPar}, s{sA}, 1')
    A(f's_mov_b32 s{sTO}, 0x40000')
    for i, sr in enumerate((sA, sH, sJ, sG)): A(f'v_mov_b32 v{F+4+i}, s{sr}')
    A(f'v_mov_b32 v{F+8}, v0')
    L, g, c, w, a_, h, j, G, tid = [X.reg(F+i) for i in range(9)]
    X.set(vL16, L*16)
    L16 = X.reg(vL16)
    def frag_addr(dst, it):
        X.set(vT1, ((it >> 3)*3277) >> 16)
        ua = X.reg(vT1)
        X.set(vT2, (it >> 3) - ua*20)
        u = X.reg(vT2)
        g1, r1, gh = (lambda: (it >> 2) & 1), (lambda: (it >> 1) & 1), (lambda: it & 1)
        X.set(vT3, (ua*5 + (u >> 2))*512 + ((g1()*2 + gh())*8 + (u & 3)*2 + r1())*16)
        X.set(dst, (ua*5 + 4)*512 + (((u & 2) + gh())*8 + (u & 1)*4 + r1()*2 + g1())*16)
        X.set(dst, X.sel(('lt', u, 16), X.reg(vT3), X.reg(dst)))
    TQ, TA_, TV, TO1, TO2 = [vXACC + i for i in range(5)]
    X.set(TQ, (L >> 2)*8192 + (((L >> 1) & 1) ^ ((L >> 5) & 1))*32 + (L & 1)*16 + h*256 + a_*64)
    A('s_waitcnt lgkmcnt(0)')
    srd(A, sWS, 26, WS_SIZE)
    if P['lin']: lin_touch(A, X, tid, vKX, sWT, (16, 18, 20, 22))
    A(f's_lshl_b32 s3, s{sG}, 5')
    A(f's_add_u32 s3, s3, s{sJ}')
    A(f's_lshl_b32 s60, s{sW}, 7')
    A('s_add_u32 s3, s3, s60')
    A('s_cmp_ge_u32 s3, 22')
    A('s_cbranch_scc1 cal_done')
    A('s_sub_u32 s60, 0, s26')
    A('s_and_b32 s60, s60, 0x1fffff')
    A(f's_lshl_b32 s61, s{sJ}, 21')
    A('s_add_u32 s60, s60, s61')
    A(f's_add_u32 s60, s60, {WS_X2 + 0x1f8000}')
    A('s_add_u32 s70, s26, s60')
    A('s_addc_u32 s71, s27, 0')
    A('s_mov_b32 s62, -1')
    A('s_mov_b32 s63, -1')
    for rep in range(P['calrep']):
        for hf in range(2):
            A('s_mov_b32 s61, 0')
            A('s_memtime s[64:65]')
            A('s_waitcnt lgkmcnt(0)')
            A(f's_atomic_or s61, s[70:71], {hf*8192 + (rep&1)*4096} glc')
            A('s_waitcnt lgkmcnt(0)')
            A('s_memtime s[66:67]')
            A('s_waitcnt lgkmcnt(0)')
            A('s_sub_u32 s64, s66, s64')
            A(f's_min_u32 s{62+hf}, s{62+hf}, s64')
    A('s_cmp_lt_u32 s63, s62')
    A('s_cselect_b32 s61, 1, 0')
    A(f's_lshl_b32 s61, s61, s{sJ}')
    A(f's_atomic_or s61, s[24:25], {DBG_MASK} glc')
    A('s_waitcnt lgkmcnt(0)')
    arrive_s(A, 24, 61, 'cal_done')
    A.label('cal_done')
    if P['coop']:
        for i in range(2):
            X.set(vKX+i, X.sel(('lt', tid + 256*i, 320), (j*20 + ((tid + 256*i) >> 4))*8192 + G*2048 + (tid & 15)*128, OOB))
        for m, ptr in enumerate((16, 18, 20)):
            srd(A, sWT, ptr, DM * 4096 * 2)
            for i in range(2): A(f'buffer_load_dword v{vKX+4+2*m+i}, v{vKX+i}, {wt}, 0 offen')
        srd(A, sWT, 22, 4096 * DM * 2)
        for i in range(2):
            X.set(vT1, X.sel(('lt', tid + 256*i, 320), (G*32 + j)*40960 + (tid + 256*i)*128, OOB))
            A(f'buffer_load_dword v{vKX+10+i}, v{vT1}, {wt}, 0 offen')
    for m, ptr in enumerate((16, 18, 20)):
        srd(A, sWT, ptr, DM * 4096 * 2)
        A(f's_lshl_b32 s63, s{sW}, 10')
        A(f's_add_u32 s63, s63, {40960*(m+1)}')
        A(f's_mul_i32 s64, s{sW}, {16*8192}')
        for i in range(10):
            A('s_mov_b32 m0, s63')
            A(f's_add_u32 s63, s63, 4096')
            A(f'buffer_load_dwordx4 v{TQ}, {wt}, s64 offen lds')
            A(f's_add_u32 s64, s64, {64*8192}')
    srd(A, sWT, 22, 4096 * DM * 2)
    A(f's_mul_i32 s64, s{sH}, {128*1280}')
    A(f's_mul_i32 s3, s{sA}, 320')
    A(f's_add_u32 s64, s64, s3')
    A(f's_lshl_b32 s63, s{sW}, 10')
    for i in range(10):
        cid = tid + 256*i
        row = (cid*3277) >> 16
        X.set(vT0, row*1280 + (cid - row*20)*16)
        A('s_mov_b32 m0, s63')
        A(f's_add_u32 s63, s63, 4096')
        A(f'buffer_load_dwordx4 v{vT0}, {wt}, s64 offen lds')
    for q in range(4): X.set(vSent4+q, -1)
    S4 = f'v[{vSent4}:{vSent4+3}]'
    srd(A, sWT, 72, NM*DM*2)
    idn = lambda: j*20 + tid
    X.set(vT2, X.sel(('lt', tid, 20), (idn() & 7)*1280 + (idn() >> 3)*16, OOB))
    A(f'buffer_load_dwordx4 v[{vS}:{vS+3}], v{vT2}, {wt}, 0 offen')
    per = -(-(WS_FILL_END - WS_FILL_BEG) // (128 * 4096))
    X.set(vT1, (G*32 + j)*(per*4096) + tid*16 + WS_FILL_BEG)
    A(f's_mov_b32 s{sWS+2}, {WS_FILL_END:#x}')
    for r in range(per):
        A(f'buffer_store_dwordx4 {S4}, v{vT1}, {WS}, 0 offen sc1')
        A(f'v_add_u32 v{vT1}, 4096, v{vT1}')
    A(f's_mov_b32 s{sWS+2}, {WS_SIZE:#x}')
    A('s_sub_u32 s60, 0, s26')
    A('s_and_b32 s60, s60, 0x1fffff')
    A(f's_add_u32 s60, s60, {WS_X2}')
    X.set(vT1, X.sel(('lt', G*32 + j, 120), (G*32 + j)*16384 + tid*16, OOB))
    for r in range(4):
        A(f'buffer_store_dwordx4 {S4}, v{vT1}, {WS}, s60 offen sc1')
        A('s_add_u32 s60, s60, 4096')
    X.set(vS+4, X.sel(('lt', tid, 20), idn()*16 + G*X3_G + WS_X3, OOB))
    X.set(vM2, -2)
    clt8 = ('lt', c, 8); glt2 = ('lt', g, 2); wlt2 = ('lt', w, 2); w0 = ('eq', w, 0)
    X.set(vT0, 0x3f803f80)
    for q in range(4): A(f'v_accvgpr_write_b32 a{aOne+q}, v{vT0}')
    X.set(vT0, X.sel(glt2, 0x3f803f80, 0))
    for q in range(2): A(f'v_accvgpr_write_b32 a{aOneM+q}, v{vT0}')
    slot = lambda: (g*8 + (c & 7))*16
    X.set(vX3ld, X.sel(wlt2, w*3072, w*2048 + 2048) + L16)
    X.set(vMemR, slot() + (c >> 3)*512)
    X.set(vKr, slot() + L_K)
    X.set(vQr, X.sel(clt8, L_Q, L_QX) + slot())
    tq = lambda: (a_ & 2) + (w & 1)
    tt = lambda: a_ & 1
    X.set(vX1st, X.sel(clt8, tq()*1024 + (w >> 1)*512 + slot() + tt()*8, OOB))
    X.set(vV1st, X.sel(('eq', g >> 1, w >> 1), a_*1024 + L16 + (w & 1)*8 + 4096, OOB))
    X.set(vVMld, w*1024 + L16 + 4096)
    X.set(vQKld, w*1024 + L16)
    X.set(vOw, w*1024 + L16 + L_O)
    X.set(vQKw, X.sel(glt2, L_Q, L_K - 512) + w*512 + L16)
    X.set(vT0, (a_*20 + w*4 + (c >> 1))*4096 + ((c & 1)*4 + g)*16)
    X.set(vT1, (a_*20 + 16 + w*2 + ((c >> 2) & 1))*4096 + (((c >> 1) & 1)*4 + g)*16)
    X.set(vT1, X.sel(('eq', (c & 1) + (w & 2), 0), X.reg(vT1), OOB))
    X.set(vX2st, X.sel(clt8, X.reg(vT0), X.reg(vT1)) + h*128)
    xs = X.reg(vX2st)
    X.set(vSR, X.sel(('lt', xs, OOB), (xs >> 13)*16384 + (xs & 8191), OOB))
    X.set(vOFst, X.sel(clt8, OOB, ((a_ >> 1)*128 + h*4 + w)*1024 + tt()*128 + L16 - 128))
    X.set(vT0, X.sel(('lt', j, 16), j*3 + X.sel(wlt2, 2, w & 1), j*2 + 16 + (w & 1)))
    U = X.reg(vT0)
    x2a = lambda Uq, Lq: (Uq*4096 if Lq == 3 else (Uq >> 1)*16384 + (Uq & 1)*4096) + L16 + ((G + (Lq+1)) & 3)*1024
    lo = [lambda: (a_*20 + (L >> 3))*4096 + h*128 + (L & 7)*16,
          lambda: X.sel(('lt', L, 32), X.reg(vR), OOB),
          lambda: a_*2048 + L16,
          lambda: X.sel(('lt', L, 20), j*320 + L16, OOB)]
    for i in range(4):
        X.set(vR+i, X.sel(w0, lo[i](), x2a(U, i)))
    X.set(vR+4, X.sel(('lt', L, 32), a_*4096 + L*128, X.sel(('lt', L, 48), a_*2048 + L*128 + (16384 - 4096), OOB)))
    X.set(vR+5, X.sel(w0, X.sel(('eq', L + j + G, 0), 0, OOB), h*16 + (L & 3)*4 + WS_QP))
    X.set(vR+6, X.sel(('eq', L, 0), 0, OOB))
    if P['pt']: X.set(vKXr, X.sel(('lt', L, 2), ((U + L) >> 1)*16384 + ((U + L) & 1)*4096 + G*1024, OOB))
    X.set(vRinv1, (U + (g >> 1))*8 + (g & 1)*4 + ((c & 7) >> 1))
    frag_addr(vRinv, X.reg(vRinv1))
    X.set(vR+8, X.sel(('eq', (c >> 3) + (g >> 1), 0), X.reg(vRinv) + (c & 1)*8, OOB))
    for q in range(4):
        X.set(vT1, X.sel(('eq', c >> 1, q), X.sel(('eq', c & 1, 0), 0x3f80, 0x3f800000), 0))
        A(f'v_accvgpr_write_b32 a{aSel+q if q < 4 else aSelH+q-4}, v{vT1}')
    X.set(vT1, X.sel(clt8, 63, a_*8 + c - 8))
    for kt in range(2):
        for r in range(4):
            X.set(vBias+4*kt+r, X.sel(('gt', g*4 + (16*kt + r), X.reg(vT1)), f2u(NEG), 0))
    trb = lambda: (g*8 + ((L >> 2) & 3))*64 + ((w & 1) ^ (g & 1))*32 + (L & 3)*8
    X.set(TA_, trb() + (w >> 1)*40960 + 40960)
    X.set(TV, trb() + (w >> 1)*2048 + 122880)
    wob = lambda: (g*4 + ((L >> 2) & 3))*320 + (L & 3)*8
    X.set(TO1, wob() + w*64)
    X.set(TO2, wob() + (w & 1)*32 + 256)
    X.set(vP+1, X.sel(('eq', tid, 0), 0, OOB))
    X.set(vP+2, (L & 31)*4)
    X.set(vDbg, X.sel(('lt', L, 16), L*4, OOB))
    A(f's_mov_b32 s{sOF}, {WS_OF}')
    A(f's_cmp_lt_u32 s{sJ}, 16')
    A(f's_cselect_b32 s{sNH}, 3, 2')
    A(f's_mov_b32 s{sC2}, {f2u(QSCALE):#x}')
    A(f's_mov_b32 s{sC2+1}, {f2u(QSCALE):#x}')
    A(f's_mul_i32 s{sX3G}, s{sG}, {X3_G}')
    A(f's_add_u32 s{sX3G}, s{sX3G}, {WS_X3}')
    A(f's_lshl_b32 s{sX1H}, s{sH}, 13')
    A(f's_add_u32 s{sX1H}, s{sX1H}, {WS_X1}')
    A(f's_mul_i32 s{sHoff}, s{sH}, {XH}')
    A(f's_add_u32 s{sHoff}, s{sHoff}, {WS_KX}')
    A(f's_lshl_b32 s75, s{sG}, 5')
    A(f's_add_u32 s75, s75, s{sJ}')
    A(f's_lshl_b32 s{sDB}, s75, 2')
    A(f's_add_u32 s{sDB}, s{sDB}, s{sW}')
    A(f's_lshl_b32 s{sDB}, s{sDB}, 12')
    A(f's_add_u32 s{sDB}, s{sDB}, {WS_DBG:#x}')
    A(f's_lshl_b32 s{sKXm}, s{sW}, 11')
    A(f's_lshl_b32 s{sQXr}, s{sA}, 11')
    A(f's_add_u32 s{sQXr}, s{sQXr}, s{sHoff}')
    A(f's_add_u32 s{sQXr}, s{sQXr}, 16384')
    A(f's_add_u32 s{sXr}, s{sHoff}, s{sKXm}')
    A(f's_mov_b32 s{sLrng}, {f2u(2.0**64) - f2u(2.0**-60):#x}')
    A(f's_add_u32 s{sWarm}, s{sHoff}, {XSEG}')
    pst()
    A('s_waitcnt vmcnt(0)')
    for k in range(4): A(f'v_min_u32 v{vS+k}, -2, v{vS+k}')
    A(f'buffer_store_dwordx4 v[{vS}:{vS+3}], v{vS+4}, {WS}, 0 offen sc1')
    A('s_barrier')
    pst()
    for t in range(20):
        A(f'ds_read_b64_tr_b16 a[{4*t}:{4*t+1}], v{TA_} offset:{2048*t}')
        A(f'ds_read_b64_tr_b16 a[{4*t+2}:{4*t+3}], v{TA_} offset:{2048*t+256}')
        if t % 4 == 3: A('s_waitcnt lgkmcnt(4)')
    for i in range(10):
        A(f'ds_read_b64_tr_b16 a[{80+4*i}:{80+4*i+1}], v{TV} offset:{4096*i}')
        A(f'ds_read_b64_tr_b16 a[{80+4*i+2}:{80+4*i+3}], v{TV} offset:{4096*i+256}')
        if i % 4 == 3: A('s_waitcnt lgkmcnt(4)')
    for k in range(3):
        for t in range(4):
            r, o = (TO1, 32*320*t + 32*k) if k < 2 else (TO2, 32*320*t)
            A(f'ds_read_b64_tr_b16 v[{vWO+16*k+4*t}:{vWO+16*k+4*t+1}], v{r} offset:{o}')
            A(f'ds_read_b64_tr_b16 v[{vWO+16*k+4*t+2}:{vWO+16*k+4*t+3}], v{r} offset:{o+16*320}')
        A('s_waitcnt lgkmcnt(0)')
    pst()
    srd(A, sWT, 24, 256)
    wait_start(A, wt, vT0, 74, sTO, 'start_ok', 'chain_abort10', sleep=4)
    pst()
    NS0 = 0
    x2_table(A, X, L, vX2tab, 74, 26, vT1)
    A(f's_getreg_b32 s74, hwreg(HW_REG_XCC_ID, 0, 4)')
    A(f's_lshl_b32 s3, s75, 2')
    A(f's_add_u32 s3, s3, {WS_TAB}')
    A(f'v_mov_b32 v{vT1}, s74')
    A(f'buffer_store_dword v{vT1}, v{vP+1}, {WS}, s3 offen sc1')
    if NS0 == 0:
        A(f's_cmp_lg_u32 s{sW}, 1')
        A('s_cbranch_scc1 qp0_ok')
        A(f's_mov_b32 s{sT1}, 1')
        qp_wait(A, 'qp0', 'qp0_ok', shifts=(2,))
        A.label('qp0_ok')
        A('s_barrier')
    A(f's_mov_b32 s{sQok}, {NS0 // 2}')
    pst()
    A(f's_mov_b32 s{sZn}, 2')
    A(f's_mov_b32 s{sZo}, {WS_ZFLAG}')
    A(f's_lshl_b32 s3, s{sG}, 7')
    A(f's_add_u32 s3, s3, {WS_TAB}')
    A(f's_mov_b32 s60, {WS_TAB}')
    A(f'v_lshrrev_b32 v{vT2}, 1, v{vL16}')
    A.label('tab_poll')
    A(f'buffer_load_dwordx2 v[{vRinv}:{vRinv1}], v{vT2}, {WS}, s60 offen sc1')
    A(f'buffer_load_dword v{vT0}, v{vP+2}, {WS}, s3 offen sc1')
    A('s_waitcnt vmcnt(0)')
    emit(A, check_sent([vRinv, vRinv1, vT0], vT3))
    A('s_cbranch_vccz tab_ok')
    bounded(A, 'tab_poll', 5)
    A.label('tab_ok')
    pst()
    A(f'v_cmp_ne_u32 s[68:69], v{vT1}, v{vT0}')
    A(f's_mov_b32 s{sStep}, 0')
    emit(A, kv_list())
    A(f's_cmp_lg_u32 s{sW}, 1')
    A('s_cbranch_scc1 no_q0')
    emit(A, qx_list())
    A(f'buffer_load_dword v{vM}, v{vR+4}, {WS}, s{sWarm} offen sc1')
    A(f's_add_u32 s{sWarm}, s{sWarm}, {XSEG}')
    A.label('no_q0')
    emit(A, slot_list(0))
    A(f'v_readlane_b32 s{sXw}, v{vX2tab}, 4')
    A(f's_xor_b32 s{sXw}, s{sXw}, 8192')
    for k in range(5): A(f's_mov_b32 s{sCnt+k}, 0')
    for mode in ('f', 's'):
        if mode == 'f':
            A('s_cmp_lg_u64 s[68:69], 0')
            A('s_cbranch_scc1 disp_s')
        else:
            A.label('disp_s')
        A(f's_cmp_eq_u32 s{sW}, 0')
        A(f's_cbranch_scc1 j_{mode}D')
        A(f's_cmp_eq_u32 s{sW}, 2')
        A(f's_cbranch_scc1 j_{mode}B')
        A(f's_cmp_eq_u32 s{sW}, 3')
        A(f's_cbranch_scc1 j_{mode}C')
        A(f's_cmp_eq_u32 s{sNH}, 3')
        A(f's_cbranch_scc1 j_{mode}E')
        A(f's_branch entry_{mode}A')
        for r in 'BDEC':
            A.label(f'j_{mode}{r}')
            A(f's_branch entry_{mode}{r}')
    for mode, fl in (('f', ''), ('s', ' sc1')):
        for role in 'DABEC':
            gen_loop(A, mode + role, fl, role, stamps, P)
    A.label('chain_abort10')
    A(f's_mov_b32 s{sT0}, 10')
    A.label('chain_abort')
    srd(A, sWT, 24, 256)
    A(f'v_mov_b32 v{vT0}, s{sT0}')
    A(f'v_mov_b32 v{vT1}, 0')
    A(f'buffer_store_dword v{vT0}, v{vT1}, {wt}, 0 offen')
    A('s_endpgm')
```

```python
from k7_common import *
NEG = -1.0e30
L_MEM = 0
L_Q   = 10240
L_K   = L_Q + 2048
L_O   = L_K + 2048
L_QX  = L_O + 8192
L_KX  = L_QX + 2048
L_XN  = 40960
LDS_BYTES = 163840
assert L_KX + 8192 <= L_XN
sWS, sWT, sC2 = 4, 8, 12
sKXm, sQXr = 14, 15
sCnt = 16
sPar, sQok = 28, 29
sW, sG, sJ, sH, sA, sStep, sTO, sXw = 30, 31, 32, 33, 34, 35, 36, 37
sX3r, sX1, sX2, sX3w, sVXr, sX2L, sXr, sT0, sT1, sOF, sNH = 38, 39, 40, 41, 42, 44, 45, 46, 47, 48, 49
sX3G, sX1H, sDB, sXNg, sHoff, sT2 = 50, 51, 52, 53, 54, 55
sST = 56
sWarm, sLrng, sZn, sZo = 88, 89, 90, 91
vDbg, vX2tab = 0, 1
vX3ld, vMemR, vX1st, vV1st, vQKld, vQKw, vQr, vKr, vVMld, vOw = 2, 3, 4, 5, 6, 7, 8, 9, 10, 11
vX2st, vSR, vOFst, vL16, vKXr, vXNr, vXA, vM2, vM = 12, 13, 14, 15, 16, 17, 18, 19, 20
vR = 21
vT0, vT1, vT2, vT3, vRinv, vRinv1 = 30, 31, 32, 33, 34, 35
vPL = 36
vBias = 40
vLS = 48
vVE = 52
vWO = 56
vKX = 104
vVX = 136
vS = 144
vAcc = 156
vAcc2 = 160
vP = 164
vVM4 = 168
vXACC = 172
vMW = 180
vOFR = 184
vSent4 = 188
vRG = 192
vPS = 224
vQS = 248
aSel, aOne, aSelH, aOneM = 240, 244, 248, 252
WS = f's[{sWS}:{sWS+3}]'

class Stamp:
    def __init__(self, A, on): self.A, self.on, self.n = A, on, 0
    def __call__(self, lvl=2):
        if self.on >= lvl:
            self.A(f'{"s_memrealtime" if self.on == 3 else "s_memtime"} s[{sST+2*self.n}:{sST+2*self.n+1}]')
            self.A('s_waitcnt lgkmcnt(0)')
            self.n += 1
    def flush(self):
        if not self.on: return
        A = self.A
        for k in range(self.n): A(f'v_writelane_b32 v{vT3}, s{sST+2*k}, {k}')
        for k in range(5): A(f'v_writelane_b32 v{vT3}, s{sCnt+k}, {10+k}')
        A(f'v_writelane_b32 v{vT3}, s100, 15')
        A(f's_lshl_b32 s{sT0}, s{sStep}, 6')
        A(f's_add_u32 s{sT0}, s{sT0}, s{sDB}')
        A(f'buffer_store_dword v{vT3}, v{vDbg}, {WS}, s{sT0} offen')

def slot_list(add):
    return [
    f's_add_u32 s{sT0}, s{sStep}, {add}',
    f's_and_b32 s{sT1}, s{sT0}, 63',
    f's_and_b32 s{sT0}, s{sT0}, 3',
    f's_mul_i32 s{sX3r}, s{sT0}, {X3_SLOT}',
    f's_add_u32 s{sX3r}, s{sX3r}, s{sX3G}',
    f'v_readlane_b32 s{sX2}, v{vX2tab}, s{sT1}',
    f's_mul_i32 s{sX2L}, s{sT0}, {X2_SLOT}',
    f's_add_u32 s{sX2L}, s{sX2L}, {WS_X2L}',
    f's_mul_i32 s{sX1}, s{sT0}, {X1_SLOT}',
    f's_add_u32 s{sX1}, s{sX1}, s{sX1H}',
    f's_add_u32 s{sT0}, s{sT0}, 1',
    f's_and_b32 s{sT0}, s{sT0}, 3',
    f's_mul_i32 s{sX3w}, s{sT0}, {X3_SLOT}',
    f's_add_u32 s{sX3w}, s{sX3w}, s{sX3G}']
def reset_list(fl):
    S4 = f'v[{vSent4}:{vSent4+3}]'
    o = [f's_add_u32 s{sT2}, s{sStep}, 2', f's_and_b32 s{sT2}, s{sT2}, 3',
         f's_mul_i32 s{sT0}, s{sT2}, {X2_SLOT}', f's_add_u32 s{sT0}, s{sT0}, {WS_X2L}']
    for i in range(3):
        o.append(f'buffer_store_dwordx4 {S4}, v{vR if i < 2 else vR+1}, {WS}, s{sT0} offen{fl}')
        if i < 2: o.append(f's_add_u32 s{sT0}, s{sT0}, 32768')
    o += [f's_mul_i32 s{sT1}, s{sT2}, {X1_SLOT}', f's_add_u32 s{sT1}, s{sT1}, s{sX1H}',
          f'buffer_store_dwordx4 {S4}, v{vR+2}, {WS}, s{sT1} offen{fl}',
          f'buffer_store_dwordx4 {S4}, v{vR+2}, {WS}, s{sT1} offen offset:1024{fl}',
          f's_add_u32 s{sT2}, s{sT2}, 1', f's_and_b32 s{sT2}, s{sT2}, 3',
          f's_mul_i32 s{sT1}, s{sT2}, {X3_SLOT}', f's_add_u32 s{sT1}, s{sT1}, s{sX3G}',
          f'buffer_store_dwordx4 {S4}, v{vR+3}, {WS}, s{sT1} offen{fl}']
    return o
def kv_list():
    return [f's_add_u32 m0, s{sKXm}, {L_KX}', f's_add_u32 s{sVXr}, s{sXr}, 8192',
            f'buffer_load_dwordx4 v{vL16}, {WS}, s{sXr} offen sc1 lds',
            f'buffer_load_dwordx4 v{vL16}, {WS}, s{sXr} offen offset:1024 sc1 lds',
            f'buffer_load_dwordx4 v[{vVX}:{vVX+3}], v{vL16}, {WS}, s{sVXr} offen sc1',
            f'buffer_load_dwordx4 v[{vVX+4}:{vVX+7}], v{vL16}, {WS}, s{sVXr} offen offset:1024 sc1',
            f's_add_u32 s{sXr}, s{sXr}, {XSEG}']
def qx_list():
    return [f's_mov_b32 m0, {L_QX}', 's_nop 0',
            f'buffer_load_dwordx4 v{vL16}, {WS}, s{sQXr} offen sc1 lds',
            f'buffer_load_dwordx4 v{vL16}, {WS}, s{sQXr} offen offset:1024 sc1 lds',
            f's_add_u32 s{sQXr}, s{sQXr}, {XSEG}']
def bounded(A, top, code):
    A(f's_sub_u32 s{sTO}, s{sTO}, 1')
    A(f's_cbranch_scc0 {top}')
    A(f's_mov_b32 s{sT0}, {code}')
    A('s_branch chain_abort')
def slow_poll(A, lab, back, issue, consume, nl, code, cnt):
    A.label(lab)
    for k in (0, 1):
        if cnt is not None: A(f's_add_u32 s{cnt}, s{cnt}, 1')
        emit(A, issue(k))
        if nl is not None: A(f's_waitcnt vmcnt({nl})')
        emit(A, consume(1 - k))
        A(f's_cbranch_vccz {back}')
    bounded(A, lab, code)
def qp_wait(A, lab, back, shifts=(2, 1)):
    A.label(lab)
    A(f'buffer_load_dword v{vT0}, v{vR+5}, {WS}, 0 offen sc1')
    A('s_waitcnt vmcnt(0)')
    for sh in shifts:
        A(f'v_min_i32_dpp v{vT0}, v{vT0}, v{vT0} row_ror:{sh} row_mask:0xf bank_mask:0xf')
        A('s_nop 1')
    A(f'v_readfirstlane_b32 s{sQok}, v{vT0}')
    A(f's_cmp_ge_i32 s{sQok}, s{sT1}')
    A(f's_cbranch_scc1 {back}')
    bounded(A, lab, 9)

def gen_loop(A, tag, fl, role, stamps, P):
    wv = dict(D=0, A=1, E=1, B=2, C=3)[role]
    st = Stamp(A, stamps)
    isA = role in 'ADE'
    recv = role in 'BCE'
    NU = 1
    N3 = 3 if isA else 2
    cn = (lambda k: sCnt + k) if stamps else (lambda k: None)
    br = lambda nm: f's_cbranch_vccnz {nm}_{tag}' if nm not in P.get('nock', '') else 's_nop 2'
    tails = []
    def x3_issue(k):
        r = vPS + 12*k
        return [f'buffer_load_dwordx4 v[{r+4*i}:{r+4*i+3}], v{vX3ld}, {WS}, s{sX3r} offen offset:{1024*i} sc1' for i in range(N3)]
    def x3_consume(k):
        o = []
        for i in range(N3):
            r = vPS + 12*k + 4*i
            o.append(f's_waitcnt vmcnt({2*N3 - 1 - i})')
            o.append(f'ds_write_b128 v{vX3ld}, v[{r}:{r+3}] offset:{1024*i}')
            o += [f'v_max3_u32 v{vT0}, v{r}, v{r+1}, v{r+2}', f'v_max_u32 v{vT0}, v{vT0}, v{r+3}'] if i == 0 else \
                 [f'v_max3_u32 v{vT0}, v{vT0}, v{r}, v{r+1}', f'v_max3_u32 v{vT0}, v{vT0}, v{r+2}, v{r+3}']
        return o + [f'v_cmp_eq_u32 vcc, -1, v{vT0}', 's_waitcnt lgkmcnt(0)']
    def qk_issue(k):
        return [f'buffer_load_dwordx4 v[{vQS+4*k}:{vQS+4*k+3}], v{vQKld}, {WS}, s{sX1} offen sc1']
    def qk_consume(k):
        return [f'ds_write_b128 v{vQKw}, v[{vQS+4*k}:{vQS+4*k+3}]'] + check_sent(range(vQS+4*k, vQS+4*k+4), vT0) + ['s_waitcnt lgkmcnt(0)']
    LO = (3, 0, 1, 2)
    def x2_issue():
        return [f'buffer_load_dwordx4 v[{vKX+4*L}:{vKX+4*L+3}], v{vR+L}, {WS}, s{sX2 if L < 3 else sX2L} offen sc1' for L in LO]
    def x2_consume(young):
        o = []
        for i, L in enumerate(LO):
            r = vKX + 4*L
            o.append(f's_waitcnt vmcnt({young + 3 - i})')
            o.append(M32(v(vAcc, 4), a(aSel, 4), v(r, 4), '0' if i == 0 else v(vAcc, 4)))
            o += [f'v_max3_u32 v{vT0}, v{r}, v{r+1}, v{r+2}', f'v_max_u32 v{vT0}, v{vT0}, v{r+3}'] if i == 0 else \
                 [f'v_max3_u32 v{vT0}, v{vT0}, v{r}, v{r+1}', f'v_max3_u32 v{vT0}, v{vT0}, v{r+2}, v{r+3}']
        return o + [f'v_cmp_eq_u32 vcc, -1, v{vT0}', 's_nop 3']
    top_young = N3

    A.label(f'entry_{tag}')
    emit(A, x3_issue(0))
    A('s_waitcnt vmcnt(0)')
    emit(A, x3_issue(1))
    if stamps:
        A('s_memrealtime s[96:97]')
        A('s_waitcnt lgkmcnt(0)')
    if P['al'] >= 0:
        A(f's_branch loop_{tag}')
        A.raw('.p2align 6')
        for _ in range(P['al']): A('s_nop 0')
    A.label(f'loop_{tag}')
    if stamps: A('s_memrealtime s[100:101]')
    st(1)
    emit(A, x3_consume(0))
    A(br('x3s'))
    A.label(f'x3ok_{tag}')
    def x3_light():
        NSET = P['x3l']
        base = [vPS, vPS+12, vKX, vKX+12]
        iss = lambda k: [f'buffer_load_dwordx4 v[{base[k]+4*i}:{base[k]+4*i+3}], v{vX3ld}, {WS}, s{sX3r} offen offset:{1024*i} sc1' for i in range(N3)]
        A.label(f'x3s_{tag}')
        for k in range(2, NSET): emit(A, iss(k))
        A.label(f'x3t_{tag}')
        for k in range(NSET):
            kk = (k + 1) % NSET
            if stamps: A(f's_add_u32 s{sCnt}, s{sCnt}, 1')
            emit(A, iss(k))
            A(f's_waitcnt vmcnt({N3*(NSET-1)})')
            emit(A, check_sent(range(base[kk], base[kk]+4*N3), vT0))
            A(f's_cbranch_vccz x3w{kk}_{tag}')
        bounded(A, f'x3t_{tag}', 1)
        for k in range(NSET):
            A.label(f'x3w{k}_{tag}')
            for i in range(N3): A(f'ds_write_b128 v{vX3ld}, v[{base[k]+4*i}:{base[k]+4*i+3}] offset:{1024*i}')
            A('s_waitcnt lgkmcnt(0)')
            A(f's_branch x3ok_{tag}')
    if P['x3l']: tails.append(x3_light)
    else: tails.append(lambda: slow_poll(A, f'x3s_{tag}', f'x3ok_{tag}', x3_issue, x3_consume, None, 1, cn(0)))
    A('s_barrier')
    st()
    MF = lambda i: (vRG + 4*i) if i < 8 else (vS + 4*(i-8))
    for i in range(10): A(f'ds_read_b128 v[{MF(i)}:{MF(i)+3}], v{vMemR} offset:{1024*i}')
    for i in range(10):
        A(f's_waitcnt lgkmcnt({9-i})')
        A(M32(v(vAcc, 4), a(8*i, 4), v(MF(i), 4), '0' if i == 0 else v(vAcc, 4)))
        A(M32(v(vAcc2, 4), a(8*i+4, 4), v(MF(i), 4), '0' if i == 0 else v(vAcc2, 4)))
    vm = [M32(v(vVE, 4), v(MF(i), 4), a(80+4*i, 4), '0' if i == 0 else v(vVE, 4)) for i in range(10)]
    NV = P['nv']
    emit(A, vm[:NV])
    if NV < 3: A('s_nop 1')
    for r in range(4): A(f'v_add_f32_dpp v{vAcc+r}, v{vAcc2+r}, v{vAcc+r} row_ror:8 row_mask:0xf bank_mask:0xf')
    if isA:
        A(f'v_pk_mul_f32 v[{vAcc}:{vAcc+1}], v[{vAcc}:{vAcc+1}], s[{sC2}:{sC2+1}]')
        A(f'v_pk_mul_f32 v[{vAcc+2}:{vAcc+3}], v[{vAcc+2}:{vAcc+3}], s[{sC2}:{sC2+1}]')
    A(f'v_cvt_pk_bf16_f32 v{vT0}, v{vAcc}, v{vAcc+1}')
    A(f'v_cvt_pk_bf16_f32 v{vT1}, v{vAcc+2}, v{vAcc+3}')
    A(f'v_min_u32 v{vT0}, -2, v{vT0}')
    A(f'v_min_u32 v{vT1}, -2, v{vT1}')
    A(f'buffer_store_dwordx2 v[{vT0}:{vT1}], v{vX1st}, {WS}, s{sX1} offen{fl}')
    st(3)
    QR = [vQS, vQS+4, vXACC, vXACC+4]
    qi = lambda k: f'buffer_load_dwordx4 v[{QR[k]}:{QR[k]+3}], v{vQKld}, {WS}, s{sX1} offen sc1'
    qc = lambda k: [f'ds_write_b128 v{vQKw}, v[{QR[k]}:{QR[k]+3}]'] + check_sent(range(QR[k], QR[k]+4), vT0) + ['s_waitcnt lgkmcnt(0)']
    late0 = P['qkA'] > 20
    emit(A, weave(vm[NV:], [] if late0 else [(P['qkA'], qi(0))]))
    if P['x3l'] > 2: A('s_waitcnt vmcnt(2)')
    for k in range(8):
        A(f'ds_read_b128 v[{vKX+4*k}:{vKX+4*k+3}], v{vL16} offset:{L_KX + 1024*k}')
        if k == 3 and P['q4']: A(qi(2))
    A(f'v_cvt_pk_bf16_f32 v{vT2}, v{vVE}, v{vVE+1}')
    A(f'v_cvt_pk_bf16_f32 v{vT3}, v{vVE+2}, v{vVE+3}')
    A(f'v_min_u32 v{vT2}, -2, v{vT2}')
    A(f'v_min_u32 v{vT3}, -2, v{vT3}')
    A(f'buffer_store_dwordx2 v[{vT2}:{vT3}], v{vV1st}, {WS}, s{sX1} offen{fl}')
    if wv == 1:
        A(f's_add_u32 s{sT1}, s{sStep}, 3')
        A(f's_lshr_b32 s{sT1}, s{sT1}, 1')
        A(f's_cmp_lt_i32 s{sQok}, s{sT1}')
        A(f's_cbranch_scc1 qp_{tag}')
        A.label(f'qpok_{tag}')
        tails.append(lambda: qp_wait(A, f'qp_{tag}', f'qpok_{tag}'))
    if P['q4']:
        A(qi(3))
        A.nop(P['q4'])
    if late0:
        A.nop(P['qkA'] - 20)
        A(qi(0))
    if P['qkgap']: A.nop(P['qkgap'])
    A(qi(1))
    for _ in range(P.get('wm1', 0)): A(M32(v(vLS, 4), a(aOne, 4), a(aOne, 4), '0'))
    st()
    A(f's_waitcnt vmcnt({4 if P["q4"] else 1 if late0 else 2})')
    emit(A, qc(0))
    A(br('qks'))
    A.label(f'qkok_{tag}')
    def qk_slow():
        A.label(f'qks_{tag}')
        if P['q4']:
            for k, n in ((2, 3), (3, 1)):
                if stamps: A(f's_add_u32 s{sCnt+1}, s{sCnt+1}, 1')
                A(f's_waitcnt vmcnt({n})')
                emit(A, qc(k))
                A(f's_cbranch_vccz qkok_{tag}')
        slow_poll(A, f'qkt_{tag}', f'qkok_{tag}', qk_issue, qk_consume, 1, 2, cn(1))
    tails.append(qk_slow)
    vm_ld = f'buffer_load_dwordx4 v[{vVM4}:{vVM4+3}], v{vVMld}, {WS}, s{sX1} offen sc1'
    if P['vpos'] in (0, 2): A(vm_ld)
    A('s_barrier')
    st()
    QF, KF = vRG, vRG + 16
    for t in range(4): A(f'ds_read_b128 v[{QF+4*t}:{QF+4*t+3}], v{vQr} offset:{512*t}')
    for t in range(4): A(f'ds_read_b128 v[{KF+4*t}:{KF+4*t+3}], v{vKr} offset:{512*t}')
    if P['vpos'] == 1: A(vm_ld)
    vm2 = f'buffer_load_dwordx4 v[{vXACC}:{vXACC+3}], v{vVMld}, {WS}, s{sX1} offen sc1'
    def smf(i, t):
        src = (vKX + 4*t, vKX + 16 + 4*t, KF + 4*t)[i]
        return M32(v(vS+4*i, 4), v(src, 4), v(QF+4*t, 4), (v(vBias+4*i, 4) if i < 2 else '0') if t == 0 else v(vS+4*i, 4))
    E = lambda r: f'v_exp_f32 v{vS+r}, v{vS+r}'
    C = lambda d, r: f'v_cvt_pk_bf16_f32 v{d}, v{vS+r}, v{vS+r+1}'
    for t in range(4):
        A(f's_waitcnt lgkmcnt({7-t})')
        A(smf(0, t))
    if P['vpos'] == 2: A(vm2)
    for t in range(4):
        A(f's_waitcnt lgkmcnt({3-t})')
        A(smf(2, t))
        if t >= 2: A(E(t - 2))
    A(smf(1, 0)); A(E(2))
    A(smf(1, 1)); A(E(3))
    A(smf(1, 2)); A(E(8))
    A(smf(1, 3)); A(E(9))
    A(E(10)); A(E(11))
    if P.get('att'): st()
    A(f's_waitcnt vmcnt({1 if P["vpos"] == 2 else 0})')
    if P.get('att'): st()
    emit(A, check_sent(range(vVM4, vVM4+4), vT2))
    A(C(vPL, 8)); A(C(vPL+1, 10))
    A(E(4))
    A(br('pvs'))
    A.label(f'pvok_{tag}')
    def pv_slow():
        A.label(f'pvs_{tag}')
        if P['vpos'] == 2:
            if stamps: A(f's_add_u32 s{sCnt+2}, s{sCnt+2}, 1')
            A('s_waitcnt vmcnt(0)')
            emit(A, check_sent(range(vXACC, vXACC+4), vT2))
            for r in range(4): A(f'v_mov_b32 v{vVM4+r}, v{vXACC+r}')
            A('s_nop 0')
            A(f's_cbranch_vccz pvok_{tag}')
        A.label(f'pvt_{tag}')
        if stamps: A(f's_add_u32 s{sCnt+2}, s{sCnt+2}, 1')
        A(vm_ld)
        A('s_waitcnt vmcnt(0)')
        emit(A, check_sent(range(vVM4, vVM4+4), vT2))
        A(f's_cbranch_vccz pvok_{tag}')
        bounded(A, f'pvt_{tag}', 3)
    tails.append(pv_slow)
    pvm = [M16(v(vAcc, 4), v(vVM4, 2), v(vPL, 2), '0'), M16(v(vAcc2, 4), v(vVM4+2, 2), v(vPL, 2), '0'),
           M16(v(vLS, 4), a(aOneM, 2), v(vPL, 2), '0')]
    A(pvm[0]); A(E(5))
    if wv == 1 and P['tatt']: A(f'buffer_load_dword v{vM2+0 if False else vXA}, v{vR+4}, {WS}, s{sWarm} offen sc1')
    if role == 'D' and P['tlb']: A(f'buffer_load_dword v{vXA}, v{vR+6}, {WS}, s{sXw} offen sc1')
    A(pvm[1]); A(E(6))
    if P['pt'] & 1: A(f'buffer_load_dword v{vXNr}, v{vSR}, {WS}, s{sX2} offen sc1')
    A(pvm[2]); A(E(7))
    if recv and P['pt'] & 2: A(f'buffer_load_dword v{vXNr}, v{vKXr}, {WS}, s{sX2} offen sc1')
    A(C(vP, 0)); A(C(vP+1, 2)); A(C(vP+2, 4)); A(C(vP+3, 6))
    A('s_nop 1')
    if P.get('att'): st()
    D = vPS
    NTL = 3 if isA else 2
    def pv_fin():
        A(M32(v(vAcc, 4), v(vVX, 4), v(vP, 4), v(vAcc, 4)))
        A(M32(v(vAcc2, 4), v(vVX+4, 4), v(vP, 4), v(vAcc2, 4)))
        A(M32(v(vLS, 4), a(aOne, 4), v(vP, 4), v(vLS, 4)))
        A.nop(P['pvnop'])
        A(f'v_cvt_pk_bf16_f32 v{vOFR}, v{vAcc}, v{vAcc+1}')
        A(f'v_cvt_pk_bf16_f32 v{vOFR+1}, v{vAcc+2}, v{vAcc+3}')
        A(f'v_cvt_pk_bf16_f32 v{vOFR+2}, v{vAcc2}, v{vAcc2+1}')
        A(f'v_cvt_pk_bf16_f32 v{vOFR+3}, v{vAcc2+2}, v{vAcc2+3}')
        A(f'ds_write_b128 v{vOw}, v[{vOFR}:{vOFR+3}]')
        A(f'v_rcp_f32 v{vRinv}, v{vLS}')
        for k in range(NTL): A(M32(v(D+4*k, 4), v(vWO+16*k+4*wv, 4), v(vOFR, 4), '0'))
    pv_fin()
    A(f'v_subrev_u32 v{vT0}, {f2u(2.0**-60):#x}, v{vLS}')
    A(f'v_cmp_le_u32 vcc, s{sLrng}, v{vT0}')
    A(f'v_mov_b32 v{vRinv1}, v{vRinv}')
    A(f's_cmp_eq_u32 s{sStep}, {NSEG-1}')
    A('s_waitcnt lgkmcnt(0)')
    A(br('smx'))
    A.label(f'smok_{tag}')
    def sm_slow():
        A.label(f'smx_{tag}')
        if stamps: A(f's_add_u32 s{sCnt+4}, s{sCnt+4}, 1')
        for i in range(3):
            for t in range(4): A(smf(i, t))
        A.nop(8)
        A(f'v_max3_f32 v{vM}, v{vS}, v{vS+1}, v{vS+2}')
        for r in range(3, 11, 2): A(f'v_max3_f32 v{vM}, v{vM}, v{vS+r}, v{vS+r+1}')
        A(f'v_max_f32 v{vM}, v{vM}, v{vS+11}')
        for sw in ('16', '32'):
            A(f'v_mov_b32 v{vT0}, v{vM}')
            A.nop(2)
            A(f'v_permlane{sw}_swap_b32 v{vT0}, v{vM}')
            A.nop(1)
            A(f'v_max_f32 v{vM}, v{vM}, v{vT0}')
        for r in range(12): A(f'v_sub_f32 v{vS+r}, v{vS+r}, v{vM}')
        for r in range(12): A(E(r))
        A.nop(1)
        A(C(vP, 0)); A(C(vP+1, 2)); A(C(vP+2, 4)); A(C(vP+3, 6)); A(C(vPL, 8)); A(C(vPL+1, 10))
        A.nop(2)
        emit(A, pvm)
        A.nop(6)
        pv_fin()
        A.nop(1)
        A(f'v_mov_b32 v{vRinv1}, v{vRinv}')
        A(f's_cmp_eq_u32 s{sStep}, {NSEG-1}')
        A('s_waitcnt lgkmcnt(0)')
        A(f's_branch smok_{tag}')
    tails.append(sm_slow)
    A(f's_cbranch_scc1 last_{tag}')
    A('s_barrier')
    st()
    OF4 = vRG
    TS = [t for t in range(4) if t != wv]
    for t in TS: A(f'ds_read_b128 v[{OF4+4*t}:{OF4+4*t+3}], v{vL16} offset:{L_O + 1024*t}')
    R = vS
    RI = f'v[{vRinv}:{vRinv1}]'
    def scale_cvt(k):
        return [f'v_pk_mul_f32 v[{D+4*k}:{D+4*k+1}], v[{D+4*k}:{D+4*k+1}], {RI}',
                f'v_pk_mul_f32 v[{D+4*k+2}:{D+4*k+3}], v[{D+4*k+2}:{D+4*k+3}], {RI}',
                f'v_cvt_pk_bf16_f32 v{D+4*k}, v{D+4*k}, v{D+4*k+1}',
                f'v_cvt_pk_bf16_f32 v{D+4*k+1}, v{D+4*k+2}, v{D+4*k+3}']
    mind = lambda d, s_, ctl: f'v_min_u32_dpp v{d}, v{s_}, v{vM2} ' + ctl.replace(' bank', ' row_mask:0xf bank')
    export = []
    for r in (0, 2):
        export.append(f'v_pk_mul_f32 v[{vAcc+r}:{vAcc+r+1}], v[{vAcc+r}:{vAcc+r+1}], {RI}')
        export.append(f'v_pk_mul_f32 v[{vAcc2+r}:{vAcc2+r+1}], v[{vAcc2+r}:{vAcc2+r+1}], {RI}')
    export += [f'v_cvt_pk_bf16_f32 v{vOFR}, v{vAcc}, v{vAcc+1}', f'v_cvt_pk_bf16_f32 v{vOFR+1}, v{vAcc+2}, v{vAcc+3}',
               f'v_cvt_pk_bf16_f32 v{vOFR+2}, v{vAcc2}, v{vAcc2+1}', f'v_cvt_pk_bf16_f32 v{vOFR+3}, v{vAcc2+2}, v{vAcc2+3}',
               f'buffer_store_dwordx4 v[{vOFR}:{vOFR+3}], v{vOFst}, {WS}, s{sOF} offen sc1',
               f's_add_u32 s{sOF}, s{sOF}, {2*128*1024}']
    emit(A, export[:6])
    op = []
    for n, k in enumerate([2, 0, 1] if isA else [0, 1]):
        for i, t in enumerate(TS):
            if n == 0: op.append(f's_waitcnt lgkmcnt({2-i})')
            op.append(M32(v(D+4*k, 4), v(vWO+16*k+4*t, 4), v(OF4+4*t, 4), v(D+4*k, 4)))
    ident = 'quad_perm:[0,1,2,3] bank_mask:0x3'
    if isA:
        single = scale_cvt(2) + ['s_nop 0', mind(R, D+8, 'row_shr:8 bank_mask:0xc'), mind(R+1, D+9, 'row_shr:8 bank_mask:0xc'),
                                 mind(R+2, D+8, 'row_shr:7 bank_mask:0xc'), mind(R+3, D+9, 'row_shr:7 bank_mask:0xc')]
        emit(A, weave(op, export[6:8] + [(6, x) for x in single], per=3))
    else:
        emit(A, weave(op, export[6:8]))
    emit(A, scale_cvt(0))
    A.nop(2)
    A(mind(R, D, ident)); A(mind(R+1, D+1, ident))
    emit(A, scale_cvt(1))
    A.nop(1)
    A(mind(R+2, D+4, ident)); A(mind(R+3, D+5, ident))
    A(f'buffer_store_dwordx4 v[{R}:{R+3}], v{vSR}, {WS}, s{sX2} offen sc1')
    A(f'buffer_store_dwordx4 v[{R}:{R+3}], v{vX2st}, {WS}, s{sX2L} offen{fl}')
    st()
    pre = kv_list() if not P.get('nokv') else []
    late = list(export[8:])
    if role == 'D':
        A(f's_cmp_eq_u32 s{sStep}, s{sZn}')
        A(f's_cbranch_scc1 z1_{tag}')
        A.label(f'z1ok_{tag}')
        def z1():
            A.label(f'z1_{tag}')
            A(f'v_lshrrev_b32 v{vT2}, 1, v{vL16}')
            A(f'buffer_load_dwordx2 v[{vT0}:{vT1}], v{vT2}, {WS}, s{sZo} offen sc1')
            A('s_waitcnt vmcnt(0)')
            emit(A, check_sent([vT0, vT1], vT0))
            A(f's_cbranch_vccz z2_{tag}')
            bounded(A, f'z1_{tag}', 8)
            A.label(f'z2_{tag}')
            A(f's_add_u32 s{sZo}, s{sZo}, 512')
            A(f's_cmp_eq_u32 s{sZn}, 2')
            A(f's_cselect_b32 s{sZn}, 7, 23')
            A(f's_branch z1ok_{tag}')
        tails.append(z1)
        late += reset_list(fl)
        late += [f's_add_u32 s{sT0}, s{sStep}, 5', f's_min_u32 s{sT0}, s{sT0}, 63', f'v_readlane_b32 s{sXw}, v{vX2tab}, s{sT0}',
                 f's_xor_b32 s{sXw}, s{sXw}, 8192']
        late += [f's_lshl_b32 s{sT0}, s{sStep}, 7', f's_add_u32 s{sT0}, s{sT0}, {WS_PROG - 256}',
                 f'buffer_store_dword v{vM2}, v{vR+5}, {WS}, s{sT0} offen sc1']
    if wv == 1:
        touch = [f'buffer_load_dword v{vM}, v{vR+4}, {WS}, s{sWarm} offen sc1', f's_add_u32 s{sWarm}, s{sWarm}, {XSEG}']
        if P.get('notouch') or P['tatt']: touch = touch[1:]
        dl = []
        n = P['tdel']
        while n > 0: dl.append(f's_nop {min(n,16)-1}'); n -= 16
        pre = (touch + qx_list() + pre) if P['tfirst'] else (qx_list() + pre + dl + touch)
    if recv:
        if not isA and P['kvS']: A(f's_sleep {P["kvS"]}')
        emit(A, pre)
        A(f's_sleep {P["pollS"] - (P["pollE"] if isA else P["kvS"])}')
        emit(A, x2_issue())
        emit(A, late)
        st()
        if P.get('diag'):
            A(f's_waitcnt vmcnt({nvm(late) + 4*NU + 4})'); st()
            A(f's_waitcnt vmcnt({nvm(late) + 4*NU})'); st()
        emit(A, x2_consume(nvm(late)))
        A(br('x2s'))
        A.label(f'x2ok_{tag}')
        def x2_slow():
            A.label(f'x2s_{tag}')
            if stamps: A(f's_add_u32 s{sCnt+3}, s{sCnt+3}, 1')
            emit(A, x2_issue())
            emit(A, x2_consume(0))
            A(f's_cbranch_vccz x2ok_{tag}')
            bounded(A, f'x2s_{tag}', 4)
        tails.append(x2_slow)
        st()
        for r in range(4): A(f'v_add_f32_dpp v{vAcc2+r}, v{vAcc+r}, v{vAcc+r} row_ror:8 row_mask:0xf bank_mask:0xf')
        A(f'v_cvt_pk_bf16_f32 v{vT0}, v{vAcc2}, v{vAcc2+1}')
        A(f'v_cvt_pk_bf16_f32 v{vT1}, v{vAcc2+2}, v{vAcc2+3}')
        A(f'v_min_u32 v{vT0}, -2, v{vT0}')
        A(f'v_min_u32 v{vT1}, -2, v{vT1}')
        A(f'buffer_store_dwordx2 v[{vT0}:{vT1}], v{vR+8}, {WS}, s{sX3w} offen{fl}')
    else:
        emit(A, pre)
        if P['lateS']: A(f's_sleep {P["lateS"]}')
        emit(A, late)
        st(); st()
    sl = slot_list(1)
    if not recv: emit(A, sl)
    if P['nob4'] == 0: A('s_barrier')
    elif not recv: A.nop(P['nob4'] - (60 if role == 'D' else 0))
    st.flush()
    if recv: emit(A, sl[:5])
    A.nop(P['x3d'] if not recv else max(0, P['x3d'] - 8))
    emit(A, x3_issue(0))
    if recv: emit(A, sl[5:])
    A(f's_add_u32 s{sStep}, s{sStep}, 1')
    A('s_sleep 1')
    emit(A, x3_issue(1))
    for _ in range(P.get('wm3', 0)): A(M32(v(vVE, 4), a(aOne, 4), a(aOne, 4), '0'))
    A(f's_branch loop_{tag}')
    A.label(f'last_{tag}')
    emit(A, export)
    if role == 'D':
        A(f's_mov_b32 s{sT0}, {WS_PROG + 61*128}')
        A(f'buffer_store_dword v{vM2}, v{vR+5}, {WS}, s{sT0} offen sc1')
    A('s_waitcnt vmcnt(0)')
    A('s_barrier')
    if role == 'D':
        A(f's_lshl_b32 s{sT0}, s{sG}, 5')
        A(f's_add_u32 s{sT0}, s{sT0}, s{sJ}')
        A(f's_lshl_b32 s{sT0}, s{sT0}, 2')
        A(f's_add_u32 s{sT0}, s{sT0}, {WS_FLAG}')
        A(f'v_cmp_eq_u32 vcc, 0, v{vL16}')
        A(f'v_mov_b32 v{vT0}, {OOB:#x}')
        A('s_nop 1')
        A(f'v_cndmask_b32 v{vT0}, v{vT0}, 0, vcc')
        A(f'buffer_store_dword v{vM2}, v{vT0}, {WS}, s{sT0} offen sc1')
    if stamps:
        A('s_memrealtime s[98:99]')
        A('s_waitcnt lgkmcnt(0)')
        A(f'v_writelane_b32 v{vT3}, s{sST}, 0')
        for k, r in enumerate((94, 96, 98, 76, 78, 80, 82, 84, 86)): A(f'v_writelane_b32 v{vT3}, s{r}, {1+k}')
        A(f's_add_u32 s{sT0}, s{sDB}, {63*64}')
        A(f'buffer_store_dword v{vT3}, v{vDbg}, {WS}, s{sT0} offen')
        if P.get('dbgout') and role == 'D':
            srd(A, sWT, 24, 64)
            A(f's_add_u32 s{sT0}, s{sJ}, s{sG}')
            A(f's_cmp_eq_u32 s{sT0}, 0')
            A(f's_cselect_b32 s{sT0}, 12, 64')
            A(f'buffer_store_dword v{vT3}, v{vDbg}, s[{sWT}:{sWT+3}], s{sT0} offen')
    A('s_endpgm')
    for t in tails: t()

DEFAULT_P = dict(kvS=2, nv=3, coop=0, ns0=0, bdel=0, vpos=0, pollE=2, al=0, x3l=0, lateS=0, pt=0, lin=0, cpf=1, pollS=5, q4=0, x3d=0, nob4=0, tlb=1, tatt=1, tdel=0, tfirst=0, pollA=80, qkA=5, qkgap=0, x3A=4, x3B=8, x3gap=16, pvnop=6)

def gen_chain(A, stamps, P):
    wt = f's[{sWT}:{sWT+3}]'
    npst = [0]
    def pst():
        if stamps == 1:
            A(f's_memrealtime s[{76+2*npst[0]}:{77+2*npst[0]}]'); A('s_waitcnt lgkmcnt(0)'); npst[0] += 1
    if stamps: A('s_memrealtime s[94:95]')
    if P['cpf']: code_prefetch(A, 250, 8)
    A('s_load_dwordx4 s[16:19], s[0:1], 16')
    A('s_load_dwordx4 s[20:23], s[0:1], 32')
    A('s_load_dwordx4 s[24:27], s[0:1], 96')
    A('s_load_dwordx2 s[72:73], s[0:1], 8')
    F = 232
    X = VX(A, vRG, F, 3)
    A(f'v_lshrrev_b32 v{F+3}, 6, v0')
    A(f'v_and_b32 v{F}, 63, v0')
    A(f'v_readfirstlane_b32 s{sW}, v{F+3}')
    A(f'v_bfe_u32 v{F+1}, v0, 4, 2')
    A(f'v_and_b32 v{F+2}, 15, v0')
    A(f's_and_b32 s{sG}, s2, 3')
    A(f's_lshr_b32 s{sJ}, s2, 3')
    A(f's_lshr_b32 s{sH}, s{sJ}, 2')
    A(f's_lshl_b32 s3, s{sG}, 3')
    A(f's_add_u32 s{sH}, s{sH}, s3')
    A(f's_and_b32 s{sA}, s{sJ}, 3')
    A(f's_and_b32 s{sPar}, s{sA}, 1')
    A(f's_mov_b32 s{sTO}, 0x40000')
    for i, sr in enumerate((sA, sH, sJ, sG)): A(f'v_mov_b32 v{F+4+i}, s{sr}')
    A(f'v_mov_b32 v{F+8}, v0')
    L, g, c, w, a_, h, j, G, tid = [X.reg(F+i) for i in range(9)]
    X.set(vL16, L*16)
    L16 = X.reg(vL16)
    def frag_addr(dst, it):
        X.set(vT1, ((it >> 3)*3277) >> 16)
        ua = X.reg(vT1)
        X.set(vT2, (it >> 3) - ua*20)
        u = X.reg(vT2)
        g1, r1, gh = (lambda: (it >> 2) & 1), (lambda: (it >> 1) & 1), (lambda: it & 1)
        X.set(vT3, (ua*5 + (u >> 2))*512 + ((g1()*2 + gh())*8 + (u & 3)*2 + r1())*16)
        X.set(dst, (ua*5 + 4)*512 + (((u & 2) + gh())*8 + (u & 1)*4 + r1()*2 + g1())*16)
        X.set(dst, X.sel(('lt', u, 16), X.reg(vT3), X.reg(dst)))
    TQ, TA_, TV, TO1, TO2 = [vXACC + i for i in range(5)]
    X.set(TQ, (L >> 2)*8192 + (((L >> 1) & 1) ^ ((L >> 5) & 1))*32 + (L & 1)*16 + h*256 + a_*64)
    A('s_waitcnt lgkmcnt(0)')
    srd(A, sWS, 26, WS_SIZE)
    if P['lin']: lin_touch(A, X, tid, vKX, sWT, (16, 18, 20, 22))
    A(f's_lshl_b32 s3, s{sG}, 5')
    A(f's_add_u32 s3, s3, s{sJ}')
    A(f's_lshl_b32 s60, s{sW}, 7')
    A('s_add_u32 s3, s3, s60')
    A('s_cmp_ge_u32 s3, 22')
    A('s_cbranch_scc1 cal_done')
    A('s_sub_u32 s60, 0, s26')
    A('s_and_b32 s60, s60, 0x1fffff')
    A(f's_lshl_b32 s61, s{sJ}, 21')
    A('s_add_u32 s60, s60, s61')
    A(f's_add_u32 s60, s60, {WS_X2 + 0x1f8000}')
    A('s_add_u32 s70, s26, s60')
    A('s_addc_u32 s71, s27, 0')
    A('s_mov_b32 s62, -1')
    A('s_mov_b32 s63, -1')
    for rep in range(P['calrep']):
        for hf in range(2):
            A('s_mov_b32 s61, 0')
            A('s_memtime s[64:65]')
            A('s_waitcnt lgkmcnt(0)')
            A(f's_atomic_or s61, s[70:71], {hf*8192 + (rep&1)*4096} glc')
            A('s_waitcnt lgkmcnt(0)')
            A('s_memtime s[66:67]')
            A('s_waitcnt lgkmcnt(0)')
            A('s_sub_u32 s64, s66, s64')
            A(f's_min_u32 s{62+hf}, s{62+hf}, s64')
    A('s_cmp_lt_u32 s63, s62')
    A('s_cselect_b32 s61, 1, 0')
    A(f's_lshl_b32 s61, s61, s{sJ}')
    A(f's_atomic_or s61, s[24:25], {DBG_MASK} glc')
    A('s_waitcnt lgkmcnt(0)')
    arrive_s(A, 24, 61, 'cal_done')
    A.label('cal_done')
    if P['coop']:
        for i in range(2):
            X.set(vKX+i, X.sel(('lt', tid + 256*i, 320), (j*20 + ((tid + 256*i) >> 4))*8192 + G*2048 + (tid & 15)*128, OOB))
        for m, ptr in enumerate((16, 18, 20)):
            srd(A, sWT, ptr, DM * 4096 * 2)
            for i in range(2): A(f'buffer_load_dword v{vKX+4+2*m+i}, v{vKX+i}, {wt}, 0 offen')
        srd(A, sWT, 22, 4096 * DM * 2)
        for i in range(2):
            X.set(vT1, X.sel(('lt', tid + 256*i, 320), (G*32 + j)*40960 + (tid + 256*i)*128, OOB))
            A(f'buffer_load_dword v{vKX+10+i}, v{vT1}, {wt}, 0 offen')
    for m, ptr in enumerate((16, 18, 20)):
        srd(A, sWT, ptr, DM * 4096 * 2)
        A(f's_lshl_b32 s63, s{sW}, 10')
        A(f's_add_u32 s63, s63, {40960*(m+1)}')
        A(f's_mul_i32 s64, s{sW}, {16*8192}')
        for i in range(10):
            A('s_mov_b32 m0, s63')
            A(f's_add_u32 s63, s63, 4096')
            A(f'buffer_load_dwordx4 v{TQ}, {wt}, s64 offen lds')
            A(f's_add_u32 s64, s64, {64*8192}')
    srd(A, sWT, 22, 4096 * DM * 2)
    A(f's_mul_i32 s64, s{sH}, {128*1280}')
    A(f's_mul_i32 s3, s{sA}, 320')
    A(f's_add_u32 s64, s64, s3')
    A(f's_lshl_b32 s63, s{sW}, 10')
    for i in range(10):
        cid = tid + 256*i
        row = (cid*3277) >> 16
        X.set(vT0, row*1280 + (cid - row*20)*16)
        A('s_mov_b32 m0, s63')
        A(f's_add_u32 s63, s63, 4096')
        A(f'buffer_load_dwordx4 v{vT0}, {wt}, s64 offen lds')
    for q in range(4): X.set(vSent4+q, -1)
    S4 = f'v[{vSent4}:{vSent4+3}]'
    srd(A, sWT, 72, NM*DM*2)
    idn = lambda: j*20 + tid
    X.set(vT2, X.sel(('lt', tid, 20), (idn() & 7)*1280 + (idn() >> 3)*16, OOB))
    A(f'buffer_load_dwordx4 v[{vS}:{vS+3}], v{vT2}, {wt}, 0 offen')
    per = -(-(WS_FILL_END - WS_FILL_BEG) // (128 * 4096))
    X.set(vT1, (G*32 + j)*(per*4096) + tid*16 + WS_FILL_BEG)
    A(f's_mov_b32 s{sWS+2}, {WS_FILL_END:#x}')
    for r in range(per):
        A(f'buffer_store_dwordx4 {S4}, v{vT1}, {WS}, 0 offen sc1')
        A(f'v_add_u32 v{vT1}, 4096, v{vT1}')
    A(f's_mov_b32 s{sWS+2}, {WS_SIZE:#x}')
    A('s_sub_u32 s60, 0, s26')
    A('s_and_b32 s60, s60, 0x1fffff')
    A(f's_add_u32 s60, s60, {WS_X2}')
    X.set(vT1, X.sel(('lt', G*32 + j, 120), (G*32 + j)*16384 + tid*16, OOB))
    for r in range(4):
        A(f'buffer_store_dwordx4 {S4}, v{vT1}, {WS}, s60 offen sc1')
        A('s_add_u32 s60, s60, 4096')
    X.set(vS+4, X.sel(('lt', tid, 20), idn()*16 + G*X3_G + WS_X3, OOB))
    X.set(vM2, -2)
    clt8 = ('lt', c, 8); glt2 = ('lt', g, 2); wlt2 = ('lt', w, 2); w0 = ('eq', w, 0)
    X.set(vT0, 0x3f803f80)
    for q in range(4): A(f'v_accvgpr_write_b32 a{aOne+q}, v{vT0}')
    X.set(vT0, X.sel(glt2, 0x3f803f80, 0))
    for q in range(2): A(f'v_accvgpr_write_b32 a{aOneM+q}, v{vT0}')
    slot = lambda: (g*8 + (c & 7))*16
    X.set(vX3ld, X.sel(wlt2, w*3072, w*2048 + 2048) + L16)
    X.set(vMemR, slot() + (c >> 3)*512)
    X.set(vKr, slot() + L_K)
    X.set(vQr, X.sel(clt8, L_Q, L_QX) + slot())
    tq = lambda: (a_ & 2) + (w & 1)
    tt = lambda: a_ & 1
    X.set(vX1st, X.sel(clt8, tq()*1024 + (w >> 1)*512 + slot() + tt()*8, OOB))
    X.set(vV1st, X.sel(('eq', g >> 1, w >> 1), a_*1024 + L16 + (w & 1)*8 + 4096, OOB))
    X.set(vVMld, w*1024 + L16 + 4096)
    X.set(vQKld, w*1024 + L16)
    X.set(vOw, w*1024 + L16 + L_O)
    X.set(vQKw, X.sel(glt2, L_Q, L_K - 512) + w*512 + L16)
    X.set(vT0, (a_*20 + w*4 + (c >> 1))*4096 + ((c & 1)*4 + g)*16)
    X.set(vT1, (a_*20 + 16 + w*2 + ((c >> 2) & 1))*4096 + (((c >> 1) & 1)*4 + g)*16)
    X.set(vT1, X.sel(('eq', (c & 1) + (w & 2), 0), X.reg(vT1), OOB))
    X.set(vX2st, X.sel(clt8, X.reg(vT0), X.reg(vT1)) + h*128)
    xs = X.reg(vX2st)
    X.set(vSR, X.sel(('lt', xs, OOB), (xs >> 13)*16384 + (xs & 8191), OOB))
    X.set(vOFst, X.sel(clt8, OOB, ((a_ >> 1)*128 + h*4 + w)*1024 + tt()*128 + L16 - 128))
    X.set(vT0, X.sel(('lt', j, 16), j*3 + X.sel(wlt2, 2, w & 1), j*2 + 16 + (w & 1)))
    U = X.reg(vT0)
    x2a = lambda Uq, Lq: (Uq*4096 if Lq == 3 else (Uq >> 1)*16384 + (Uq & 1)*4096) + L16 + ((G + (Lq+1)) & 3)*1024
    lo = [lambda: (a_*20 + (L >> 3))*4096 + h*128 + (L & 7)*16,
          lambda: X.sel(('lt', L, 32), X.reg(vR), OOB),
          lambda: a_*2048 + L16,
          lambda: X.sel(('lt', L, 20), j*320 + L16, OOB)]
    for i in range(4):
        X.set(vR+i, X.sel(w0, lo[i](), x2a(U, i)))
    X.set(vR+4, X.sel(('lt', L, 32), a_*4096 + L*128, X.sel(('lt', L, 48), a_*2048 + L*128 + (16384 - 4096), OOB)))
    X.set(vR+5, X.sel(w0, X.sel(('eq', L + j + G, 0), 0, OOB), h*16 + (L & 3)*4 + WS_QP))
    X.set(vR+6, X.sel(('eq', L, 0), 0, OOB))
    if P['pt']: X.set(vKXr, X.sel(('lt', L, 2), ((U + L) >> 1)*16384 + ((U + L) & 1)*4096 + G*1024, OOB))
    X.set(vRinv1, (U + (g >> 1))*8 + (g & 1)*4 + ((c & 7) >> 1))
    frag_addr(vRinv, X.reg(vRinv1))
    X.set(vR+8, X.sel(('eq', (c >> 3) + (g >> 1), 0), X.reg(vRinv) + (c & 1)*8, OOB))
    for q in range(4):
        X.set(vT1, X.sel(('eq', c >> 1, q), X.sel(('eq', c & 1, 0), 0x3f80, 0x3f800000), 0))
        A(f'v_accvgpr_write_b32 a{aSel+q if q < 4 else aSelH+q-4}, v{vT1}')
    X.set(vT1, X.sel(clt8, 63, a_*8 + c - 8))
    for kt in range(2):
        for r in range(4):
            X.set(vBias+4*kt+r, X.sel(('gt', g*4 + (16*kt + r), X.reg(vT1)), f2u(NEG), 0))
    trb = lambda: (g*8 + ((L >> 2) & 3))*64 + ((w & 1) ^ (g & 1))*32 + (L & 3)*8
    X.set(TA_, trb() + (w >> 1)*40960 + 40960)
    X.set(TV, trb() + (w >> 1)*2048 + 122880)
    wob = lambda: (g*4 + ((L >> 2) & 3))*320 + (L & 3)*8
    X.set(TO1, wob() + w*64)
    X.set(TO2, wob() + (w & 1)*32 + 256)
    X.set(vP+1, X.sel(('eq', tid, 0), 0, OOB))
    X.set(vP+2, (L & 31)*4)
    X.set(vDbg, X.sel(('lt', L, 16), L*4, OOB))
    A(f's_mov_b32 s{sOF}, {WS_OF}')
    A(f's_cmp_lt_u32 s{sJ}, 16')
    A(f's_cselect_b32 s{sNH}, 3, 2')
    A(f's_mov_b32 s{sC2}, {f2u(QSCALE):#x}')
    A(f's_mov_b32 s{sC2+1}, {f2u(QSCALE):#x}')
    A(f's_mul_i32 s{sX3G}, s{sG}, {X3_G}')
    A(f's_add_u32 s{sX3G}, s{sX3G}, {WS_X3}')
    A(f's_lshl_b32 s{sX1H}, s{sH}, 13')
    A(f's_add_u32 s{sX1H}, s{sX1H}, {WS_X1}')
    A(f's_mul_i32 s{sHoff}, s{sH}, {XH}')
    A(f's_add_u32 s{sHoff}, s{sHoff}, {WS_KX}')
    A(f's_lshl_b32 s75, s{sG}, 5')
    A(f's_add_u32 s75, s75, s{sJ}')
    A(f's_lshl_b32 s{sDB}, s75, 2')
    A(f's_add_u32 s{sDB}, s{sDB}, s{sW}')
    A(f's_lshl_b32 s{sDB}, s{sDB}, 12')
    A(f's_add_u32 s{sDB}, s{sDB}, {WS_DBG:#x}')
    A(f's_lshl_b32 s{sKXm}, s{sW}, 11')
    A(f's_lshl_b32 s{sQXr}, s{sA}, 11')
    A(f's_add_u32 s{sQXr}, s{sQXr}, s{sHoff}')
    A(f's_add_u32 s{sQXr}, s{sQXr}, 16384')
    A(f's_add_u32 s{sXr}, s{sHoff}, s{sKXm}')
    A(f's_mov_b32 s{sLrng}, {f2u(2.0**64) - f2u(2.0**-60):#x}')
    A(f's_add_u32 s{sWarm}, s{sHoff}, {XSEG}')
    pst()
    A('s_waitcnt vmcnt(0)')
    for k in range(4): A(f'v_min_u32 v{vS+k}, -2, v{vS+k}')
    A(f'buffer_store_dwordx4 v[{vS}:{vS+3}], v{vS+4}, {WS}, 0 offen sc1')
    A('s_barrier')
    pst()
    for t in range(20):
        A(f'ds_read_b64_tr_b16 a[{4*t}:{4*t+1}], v{TA_} offset:{2048*t}')
        A(f'ds_read_b64_tr_b16 a[{4*t+2}:{4*t+3}], v{TA_} offset:{2048*t+256}')
        if t % 4 == 3: A('s_waitcnt lgkmcnt(4)')
    for i in range(10):
        A(f'ds_read_b64_tr_b16 a[{80+4*i}:{80+4*i+1}], v{TV} offset:{4096*i}')
        A(f'ds_read_b64_tr_b16 a[{80+4*i+2}:{80+4*i+3}], v{TV} offset:{4096*i+256}')
        if i % 4 == 3: A('s_waitcnt lgkmcnt(4)')
    for k in range(3):
        for t in range(4):
            r, o = (TO1, 32*320*t + 32*k) if k < 2 else (TO2, 32*320*t)
            A(f'ds_read_b64_tr_b16 v[{vWO+16*k+4*t}:{vWO+16*k+4*t+1}], v{r} offset:{o}')
            A(f'ds_read_b64_tr_b16 v[{vWO+16*k+4*t+2}:{vWO+16*k+4*t+3}], v{r} offset:{o+16*320}')
        A('s_waitcnt lgkmcnt(0)')
    pst()
    srd(A, sWT, 24, 256)
    wait_start(A, wt, vT0, 74, sTO, 'start_ok', 'chain_abort10', sleep=4)
    pst()
    NS0 = 0
    x2_table(A, X, L, vX2tab, 74, 26, vT1)
    A(f's_getreg_b32 s74, hwreg(HW_REG_XCC_ID, 0, 4)')
    A(f's_lshl_b32 s3, s75, 2')
    A(f's_add_u32 s3, s3, {WS_TAB}')
    A(f'v_mov_b32 v{vT1}, s74')
    A(f'buffer_store_dword v{vT1}, v{vP+1}, {WS}, s3 offen sc1')
    if NS0 == 0:
        A(f's_cmp_lg_u32 s{sW}, 1')
        A('s_cbranch_scc1 qp0_ok')
        A(f's_mov_b32 s{sT1}, 1')
        qp_wait(A, 'qp0', 'qp0_ok', shifts=(2,))
        A.label('qp0_ok')
        A('s_barrier')
    A(f's_mov_b32 s{sQok}, {NS0 // 2}')
    pst()
    A(f's_mov_b32 s{sZn}, 2')
    A(f's_mov_b32 s{sZo}, {WS_ZFLAG}')
    A(f's_lshl_b32 s3, s{sG}, 7')
    A(f's_add_u32 s3, s3, {WS_TAB}')
    A(f's_mov_b32 s60, {WS_TAB}')
    A(f'v_lshrrev_b32 v{vT2}, 1, v{vL16}')
    A.label('tab_poll')
    A(f'buffer_load_dwordx2 v[{vRinv}:{vRinv1}], v{vT2}, {WS}, s60 offen sc1')
    A(f'buffer_load_dword v{vT0}, v{vP+2}, {WS}, s3 offen sc1')
    A('s_waitcnt vmcnt(0)')
    emit(A, check_sent([vRinv, vRinv1, vT0], vT3))
    A('s_cbranch_vccz tab_ok')
    bounded(A, 'tab_poll', 5)
    A.label('tab_ok')
    pst()
    A(f'v_cmp_ne_u32 s[68:69], v{vT1}, v{vT0}')
    A(f's_mov_b32 s{sStep}, 0')
    emit(A, kv_list())
    A(f's_cmp_lg_u32 s{sW}, 1')
    A('s_cbranch_scc1 no_q0')
    emit(A, qx_list())
    A(f'buffer_load_dword v{vM}, v{vR+4}, {WS}, s{sWarm} offen sc1')
    A(f's_add_u32 s{sWarm}, s{sWarm}, {XSEG}')
    A.label('no_q0')
    emit(A, slot_list(0))
    A(f'v_readlane_b32 s{sXw}, v{vX2tab}, 4')
    A(f's_xor_b32 s{sXw}, s{sXw}, 8192')
    for k in range(5): A(f's_mov_b32 s{sCnt+k}, 0')
    for mode in ('f', 's'):
        if mode == 'f':
            A('s_cmp_lg_u64 s[68:69], 0')
            A('s_cbranch_scc1 disp_s')
        else:
            A.label('disp_s')
        A(f's_cmp_eq_u32 s{sW}, 0')
        A(f's_cbranch_scc1 j_{mode}D')
        A(f's_cmp_eq_u32 s{sW}, 2')
        A(f's_cbranch_scc1 j_{mode}B')
        A(f's_cmp_eq_u32 s{sW}, 3')
        A(f's_cbranch_scc1 j_{mode}C')
        A(f's_cmp_eq_u32 s{sNH}, 3')
        A(f's_cbranch_scc1 j_{mode}E')
        A(f's_branch entry_{mode}A')
        for r in 'BDEC':
            A.label(f'j_{mode}{r}')
            A(f's_branch entry_{mode}{r}')
    for mode, fl in (('f', ''), ('s', ' sc1')):
        for role in 'DABEC':
            gen_loop(A, mode + role, fl, role, stamps, P)
    A.label('chain_abort10')
    A(f's_mov_b32 s{sT0}, 10')
    A.label('chain_abort')
    srd(A, sWT, 24, 256)
    A(f'v_mov_b32 v{vT0}, s{sT0}')
    A(f'v_mov_b32 v{vT1}, 0')
    A(f'buffer_store_dword v{vT0}, v{vT1}, {wt}, 0 offen')
    A('s_endpgm')
```

```python
from g import *
from layout import *
import struct, math
def f2u(x): return struct.unpack('<I', struct.pack('<f', x))[0]
QSCALE = (128 ** -0.5) * math.log2(math.e)
def M32(d, a_, b_, c_): return f'v_mfma_f32_16x16x32_bf16 {d}, {a_}, {b_}, {c_}'
def M16(d, a_, b_, c_): return f'v_mfma_f32_16x16x16_bf16 {d}, {a_}, {b_}, {c_}'
def check_sent(regs, t):
    regs = list(regs); o = []
    if len(regs) == 2:
        o.append(f'v_max_u32 v{t}, v{regs[0]}, v{regs[1]}')
    else:
        o.append(f'v_max3_u32 v{t}, v{regs[0]}, v{regs[1]}, v{regs[2]}')
        rest = regs[3:]
        while rest:
            if len(rest) >= 2:
                o.append(f'v_max3_u32 v{t}, v{t}, v{rest[0]}, v{rest[1]}'); rest = rest[2:]
            else:
                o.append(f'v_max_u32 v{t}, v{t}, v{rest[0]}'); rest = rest[1:]
    o.append(f'v_cmp_eq_u32 vcc, -1, v{t}')
    return o
def emit(A, lst):
    for l in lst:
        if l.endswith(':'): A.label(l[:-1])
        else: A(l)
def nvm(lst):
    n = 0
    for l in lst:
        if isinstance(l, tuple): l = l[1]
        if l.startswith('buffer_'): n += 1
    return n
def weave(prim, fill, per=2):
    out = []; fill = list(fill); n = 0
    for p in prim:
        out.append(p)
        if p.startswith('v_mfma'):
            n += 1; k = 0
            while fill and k < per:
                f = fill[0]
                if isinstance(f, tuple):
                    if f[0] > n: break
                    f = f[1]
                out.append(f); fill.pop(0)
                k += 0.67 if f.startswith('s_') else 1
    for f in fill:
        out.append(f[1] if isinstance(f, tuple) else f)
    return out
def wait_start(A, dsrd, vt, sdst, sto, okl, abort, sleep=2):
    top = A.newlabel('ws')
    A.label(top)
    A(f'v_mov_b32 v{vt}, 0')
    A(f'buffer_load_dword v{vt}, v{vt}, {dsrd}, 0 offen offset:{DBG_GO} sc1')
    A('s_waitcnt vmcnt(0)')
    A(f'v_readfirstlane_b32 s{sdst}, v{vt}')
    A(f's_cmp_lt_i32 s{sdst}, 0')
    A(f's_cbranch_scc1 {okl}')
    A(f's_sleep {sleep}')
    A(f's_sub_u32 s{sto}, s{sto}, 1')
    A(f's_cbranch_scc0 {top}')
    A(f's_branch {abort}')
    A.label(okl)
def x2_table(A, X, L, dst, smask, sws_lo, t):
    X.set(t, (L*21846) >> 16)
    A(f'v_lshrrev_b32 v{dst}, v{t}, s{smask}' if False else f'v_mov_b32 v{dst}, s{smask}')
    A(f'v_lshrrev_b32 v{dst}, v{t}, v{dst}')
    X.set(dst, (X.reg(t) << 21) + (L - X.reg(t)*3)*655360 + ((X.reg(dst) & 1) << 13))
    A(f's_sub_u32 s3, 0, s{sws_lo}')
    A('s_and_b32 s3, s3, 0x1fffff')
    A(f's_add_u32 s3, s3, {WS_X2}')
    A(f'v_add_u32 v{dst}, s3, v{dst}')

N_ARRIVE = 64 + 22
def arrive(A, dsrd, vt, vz, stmp, done):
    A(f'v_mov_b32 v{vt}, 1')
    A(f'buffer_atomic_add v{vt}, v{vz}, {dsrd}, 0 offen offset:{DBG_CNT} sc0')
    A('s_waitcnt vmcnt(0)')
    A(f'v_readfirstlane_b32 s{stmp}, v{vt}')
    A(f's_cmp_lg_u32 s{stmp}, {N_ARRIVE-1}')
    A(f's_cbranch_scc1 {done}')
    A(f'v_mov_b32 v{vt}, 0')
    A(f'buffer_atomic_or v{vt}, v{vz}, {dsrd}, 0 offen offset:{DBG_MASK} sc0')
    A('s_waitcnt vmcnt(0)')
    A(f'v_or_b32 v{vt}, 0x80000000, v{vt}')
    A(f'buffer_store_dword v{vt}, v{vz}, {dsrd}, 0 offen offset:{DBG_GO} sc1')

def arrive_s(A, sbase, stmp, done):
    A(f's_mov_b32 s{stmp}, 1')
    A(f's_atomic_add s{stmp}, s[{sbase}:{sbase+1}], {DBG_CNT} glc')
    A('s_waitcnt lgkmcnt(0)')
    A(f's_cmp_lg_u32 s{stmp}, {N_ARRIVE-1}')
    A(f's_cbranch_scc1 {done}')
    A(f's_mov_b32 s{stmp}, 0')
    A(f's_atomic_or s{stmp}, s[{sbase}:{sbase+1}], {DBG_MASK} glc')
    A('s_waitcnt lgkmcnt(0)')
    A(f's_or_b32 s{stmp}, s{stmp}, 0x80000000')
    A(f's_atomic_or s{stmp}, s[{sbase}:{sbase+1}], {DBG_GO}')
    A('s_waitcnt lgkmcnt(0)')

def code_prefetch(A, vt, lines):
    A('s_getpc_b64 s[64:65]')
    A('s_lshr_b32 s3, s2, 3')
    A(f's_mul_i32 s3, s3, {lines*128}')
    A(f'v_lshlrev_b32 v{vt}, 7, v0')
    A(f'v_add_u32 v{vt}, s3, v{vt}')
    A(f'v_cmp_gt_u32 vcc, {lines}, v0')
    A('s_and_saveexec_b64 s[66:67], vcc')
    lab = A.newlabel('cpf')
    A(f's_cbranch_execz {lab}')
    A(f'global_load_dword v{vt+1}, v{vt}, s[64:65]')
    A.label(lab)
    A('s_mov_b64 exec, s[66:67]')

def lin_touch(A, X, tid, vt, srdn, ptrs):
    A('s_mul_i32 s3, s2, 20480')
    X.set(vt, X.sel(('lt', tid, 160), tid*128, OOB))
    for i, p in enumerate(ptrs):
        srd(A, srdn, p, DM*4096*2)
        A(f'buffer_load_dword v{vt+1+i}, v{vt}, s[{srdn}:{srdn+3}], s3 offen')

sOrig, sRot, sDbgP = 93, 99, 68
def rot_poll(A, sbase, stmp, sto, abort):
    top, ok = A.newlabel('rp'), A.newlabel('ro')
    A.label(top)
    A(f's_load_dword s{stmp}, s[{sbase}:{sbase+1}], {DBG_ROT} glc')
    A('s_waitcnt lgkmcnt(0)')
    A(f's_cmp_lg_u32 s{stmp}, 0')
    A(f's_cbranch_scc1 {ok}')
    A('s_sleep 2')
    A(f's_sub_u32 s{sto}, s{sto}, 1')
    A(f's_cbranch_scc0 {top}')
    A(f's_branch {abort}')
    A.label(ok)
def rot_verify(A, sbase, stmp, sto, abort):
    rot_poll(A, sbase, stmp, sto, abort)
    ok = A.newlabel('rv')
    A(f's_cmp_eq_u32 s{stmp}, s{sRot}')
    A(f's_cbranch_scc1 {ok}')
    A(f's_mov_b32 s{sRot}, s{stmp}')
    A('s_waitcnt vmcnt(0)')
    A('s_barrier')
    A('s_branch k_role')
    A.label(ok)
```

```python
from k7_common import *
NEG = -1.0e30
L_MEM = 0
L_Q   = 10240
L_K   = L_Q + 2048
L_O   = L_K + 2048
L_QX  = L_O + 8192
L_KX  = L_QX + 2048
L_XN  = 40960
LDS_BYTES = 163840
assert L_KX + 8192 <= L_XN
sWS, sWT, sC2 = 4, 8, 12
sKXm, sQXr = 14, 15
sCnt = 16
sPar, sQok = 28, 29
sW, sG, sJ, sH, sA, sStep, sTO, sXw = 30, 31, 32, 33, 34, 35, 36, 37
sX3r, sX1, sX2, sX3w, sVXr, sX2L, sXr, sT0, sT1, sOF, sNH = 38, 39, 40, 41, 42, 44, 45, 46, 47, 48, 49
sX3G, sX1H, sDB, sXNg, sHoff, sT2 = 50, 51, 52, 53, 54, 55
sST = 56
sWarm, sLrng, sZn, sZo = 88, 89, 90, 91
vDbg, vX2tab = 0, 1
vX3ld, vMemR, vX1st, vV1st, vQKld, vQKw, vQr, vKr, vVMld, vOw = 2, 3, 4, 5, 6, 7, 8, 9, 10, 11
vX2st, vSR, vOFst, vL16, vKXr, vXNr, vXA, vM2, vM = 12, 13, 14, 15, 16, 17, 18, 19, 20
vR = 21
vT0, vT1, vT2, vT3, vRinv, vRinv1 = 30, 31, 32, 33, 34, 35
vPL = 36
vBias = 40
vLS = 48
vVE = 52
vWO = 56
vKX = 104
vVX = 136
vS = 144
vAcc = 156
vAcc2 = 160
vP = 164
vVM4 = 168
vXACC = 172
vMW = 180
vOFR = 184
vSent4 = 188
vRG = 192
vPS = 224
vQS = 248
aSel, aOne, aSelH, aOneM = 240, 244, 248, 252
WS = f's[{sWS}:{sWS+3}]'

class Stamp:
    def __init__(self, A, on): self.A, self.on, self.n = A, on, 0
    def __call__(self, lvl=2):
        if self.on >= lvl:
            self.A(f'{"s_memrealtime" if self.on == 3 else "s_memtime"} s[{sST+2*self.n}:{sST+2*self.n+1}]')
            self.A('s_waitcnt lgkmcnt(0)')
            self.n += 1
    def flush(self):
        if not self.on: return
        A = self.A
        for k in range(self.n): A(f'v_writelane_b32 v{vT3}, s{sST+2*k}, {k}')
        for k in range(5): A(f'v_writelane_b32 v{vT3}, s{sCnt+k}, {10+k}')
        A(f'v_writelane_b32 v{vT3}, s100, 15')
        A(f's_lshl_b32 s{sT0}, s{sStep}, 6')
        A(f's_add_u32 s{sT0}, s{sT0}, s{sDB}')
        A(f'buffer_store_dword v{vT3}, v{vDbg}, {WS}, s{sT0} offen')

def slot_list(add):
    return [
    f's_add_u32 s{sT0}, s{sStep}, {add}',
    f's_and_b32 s{sT1}, s{sT0}, 63',
    f's_and_b32 s{sT0}, s{sT0}, 3',
    f's_mul_i32 s{sX3r}, s{sT0}, {X3_SLOT}',
    f's_add_u32 s{sX3r}, s{sX3r}, s{sX3G}',
    f'v_readlane_b32 s{sX2}, v{vX2tab}, s{sT1}',
    f's_mul_i32 s{sX2L}, s{sT0}, {X2_SLOT}',
    f's_add_u32 s{sX2L}, s{sX2L}, {WS_X2L}',
    f's_mul_i32 s{sX1}, s{sT0}, {X1_SLOT}',
    f's_add_u32 s{sX1}, s{sX1}, s{sX1H}',
    f's_add_u32 s{sT0}, s{sT0}, 1',
    f's_and_b32 s{sT0}, s{sT0}, 3',
    f's_mul_i32 s{sX3w}, s{sT0}, {X3_SLOT}',
    f's_add_u32 s{sX3w}, s{sX3w}, s{sX3G}']
def reset_list(fl):
    S4 = f'v[{vSent4}:{vSent4+3}]'
    o = [f's_add_u32 s{sT2}, s{sStep}, 2', f's_and_b32 s{sT2}, s{sT2}, 3',
         f's_mul_i32 s{sT0}, s{sT2}, {X2_SLOT}', f's_add_u32 s{sT0}, s{sT0}, {WS_X2L}']
    for i in range(3):
        o.append(f'buffer_store_dwordx4 {S4}, v{vR if i < 2 else vR+1}, {WS}, s{sT0} offen{fl}')
        if i < 2: o.append(f's_add_u32 s{sT0}, s{sT0}, 32768')
    o += [f's_mul_i32 s{sT1}, s{sT2}, {X1_SLOT}', f's_add_u32 s{sT1}, s{sT1}, s{sX1H}',
          f'buffer_store_dwordx4 {S4}, v{vR+2}, {WS}, s{sT1} offen{fl}',
          f'buffer_store_dwordx4 {S4}, v{vR+2}, {WS}, s{sT1} offen offset:1024{fl}',
          f's_add_u32 s{sT2}, s{sT2}, 1', f's_and_b32 s{sT2}, s{sT2}, 3',
          f's_mul_i32 s{sT1}, s{sT2}, {X3_SLOT}', f's_add_u32 s{sT1}, s{sT1}, s{sX3G}',
          f'buffer_store_dwordx4 {S4}, v{vR+3}, {WS}, s{sT1} offen{fl}']
    return o
def kv_list():
    return [f's_add_u32 m0, s{sKXm}, {L_KX}', f's_add_u32 s{sVXr}, s{sXr}, 8192',
            f'buffer_load_dwordx4 v{vL16}, {WS}, s{sXr} offen sc1 lds',
            f'buffer_load_dwordx4 v{vL16}, {WS}, s{sXr} offen offset:1024 sc1 lds',
            f'buffer_load_dwordx4 v[{vVX}:{vVX+3}], v{vL16}, {WS}, s{sVXr} offen sc1',
            f'buffer_load_dwordx4 v[{vVX+4}:{vVX+7}], v{vL16}, {WS}, s{sVXr} offen offset:1024 sc1',
            f's_add_u32 s{sXr}, s{sXr}, {XSEG}']
def qx_list():
    return [f's_mov_b32 m0, {L_QX}', 's_nop 0',
            f'buffer_load_dwordx4 v{vL16}, {WS}, s{sQXr} offen sc1 lds',
            f'buffer_load_dwordx4 v{vL16}, {WS}, s{sQXr} offen offset:1024 sc1 lds',
            f's_add_u32 s{sQXr}, s{sQXr}, {XSEG}']
def bounded(A, top, code):
    A(f's_sub_u32 s{sTO}, s{sTO}, 1')
    A(f's_cbranch_scc0 {top}')
    A(f's_mov_b32 s{sT0}, {code}')
    A('s_branch chain_abort')
def slow_poll(A, lab, back, issue, consume, nl, code, cnt):
    A.label(lab)
    for k in (0, 1):
        if cnt is not None: A(f's_add_u32 s{cnt}, s{cnt}, 1')
        emit(A, issue(k))
        if nl is not None: A(f's_waitcnt vmcnt({nl})')
        emit(A, consume(1 - k))
        A(f's_cbranch_vccz {back}')
    bounded(A, lab, code)
def qp_wait(A, lab, back, shifts=(2, 1)):
    A.label(lab)
    A(f'buffer_load_dword v{vT0}, v{vR+5}, {WS}, 0 offen sc1')
    A('s_waitcnt vmcnt(0)')
    for sh in shifts:
        A(f'v_min_i32_dpp v{vT0}, v{vT0}, v{vT0} row_ror:{sh} row_mask:0xf bank_mask:0xf')
        A('s_nop 1')
    A(f'v_readfirstlane_b32 s{sQok}, v{vT0}')
    A(f's_cmp_ge_i32 s{sQok}, s{sT1}')
    A(f's_cbranch_scc1 {back}')
    bounded(A, lab, 9)

def gen_loop(A, tag, fl, role, stamps, P):
    wv = dict(D=0, A=1, E=1, B=2, C=3)[role]
    st = Stamp(A, stamps)
    isA = role in 'ADE'
    recv = role in 'BCE'
    NU = 1
    N3 = 3 if isA else 2
    cn = (lambda k: sCnt + k) if stamps else (lambda k: None)
    br = lambda nm: f's_cbranch_vccnz {nm}_{tag}' if nm not in P.get('nock', '') else 's_nop 2'
    tails = []
    def x3_issue(k):
        r = vPS + 12*k
        return [f'buffer_load_dwordx4 v[{r+4*i}:{r+4*i+3}], v{vX3ld}, {WS}, s{sX3r} offen offset:{1024*i} sc1' for i in range(N3)]
    def x3_consume(k):
        o = []
        for i in range(N3):
            r = vPS + 12*k + 4*i
            o.append(f's_waitcnt vmcnt({2*N3 - 1 - i})')
            o.append(f'ds_write_b128 v{vX3ld}, v[{r}:{r+3}] offset:{1024*i}')
            o += [f'v_max3_u32 v{vT0}, v{r}, v{r+1}, v{r+2}', f'v_max_u32 v{vT0}, v{vT0}, v{r+3}'] if i == 0 else \
                 [f'v_max3_u32 v{vT0}, v{vT0}, v{r}, v{r+1}', f'v_max3_u32 v{vT0}, v{vT0}, v{r+2}, v{r+3}']
        return o + [f'v_cmp_eq_u32 vcc, -1, v{vT0}', 's_waitcnt lgkmcnt(0)']
    def qk_issue(k):
        return [f'buffer_load_dwordx4 v[{vQS+4*k}:{vQS+4*k+3}], v{vQKld}, {WS}, s{sX1} offen sc1']
    def qk_consume(k):
        return [f'ds_write_b128 v{vQKw}, v[{vQS+4*k}:{vQS+4*k+3}]'] + check_sent(range(vQS+4*k, vQS+4*k+4), vT0) + ['s_waitcnt lgkmcnt(0)']
    LO = (3, 0, 1, 2)
    def x2_issue():
        return [f'buffer_load_dwordx4 v[{vKX+4*L}:{vKX+4*L+3}], v{vR+L}, {WS}, s{sX2 if L < 3 else sX2L} offen sc1' for L in LO]
    def x2_consume(young):
        o = []
        for i, L in enumerate(LO):
            r = vKX + 4*L
            o.append(f's_waitcnt vmcnt({young + 3 - i})')
            o.append(M32(v(vAcc, 4), a(aSel, 4), v(r, 4), '0' if i == 0 else v(vAcc, 4)))
            o += [f'v_max3_u32 v{vT0}, v{r}, v{r+1}, v{r+2}', f'v_max_u32 v{vT0}, v{vT0}, v{r+3}'] if i == 0 else \
                 [f'v_max3_u32 v{vT0}, v{vT0}, v{r}, v{r+1}', f'v_max3_u32 v{vT0}, v{vT0}, v{r+2}, v{r+3}']
        return o + [f'v_cmp_eq_u32 vcc, -1, v{vT0}', 's_nop 3']
    top_young = N3

    A.label(f'entry_{tag}')
    emit(A, x3_issue(0))
    A('s_waitcnt vmcnt(0)')
    emit(A, x3_issue(1))
    if stamps:
        A('s_memrealtime s[96:97]')
        A('s_waitcnt lgkmcnt(0)')
    if P['al'] >= 0:
        A(f's_branch loop_{tag}')
        A.raw('.p2align 6')
        for _ in range(P['al']): A('s_nop 0')
    A.label(f'loop_{tag}')
    if stamps: A('s_memrealtime s[100:101]')
    st(1)
    emit(A, x3_consume(0))
    A(br('x3s'))
    A.label(f'x3ok_{tag}')
    def x3_light():
        NSET = P['x3l']
        base = [vPS, vPS+12, vKX, vKX+12]
        iss = lambda k: [f'buffer_load_dwordx4 v[{base[k]+4*i}:{base[k]+4*i+3}], v{vX3ld}, {WS}, s{sX3r} offen offset:{1024*i} sc1' for i in range(N3)]
        A.label(f'x3s_{tag}')
        for k in range(2, NSET): emit(A, iss(k))
        A.label(f'x3t_{tag}')
        for k in range(NSET):
            kk = (k + 1) % NSET
            if stamps: A(f's_add_u32 s{sCnt}, s{sCnt}, 1')
            emit(A, iss(k))
            A(f's_waitcnt vmcnt({N3*(NSET-1)})')
            emit(A, check_sent(range(base[kk], base[kk]+4*N3), vT0))
            A(f's_cbranch_vccz x3w{kk}_{tag}')
        bounded(A, f'x3t_{tag}', 1)
        for k in range(NSET):
            A.label(f'x3w{k}_{tag}')
            for i in range(N3): A(f'ds_write_b128 v{vX3ld}, v[{base[k]+4*i}:{base[k]+4*i+3}] offset:{1024*i}')
            A('s_waitcnt lgkmcnt(0)')
            A(f's_branch x3ok_{tag}')
    if P['x3l']: tails.append(x3_light)
    else: tails.append(lambda: slow_poll(A, f'x3s_{tag}', f'x3ok_{tag}', x3_issue, x3_consume, None, 1, cn(0)))
    A('s_barrier')
    st()
    MF = lambda i: (vRG + 4*i) if i < 8 else (vS + 4*(i-8))
    for i in range(10): A(f'ds_read_b128 v[{MF(i)}:{MF(i)+3}], v{vMemR} offset:{1024*i}')
    for i in range(10):
        A(f's_waitcnt lgkmcnt({9-i})')
        A(M32(v(vAcc, 4), a(8*i, 4), v(MF(i), 4), '0' if i == 0 else v(vAcc, 4)))
        A(M32(v(vAcc2, 4), a(8*i+4, 4), v(MF(i), 4), '0' if i == 0 else v(vAcc2, 4)))
    vm = [M32(v(vVE, 4), v(MF(i), 4), a(80+4*i, 4), '0' if i == 0 else v(vVE, 4)) for i in range(10)]
    NV = P['nv']
    emit(A, vm[:NV])
    if NV < 3: A('s_nop 1')
    for r in range(4): A(f'v_add_f32_dpp v{vAcc+r}, v{vAcc2+r}, v{vAcc+r} row_ror:8 row_mask:0xf bank_mask:0xf')
    if isA:
        A(f'v_pk_mul_f32 v[{vAcc}:{vAcc+1}], v[{vAcc}:{vAcc+1}], s[{sC2}:{sC2+1}]')
        A(f'v_pk_mul_f32 v[{vAcc+2}:{vAcc+3}], v[{vAcc+2}:{vAcc+3}], s[{sC2}:{sC2+1}]')
    A(f'v_cvt_pk_bf16_f32 v{vT0}, v{vAcc}, v{vAcc+1}')
    A(f'v_cvt_pk_bf16_f32 v{vT1}, v{vAcc+2}, v{vAcc+3}')
    A(f'v_min_u32 v{vT0}, -2, v{vT0}')
    A(f'v_min_u32 v{vT1}, -2, v{vT1}')
    A(f'buffer_store_dwordx2 v[{vT0}:{vT1}], v{vX1st}, {WS}, s{sX1} offen{fl}')
    st(3)
    QR = [vQS, vQS+4, vXACC, vXACC+4]
    qi = lambda k: f'buffer_load_dwordx4 v[{QR[k]}:{QR[k]+3}], v{vQKld}, {WS}, s{sX1} offen sc1'
    qc = lambda k: [f'ds_write_b128 v{vQKw}, v[{QR[k]}:{QR[k]+3}]'] + check_sent(range(QR[k], QR[k]+4), vT0) + ['s_waitcnt lgkmcnt(0)']
    late0 = P['qkA'] > 20
    emit(A, weave(vm[NV:], [] if late0 else [(P['qkA'], qi(0))]))
    if P['x3l'] > 2: A('s_waitcnt vmcnt(2)')
    for k in range(8):
        A(f'ds_read_b128 v[{vKX+4*k}:{vKX+4*k+3}], v{vL16} offset:{L_KX + 1024*k}')
        if k == 3 and P['q4']: A(qi(2))
    A(f'v_cvt_pk_bf16_f32 v{vT2}, v{vVE}, v{vVE+1}')
    A(f'v_cvt_pk_bf16_f32 v{vT3}, v{vVE+2}, v{vVE+3}')
    A(f'v_min_u32 v{vT2}, -2, v{vT2}')
    A(f'v_min_u32 v{vT3}, -2, v{vT3}')
    A(f'buffer_store_dwordx2 v[{vT2}:{vT3}], v{vV1st}, {WS}, s{sX1} offen{fl}')
    if wv == 1:
        A(f's_add_u32 s{sT1}, s{sStep}, 3')
        A(f's_lshr_b32 s{sT1}, s{sT1}, 1')
        A(f's_cmp_lt_i32 s{sQok}, s{sT1}')
        A(f's_cbranch_scc1 qp_{tag}')
        A.label(f'qpok_{tag}')
        tails.append(lambda: qp_wait(A, f'qp_{tag}', f'qpok_{tag}'))
    if P['q4']:
        A(qi(3))
        A.nop(P['q4'])
    if late0:
        A.nop(P['qkA'] - 20)
        A(qi(0))
    if P['qkgap']: A.nop(P['qkgap'])
    A(qi(1))
    for _ in range(P.get('wm1', 0)): A(M32(v(vLS, 4), a(aOne, 4), a(aOne, 4), '0'))
    st()
    A(f's_waitcnt vmcnt({4 if P["q4"] else 1 if late0 else 2})')
    emit(A, qc(0))
    A(br('qks'))
    A.label(f'qkok_{tag}')
    def qk_slow():
        A.label(f'qks_{tag}')
        if P['q4']:
            for k, n in ((2, 3), (3, 1)):
                if stamps: A(f's_add_u32 s{sCnt+1}, s{sCnt+1}, 1')
                A(f's_waitcnt vmcnt({n})')
                emit(A, qc(k))
                A(f's_cbranch_vccz qkok_{tag}')
        slow_poll(A, f'qkt_{tag}', f'qkok_{tag}', qk_issue, qk_consume, 1, 2, cn(1))
    tails.append(qk_slow)
    vm_ld = f'buffer_load_dwordx4 v[{vVM4}:{vVM4+3}], v{vVMld}, {WS}, s{sX1} offen sc1'
    if P['vpos'] in (0, 2): A(vm_ld)
    A('s_barrier')
    st()
    QF, KF = vRG, vRG + 16
    for t in range(4): A(f'ds_read_b128 v[{QF+4*t}:{QF+4*t+3}], v{vQr} offset:{512*t}')
    for t in range(4): A(f'ds_read_b128 v[{KF+4*t}:{KF+4*t+3}], v{vKr} offset:{512*t}')
    if P['vpos'] == 1: A(vm_ld)
    vm2 = f'buffer_load_dwordx4 v[{vXACC}:{vXACC+3}], v{vVMld}, {WS}, s{sX1} offen sc1'
    def smf(i, t):
        src = (vKX + 4*t, vKX + 16 + 4*t, KF + 4*t)[i]
        return M32(v(vS+4*i, 4), v(src, 4), v(QF+4*t, 4), (v(vBias+4*i, 4) if i < 2 else '0') if t == 0 else v(vS+4*i, 4))
    E = lambda r: f'v_exp_f32 v{vS+r}, v{vS+r}'
    C = lambda d, r: f'v_cvt_pk_bf16_f32 v{d}, v{vS+r}, v{vS+r+1}'
    for t in range(4):
        A(f's_waitcnt lgkmcnt({7-t})')
        A(smf(0, t))
    if P['vpos'] == 2: A(vm2)
    for t in range(4):
        A(f's_waitcnt lgkmcnt({3-t})')
        A(smf(2, t))
        if t >= 2: A(E(t - 2))
    A(smf(1, 0)); A(E(2))
    A(smf(1, 1)); A(E(3))
    A(smf(1, 2)); A(E(8))
    A(smf(1, 3)); A(E(9))
    A(E(10)); A(E(11))
    if P.get('att'): st()
    A(f's_waitcnt vmcnt({1 if P["vpos"] == 2 else 0})')
    if P.get('att'): st()
    emit(A, check_sent(range(vVM4, vVM4+4), vT2))
    A(C(vPL, 8)); A(C(vPL+1, 10))
    A(E(4))
    A(br('pvs'))
    A.label(f'pvok_{tag}')
    def pv_slow():
        A.label(f'pvs_{tag}')
        if P['vpos'] == 2:
            if stamps: A(f's_add_u32 s{sCnt+2}, s{sCnt+2}, 1')
            A('s_waitcnt vmcnt(0)')
            emit(A, check_sent(range(vXACC, vXACC+4), vT2))
            for r in range(4): A(f'v_mov_b32 v{vVM4+r}, v{vXACC+r}')
            A('s_nop 0')
            A(f's_cbranch_vccz pvok_{tag}')
        A.label(f'pvt_{tag}')
        if stamps: A(f's_add_u32 s{sCnt+2}, s{sCnt+2}, 1')
        A(vm_ld)
        A('s_waitcnt vmcnt(0)')
        emit(A, check_sent(range(vVM4, vVM4+4), vT2))
        A(f's_cbranch_vccz pvok_{tag}')
        bounded(A, f'pvt_{tag}', 3)
    tails.append(pv_slow)
    pvm = [M16(v(vAcc, 4), v(vVM4, 2), v(vPL, 2), '0'), M16(v(vAcc2, 4), v(vVM4+2, 2), v(vPL, 2), '0'),
           M16(v(vLS, 4), a(aOneM, 2), v(vPL, 2), '0')]
    A(pvm[0]); A(E(5))
    if wv == 1 and P['tatt']: A(f'buffer_load_dword v{vM2+0 if False else vXA}, v{vR+4}, {WS}, s{sWarm} offen sc1')
    if role == 'D' and P['tlb']: A(f'buffer_load_dword v{vXA}, v{vR+6}, {WS}, s{sXw} offen sc1')
    A(pvm[1]); A(E(6))
    if P['pt'] & 1: A(f'buffer_load_dword v{vXNr}, v{vSR}, {WS}, s{sX2} offen sc1')
    A(pvm[2]); A(E(7))
    if recv and P['pt'] & 2: A(f'buffer_load_dword v{vXNr}, v{vKXr}, {WS}, s{sX2} offen sc1')
    A(C(vP, 0)); A(C(vP+1, 2)); A(C(vP+2, 4)); A(C(vP+3, 6))
    A('s_nop 1')
    if P.get('att'): st()
    D = vPS
    NTL = 3 if isA else 2
    def pv_fin():
        A(M32(v(vAcc, 4), v(vVX, 4), v(vP, 4), v(vAcc, 4)))
        A(M32(v(vAcc2, 4), v(vVX+4, 4), v(vP, 4), v(vAcc2, 4)))
        A(M32(v(vLS, 4), a(aOne, 4), v(vP, 4), v(vLS, 4)))
        A.nop(P['pvnop'])
        A(f'v_cvt_pk_bf16_f32 v{vOFR}, v{vAcc}, v{vAcc+1}')
        A(f'v_cvt_pk_bf16_f32 v{vOFR+1}, v{vAcc+2}, v{vAcc+3}')
        A(f'v_cvt_pk_bf16_f32 v{vOFR+2}, v{vAcc2}, v{vAcc2+1}')
        A(f'v_cvt_pk_bf16_f32 v{vOFR+3}, v{vAcc2+2}, v{vAcc2+3}')
        A(f'ds_write_b128 v{vOw}, v[{vOFR}:{vOFR+3}]')
        A(f'v_rcp_f32 v{vRinv}, v{vLS}')
        for k in range(NTL): A(M32(v(D+4*k, 4), v(vWO+16*k+4*wv, 4), v(vOFR, 4), '0'))
    pv_fin()
    A(f'v_subrev_u32 v{vT0}, {f2u(2.0**-60):#x}, v{vLS}')
    A(f'v_cmp_le_u32 vcc, s{sLrng}, v{vT0}')
    A(f'v_mov_b32 v{vRinv1}, v{vRinv}')
    A(f's_cmp_eq_u32 s{sStep}, {NSEG-1}')
    A('s_waitcnt lgkmcnt(0)')
    A(br('smx'))
    A.label(f'smok_{tag}')
    def sm_slow():
        A.label(f'smx_{tag}')
        if stamps: A(f's_add_u32 s{sCnt+4}, s{sCnt+4}, 1')
        for i in range(3):
            for t in range(4): A(smf(i, t))
        A.nop(8)
        A(f'v_max3_f32 v{vM}, v{vS}, v{vS+1}, v{vS+2}')
        for r in range(3, 11, 2): A(f'v_max3_f32 v{vM}, v{vM}, v{vS+r}, v{vS+r+1}')
        A(f'v_max_f32 v{vM}, v{vM}, v{vS+11}')
        for sw in ('16', '32'):
            A(f'v_mov_b32 v{vT0}, v{vM}')
            A.nop(2)
            A(f'v_permlane{sw}_swap_b32 v{vT0}, v{vM}')
            A.nop(1)
            A(f'v_max_f32 v{vM}, v{vM}, v{vT0}')
        for r in range(12): A(f'v_sub_f32 v{vS+r}, v{vS+r}, v{vM}')
        for r in range(12): A(E(r))
        A.nop(1)
        A(C(vP, 0)); A(C(vP+1, 2)); A(C(vP+2, 4)); A(C(vP+3, 6)); A(C(vPL, 8)); A(C(vPL+1, 10))
        A.nop(2)
        emit(A, pvm)
        A.nop(6)
        pv_fin()
        A.nop(1)
        A(f'v_mov_b32 v{vRinv1}, v{vRinv}')
        A(f's_cmp_eq_u32 s{sStep}, {NSEG-1}')
        A('s_waitcnt lgkmcnt(0)')
        A(f's_branch smok_{tag}')
    tails.append(sm_slow)
    A(f's_cbranch_scc1 last_{tag}')
    A('s_barrier')
    st()
    OF4 = vRG
    TS = [t for t in range(4) if t != wv]
    for t in TS: A(f'ds_read_b128 v[{OF4+4*t}:{OF4+4*t+3}], v{vL16} offset:{L_O + 1024*t}')
    R = vS
    RI = f'v[{vRinv}:{vRinv1}]'
    def scale_cvt(k):
        return [f'v_pk_mul_f32 v[{D+4*k}:{D+4*k+1}], v[{D+4*k}:{D+4*k+1}], {RI}',
                f'v_pk_mul_f32 v[{D+4*k+2}:{D+4*k+3}], v[{D+4*k+2}:{D+4*k+3}], {RI}',
                f'v_cvt_pk_bf16_f32 v{D+4*k}, v{D+4*k}, v{D+4*k+1}',
                f'v_cvt_pk_bf16_f32 v{D+4*k+1}, v{D+4*k+2}, v{D+4*k+3}']
    mind = lambda d, s_, ctl: f'v_min_u32_dpp v{d}, v{s_}, v{vM2} ' + ctl.replace(' bank', ' row_mask:0xf bank')
    export = []
    for r in (0, 2):
        export.append(f'v_pk_mul_f32 v[{vAcc+r}:{vAcc+r+1}], v[{vAcc+r}:{vAcc+r+1}], {RI}')
        export.append(f'v_pk_mul_f32 v[{vAcc2+r}:{vAcc2+r+1}], v[{vAcc2+r}:{vAcc2+r+1}], {RI}')
    export += [f'v_cvt_pk_bf16_f32 v{vOFR}, v{vAcc}, v{vAcc+1}', f'v_cvt_pk_bf16_f32 v{vOFR+1}, v{vAcc+2}, v{vAcc+3}',
               f'v_cvt_pk_bf16_f32 v{vOFR+2}, v{vAcc2}, v{vAcc2+1}', f'v_cvt_pk_bf16_f32 v{vOFR+3}, v{vAcc2+2}, v{vAcc2+3}',
               f'buffer_store_dwordx4 v[{vOFR}:{vOFR+3}], v{vOFst}, {WS}, s{sOF} offen sc1',
               f's_add_u32 s{sOF}, s{sOF}, {2*128*1024}']
    emit(A, export[:6])
    op = []
    for n, k in enumerate([2, 0, 1] if isA else [0, 1]):
        for i, t in enumerate(TS):
            if n == 0: op.append(f's_waitcnt lgkmcnt({2-i})')
            op.append(M32(v(D+4*k, 4), v(vWO+16*k+4*t, 4), v(OF4+4*t, 4), v(D+4*k, 4)))
    ident = 'quad_perm:[0,1,2,3] bank_mask:0x3'
    if isA:
        single = scale_cvt(2) + ['s_nop 0', mind(R, D+8, 'row_shr:8 bank_mask:0xc'), mind(R+1, D+9, 'row_shr:8 bank_mask:0xc'),
                                 mind(R+2, D+8, 'row_shr:7 bank_mask:0xc'), mind(R+3, D+9, 'row_shr:7 bank_mask:0xc')]
        emit(A, weave(op, export[6:8] + [(6, x) for x in single], per=3))
    else:
        emit(A, weave(op, export[6:8]))
    emit(A, scale_cvt(0))
    A.nop(2)
    A(mind(R, D, ident)); A(mind(R+1, D+1, ident))
    emit(A, scale_cvt(1))
    A.nop(1)
    A(mind(R+2, D+4, ident)); A(mind(R+3, D+5, ident))
    A(f'buffer_store_dwordx4 v[{R}:{R+3}], v{vSR}, {WS}, s{sX2} offen sc1')
    A(f'buffer_store_dwordx4 v[{R}:{R+3}], v{vX2st}, {WS}, s{sX2L} offen{fl}')
    st()
    pre = kv_list() if not P.get('nokv') else []
    late = list(export[8:])
    if role == 'D':
        A(f's_cmp_eq_u32 s{sStep}, s{sZn}')
        A(f's_cbranch_scc1 z1_{tag}')
        A.label(f'z1ok_{tag}')
        def z1():
            A.label(f'z1_{tag}')
            A(f'v_lshrrev_b32 v{vT2}, 1, v{vL16}')
            A(f'buffer_load_dwordx2 v[{vT0}:{vT1}], v{vT2}, {WS}, s{sZo} offen sc1')
            A('s_waitcnt vmcnt(0)')
            emit(A, check_sent([vT0, vT1], vT0))
            A(f's_cbranch_vccz z2_{tag}')
            bounded(A, f'z1_{tag}', 8)
            A.label(f'z2_{tag}')
            A(f's_add_u32 s{sZo}, s{sZo}, 512')
            A(f's_cmp_eq_u32 s{sZn}, 2')
            A(f's_cselect_b32 s{sZn}, 7, 23')
            A(f's_branch z1ok_{tag}')
        tails.append(z1)
        late += reset_list(fl)
        late += [f's_add_u32 s{sT0}, s{sStep}, 5', f's_min_u32 s{sT0}, s{sT0}, 63', f'v_readlane_b32 s{sXw}, v{vX2tab}, s{sT0}',
                 f's_xor_b32 s{sXw}, s{sXw}, 8192']
        late += [f's_lshl_b32 s{sT0}, s{sStep}, 7', f's_add_u32 s{sT0}, s{sT0}, {WS_PROG - 256}',
                 f'buffer_store_dword v{vM2}, v{vR+5}, {WS}, s{sT0} offen sc1']
    if wv == 1:
        touch = [f'buffer_load_dword v{vM}, v{vR+4}, {WS}, s{sWarm} offen sc1', f's_add_u32 s{sWarm}, s{sWarm}, {XSEG}']
        if P.get('notouch') or P['tatt']: touch = touch[1:]
        dl = []
        n = P['tdel']
        while n > 0: dl.append(f's_nop {min(n,16)-1}'); n -= 16
        pre = (touch + qx_list() + pre) if P['tfirst'] else (qx_list() + pre + dl + touch)
    if recv:
        if not isA and P['kvS']: A(f's_sleep {P["kvS"]}')
        emit(A, pre)
        A(f's_sleep {P["pollS"] - (P["pollE"] if isA else P["kvS"])}')
        emit(A, x2_issue())
        emit(A, late)
        st()
        if P.get('diag'):
            A(f's_waitcnt vmcnt({nvm(late) + 4*NU + 4})'); st()
            A(f's_waitcnt vmcnt({nvm(late) + 4*NU})'); st()
        emit(A, x2_consume(nvm(late)))
        A(br('x2s'))
        A.label(f'x2ok_{tag}')
        def x2_slow():
            A.label(f'x2s_{tag}')
            if stamps: A(f's_add_u32 s{sCnt+3}, s{sCnt+3}, 1')
            emit(A, x2_issue())
            emit(A, x2_consume(0))
            A(f's_cbranch_vccz x2ok_{tag}')
            bounded(A, f'x2s_{tag}', 4)
        tails.append(x2_slow)
        st()
        for r in range(4): A(f'v_add_f32_dpp v{vAcc2+r}, v{vAcc+r}, v{vAcc+r} row_ror:8 row_mask:0xf bank_mask:0xf')
        A(f'v_cvt_pk_bf16_f32 v{vT0}, v{vAcc2}, v{vAcc2+1}')
        A(f'v_cvt_pk_bf16_f32 v{vT1}, v{vAcc2+2}, v{vAcc2+3}')
        A(f'v_min_u32 v{vT0}, -2, v{vT0}')
        A(f'v_min_u32 v{vT1}, -2, v{vT1}')
        A(f'buffer_store_dwordx2 v[{vT0}:{vT1}], v{vR+8}, {WS}, s{sX3w} offen{fl}')
    else:
        emit(A, pre)
        if P['lateS']: A(f's_sleep {P["lateS"]}')
        emit(A, late)
        st(); st()
    sl = slot_list(1)
    if not recv: emit(A, sl)
    if P['nob4'] == 0: A('s_barrier')
    elif not recv: A.nop(P['nob4'] - (60 if role == 'D' else 0))
    st.flush()
    if recv: emit(A, sl[:5])
    A.nop(P['x3d'] if not recv else max(0, P['x3d'] - 8))
    emit(A, x3_issue(0))
    if recv: emit(A, sl[5:])
    A(f's_add_u32 s{sStep}, s{sStep}, 1')
    A('s_sleep 1')
    emit(A, x3_issue(1))
    for _ in range(P.get('wm3', 0)): A(M32(v(vVE, 4), a(aOne, 4), a(aOne, 4), '0'))
    A(f's_branch loop_{tag}')
    A.label(f'last_{tag}')
    emit(A, export)
    if role == 'D':
        A(f's_mov_b32 s{sT0}, {WS_PROG + 61*128}')
        A(f'buffer_store_dword v{vM2}, v{vR+5}, {WS}, s{sT0} offen sc1')
    A('s_waitcnt vmcnt(0)')
    A('s_barrier')
    if role == 'D':
        A(f's_lshl_b32 s{sT0}, s{sG}, 5')
        A(f's_add_u32 s{sT0}, s{sT0}, s{sJ}')
        A(f's_lshl_b32 s{sT0}, s{sT0}, 2')
        A(f's_add_u32 s{sT0}, s{sT0}, {WS_FLAG}')
        A(f'v_cmp_eq_u32 vcc, 0, v{vL16}')
        A(f'v_mov_b32 v{vT0}, {OOB:#x}')
        A('s_nop 1')
        A(f'v_cndmask_b32 v{vT0}, v{vT0}, 0, vcc')
        A(f'buffer_store_dword v{vM2}, v{vT0}, {WS}, s{sT0} offen sc1')
    if stamps:
        A('s_memrealtime s[100:101]')
        A('s_waitcnt lgkmcnt(0)')
        A(f'v_writelane_b32 v{vT3}, s{sST}, 0')
        for k, r in enumerate((94, 96, 100, 76, 78, 80, 82, 84, 86)): A(f'v_writelane_b32 v{vT3}, s{r}, {1+k}')
        A(f's_add_u32 s{sT0}, s{sDB}, {63*64}')
        A(f'buffer_store_dword v{vT3}, v{vDbg}, {WS}, s{sT0} offen')
        if P.get('dbgout') and role == 'D':
            A(f'v_writelane_b32 v{vT3}, s74, 10')
            A(f'v_readlane_b32 s{sT0}, v{vX2tab}, 0')
            A(f'v_writelane_b32 v{vT3}, s{sT0}, 11')
            A(f'v_writelane_b32 v{vT3}, s98, 12')
            srd(A, sWT, 24, 64)
            A(f's_add_u32 s{sT0}, s{sJ}, s{sG}')
            A(f's_cmp_eq_u32 s{sT0}, 0')
            A(f's_cselect_b32 s{sT0}, 12, 64')
            A(f'buffer_store_dword v{vT3}, v{vDbg}, s[{sWT}:{sWT+3}], s{sT0} offen')
    A('s_endpgm')
    for t in tails: t()

DEFAULT_P = dict(rot=1, kvS=2, nv=3, coop=0, ns0=0, bdel=0, vpos=0, pollE=2, al=0, x3l=0, lateS=0, pt=0, lin=0, cpf=1, pollS=5, q4=0, x3d=0, nob4=0, tlb=1, tatt=1, tdel=0, tfirst=0, pollA=80, qkA=5, qkgap=0, x3A=4, x3B=8, x3gap=16, pvnop=6)

def gen_chain(A, stamps, P):
    wt = f's[{sWT}:{sWT+3}]'
    npst = [0]
    def pst():
        if stamps == 1:
            A(f's_memrealtime s[{76+2*npst[0]}:{77+2*npst[0]}]'); A('s_waitcnt lgkmcnt(0)'); npst[0] += 1
    if stamps: A('s_memrealtime s[94:95]')
    if P['cpf']: code_prefetch(A, 250, 8)
    A('s_load_dwordx4 s[16:19], s[0:1], 16')
    A('s_load_dwordx4 s[20:23], s[0:1], 32')
    A('s_load_dwordx4 s[24:27], s[0:1], 96')
    A('s_load_dwordx2 s[72:73], s[0:1], 8')
    F = 232
    X = VX(A, vRG, F, 3)
    A(f'v_lshrrev_b32 v{F+3}, 6, v0')
    A(f'v_and_b32 v{F}, 63, v0')
    A(f'v_readfirstlane_b32 s{sW}, v{F+3}')
    A(f'v_bfe_u32 v{F+1}, v0, 4, 2')
    A(f'v_and_b32 v{F+2}, 15, v0')
    A(f's_and_b32 s{sG}, s2, 3')
    A(f's_lshr_b32 s{sJ}, s2, 3')
    A(f's_lshr_b32 s{sH}, s{sJ}, 2')
    A(f's_lshl_b32 s3, s{sG}, 3')
    A(f's_add_u32 s{sH}, s{sH}, s3')
    A(f's_and_b32 s{sA}, s{sJ}, 3')
    A(f's_and_b32 s{sPar}, s{sA}, 1')
    A(f's_mov_b32 s{sTO}, 0x40000')
    for i, sr in enumerate((sA, sH, sJ, sG)): A(f'v_mov_b32 v{F+4+i}, s{sr}')
    A(f'v_mov_b32 v{F+8}, v0')
    L, g, c, w, a_, h, j, G, tid = [X.reg(F+i) for i in range(9)]
    X.set(vL16, L*16)
    L16 = X.reg(vL16)
    def frag_addr(dst, it):
        X.set(vT1, ((it >> 3)*3277) >> 16)
        ua = X.reg(vT1)
        X.set(vT2, (it >> 3) - ua*20)
        u = X.reg(vT2)
        g1, r1, gh = (lambda: (it >> 2) & 1), (lambda: (it >> 1) & 1), (lambda: it & 1)
        X.set(vT3, (ua*5 + (u >> 2))*512 + ((g1()*2 + gh())*8 + (u & 3)*2 + r1())*16)
        X.set(dst, (ua*5 + 4)*512 + (((u & 2) + gh())*8 + (u & 1)*4 + r1()*2 + g1())*16)
        X.set(dst, X.sel(('lt', u, 16), X.reg(vT3), X.reg(dst)))
    TQ, TA_, TV, TO1, TO2 = [vXACC + i for i in range(5)]
    X.set(TQ, (L >> 2)*8192 + (((L >> 1) & 1) ^ ((L >> 5) & 1))*32 + (L & 1)*16 + h*256 + a_*64)
    A('s_waitcnt lgkmcnt(0)')
    srd(A, sWS, 26, WS_SIZE)
    if P['lin']: lin_touch(A, X, tid, vKX, sWT, (16, 18, 20, 22))
    A(f's_lshl_b32 s3, s{sG}, 5')
    A(f's_add_u32 s3, s3, s{sJ}')
    A(f's_lshl_b32 s60, s{sW}, 7')
    A('s_add_u32 s3, s3, s60')
    A('s_cmp_ge_u32 s3, 22')
    A('s_cbranch_scc1 cal_done')
    A('s_sub_u32 s60, 0, s26')
    A('s_and_b32 s60, s60, 0x1fffff')
    A(f's_lshl_b32 s61, s{sJ}, 21')
    A('s_add_u32 s60, s60, s61')
    A(f's_add_u32 s60, s60, {WS_X2 + 0x1f8000}')
    A('s_add_u32 s70, s26, s60')
    A('s_addc_u32 s71, s27, 0')
    A('s_mov_b32 s62, -1')
    A('s_mov_b32 s63, -1')
    for rep in range(P['calrep']):
        for hf in range(2):
            A('s_mov_b32 s61, 0')
            A('s_memtime s[64:65]')
            A('s_waitcnt lgkmcnt(0)')
            A(f's_atomic_or s61, s[70:71], {hf*8192 + (rep&1)*4096} glc')
            A('s_waitcnt lgkmcnt(0)')
            A('s_memtime s[66:67]')
            A('s_waitcnt lgkmcnt(0)')
            A('s_sub_u32 s64, s66, s64')
            A(f's_min_u32 s{62+hf}, s{62+hf}, s64')
    A('s_cmp_lt_u32 s63, s62')
    A('s_cselect_b32 s61, 1, 0')
    A(f's_lshl_b32 s61, s61, s{sJ}')
    if P.get('rot'):
        rot_poll(A, 24, 60, sTO, 'chain_abort10')
        A(f's_cmp_lg_u32 s60, s{sRot}')
        A('s_cbranch_scc1 cal_done')
    A(f's_atomic_or s61, s[24:25], {DBG_MASK} glc')
    A('s_waitcnt lgkmcnt(0)')
    arrive_s(A, 24, 61, 'cal_done')
    A.label('cal_done')
    if P['coop']:
        for i in range(2):
            X.set(vKX+i, X.sel(('lt', tid + 256*i, 320), (j*20 + ((tid + 256*i) >> 4))*8192 + G*2048 + (tid & 15)*128, OOB))
        for m, ptr in enumerate((16, 18, 20)):
            srd(A, sWT, ptr, DM * 4096 * 2)
            for i in range(2): A(f'buffer_load_dword v{vKX+4+2*m+i}, v{vKX+i}, {wt}, 0 offen')
        srd(A, sWT, 22, 4096 * DM * 2)
        for i in range(2):
            X.set(vT1, X.sel(('lt', tid + 256*i, 320), (G*32 + j)*40960 + (tid + 256*i)*128, OOB))
            A(f'buffer_load_dword v{vKX+10+i}, v{vT1}, {wt}, 0 offen')
    for m, ptr in enumerate((16, 18, 20)):
        srd(A, sWT, ptr, DM * 4096 * 2)
        A(f's_lshl_b32 s63, s{sW}, 10')
        A(f's_add_u32 s63, s63, {40960*(m+1)}')
        A(f's_mul_i32 s64, s{sW}, {16*8192}')
        for i in range(10):
            A('s_mov_b32 m0, s63')
            A(f's_add_u32 s63, s63, 4096')
            A(f'buffer_load_dwordx4 v{TQ}, {wt}, s64 offen lds')
            A(f's_add_u32 s64, s64, {64*8192}')
    srd(A, sWT, 22, 4096 * DM * 2)
    A(f's_mul_i32 s64, s{sH}, {128*1280}')
    A(f's_mul_i32 s3, s{sA}, 320')
    A(f's_add_u32 s64, s64, s3')
    A(f's_lshl_b32 s63, s{sW}, 10')
    for i in range(10):
        cid = tid + 256*i
        row = (cid*3277) >> 16
        X.set(vT0, row*1280 + (cid - row*20)*16)
        A('s_mov_b32 m0, s63')
        A(f's_add_u32 s63, s63, 4096')
        A(f'buffer_load_dwordx4 v{vT0}, {wt}, s64 offen lds')
    if P.get('rot'): rot_verify(A, 24, 60, sTO, 'chain_abort10')
    for q in range(4): X.set(vSent4+q, -1)
    S4 = f'v[{vSent4}:{vSent4+3}]'
    srd(A, sWT, 72, NM*DM*2)
    idn = lambda: j*20 + tid
    X.set(vT2, X.sel(('lt', tid, 20), (idn() & 7)*1280 + (idn() >> 3)*16, OOB))
    A(f'buffer_load_dwordx4 v[{vS}:{vS+3}], v{vT2}, {wt}, 0 offen')
    per = -(-(WS_FILL_END - WS_FILL_BEG) // (128 * 4096))
    X.set(vT1, (G*32 + j)*(per*4096) + tid*16 + WS_FILL_BEG)
    A(f's_mov_b32 s{sWS+2}, {WS_FILL_END:#x}')
    for r in range(per):
        A(f'buffer_store_dwordx4 {S4}, v{vT1}, {WS}, 0 offen sc1')
        A(f'v_add_u32 v{vT1}, 4096, v{vT1}')
    A(f's_mov_b32 s{sWS+2}, {WS_SIZE:#x}')
    A('s_sub_u32 s60, 0, s26')
    A('s_and_b32 s60, s60, 0x1fffff')
    A(f's_add_u32 s60, s60, {WS_X2}')
    X.set(vT1, X.sel(('lt', G*32 + j, 120), (G*32 + j)*16384 + tid*16, OOB))
    for r in range(4):
        A(f'buffer_store_dwordx4 {S4}, v{vT1}, {WS}, s60 offen sc1')
        A('s_add_u32 s60, s60, 4096')
    X.set(vS+4, X.sel(('lt', tid, 20), idn()*16 + G*X3_G + WS_X3, OOB))
    X.set(vM2, -2)
    clt8 = ('lt', c, 8); glt2 = ('lt', g, 2); wlt2 = ('lt', w, 2); w0 = ('eq', w, 0)
    X.set(vT0, 0x3f803f80)
    for q in range(4): A(f'v_accvgpr_write_b32 a{aOne+q}, v{vT0}')
    X.set(vT0, X.sel(glt2, 0x3f803f80, 0))
    for q in range(2): A(f'v_accvgpr_write_b32 a{aOneM+q}, v{vT0}')
    slot = lambda: (g*8 + (c & 7))*16
    X.set(vX3ld, X.sel(wlt2, w*3072, w*2048 + 2048) + L16)
    X.set(vMemR, slot() + (c >> 3)*512)
    X.set(vKr, slot() + L_K)
    X.set(vQr, X.sel(clt8, L_Q, L_QX) + slot())
    tq = lambda: (a_ & 2) + (w & 1)
    tt = lambda: a_ & 1
    X.set(vX1st, X.sel(clt8, tq()*1024 + (w >> 1)*512 + slot() + tt()*8, OOB))
    X.set(vV1st, X.sel(('eq', g >> 1, w >> 1), a_*1024 + L16 + (w & 1)*8 + 4096, OOB))
    X.set(vVMld, w*1024 + L16 + 4096)
    X.set(vQKld, w*1024 + L16)
    X.set(vOw, w*1024 + L16 + L_O)
    X.set(vQKw, X.sel(glt2, L_Q, L_K - 512) + w*512 + L16)
    X.set(vT0, (a_*20 + w*4 + (c >> 1))*4096 + ((c & 1)*4 + g)*16)
    X.set(vT1, (a_*20 + 16 + w*2 + ((c >> 2) & 1))*4096 + (((c >> 1) & 1)*4 + g)*16)
    X.set(vT1, X.sel(('eq', (c & 1) + (w & 2), 0), X.reg(vT1), OOB))
    X.set(vX2st, X.sel(clt8, X.reg(vT0), X.reg(vT1)) + h*128)
    xs = X.reg(vX2st)
    X.set(vSR, X.sel(('lt', xs, OOB), (xs >> 13)*16384 + (xs & 8191), OOB))
    X.set(vOFst, X.sel(clt8, OOB, ((a_ >> 1)*128 + h*4 + w)*1024 + tt()*128 + L16 - 128))
    X.set(vT0, X.sel(('lt', j, 16), j*3 + X.sel(wlt2, 2, w & 1), j*2 + 16 + (w & 1)))
    U = X.reg(vT0)
    x2a = lambda Uq, Lq: (Uq*4096 if Lq == 3 else (Uq >> 1)*16384 + (Uq & 1)*4096) + L16 + ((G + (Lq+1)) & 3)*1024
    lo = [lambda: (a_*20 + (L >> 3))*4096 + h*128 + (L & 7)*16,
          lambda: X.sel(('lt', L, 32), X.reg(vR), OOB),
          lambda: a_*2048 + L16,
          lambda: X.sel(('lt', L, 20), j*320 + L16, OOB)]
    for i in range(4):
        X.set(vR+i, X.sel(w0, lo[i](), x2a(U, i)))
    X.set(vR+4, X.sel(('lt', L, 32), a_*4096 + L*128, X.sel(('lt', L, 48), a_*2048 + L*128 + (16384 - 4096), OOB)))
    X.set(vR+5, X.sel(w0, X.sel(('eq', L + j + G, 0), 0, OOB), h*16 + (L & 3)*4 + WS_QP))
    X.set(vR+6, X.sel(('eq', L, 0), 0, OOB))
    if P['pt']: X.set(vKXr, X.sel(('lt', L, 2), ((U + L) >> 1)*16384 + ((U + L) & 1)*4096 + G*1024, OOB))
    X.set(vRinv1, (U + (g >> 1))*8 + (g & 1)*4 + ((c & 7) >> 1))
    frag_addr(vRinv, X.reg(vRinv1))
    X.set(vR+8, X.sel(('eq', (c >> 3) + (g >> 1), 0), X.reg(vRinv) + (c & 1)*8, OOB))
    for q in range(4):
        X.set(vT1, X.sel(('eq', c >> 1, q), X.sel(('eq', c & 1, 0), 0x3f80, 0x3f800000), 0))
        A(f'v_accvgpr_write_b32 a{aSel+q if q < 4 else aSelH+q-4}, v{vT1}')
    X.set(vT1, X.sel(clt8, 63, a_*8 + c - 8))
    for kt in range(2):
        for r in range(4):
            X.set(vBias+4*kt+r, X.sel(('gt', g*4 + (16*kt + r), X.reg(vT1)), f2u(NEG), 0))
    trb = lambda: (g*8 + ((L >> 2) & 3))*64 + ((w & 1) ^ (g & 1))*32 + (L & 3)*8
    X.set(TA_, trb() + (w >> 1)*40960 + 40960)
    X.set(TV, trb() + (w >> 1)*2048 + 122880)
    wob = lambda: (g*4 + ((L >> 2) & 3))*320 + (L & 3)*8
    X.set(TO1, wob() + w*64)
    X.set(TO2, wob() + (w & 1)*32 + 256)
    X.set(vP+1, X.sel(('eq', tid, 0), 0, OOB))
    X.set(vP+2, (L & 31)*4)
    X.set(vDbg, X.sel(('lt', L, 16), L*4, OOB))
    A(f's_mov_b32 s{sOF}, {WS_OF}')
    A(f's_cmp_lt_u32 s{sJ}, 16')
    A(f's_cselect_b32 s{sNH}, 3, 2')
    A(f's_mov_b32 s{sC2}, {f2u(QSCALE):#x}')
    A(f's_mov_b32 s{sC2+1}, {f2u(QSCALE):#x}')
    A(f's_mul_i32 s{sX3G}, s{sG}, {X3_G}')
    A(f's_add_u32 s{sX3G}, s{sX3G}, {WS_X3}')
    A(f's_lshl_b32 s{sX1H}, s{sH}, 13')
    A(f's_add_u32 s{sX1H}, s{sX1H}, {WS_X1}')
    A(f's_mul_i32 s{sHoff}, s{sH}, {XH}')
    A(f's_add_u32 s{sHoff}, s{sHoff}, {WS_KX}')
    A(f's_lshl_b32 s75, s{sG}, 5')
    A(f's_add_u32 s75, s75, s{sJ}')
    A(f's_lshl_b32 s{sDB}, s75, 2')
    A(f's_add_u32 s{sDB}, s{sDB}, s{sW}')
    A(f's_lshl_b32 s{sDB}, s{sDB}, 12')
    A(f's_add_u32 s{sDB}, s{sDB}, {WS_DBG:#x}')
    A(f's_lshl_b32 s{sKXm}, s{sW}, 11')
    A(f's_lshl_b32 s{sQXr}, s{sA}, 11')
    A(f's_add_u32 s{sQXr}, s{sQXr}, s{sHoff}')
    A(f's_add_u32 s{sQXr}, s{sQXr}, 16384')
    A(f's_add_u32 s{sXr}, s{sHoff}, s{sKXm}')
    A(f's_mov_b32 s{sLrng}, {f2u(2.0**64) - f2u(2.0**-60):#x}')
    A(f's_add_u32 s{sWarm}, s{sHoff}, {XSEG}')
    pst()
    A('s_waitcnt vmcnt(0)')
    for k in range(4): A(f'v_min_u32 v{vS+k}, -2, v{vS+k}')
    A(f'buffer_store_dwordx4 v[{vS}:{vS+3}], v{vS+4}, {WS}, 0 offen sc1')
    A('s_barrier')
    pst()
    for t in range(20):
        A(f'ds_read_b64_tr_b16 a[{4*t}:{4*t+1}], v{TA_} offset:{2048*t}')
        A(f'ds_read_b64_tr_b16 a[{4*t+2}:{4*t+3}], v{TA_} offset:{2048*t+256}')
        if t % 4 == 3: A('s_waitcnt lgkmcnt(4)')
    for i in range(10):
        A(f'ds_read_b64_tr_b16 a[{80+4*i}:{80+4*i+1}], v{TV} offset:{4096*i}')
        A(f'ds_read_b64_tr_b16 a[{80+4*i+2}:{80+4*i+3}], v{TV} offset:{4096*i+256}')
        if i % 4 == 3: A('s_waitcnt lgkmcnt(4)')
    for k in range(3):
        for t in range(4):
            r, o = (TO1, 32*320*t + 32*k) if k < 2 else (TO2, 32*320*t)
            A(f'ds_read_b64_tr_b16 v[{vWO+16*k+4*t}:{vWO+16*k+4*t+1}], v{r} offset:{o}')
            A(f'ds_read_b64_tr_b16 v[{vWO+16*k+4*t+2}:{vWO+16*k+4*t+3}], v{r} offset:{o+16*320}')
        A('s_waitcnt lgkmcnt(0)')
    pst()
    srd(A, sWT, 24, 256)
    wait_start(A, wt, vT0, 74, sTO, 'start_ok', 'chain_abort10', sleep=4)
    pst()
    NS0 = 0
    x2_table(A, X, L, vX2tab, 74, 26, vT1)
    if P.get('dbgout'): A('s_mov_b32 s98, s74')
    A(f's_getreg_b32 s74, hwreg(HW_REG_XCC_ID, 0, 4)')
    A(f's_lshl_b32 s3, s75, 2')
    A(f's_add_u32 s3, s3, {WS_TAB}')
    A(f'v_mov_b32 v{vT1}, s74')
    A(f'buffer_store_dword v{vT1}, v{vP+1}, {WS}, s3 offen sc1')
    if NS0 == 0:
        A(f's_cmp_lg_u32 s{sW}, 1')
        A('s_cbranch_scc1 qp0_ok')
        A(f's_mov_b32 s{sT1}, 1')
        qp_wait(A, 'qp0', 'qp0_ok', shifts=(2,))
        A.label('qp0_ok')
        A('s_barrier')
    A(f's_mov_b32 s{sQok}, {NS0 // 2}')
    pst()
    A(f's_mov_b32 s{sZn}, 2')
    A(f's_mov_b32 s{sZo}, {WS_ZFLAG}')
    A(f's_lshl_b32 s3, s{sG}, 7')
    A(f's_add_u32 s3, s3, {WS_TAB}')
    A(f's_mov_b32 s60, {WS_TAB}')
    A(f'v_lshrrev_b32 v{vT2}, 1, v{vL16}')
    A.label('tab_poll')
    A(f'buffer_load_dwordx2 v[{vRinv}:{vRinv1}], v{vT2}, {WS}, s60 offen sc1')
    A(f'buffer_load_dword v{vT0}, v{vP+2}, {WS}, s3 offen sc1')
    A('s_waitcnt vmcnt(0)')
    emit(A, check_sent([vRinv, vRinv1, vT0], vT3))
    A('s_cbranch_vccz tab_ok')
    bounded(A, 'tab_poll', 5)
    A.label('tab_ok')
    pst()
    A(f'v_cmp_ne_u32 s[68:69], v{vT1}, v{vT0}')
    A(f's_mov_b32 s{sStep}, 0')
    emit(A, kv_list())
    A(f's_cmp_lg_u32 s{sW}, 1')
    A('s_cbranch_scc1 no_q0')
    emit(A, qx_list())
    A(f'buffer_load_dword v{vM}, v{vR+4}, {WS}, s{sWarm} offen sc1')
    A(f's_add_u32 s{sWarm}, s{sWarm}, {XSEG}')
    A.label('no_q0')
    emit(A, slot_list(0))
    A(f'v_readlane_b32 s{sXw}, v{vX2tab}, 4')
    A(f's_xor_b32 s{sXw}, s{sXw}, 8192')
    for k in range(5): A(f's_mov_b32 s{sCnt+k}, 0')
    for mode in ('f', 's'):
        if mode == 'f':
            A('s_cmp_lg_u64 s[68:69], 0')
            A('s_cbranch_scc1 disp_s')
        else:
            A.label('disp_s')
        A(f's_cmp_eq_u32 s{sW}, 0')
        A(f's_cbranch_scc1 j_{mode}D')
        A(f's_cmp_eq_u32 s{sW}, 2')
        A(f's_cbranch_scc1 j_{mode}B')
        A(f's_cmp_eq_u32 s{sW}, 3')
        A(f's_cbranch_scc1 j_{mode}C')
        A(f's_cmp_eq_u32 s{sNH}, 3')
        A(f's_cbranch_scc1 j_{mode}E')
        A(f's_branch entry_{mode}A')
        for r in 'BDEC':
            A.label(f'j_{mode}{r}')
            A(f's_branch entry_{mode}{r}')
    for mode, fl in (('f', ''), ('s', ' sc1')):
        for role in 'DABEC':
            gen_loop(A, mode + role, fl, role, stamps, P)
    A.label('chain_abort10')
    A(f's_mov_b32 s{sT0}, 10')
    A.label('chain_abort')
    srd(A, sWT, 24, 256)
    A(f'v_mov_b32 v{vT0}, s{sT0}')
    A(f'v_mov_b32 v{vT1}, 0')
    A(f'buffer_store_dword v{vT0}, v{vT1}, {wt}, 0 offen')
    A('s_endpgm')
```

```python
import sys, json
from g import *
from layout import *
import k8_chain as k7_chain, k8_bulk as k7_bulk
from k7_common import sOrig, sRot
NAME = 'recurrent_scan__memory_aug_recurrent_mem_tr__glu_gated_swiglu__prompt'
def build(stamps=0, P=None, aslist=True):
    P = dict(dict(k7_chain.DEFAULT_P, calrep=7, cpfb=6), **(P or {}))
    hdr = open(f'cdna_kernels/{NAME}.s.ref').read().split('\n')
    hdr = [l for l in hdr if l.startswith(';') and '@launch' not in l and 'Override' not in l and 'grid=ceil' not in l]
    kn = NAME + '_kernel'
    launch = f'; @launch {"kernel="+kn+" " if aslist else ""}grid=(256,1,1) block=(256,1,1) lds={k7_chain.LDS_BYTES}'
    A = Asm()
    A.raw('.amdgcn_target "amdgcn-amd-amdhsa--gfx950"')
    A.raw('.text')
    kernel_begin(A, kn)
    A('s_cmp_ge_u32 s2, 256')
    A('s_cbranch_scc0 k_go')
    A('s_endpgm')
    A.label('k_go')
    if P.get('rot'):
        A('s_getreg_b32 s3, hwreg(HW_REG_XCC_ID, 0, 3)')
        A(f's_mov_b32 s{sOrig}, s2')
        A(f's_sub_u32 s{sRot}, s3, s2')
        A(f's_and_b32 s{sRot}, s{sRot}, 7')
        A(f's_or_b32 s{sRot}, s{sRot}, 0x100')
        A('s_cmp_lg_u32 s2, 0')
        A('s_cbranch_scc1 k_role')
        A('s_load_dwordx2 s[4:5], s[0:1], 96')
        A(f's_mov_b32 s6, s{sRot}')
        A('s_waitcnt lgkmcnt(0)')
        A(f's_atomic_or s6, s[4:5], {DBG_ROT}')
        A.label('k_role')
        A(f's_add_u32 s3, s{sOrig}, s{sRot}')
        A('s_and_b32 s3, s3, 7')
        A(f's_andn2_b32 s2, s{sOrig}, 7')
        A('s_or_b32 s2, s2, s3')
    A('s_and_b32 s3, s2, 4')
    A('s_cbranch_scc0 chain_go')
    A('s_branch bulk_entry')
    A.label('chain_go')
    k7_chain.gen_chain(A, stamps, P)
    k7_bulk.gen_bulk(A, stamps, P)
    return '\n'.join(hdr + [launch]) + '\n' + A.text() + '.section .rodata,"a"\n' + kernel_desc(kn, 512, 256, 102)
if __name__ == '__main__':
    out = sys.argv[1]
    stamps = int(sys.argv[2]) if len(sys.argv) > 2 else 0
    P = json.loads(sys.argv[3]) if len(sys.argv) > 3 else None
    open(out, 'w').write(build(stamps=stamps, P=P, aslist='cdna_kernels' not in out))
```

```python
from g import *
from layout import *
import struct, math
def f2u(x): return struct.unpack('<I', struct.pack('<f', x))[0]
QSCALE = (128 ** -0.5) * math.log2(math.e)
def M32(d, a_, b_, c_): return f'v_mfma_f32_16x16x32_bf16 {d}, {a_}, {b_}, {c_}'
def M16(d, a_, b_, c_): return f'v_mfma_f32_16x16x16_bf16 {d}, {a_}, {b_}, {c_}'
def check_sent(regs, t):
    regs = list(regs); o = []
    if len(regs) == 2:
        o.append(f'v_max_u32 v{t}, v{regs[0]}, v{regs[1]}')
    else:
        o.append(f'v_max3_u32 v{t}, v{regs[0]}, v{regs[1]}, v{regs[2]}')
        rest = regs[3:]
        while rest:
            if len(rest) >= 2:
                o.append(f'v_max3_u32 v{t}, v{t}, v{rest[0]}, v{rest[1]}'); rest = rest[2:]
            else:
                o.append(f'v_max_u32 v{t}, v{t}, v{rest[0]}'); rest = rest[1:]
    o.append(f'v_cmp_eq_u32 vcc, -1, v{t}')
    return o
def emit(A, lst):
    for l in lst:
        if l.endswith(':'): A.label(l[:-1])
        else: A(l)
def nvm(lst):
    n = 0
    for l in lst:
        if isinstance(l, tuple): l = l[1]
        if l.startswith('buffer_'): n += 1
    return n
def weave(prim, fill, per=2):
    out = []; fill = list(fill); n = 0
    for p in prim:
        out.append(p)
        if p.startswith('v_mfma'):
            n += 1; k = 0
            while fill and k < per:
                f = fill[0]
                if isinstance(f, tuple):
                    if f[0] > n: break
                    f = f[1]
                out.append(f); fill.pop(0)
                k += 0.67 if f.startswith('s_') else 1
    for f in fill:
        out.append(f[1] if isinstance(f, tuple) else f)
    return out
def wait_start(A, dsrd, vt, sdst, sto, okl, abort, sleep=2):
    top = A.newlabel('ws')
    A.label(top)
    A(f'v_mov_b32 v{vt}, 0')
    A(f'buffer_load_dword v{vt}, v{vt}, {dsrd}, 0 offen offset:{DBG_GO} sc1')
    A('s_waitcnt vmcnt(0)')
    A(f'v_readfirstlane_b32 s{sdst}, v{vt}')
    A(f's_cmp_lt_i32 s{sdst}, 0')
    A(f's_cbranch_scc1 {okl}')
    A(f's_sleep {sleep}')
    A(f's_sub_u32 s{sto}, s{sto}, 1')
    A(f's_cbranch_scc0 {top}')
    A(f's_branch {abort}')
    A.label(okl)
def x2_table(A, X, L, dst, smask, sws_lo, t):
    X.set(t, (L*21846) >> 16)
    A(f'v_lshrrev_b32 v{dst}, v{t}, s{smask}' if False else f'v_mov_b32 v{dst}, s{smask}')
    A(f'v_lshrrev_b32 v{dst}, v{t}, v{dst}')
    X.set(dst, (X.reg(t) << 21) + (L - X.reg(t)*3)*655360 + ((X.reg(dst) & 1) << 13))
    A(f's_sub_u32 s3, 0, s{sws_lo}')
    A('s_and_b32 s3, s3, 0x1fffff')
    A(f's_add_u32 s3, s3, {WS_X2}')
    A(f'v_add_u32 v{dst}, s3, v{dst}')

N_ARRIVE = 64 + 22
def arrive(A, dsrd, vt, vz, stmp, done):
    A(f'v_mov_b32 v{vt}, 1')
    A(f'buffer_atomic_add v{vt}, v{vz}, {dsrd}, 0 offen offset:{DBG_CNT} sc0')
    A('s_waitcnt vmcnt(0)')
    A(f'v_readfirstlane_b32 s{stmp}, v{vt}')
    A(f's_cmp_lg_u32 s{stmp}, {N_ARRIVE-1}')
    A(f's_cbranch_scc1 {done}')
    A(f'v_mov_b32 v{vt}, 0')
    A(f'buffer_atomic_or v{vt}, v{vz}, {dsrd}, 0 offen offset:{DBG_MASK} sc0')
    A('s_waitcnt vmcnt(0)')
    A(f'v_or_b32 v{vt}, 0x80000000, v{vt}')
    A(f'buffer_store_dword v{vt}, v{vz}, {dsrd}, 0 offen offset:{DBG_GO} sc1')

def arrive_s(A, sbase, stmp, done):
    A(f's_mov_b32 s{stmp}, 1')
    A(f's_atomic_add s{stmp}, s[{sbase}:{sbase+1}], {DBG_CNT} glc')
    A('s_waitcnt lgkmcnt(0)')
    A(f's_cmp_lg_u32 s{stmp}, {N_ARRIVE-1}')
    A(f's_cbranch_scc1 {done}')
    A(f's_mov_b32 s{stmp}, 0')
    A(f's_atomic_or s{stmp}, s[{sbase}:{sbase+1}], {DBG_MASK} glc')
    A('s_waitcnt lgkmcnt(0)')
    A(f's_or_b32 s{stmp}, s{stmp}, 0x80000000')
    A(f's_atomic_or s{stmp}, s[{sbase}:{sbase+1}], {DBG_GO}')
    A('s_waitcnt lgkmcnt(0)')

def code_prefetch(A, vt, lines):
    A('s_getpc_b64 s[64:65]')
    A('s_lshr_b32 s3, s2, 3')
    A(f's_mul_i32 s3, s3, {lines*128}')
    A(f'v_lshlrev_b32 v{vt}, 7, v0')
    A(f'v_add_u32 v{vt}, s3, v{vt}')
    A(f'v_cmp_gt_u32 vcc, {lines}, v0')
    A('s_and_saveexec_b64 s[66:67], vcc')
    lab = A.newlabel('cpf')
    A(f's_cbranch_execz {lab}')
    A(f'global_load_dword v{vt+1}, v{vt}, s[64:65]')
    A.label(lab)
    A('s_mov_b64 exec, s[66:67]')

def lin_touch(A, X, tid, vt, srdn, ptrs):
    A('s_mul_i32 s3, s2, 20480')
    X.set(vt, X.sel(('lt', tid, 160), tid*128, OOB))
    for i, p in enumerate(ptrs):
        srd(A, srdn, p, DM*4096*2)
        A(f'buffer_load_dword v{vt+1+i}, v{vt}, s[{srdn}:{srdn+3}], s3 offen')

sOrig, sRot, sDbgP = 93, 99, 68
def rot_poll(A, sbase, stmp, sto, abort):
    top, ok = A.newlabel('rp'), A.newlabel('ro')
    A(f's_load_dword s{stmp}, s[{sbase}:{sbase+1}], {DBG_ROT}')
    A('s_waitcnt lgkmcnt(0)')
    A(f's_cmp_lg_u32 s{stmp}, 0')
    A(f's_cbranch_scc1 {ok}')
    A.label(top)
    A(f's_load_dword s{stmp}, s[{sbase}:{sbase+1}], {DBG_ROT} glc')
    A('s_waitcnt lgkmcnt(0)')
    A(f's_cmp_lg_u32 s{stmp}, 0')
    A(f's_cbranch_scc1 {ok}')
    A('s_sleep 16')
    A(f's_sub_u32 s{sto}, s{sto}, 1')
    A(f's_cbranch_scc0 {top}')
    A(f's_branch {abort}')
    A.label(ok)
def rot_verify(A, sbase, stmp, sto, abort):
    rot_poll(A, sbase, stmp, sto, abort)
    ok = A.newlabel('rv')
    A(f's_cmp_eq_u32 s{stmp}, s{sRot}')
    A(f's_cbranch_scc1 {ok}')
    A(f's_mov_b32 s{sRot}, s{stmp}')
    A('s_waitcnt vmcnt(0)')
    A('s_barrier')
    A('s_branch k_role')
    A.label(ok)
```

```python
from k7_common import *
LOG2E = math.log2(math.e)
sWS, sR1, sR2, sR3, sR4 = 4, 8, 12, 16, 20
sM = 92
sC2 = 24
sW, sB, sN, sO1, sO2, sLB, sT0, sT1, sTO, sTile, sNG, sRB, sZs, sQ = 30, 31, 32, 33, 34, 35, 36, 37, 38, 39, 40, 41, 42, 43
WS = f's[{sWS}:{sWS+3}]'
R1, R2, R3, R4 = [f's[{r}:{r+3}]' for r in (sR1, sR2, sR3, sR4)]
vL16, vD1, vD2, vD3, vR1, vT0, vT1, vT2, vT3 = 1, 2, 3, 4, 5, 6, 7, 8, 9
vGo, vXo, vRw, vRr, vFl, vZt, vZf = 10, 11, 12, 13, 14, 15, 16
vZu = 17
vH = 24
vA1 = 32
vWF = 64
vY = 84
vR1b = 100
vR2n = 112
vOF = 112
F = 244

def rbf2(A, x, y, t):
    A(f'v_cvt_pk_bf16_f32 v{t}, v{x}, v{y}')
    A(f'v_lshlrev_b32 v{x}, 16, v{t}')
    A(f'v_and_b32 v{y}, 0xffff0000, v{t}')
def rbf(A, x):
    A(f'v_cvt_pk_bf16_f32 v{x}, v{x}, v{x}')
    A(f'v_and_b32 v{x}, 0xffff0000, v{x}')
def silu(A, x, t):
    A(f'v_mul_f32 v{t}, {f2u(-LOG2E):#x}, v{x}')
    A(f'v_exp_f32 v{t}, v{t}')
    A('s_nop 0')
    A(f'v_add_f32 v{t}, 1.0, v{t}')
    A(f'v_rcp_f32 v{t}, v{t}')
    A('s_nop 0')
    A(f'v_mul_f32 v{x}, v{x}, v{t}')
def xsum_g(A, x, t):
    for sw in ('16', '32'):
        A(f'v_mov_b32 v{t}, v{x}')
        A.nop(2)
        A(f'v_permlane{sw}_swap_b32 v{t}, v{x}')
        A.nop(1)
        A(f'v_add_f32 v{x}, v{x}, v{t}')
def spin_flags(A, lab, ok, off, sleep):
    A.label(lab)
    A(f's_mov_b32 s{sT0}, {off}')
    A(f'buffer_load_dwordx2 v[{vT0}:{vT1}], v{vFl}, {WS}, s{sT0} offen sc1')
    A('s_waitcnt vmcnt(0)')
    emit(A, check_sent([vT0, vT1], vT0))
    A(f's_cbranch_vccz {ok}')
    A(f's_sleep {sleep}')
    A(f's_sub_u32 s{sTO}, s{sTO}, 1')
    A(f's_cbranch_scc0 {lab}')
    A('s_branch bulk_abort')

def gen_bulk(A, stamps, P):
    nst = [0]
    def st():
        if stamps:
            A(f's_memrealtime s[{70+2*nst[0]}:{71+2*nst[0]}]'); A('s_waitcnt lgkmcnt(0)'); nst[0] += 1
    A.label('bulk_entry')
    st()
    if P['cpf']: code_prefetch(A, 252, P['cpfb'])
    A('s_load_dwordx4 s[44:47], s[0:1], 64')
    A('s_load_dwordx4 s[48:51], s[0:1], 80')
    A('s_load_dwordx4 s[52:55], s[0:1], 96')
    A('s_load_dwordx2 s[56:57], s[0:1], 40')
    A('s_load_dwordx4 s[60:63], s[0:1], 0')
    A('s_load_dwordx4 s[88:91], s[0:1], 16')
    A('s_load_dwordx2 s[58:59], s[0:1], 32')
    X = VX(A, 200, F, 3)
    A(f'v_lshrrev_b32 v{F+3}, 6, v0')
    A(f'v_and_b32 v{F}, 63, v0')
    A(f'v_readfirstlane_b32 s{sW}, v{F+3}')
    A(f'v_bfe_u32 v{F+1}, v0, 4, 2')
    A(f'v_and_b32 v{F+2}, 15, v0')
    A(f's_lshr_b32 s{sB}, s2, 3')
    A(f's_lshl_b32 s{sB}, s{sB}, 2')
    A(f's_and_b32 s{sQ}, s2, 3')
    A(f's_add_u32 s{sB}, s{sB}, s{sQ}')
    A(f'v_mov_b32 v{F+4}, s{sB}')
    A(f's_lshl_b32 s{sM}, s{sQ}, 5')
    A(f's_lshr_b32 s3, s{sB}, 2')
    A(f's_add_u32 s{sM}, s{sM}, s3')
    A(f'v_mov_b32 v{F+5}, s{sM}')
    L, g, c, w, b, m_ = [X.reg(F+i) for i in range(6)]
    tid = X.reg(0)
    A(f's_mov_b32 s{sTO}, 0x400000')
    X.set(vL16, L*16)
    L16 = X.reg(vL16)
    n_ = lambda: m_ >> 1
    X.set(vT0, (n_()*32 + c)*1280 + w*320 + g*16)
    X.set(vD1, (L >> 3)*8192 + ((((L >> 1) & 3) ^ (((L >> 4) & 1) | ((w & 1) << 1)))*2 + (L & 1))*16 + (m_ >> 2)*256 + (m_ & 2)*64)
    A('s_waitcnt lgkmcnt(0)')
    srd(A, sWS, 54, WS_SIZE)
    srd(A, sR1, 60, S_TOK*DM*2)
    srd(A, sR4, 52, 256)
    X.set(vZf, X.sel(('eq', tid, 0), 0, OOB))
    X.set(vFl, L*8)
    A(f's_and_b32 s3, s{sM}, 1')
    A('s_cbranch_scc0 b_even')
    XR, XR2, FL = 32, 112, 64
    A('s_movk_i32 s26, 0x5000')
    for t in range(5):
        A(f'buffer_load_dwordx4 v[{XR+4*t}:{XR+4*t+3}], v{vT0}, {R1}, 0 offen offset:{64*t}')
    for t in range(5):
        A(f'buffer_load_dwordx4 v[{XR2+4*t}:{XR2+4*t+3}], v{vT0}, {R1}, s26 offen offset:{64*t}')
    if P['lin']: lin_touch(A, X, tid, 160, sR2, (88, 90, 58, 56))
    X.set(vT1, n_()*40960 + w*5120 + L16 + WS_XN)
    X.set(vRw, w*64 + c*4)
    X.set(vRr, c*4)
    A(f's_mov_b32 s{sN}, 0')
    A('s_waitcnt vmcnt(0)')
    A.label('ln_loop')
    for k in range(20):
        A(f'v_lshlrev_b32 v{FL+2*k}, 16, v{XR+k}')
        A(f'v_and_b32 v{FL+2*k+1}, 0xffff0000, v{XR+k}')
    A(f'v_add_f32 v{vT2}, v{FL}, v{FL+1}')
    for k in range(2, 40): A(f'v_add_f32 v{vT2}, v{vT2}, v{FL+k}')
    def wg_sum(dst, off):
        xsum_g(A, vT2, vT3)
        A(f'ds_write_b32 v{vRw}, v{vT2} offset:{off}')
        A('s_waitcnt lgkmcnt(0)')
        A('s_barrier')
        for k in range(4): A(f'ds_read_b32 v{dst+k}, v{vRr} offset:{off+64*k}')
        A('s_waitcnt lgkmcnt(0)')
        A(f'v_add_f32 v{dst}, v{dst}, v{dst+1}')
        A(f'v_add_f32 v{dst+2}, v{dst+2}, v{dst+3}')
        A(f'v_add_f32 v{dst}, v{dst}, v{dst+2}')
        A(f'v_mul_f32 v{dst}, {f2u(1.0/640):#x}, v{dst}')
    MN, VR = 104, 108
    wg_sum(MN, 0)
    A(f'v_sub_f32 v{vT3}, v{FL}, v{MN}')
    A(f'v_mul_f32 v{vT2}, v{vT3}, v{vT3}')
    for k in range(1, 40):
        A(f'v_sub_f32 v{vT3}, v{FL+k}, v{MN}')
        A(f'v_fmac_f32 v{vT2}, v{vT3}, v{vT3}')
    wg_sum(VR, 256)
    rbf(A, VR)
    A(f'v_add_f32 v{VR}, 0x3727c5ac, v{VR}')
    rbf(A, VR)
    A(f'v_sqrt_f32 v{VR}, v{VR}')
    A.nop(1)
    rbf(A, VR)
    A(f'v_rcp_f32 v{VR}, v{VR}')
    rbf(A, MN)
    A(f'v_mov_b32 v{MN+1}, v{MN}')
    A(f'v_mov_b32 v{VR+1}, v{VR}')
    YR = 136
    for k in range(20):
        A(f'v_pk_add_f32 v[{FL+2*k}:{FL+2*k+1}], v[{FL+2*k}:{FL+2*k+1}], v[{MN}:{MN+1}] neg_lo:[0,1] neg_hi:[0,1]')
        rbf2(A, FL+2*k, FL+2*k+1, vT3)
        A(f'v_pk_mul_f32 v[{FL+2*k}:{FL+2*k+1}], v[{FL+2*k}:{FL+2*k+1}], v[{VR}:{VR+1}]')
        A(f'v_cvt_pk_bf16_f32 v{YR+k}, v{FL+2*k}, v{FL+2*k+1}')
    A(f'v_add_u32 v{vT2}, 4096, v{vT1}')
    for t in range(5):
        A(f'buffer_store_dwordx4 v[{YR+4*t}:{YR+4*t+3}], v{vT1 if t < 4 else vT2}, {WS}, 0 offen offset:{1024*(t%4)} sc1')
    for k in range(20): A(f'v_mov_b32 v{XR+k}, v{XR2+k}')
    A(f'v_add_u32 v{vT1}, 20480, v{vT1}')
    A(f's_add_u32 s{sN}, s{sN}, 1')
    A(f's_cmp_lt_u32 s{sN}, 2')
    A('s_cbranch_scc1 ln_loop')
    if P.get('rot'): rot_verify(A, 52, 26, sTO, 'bulk_abort')
    for q in range(4): A(f'v_mov_b32 v{vH+q}, -1')
    X.set(vT1, X.sel(('lt', tid, 16), n_()*256 + tid*16 + WS_TAB, OOB))
    A(f'buffer_store_dwordx4 v[{vH}:{vH+3}], v{vT1}, {WS}, 0 offen sc1')
    A('s_waitcnt vmcnt(0)')
    A('s_barrier')
    A(f's_cmp_lg_u32 s{sW}, 0')
    A('s_cbranch_scc1 b_arrived')
    arrive_s(A, 52, 26, 'b_arrived')
    A('s_branch b_arrived')
    A.label('b_even')
    if P['coop']:
        for i in range(3):
            X.set(112+i, X.sel(('lt', tid + 256*i, 640), (((m_ >> 1) & 15)*40 + ((tid + 256*i) >> 4))*8192 + (m_ >> 5)*2048 + (tid & 15)*128, OOB))
        for mm, ptr in enumerate((88, 90, 58)):
            srd(A, sR2, ptr, DM*4096*2)
            for i in range(3): A(f'buffer_load_dword v{116+3*mm+i}, v{112+i}, {R2}, 0 offen')
    for _ in range(P['bdel']): A('s_sleep 32')
    if P['lin']: lin_touch(A, X, tid, 160, sR2, (88, 90, 58, 56))
    A.label('b_arrived')
    def stage(ptr, base):
        srd(A, sR2, ptr, DM*4096*2)
        A(f's_lshl_b32 s{sT0}, s{sW}, 10')
        A(f's_add_u32 s{sT0}, s{sT0}, {base}')
        A(f's_lshl_b32 s{sT1}, s{sW}, 16')
        for i in range(20):
            A(f's_mov_b32 m0, s{sT0}')
            A(f's_add_u32 s{sT0}, s{sT0}, 4096')
            A(f'buffer_load_dwordx4 v{vD1}, {R2}, s{sT1} offen lds')
            A(f's_add_u32 s{sT1}, s{sT1}, {4*65536}')
    stage(88, 0)
    stage(90, 81920)
    if not P['coop']:
        srd(A, sR2, 58, DM*4096*2)
        for i in range(3):
            X.set(vT1, X.sel(('lt', tid + 256*i, 640), (tid + 256*i)*8192 + (m_ >> 2)*256 + (m_ & 2)*64, OOB))
            A(f'buffer_load_dword v{112+i}, v{vT1}, {R2}, 0 offen')
    if P.get('rot'): rot_verify(A, 52, 26, sTO, 'bulk_abort')
    trb = lambda le: (g*8 + ((L >> 2) & 3))*128 + (le ^ (((L >> 3) & 1) | ((g & 1) << 1)))*32 + (L & 3)*8
    def trload(abase, R0):
        A(f'v_add_u32 v{vT3}, 0x10000, v{R0}')
        for t in range(20):
            r, o = (R0, 4096*t) if t < 16 else (vT3, 4096*(t-16))
            A(f'ds_read_b64_tr_b16 a[{abase+4*t}:{abase+4*t+1}], v{r} offset:{o}')
            A(f'ds_read_b64_tr_b16 a[{abase+4*t+2}:{abase+4*t+3}], v{r} offset:{o+512}')
            if t % 4 == 3: A('s_waitcnt lgkmcnt(4)')
    X.set(vR1, trb(w & 1) + (w >> 1)*81920)
    X.set(vD3, trb((w & 1) + 2) + (w >> 1)*81920)
    A(f's_waitcnt vmcnt({0 if P["coop"] else 3})')
    A('s_barrier')
    trload(0, vR1)
    trload(160, vD3)
    A('s_waitcnt lgkmcnt(0)')
    A('s_barrier')
    stage(58, 81920)
    X.set(vR1, trb(w) + 81920)
    A(f's_and_b32 s{sT0}, s{sB}, 15')
    A(f's_mul_i32 s{sT0}, s{sT0}, 5')
    A(f'v_mov_b32 v{vT0}, s{sT0}')
    for u in range(5):
        uu = X.reg(vT0) + u
        X.set(vZu+u, (uu >> 1)*16384 + (uu & 1)*4096 + tid*16)
    A('s_waitcnt vmcnt(0)')
    A('s_barrier')
    trload(80, vR1)
    A(f's_lshr_b32 s{sZs}, s{sB}, 4')
    def fill(nph, flag):
        for q in range(4): A(f'v_mov_b32 v{vH+q}, -1')
        for ph in range(nph):
            A(f'v_readlane_b32 s{sT0}, v{vZt}, s{sZs}')
            if flag == 0:
                A(f's_cmp_lt_u32 s{sZs}, 3')
                A(f's_cselect_b32 s{sT0}, {OOB:#x}, s{sT0}')
            A(f's_add_u32 s{sZs}, s{sZs}, 8')
            A.nop(4)
            for u in range(5):
                A(f'buffer_store_dwordx4 v[{vH}:{vH+3}], v{vZu+u}, {WS}, s{sT0} offen sc1')
        A('s_waitcnt vmcnt(0)')
        A('s_barrier')
        A(f's_lshl_b32 s{sT0}, s{sB}, 2')
        A(f's_add_u32 s{sT0}, s{sT0}, {WS_ZFLAG + 512*flag}')
        A(f'buffer_store_dword v{vZf}, v{vZf}, {WS}, s{sT0} offen sc1')
    A(f's_cmp_lt_u32 s{sW}, 2')
    A(f's_cselect_b32 s{sC2}, {f2u(QSCALE):#x}, 1.0')
    A(f's_mov_b32 s{sC2+1}, s{sC2}')
    tq = lambda: (m_ & 2) + (w & 1)
    X.set(vGo, X.sel(('lt', w, 2), (c >> 3)*2048 + tq()*512 + (g*8 + (c & 7))*16 + 16384, tq()*1024 + L16))
    X.set(vXo, ((m_ & 2)*2 + w)*1024 + L16 + 8192)
    X.set(vRr, X.sel(('eq', tid, 0), m_*4 + WS_QP, OOB))
    A(f's_and_b32 s3, s{sM}, 1')
    A(f's_mul_i32 s{sO1}, s3, 40960')
    A(f's_mul_i32 s{sLB}, s{sW}, 5120')
    A(f's_add_u32 s{sO1}, s{sO1}, {40960*P["ns0"]}')
    A(f's_add_u32 s{sO1}, s{sO1}, s{sLB}')
    A(f's_mul_i32 s{sO2}, s3, {XSEG}')
    A(f's_lshr_b32 s3, s{sM}, 2')
    A(f's_mul_i32 s3, s3, {XH}')
    A(f's_add_u32 s{sO2}, s{sO2}, s3')
    A(f's_add_u32 s{sO2}, s{sO2}, {WS_KX + XSEG*P["ns0"]}')
    A(f's_mov_b32 s{sN}, {P["ns0"]//2}')
    RG, XA, PK, PV = 40, 72, 84, 88
    def x_dma(buf, adv):
        o = [f's_add_u32 m0, s{sLB}, {20480*buf}', f's_add_u32 s{sT0}, s{sO1}, 4096']
        o += [f'buffer_load_dwordx4 v{vL16}, {WS}, s{sO1} offen offset:{1024*k} sc1 lds' for k in range(4)]
        o += [f's_add_u32 m0, s{sLB}, {20480*buf + 4096}', f's_add_u32 s{sO1}, s{sO1}, {adv}',
              f'buffer_load_dwordx4 v{vL16}, {WS}, s{sT0} offen sc1 lds']
        return o
    def x_tile(tt, young):
        A(f's_waitcnt vmcnt({young})')
        A('s_barrier')
        fl = x_dma(1 - tt, 61440 if tt == 0 else 20480)
        if tt == 1:
            fl = [f'v_mov_b32 v{vT0}, s{sN}', f'buffer_store_dword v{vT0}, v{vRr}, {WS}, 0 offen sc1'] + fl
        o = []
        rd = lambda t: f'ds_read_b128 v[{RG+4*(t%8)}:{RG+4*(t%8)+3}], v{vL16} offset:{20480*tt + 1024*t}'
        for t in range(6): o.append(rd(t))
        for t in range(20):
            o.append(f's_waitcnt lgkmcnt({min(20, t + 6) - t - 1})')
            f = v(RG + 4*(t % 8), 4)
            o.append(M32(v(XA, 4), a(4*t, 4), f, '0' if t == 0 else v(XA, 4)))
            o.append(M32(v(XA+4, 4), a(160+4*t, 4), f, '0' if t == 0 else v(XA+4, 4)))
            o.append(M32(v(XA+8, 4), f, a(80+4*t, 4), '0' if t == 0 else v(XA+8, 4)))
            if t + 6 < 20: o.append(rd(t + 6))
        emit(A, weave(o, fl, per=1))
        if tt: A(f's_add_u32 s{sT1}, s{sO2}, 4096')
        A.nop(6)
        for r in range(0, 8, 2): A(f'v_pk_mul_f32 v[{XA+r}:{XA+r+1}], v[{XA+r}:{XA+r+1}], s[{sC2}:{sC2+1}]')
        for r in range(4): A(f'v_cvt_pk_bf16_f32 v{PK+r}, v{XA+2*r}, v{XA+2*r+1}')
        A(f'buffer_store_dwordx4 v[{PK}:{PK+3}], v{vGo}, {WS}, s{sT1 if tt else sO2} offen sc1')
        for r in range(2): A(f'v_cvt_pk_bf16_f32 v{PV+2*tt+r}, v{XA+8+2*r}, v{XA+8+2*r+1}')
        if tt:
            A(f'buffer_store_dwordx4 v[{PV}:{PV+3}], v{vXo}, {WS}, s{sO2} offen sc1')
            A(f's_add_u32 s{sO2}, s{sO2}, {2*XSEG}')
            A(f's_add_u32 s{sN}, s{sN}, 1')
    wait_start(A, R4, vT0, 26, sTO, 'b_start', 'bulk_abort', sleep=2)
    emit(A, x_dma(0, 20480))
    x2_table(A, X, L, vZt, 26, 54, vT1)
    st()
    if P['ns0']: fill(1, 0)
    A('s_waitcnt vmcnt(0) lgkmcnt(0)')
    A.label('q_loop')
    x_tile(0, 2); x_tile(1, 1)
    A(f's_cmp_eq_u32 s{sN}, {P["ns0"]//2 + 1}')
    A('s_cbranch_scc1 q_fill0')
    A(f's_cmp_eq_u32 s{sN}, 6')
    A('s_cbranch_scc1 q_fill')
    A(f's_cmp_eq_u32 s{sN}, 16')
    A('s_cbranch_scc1 q_fill2')
    A.label('q_back')
    A(f's_cmp_lt_u32 s{sN}, 32')
    A('s_cbranch_scc1 q_loop')
    A('s_branch q_done')
    A.label('q_fill0')
    A('s_waitcnt vmcnt(0)')
    A('s_barrier')
    A(f'v_mov_b32 v{vT0}, s{sN}')
    A(f'buffer_store_dword v{vT0}, v{vRr}, {WS}, 0 offen sc1')
    if not P['ns0']: fill(1, 0)
    A('s_branch q_back')
    A.label('q_fill')
    fill(2, 1)
    A('s_branch q_back')
    A.label('q_fill2')
    fill(5, 2)
    A('s_branch q_back')
    A.label('q_done')
    A('s_waitcnt vmcnt(0)')
    A('s_barrier')
    A(f'v_mov_b32 v{vT0}, 64')
    A(f'buffer_store_dword v{vT0}, v{vRr}, {WS}, 0 offen sc1')
    st()
    srd(A, sR1, 44, DM*FF*2)
    srd(A, sR2, 46, DM*FF*2)
    srd(A, sR3, 48, FF*DM*2)
    jj, qq = (lambda: b >> 2), (lambda: b & 3)
    X.set(vT2, X.sel(('lt', tid, 160), ((tid >> 3)*32 + jj())*3456 + ((tid & 7)*4 + qq())*128, OOB))
    A(f'buffer_load_dword v{vWF}, v{vT2}, {R1}, 0 offen')
    A(f'buffer_load_dword v{vWF+1}, v{vT2}, {R2}, 0 offen')
    X.set(vT3, (tid*6554) >> 16)
    rr = X.reg(vT3)
    X.set(vT2, X.sel(('lt', tid, 140), (((rr >> 1)*4 + qq())*64 + (rr & 1)*32 + jj())*1280 + (tid - rr*10)*128, OOB))
    A(f'buffer_load_dword v{vWF+2}, v{vT2}, {R3}, 0 offen')
    A(f's_and_b32 s{sTile}, s{sB}, 0x7c')
    A(f's_add_u32 s{sTile}, s{sTile}, s{sW}')
    A(f's_mul_i32 s{sT0}, s{sTile}, 20480')
    for t in range(20):
        if t and t % 4 == 0: A(f's_add_u32 s{sT0}, s{sT0}, 4096')
        A(f'buffer_load_dwordx4 a[{4*t}:{4*t+3}], v{vL16}, {WS}, s{sT0} offen offset:{1024*(t%4)} sc1')
    st()
    X.set(vD1, (w*8 + (L >> 3))*3456 + ((((L >> 1) & 3) ^ (((L >> 4) & 1) | ((w & 1) << 1)))*2 + (L & 1))*16)
    for i, dst in enumerate((vD2, vD3)):
        X.set(dst, (w*8 + (L >> 4) + 4*i)*1280 + ((((L >> 1) & 7) ^ ((L >> 4) + 4*i))*2 + (L & 1))*16)
    for tl in range(4):
        X.set(vR1b+tl, (g*8 + ((L >> 2) & 3))*128 + ((((L >> 3) & 1) | ((g & 1) << 1)) ^ tl)*32 + (L & 3)*8)
        X.set(vR1b+4+tl, X.reg(vR1b+tl) + 65536)
    for n in range(8):
        X.set(vR2n+n, (g*4 + ((L >> 2) & 3))*256 + ((((g & 1)*4 + ((L >> 2) & 3)) ^ n)*32) + (L & 3)*8)
        X.set(vR2n+8+n, X.reg(vR2n+n) + 65536)
    A(f'v_mov_b32 v{vT0}, 0')
    for r in range(160): A(f'v_accvgpr_write_b32 a{80+r}, v{vT0}')
    A(f's_cmp_lt_u32 s{sQ}, 3')
    A(f's_cselect_b32 s{sN}, 7, 6')
    A(f's_lshl_b32 s{sO1}, s{sQ}, 7')
    A(f's_mul_i32 s{sO2}, s{sQ}, {64*1280}')
    A(f's_lshl_b32 s{sLB}, s{sW}, 10')
    A(f's_lshl_b32 s{sRB}, s{sW}, 11')
    NS, NC = 15, 30
    def issue(ci, nxt):
        o = []; lb = (ci % NS) * 8192
        if ci < 20:
            for m, sr in enumerate((R1, R2)):
                o.append(f's_add_u32 m0, s{sLB}, {lb + m*4096}')
                o.append(f's_add_u32 s{sT0}, s{sO1}, {ci*32*3456 + nxt*512}')
                o.append(f'buffer_load_dwordx4 v{vD1}, {sr}, s{sT0} offen lds')
        else:
            hb, cc = (ci - 20) // 5, (ci - 20) % 5
            for i in range(2):
                o.append(f's_add_u32 m0, s{sRB}, {lb + i*1024}')
                o.append(f's_add_u32 s{sT0}, s{sO2}, {hb*32*1280 + cc*256}')
                o.append(f'buffer_load_dwordx4 v{vD2 if i == 0 else vD3}, {R3}, s{sT0} offen lds')
        return o
    A('s_waitcnt vmcnt(0)')
    for ci in range(NS - 1): emit(A, issue(ci, 0))
    A.label('ffn_loop')
    for ci in range(NC):
        A(f's_waitcnt vmcnt({2*(NS-2)})')
        A('s_barrier')
        lb = (ci % NS) * 8192
        hi = 1 if lb >= 65536 else 0
        lb -= hi*65536
        nx = issue((ci + NS - 1) % NC, 1 if ci + NS - 1 >= NC else 0)
        mf = []
        if ci < 20:
            for n in range(8):
                m, tl = n >> 2, n & 3
                r = vWF + 4*n
                A(f'ds_read_b64_tr_b16 v[{r}:{r+1}], v{vR1b+4*hi+tl} offset:{lb + m*4096}')
                A(f'ds_read_b64_tr_b16 v[{r+2}:{r+3}], v{vR1b+4*hi+tl} offset:{lb + m*4096 + 512}')
            for n in range(8):
                mf.append(f's_waitcnt lgkmcnt({2*(7-n)})')
                mf.append(M32(v(vA1+4*n, 4), v(vWF+4*n, 4), a(4*ci, 4), '0' if ci == 0 else v(vA1+4*n, 4)))
        else:
            hb, cc = (ci - 20) // 5, (ci - 20) % 5
            for n in range(8):
                r = vWF + 4*n
                A(f'ds_read_b64_tr_b16 v[{r}:{r+1}], v{vR2n+8*hi+n} offset:{lb}')
                A(f'ds_read_b64_tr_b16 v[{r+2}:{r+3}], v{vR2n+8*hi+n} offset:{lb + 4096}')
            if ci == 20:
                for tl in range(4):
                    for r in (0, 2):
                        gx, ux = vA1 + 4*tl + r, vA1 + 16 + 4*tl + r
                        rbf2(A, gx, gx+1, vT0); rbf2(A, ux, ux+1, vT0)
                        silu(A, gx, vT0); silu(A, gx+1, vT1)
                        rbf2(A, gx, gx+1, vT0)
                        A(f'v_mul_f32 v{gx}, v{gx}, v{ux}')
                        A(f'v_mul_f32 v{gx+1}, v{gx+1}, v{ux+1}')
                        A(f'v_cvt_pk_bf16_f32 v{vH+2*tl+r//2}, v{gx}, v{gx+1}')
                A('s_nop 0')
            for n in range(8):
                ct = cc*8 + n
                mf.append(f's_waitcnt lgkmcnt({2*(7-n)})')
                mf.append(M32(a(80+4*ct, 4), v(vWF+4*n, 4), v(vH+4*hb, 4), a(80+4*ct, 4)))
        emit(A, weave(mf, nx, per=1))
    A(f's_add_u32 s{sO1}, s{sO1}, 512')
    A(f's_add_u32 s{sO2}, s{sO2}, {256*1280}')
    A(f's_sub_u32 s{sN}, s{sN}, 1')
    A(f's_cmp_lg_u32 s{sN}, 0')
    A('s_cbranch_scc1 ffn_loop')
    A('s_waitcnt vmcnt(0)')
    A('s_barrier')
    st()
    A(f's_lshl_b32 s{sT0}, s{sQ}, 7')
    A(f's_add_u32 s{sT0}, s{sT0}, s{sTile}')
    A(f's_mul_i32 s{sT0}, s{sT0}, 40960')
    A(f's_add_u32 s{sT0}, s{sT0}, {WS_G}')
    for ct in range(40):
        if ct and ct % 4 == 0: A(f's_add_u32 s{sT0}, s{sT0}, 4096')
        A(f'buffer_store_dwordx4 a[{80+4*ct}:{80+4*ct+3}], v{vL16}, {WS}, s{sT0} offen offset:{1024*(ct%4)} sc1')
    A('s_waitcnt vmcnt(0)')
    A('s_barrier')
    A(f's_lshl_b32 s{sT0}, s{sB}, 2')
    A(f's_add_u32 s{sT0}, s{sT0}, {WS_GFLAG}')
    A(f'buffer_store_dword v{vZf}, v{vZf}, {WS}, s{sT0} offen sc1')
    A(f's_cmp_ge_u32 s{sB}, 120')
    A('s_cbranch_scc1 bulk_end')
    A(f's_mul_i32 s{sTile}, s{sB}, 3277')
    A(f's_lshr_b32 s{sTile}, s{sTile}, 16')
    A(f's_mul_i32 s3, s{sTile}, 20')
    A(f's_sub_u32 s{sNG}, s{sB}, s3')
    srd(A, sR1, 56, 4096*DM*2)
    srd(A, sR2, 60, S_TOK*DM*2)
    srd(A, sR3, 50, S_TOK*DM*2)
    X.set(vD1, (L >> 2)*1280 + (L & 3)*16)
    X.set(vR1, w*40960 + (g*4 + ((L >> 2) & 3))*64 + (L & 3)*8)
    A(f's_mul_i32 s{sO1}, s{sW}, {1024*1280}')
    A(f's_lshl_b32 s3, s{sNG}, 6')
    A(f's_add_u32 s{sO1}, s{sO1}, s3')
    A(f's_mul_i32 s{sLB}, s{sW}, 40960')
    for rnd in range(2):
        for i in range(32):
            A(f's_add_u32 m0, s{sLB}, {1024*i}')
            A(f's_add_u32 s{sT1}, s{sO1}, {(rnd*512 + i*16)*1280}')
            A(f'buffer_load_dwordx4 v{vD1}, {R1}, s{sT1} offen lds')
        A('s_waitcnt vmcnt(0)')
        for t in range(16):
            for tl in range(2):
                r = ((rnd*16 + t)*2 + tl)*4
                A(f'ds_read_b64_tr_b16 a[{r}:{r+1}], v{vR1} offset:{t*2048 + tl*32}')
                A(f'ds_read_b64_tr_b16 a[{r+2}:{r+3}], v{vR1} offset:{t*2048 + tl*32 + 1024}')
            if t % 2 == 1: A('s_waitcnt lgkmcnt(4)')
        A('s_waitcnt lgkmcnt(0)')
    X.set(vRw, w*2048 + L16)
    X.set(vRr, (w & 1)*1024 + L16)
    X.set(vD2, w*32768 + L16)
    X.set(vGo, (w & 1)*1024 + L16)
    X.set(vXo, c*1280 + (w & 1)*32 + g*8)
    if stamps: X.set(vD3, X.sel(('lt', tid, 8), tid*4, OOB))
    spin_flags(A, 'g_poll', 'g_ok', WS_GFLAG, 8)
    A.label('g_ok')
    A('s_barrier')
    st()
    A(f's_mov_b32 s{sRB}, 0')
    A.label('op_loop')
    A(f's_lshr_b32 s{sT0}, s{sTile}, 1')
    A(f's_cmp_ge_u32 s{sT0}, 62')
    A('s_cbranch_scc1 op_final')
    A(f's_lshl_b32 s{sT0}, s{sT0}, 7')
    A(f's_add_u32 s{sT0}, s{sT0}, {WS_PROG}')
    A(f'v_mov_b32 v{vT2}, 0')
    A.label('p_poll')
    A(f'buffer_load_dword v{vT0}, v{vT2}, {WS}, s{sT0} offen sc1')
    A('s_waitcnt vmcnt(0)')
    A(f'v_cmp_eq_u32 vcc, -1, v{vT0}')
    A('s_cbranch_vccz op_go')
    A('s_sleep 8')
    A(f's_sub_u32 s{sTO}, s{sTO}, 1')
    A('s_cbranch_scc0 p_poll')
    A('s_branch bulk_abort')
    spin_flags(A, 'op_final', 'op_go', WS_FLAG, P.get('fsl', 2))
    A.label('op_go')
    A(f's_lshl_b32 s{sT0}, s{sTile}, 17')
    A(f's_add_u32 s{sT0}, s{sT0}, {WS_OF}')
    for t in range(32):
        if t and t % 4 == 0: A(f's_add_u32 s{sT0}, s{sT0}, 4096')
        A(f'buffer_load_dwordx4 v[{vOF+4*t}:{vOF+4*t+3}], v{vD2}, {WS}, s{sT0} offen offset:{1024*(t%4)} sc1')
    A(f's_mul_i32 s{sT0}, s{sTile}, 20480')
    A(f's_lshl_b32 s{sT1}, s{sNG}, 10')
    A(f's_add_u32 s{sT1}, s{sT1}, s{sT0}')
    A(f's_lshl_b32 s{sT1}, s{sT1}, 1')
    A(f's_add_u32 s{sT1}, s{sT1}, {WS_G}')
    for q in range(4):
        A(f'buffer_load_dwordx4 v[{vY+4*q}:{vY+4*q+3}], v{vGo}, {WS}, s{sT1} offen sc1')
        if q < 3: A(f's_add_u32 s{sT1}, s{sT1}, {128*40960}')
    A(f's_lshl_b32 s{sT1}, s{sNG}, 6')
    A(f's_add_u32 s{sO2}, s{sT1}, s{sT0}')
    A(f'buffer_load_dwordx2 v[{vH+2}:{vH+3}], v{vXo}, {R2}, s{sO2} offen')
    for t in range(32):
        A(f's_waitcnt vmcnt({36-t})')
        for tl in range(2):
            A(M32(v(vA1+4*tl, 4), a((2*t+tl)*4, 4), v(vOF+4*t, 4), '0' if t == 0 else v(vA1+4*tl, 4)))
    A(f'v_add_u32 v{vT2}, s{sRB}, v{vRw}')
    A(f'v_add_u32 v{vT3}, s{sRB}, v{vRr}')
    A.nop(6)
    A(f'ds_write_b128 v{vT2}, v[{vA1}:{vA1+3}]')
    A(f'ds_write_b128 v{vT2}, v[{vA1+4}:{vA1+7}] offset:1024')
    A(f's_xor_b32 s{sRB}, s{sRB}, 8192')
    A('s_waitcnt lgkmcnt(0)')
    A('s_barrier')
    A(f's_cmp_ge_u32 s{sW}, 2')
    A('s_cbranch_scc1 op_next')
    for p in range(4): A(f'ds_read_b128 v[{vWF+4*p}:{vWF+4*p+3}], v{vT3} offset:{2048*p}')
    A('s_waitcnt vmcnt(0) lgkmcnt(0)')
    for r in range(4):
        for bs in (vWF, vY):
            A(f'v_add_f32 v{bs+r}, v{bs+r}, v{bs+4+r}')
            A(f'v_add_f32 v{bs+8+r}, v{bs+8+r}, v{bs+12+r}')
            A(f'v_add_f32 v{bs+r}, v{bs+r}, v{bs+8+r}')
    for r in (0, 2):
        s0, s1 = vWF+r, vWF+r+1
        rbf2(A, vY+r, vY+r+1, vT0)
        silu(A, vY+r, vT0); silu(A, vY+r+1, vT1)
        rbf2(A, vY+r, vY+r+1, vT0)
        rbf2(A, s0, s1, vT0)
        A(f'v_mul_f32 v{s0}, v{s0}, v{vY+r}')
        A(f'v_mul_f32 v{s1}, v{s1}, v{vY+r+1}')
        rbf2(A, s0, s1, vT0)
        A(f'v_lshlrev_b32 v{vT0}, 16, v{vH+2+r//2}')
        A(f'v_and_b32 v{vT1}, 0xffff0000, v{vH+2+r//2}')
        A(f'v_add_f32 v{s0}, v{s0}, v{vT0}')
        A(f'v_add_f32 v{s1}, v{s1}, v{vT1}')
        A(f'v_cvt_pk_bf16_f32 v{vWF+16+r//2}, v{s0}, v{s1}')
    A(f'buffer_store_dwordx2 v[{vWF+16}:{vWF+17}], v{vXo}, {R3}, s{sO2} offen{P.get("outfl", "")}')
    A.label('op_next')
    A(f's_add_u32 s{sTile}, s{sTile}, 6')
    A(f's_cmp_lt_u32 s{sTile}, 128')
    A('s_cbranch_scc1 op_loop')
    if stamps:
        A('s_waitcnt vmcnt(0)')
        st()
        for q in range(nst[0]): A(f'v_writelane_b32 v{vT0}, s{70+2*q}, {q}')
        A(f's_lshl_b32 s{sT0}, s{sB}, 6')
        A(f's_add_u32 s{sT0}, s{sT0}, {WS_DBG + 0x400000}')
        A(f'buffer_store_dword v{vT0}, v{vD3}, {WS}, s{sT0} offen')
        if P.get('dbgout'):
            A(f'v_mov_b32 v{vT0}, s{70+2*(nst[0]-1)}')
            A(f'buffer_atomic_umax v{vT0}, v{vZf}, {R4}, 0 offen offset:8')
    A('s_endpgm')
    A.label('bulk_abort')
    A(f'v_mov_b32 v{vT0}, 9')
    A(f'v_mov_b32 v{vT1}, 4')
    A(f'buffer_store_dword v{vT0}, v{vT1}, {R4}, 0 offen')
    A.label('bulk_end')
    A('s_endpgm')
```

```python
from k7_common import *
LOG2E = math.log2(math.e)
sWS, sR1, sR2, sR3, sR4 = 4, 8, 12, 16, 20
sM = 92
sC2 = 24
sW, sB, sN, sO1, sO2, sLB, sT0, sT1, sTO, sTile, sNG, sRB, sZs, sQ = 30, 31, 32, 33, 34, 35, 36, 37, 38, 39, 40, 41, 42, 43
WS = f's[{sWS}:{sWS+3}]'
R1, R2, R3, R4 = [f's[{r}:{r+3}]' for r in (sR1, sR2, sR3, sR4)]
vL16, vD1, vD2, vD3, vR1, vT0, vT1, vT2, vT3 = 1, 2, 3, 4, 5, 6, 7, 8, 9
vGo, vXo, vRw, vRr, vFl, vZt, vZf = 10, 11, 12, 13, 14, 15, 16
vZu = 17
vH = 24
vA1 = 32
vWF = 64
vY = 84
vR1b = 100
vR2n = 112
vOF = 112
F = 244

def rbf2(A, x, y, t):
    A(f'v_cvt_pk_bf16_f32 v{t}, v{x}, v{y}')
    A(f'v_lshlrev_b32 v{x}, 16, v{t}')
    A(f'v_and_b32 v{y}, 0xffff0000, v{t}')
def rbf(A, x):
    A(f'v_cvt_pk_bf16_f32 v{x}, v{x}, v{x}')
    A(f'v_and_b32 v{x}, 0xffff0000, v{x}')
def silu(A, x, t):
    A(f'v_mul_f32 v{t}, {f2u(-LOG2E):#x}, v{x}')
    A(f'v_exp_f32 v{t}, v{t}')
    A('s_nop 0')
    A(f'v_add_f32 v{t}, 1.0, v{t}')
    A(f'v_rcp_f32 v{t}, v{t}')
    A('s_nop 0')
    A(f'v_mul_f32 v{x}, v{x}, v{t}')
def xsum_g(A, x, t):
    for sw in ('16', '32'):
        A(f'v_mov_b32 v{t}, v{x}')
        A.nop(2)
        A(f'v_permlane{sw}_swap_b32 v{t}, v{x}')
        A.nop(1)
        A(f'v_add_f32 v{x}, v{x}, v{t}')
def spin_flags(A, lab, ok, off, sleep):
    A.label(lab)
    A(f's_mov_b32 s{sT0}, {off}')
    A(f'buffer_load_dwordx2 v[{vT0}:{vT1}], v{vFl}, {WS}, s{sT0} offen sc1')
    A('s_waitcnt vmcnt(0)')
    emit(A, check_sent([vT0, vT1], vT0))
    A(f's_cbranch_vccz {ok}')
    A(f's_sleep {sleep}')
    A(f's_sub_u32 s{sTO}, s{sTO}, 1')
    A(f's_cbranch_scc0 {lab}')
    A('s_branch bulk_abort')

def gen_bulk(A, stamps, P):
    nst = [0]
    def st():
        if stamps:
            A(f's_memrealtime s[{70+2*nst[0]}:{71+2*nst[0]}]'); A('s_waitcnt lgkmcnt(0)'); nst[0] += 1
    A.label('bulk_entry')
    st()
    if P['cpf']: code_prefetch(A, 252, P['cpfb'])
    A('s_load_dwordx4 s[44:47], s[0:1], 64')
    A('s_load_dwordx4 s[48:51], s[0:1], 80')
    A('s_load_dwordx4 s[52:55], s[0:1], 96')
    A('s_load_dwordx2 s[56:57], s[0:1], 40')
    A('s_load_dwordx4 s[60:63], s[0:1], 0')
    A('s_load_dwordx4 s[88:91], s[0:1], 16')
    A('s_load_dwordx2 s[58:59], s[0:1], 32')
    X = VX(A, 200, F, 3)
    A(f'v_lshrrev_b32 v{F+3}, 6, v0')
    A(f'v_and_b32 v{F}, 63, v0')
    A(f'v_readfirstlane_b32 s{sW}, v{F+3}')
    A(f'v_bfe_u32 v{F+1}, v0, 4, 2')
    A(f'v_and_b32 v{F+2}, 15, v0')
    A(f's_lshr_b32 s{sB}, s2, 3')
    A(f's_lshl_b32 s{sB}, s{sB}, 2')
    A(f's_and_b32 s{sQ}, s2, 3')
    A(f's_add_u32 s{sB}, s{sB}, s{sQ}')
    A(f'v_mov_b32 v{F+4}, s{sB}')
    A(f's_lshl_b32 s{sM}, s{sQ}, 5')
    A(f's_lshr_b32 s3, s{sB}, 2')
    A(f's_add_u32 s{sM}, s{sM}, s3')
    A(f'v_mov_b32 v{F+5}, s{sM}')
    L, g, c, w, b, m_ = [X.reg(F+i) for i in range(6)]
    tid = X.reg(0)
    A(f's_mov_b32 s{sTO}, 0x400000')
    X.set(vL16, L*16)
    L16 = X.reg(vL16)
    n_ = lambda: m_ >> 1
    X.set(vT0, (n_()*32 + c)*1280 + w*320 + g*16)
    X.set(vD1, (L >> 3)*8192 + ((((L >> 1) & 3) ^ (((L >> 4) & 1) | ((w & 1) << 1)))*2 + (L & 1))*16 + (m_ >> 2)*256 + (m_ & 2)*64)
    A('s_waitcnt lgkmcnt(0)')
    srd(A, sWS, 54, WS_SIZE)
    srd(A, sR1, 60, S_TOK*DM*2)
    srd(A, sR4, 52, 256)
    X.set(vZf, X.sel(('eq', tid, 0), 0, OOB))
    X.set(vFl, L*8)
    A(f's_and_b32 s3, s{sM}, 1')
    A('s_cbranch_scc0 b_even')
    XR, XR2, FL = 32, 112, 64
    A('s_movk_i32 s26, 0x5000')
    for t in range(5):
        A(f'buffer_load_dwordx4 v[{XR+4*t}:{XR+4*t+3}], v{vT0}, {R1}, 0 offen offset:{64*t}')
    for t in range(5):
        A(f'buffer_load_dwordx4 v[{XR2+4*t}:{XR2+4*t+3}], v{vT0}, {R1}, s26 offen offset:{64*t}')
    if P['lin2']:
        for i in range(3):
            X.set(160+i, X.sel(('lt', tid + 256*i, 640), n_()*81920 + (tid + 256*i)*128, OOB))
        for mm, ptr in enumerate((88, 90, 58, 56)):
            srd(A, sR2, ptr, DM*4096*2)
            for i in range(3): A(f'buffer_load_dword v{164+3*mm+i}, v{160+i}, {R2}, 0 offen')
    X.set(vT1, n_()*40960 + w*5120 + L16 + WS_XN)
    X.set(vRw, w*64 + c*4)
    X.set(vRr, c*4)
    A(f's_mov_b32 s{sN}, 0')
    A(f's_waitcnt vmcnt({12 if P["lin2"] else 0})')
    A.label('ln_loop')
    for k in range(20):
        A(f'v_lshlrev_b32 v{FL+2*k}, 16, v{XR+k}')
        A(f'v_and_b32 v{FL+2*k+1}, 0xffff0000, v{XR+k}')
    A(f'v_add_f32 v{vT2}, v{FL}, v{FL+1}')
    for k in range(2, 40): A(f'v_add_f32 v{vT2}, v{vT2}, v{FL+k}')
    def wg_sum(dst, off):
        xsum_g(A, vT2, vT3)
        A(f'ds_write_b32 v{vRw}, v{vT2} offset:{off}')
        A('s_waitcnt lgkmcnt(0)')
        A('s_barrier')
        for k in range(4): A(f'ds_read_b32 v{dst+k}, v{vRr} offset:{off+64*k}')
        A('s_waitcnt lgkmcnt(0)')
        A(f'v_add_f32 v{dst}, v{dst}, v{dst+1}')
        A(f'v_add_f32 v{dst+2}, v{dst+2}, v{dst+3}')
        A(f'v_add_f32 v{dst}, v{dst}, v{dst+2}')
        A(f'v_mul_f32 v{dst}, {f2u(1.0/640):#x}, v{dst}')
    MN, VR = 104, 108
    wg_sum(MN, 0)
    A(f'v_sub_f32 v{vT3}, v{FL}, v{MN}')
    A(f'v_mul_f32 v{vT2}, v{vT3}, v{vT3}')
    for k in range(1, 40):
        A(f'v_sub_f32 v{vT3}, v{FL+k}, v{MN}')
        A(f'v_fmac_f32 v{vT2}, v{vT3}, v{vT3}')
    wg_sum(VR, 256)
    rbf(A, VR)
    A(f'v_add_f32 v{VR}, 0x3727c5ac, v{VR}')
    rbf(A, VR)
    A(f'v_sqrt_f32 v{VR}, v{VR}')
    A.nop(1)
    rbf(A, VR)
    A(f'v_rcp_f32 v{VR}, v{VR}')
    rbf(A, MN)
    A(f'v_mov_b32 v{MN+1}, v{MN}')
    A(f'v_mov_b32 v{VR+1}, v{VR}')
    YR = 136
    for k in range(20):
        A(f'v_pk_add_f32 v[{FL+2*k}:{FL+2*k+1}], v[{FL+2*k}:{FL+2*k+1}], v[{MN}:{MN+1}] neg_lo:[0,1] neg_hi:[0,1]')
        rbf2(A, FL+2*k, FL+2*k+1, vT3)
        A(f'v_pk_mul_f32 v[{FL+2*k}:{FL+2*k+1}], v[{FL+2*k}:{FL+2*k+1}], v[{VR}:{VR+1}]')
        A(f'v_cvt_pk_bf16_f32 v{YR+k}, v{FL+2*k}, v{FL+2*k+1}')
    A(f'v_add_u32 v{vT2}, 4096, v{vT1}')
    for t in range(5):
        A(f'buffer_store_dwordx4 v[{YR+4*t}:{YR+4*t+3}], v{vT1 if t < 4 else vT2}, {WS}, 0 offen offset:{1024*(t%4)} sc1')
    for k in range(20): A(f'v_mov_b32 v{XR+k}, v{XR2+k}')
    A(f'v_add_u32 v{vT1}, 20480, v{vT1}')
    A(f's_add_u32 s{sN}, s{sN}, 1')
    A(f's_cmp_lt_u32 s{sN}, 2')
    A('s_cbranch_scc1 ln_loop')
    if P.get('rot'): rot_verify(A, 52, 26, sTO, 'bulk_abort')
    for q in range(4): A(f'v_mov_b32 v{vH+q}, -1')
    X.set(vT1, X.sel(('lt', tid, 16), n_()*256 + tid*16 + WS_TAB, OOB))
    A(f'buffer_store_dwordx4 v[{vH}:{vH+3}], v{vT1}, {WS}, 0 offen sc1')
    A('s_waitcnt vmcnt(0)')
    A('s_barrier')
    A(f's_cmp_lg_u32 s{sW}, 0')
    A('s_cbranch_scc1 b_arrived')
    arrive_s(A, 52, 26, 'b_arrived')
    A('s_branch b_arrived')
    A.label('b_even')
    if P['coop']:
        for i in range(3):
            X.set(112+i, X.sel(('lt', tid + 256*i, 640), (((m_ >> 1) & 15)*40 + ((tid + 256*i) >> 4))*8192 + (m_ >> 5)*2048 + (tid & 15)*128, OOB))
        for mm, ptr in enumerate((88, 90, 58)):
            srd(A, sR2, ptr, DM*4096*2)
            for i in range(3): A(f'buffer_load_dword v{116+3*mm+i}, v{112+i}, {R2}, 0 offen')
    for _ in range(P['bdel']): A('s_sleep 32')
    if P['lin']: lin_touch(A, X, tid, 160, sR2, (88, 90, 58, 56))
    A.label('b_arrived')
    def stage(ptr, base):
        srd(A, sR2, ptr, DM*4096*2)
        A(f's_lshl_b32 s{sT0}, s{sW}, 10')
        A(f's_add_u32 s{sT0}, s{sT0}, {base}')
        A(f's_lshl_b32 s{sT1}, s{sW}, 16')
        for i in range(20):
            A(f's_mov_b32 m0, s{sT0}')
            A(f's_add_u32 s{sT0}, s{sT0}, 4096')
            A(f'buffer_load_dwordx4 v{vD1}, {R2}, s{sT1} offen lds')
            A(f's_add_u32 s{sT1}, s{sT1}, {4*65536}')
    stage(88, 0)
    stage(90, 81920)
    if not P['coop']:
        srd(A, sR2, 58, DM*4096*2)
        for i in range(3):
            X.set(vT1, X.sel(('lt', tid + 256*i, 640), (tid + 256*i)*8192 + (m_ >> 2)*256 + (m_ & 2)*64, OOB))
            A(f'buffer_load_dword v{112+i}, v{vT1}, {R2}, 0 offen')
    if P.get('rot'): rot_verify(A, 52, 26, sTO, 'bulk_abort')
    trb = lambda le: (g*8 + ((L >> 2) & 3))*128 + (le ^ (((L >> 3) & 1) | ((g & 1) << 1)))*32 + (L & 3)*8
    def trload(abase, R0):
        A(f'v_add_u32 v{vT3}, 0x10000, v{R0}')
        for t in range(20):
            r, o = (R0, 4096*t) if t < 16 else (vT3, 4096*(t-16))
            A(f'ds_read_b64_tr_b16 a[{abase+4*t}:{abase+4*t+1}], v{r} offset:{o}')
            A(f'ds_read_b64_tr_b16 a[{abase+4*t+2}:{abase+4*t+3}], v{r} offset:{o+512}')
            if t % 4 == 3: A('s_waitcnt lgkmcnt(4)')
    X.set(vR1, trb(w & 1) + (w >> 1)*81920)
    X.set(vD3, trb((w & 1) + 2) + (w >> 1)*81920)
    A(f's_waitcnt vmcnt({0 if P["coop"] else 3})')
    A('s_barrier')
    trload(0, vR1)
    trload(160, vD3)
    A('s_waitcnt lgkmcnt(0)')
    A('s_barrier')
    stage(58, 81920)
    X.set(vR1, trb(w) + 81920)
    A(f's_and_b32 s{sT0}, s{sB}, 15')
    A(f's_mul_i32 s{sT0}, s{sT0}, 5')
    A(f'v_mov_b32 v{vT0}, s{sT0}')
    for u in range(5):
        uu = X.reg(vT0) + u
        X.set(vZu+u, (uu >> 1)*16384 + (uu & 1)*4096 + tid*16)
    A('s_waitcnt vmcnt(0)')
    A('s_barrier')
    trload(80, vR1)
    A(f's_lshr_b32 s{sZs}, s{sB}, 4')
    def fill(nph, flag):
        for q in range(4): A(f'v_mov_b32 v{vH+q}, -1')
        for ph in range(nph):
            A(f'v_readlane_b32 s{sT0}, v{vZt}, s{sZs}')
            if flag == 0:
                A(f's_cmp_lt_u32 s{sZs}, 3')
                A(f's_cselect_b32 s{sT0}, {OOB:#x}, s{sT0}')
            A(f's_add_u32 s{sZs}, s{sZs}, 8')
            A.nop(4)
            for u in range(5):
                A(f'buffer_store_dwordx4 v[{vH}:{vH+3}], v{vZu+u}, {WS}, s{sT0} offen sc1')
            if P['two']:
                A(f's_add_u32 s{sT0}, s{sT0}, 0x9000000')
                for u in range(5):
                    A(f'buffer_store_dwordx4 v[{vH}:{vH+3}], v{vZu+u}, {WS}, s{sT0} offen sc1')
        A('s_waitcnt vmcnt(0)')
        A('s_barrier')
        A(f's_lshl_b32 s{sT0}, s{sB}, 2')
        A(f's_add_u32 s{sT0}, s{sT0}, {WS_ZFLAG + 512*flag}')
        A(f'buffer_store_dword v{vZf}, v{vZf}, {WS}, s{sT0} offen sc1')
    A(f's_cmp_lt_u32 s{sW}, 2')
    A(f's_cselect_b32 s{sC2}, {f2u(QSCALE):#x}, 1.0')
    A(f's_mov_b32 s{sC2+1}, s{sC2}')
    tq = lambda: (m_ & 2) + (w & 1)
    X.set(vGo, X.sel(('lt', w, 2), (c >> 3)*2048 + tq()*512 + (g*8 + (c & 7))*16 + 16384, tq()*1024 + L16))
    X.set(vXo, ((m_ & 2)*2 + w)*1024 + L16 + 8192)
    X.set(vRr, X.sel(('eq', tid, 0), m_*4 + WS_QP, OOB))
    A(f's_and_b32 s3, s{sM}, 1')
    A(f's_mul_i32 s{sO1}, s3, 40960')
    A(f's_mul_i32 s{sLB}, s{sW}, 5120')
    A(f's_add_u32 s{sO1}, s{sO1}, {40960*P["ns0"]}')
    A(f's_add_u32 s{sO1}, s{sO1}, s{sLB}')
    A(f's_mul_i32 s{sO2}, s3, {XSEG}')
    A(f's_lshr_b32 s3, s{sM}, 2')
    A(f's_mul_i32 s3, s3, {XH}')
    A(f's_add_u32 s{sO2}, s{sO2}, s3')
    A(f's_add_u32 s{sO2}, s{sO2}, {WS_KX + XSEG*P["ns0"]}')
    A(f's_mov_b32 s{sN}, {P["ns0"]//2}')
    RG, XA, PK, PV = 40, 72, 84, 88
    def x_dma(buf, adv):
        o = [f's_add_u32 m0, s{sLB}, {20480*buf}', f's_add_u32 s{sT0}, s{sO1}, 4096']
        o += [f'buffer_load_dwordx4 v{vL16}, {WS}, s{sO1} offen offset:{1024*k} sc1 lds' for k in range(4)]
        o += [f's_add_u32 m0, s{sLB}, {20480*buf + 4096}', f's_add_u32 s{sO1}, s{sO1}, {adv}',
              f'buffer_load_dwordx4 v{vL16}, {WS}, s{sT0} offen sc1 lds']
        return o
    def x_tile(tt, young):
        A(f's_waitcnt vmcnt({young})')
        A('s_barrier')
        fl = x_dma(1 - tt, 61440 if tt == 0 else 20480)
        if tt == 1:
            fl = [f'v_mov_b32 v{vT0}, s{sN}', f'buffer_store_dword v{vT0}, v{vRr}, {WS}, 0 offen sc1'] + fl
        o = []
        rd = lambda t: f'ds_read_b128 v[{RG+4*(t%8)}:{RG+4*(t%8)+3}], v{vL16} offset:{20480*tt + 1024*t}'
        for t in range(6): o.append(rd(t))
        for t in range(20):
            o.append(f's_waitcnt lgkmcnt({min(20, t + 6) - t - 1})')
            f = v(RG + 4*(t % 8), 4)
            o.append(M32(v(XA, 4), a(4*t, 4), f, '0' if t == 0 else v(XA, 4)))
            o.append(M32(v(XA+4, 4), a(160+4*t, 4), f, '0' if t == 0 else v(XA+4, 4)))
            o.append(M32(v(XA+8, 4), f, a(80+4*t, 4), '0' if t == 0 else v(XA+8, 4)))
            if t + 6 < 20: o.append(rd(t + 6))
        emit(A, weave(o, fl, per=1))
        if tt: A(f's_add_u32 s{sT1}, s{sO2}, 4096')
        A.nop(6)
        for r in range(0, 8, 2): A(f'v_pk_mul_f32 v[{XA+r}:{XA+r+1}], v[{XA+r}:{XA+r+1}], s[{sC2}:{sC2+1}]')
        for r in range(4): A(f'v_cvt_pk_bf16_f32 v{PK+r}, v{XA+2*r}, v{XA+2*r+1}')
        A(f'buffer_store_dwordx4 v[{PK}:{PK+3}], v{vGo}, {WS}, s{sT1 if tt else sO2} offen sc1')
        for r in range(2): A(f'v_cvt_pk_bf16_f32 v{PV+2*tt+r}, v{XA+8+2*r}, v{XA+8+2*r+1}')
        if tt:
            A(f'buffer_store_dwordx4 v[{PV}:{PV+3}], v{vXo}, {WS}, s{sO2} offen sc1')
            A(f's_add_u32 s{sO2}, s{sO2}, {2*XSEG}')
            A(f's_add_u32 s{sN}, s{sN}, 1')
    wait_start(A, R4, vT0, 26, sTO, 'b_start', 'bulk_abort', sleep=2)
    emit(A, x_dma(0, 20480))
    x2_table(A, X, L, vZt, 26, 54, vT1)
    st()
    if P['ns0']: fill(1, 0)
    A('s_waitcnt vmcnt(0) lgkmcnt(0)')
    A.label('q_loop')
    x_tile(0, 2); x_tile(1, 1)
    A(f's_cmp_eq_u32 s{sN}, {P["ns0"]//2 + 1}')
    A('s_cbranch_scc1 q_fill0')
    A(f's_cmp_eq_u32 s{sN}, 6')
    A('s_cbranch_scc1 q_fill')
    A(f's_cmp_eq_u32 s{sN}, 16')
    A('s_cbranch_scc1 q_fill2')
    A.label('q_back')
    A(f's_cmp_lt_u32 s{sN}, 32')
    A('s_cbranch_scc1 q_loop')
    A('s_branch q_done')
    A.label('q_fill0')
    A('s_waitcnt vmcnt(0)')
    A('s_barrier')
    A(f'v_mov_b32 v{vT0}, s{sN}')
    A(f'buffer_store_dword v{vT0}, v{vRr}, {WS}, 0 offen sc1')
    if not P['ns0']: fill(1, 0)
    A('s_branch q_back')
    A.label('q_fill')
    fill(2, 1)
    A('s_branch q_back')
    A.label('q_fill2')
    fill(5, 2)
    A('s_branch q_back')
    A.label('q_done')
    A('s_waitcnt vmcnt(0)')
    A('s_barrier')
    A(f'v_mov_b32 v{vT0}, 64')
    A(f'buffer_store_dword v{vT0}, v{vRr}, {WS}, 0 offen sc1')
    st()
    srd(A, sR1, 44, DM*FF*2)
    srd(A, sR2, 46, DM*FF*2)
    srd(A, sR3, 48, FF*DM*2)
    jj, qq = (lambda: b >> 2), (lambda: b & 3)
    X.set(vT2, X.sel(('lt', tid, 160), ((tid >> 3)*32 + jj())*3456 + ((tid & 7)*4 + qq())*128, OOB))
    A(f'buffer_load_dword v{vWF}, v{vT2}, {R1}, 0 offen')
    A(f'buffer_load_dword v{vWF+1}, v{vT2}, {R2}, 0 offen')
    X.set(vT3, (tid*6554) >> 16)
    rr = X.reg(vT3)
    X.set(vT2, X.sel(('lt', tid, 140), (((rr >> 1)*4 + qq())*64 + (rr & 1)*32 + jj())*1280 + (tid - rr*10)*128, OOB))
    A(f'buffer_load_dword v{vWF+2}, v{vT2}, {R3}, 0 offen')
    A(f's_and_b32 s{sTile}, s{sB}, 0x7c')
    A(f's_add_u32 s{sTile}, s{sTile}, s{sW}')
    A(f's_mul_i32 s{sT0}, s{sTile}, 20480')
    for t in range(20):
        if t and t % 4 == 0: A(f's_add_u32 s{sT0}, s{sT0}, 4096')
        A(f'buffer_load_dwordx4 a[{4*t}:{4*t+3}], v{vL16}, {WS}, s{sT0} offen offset:{1024*(t%4)} sc1')
    st()
    X.set(vD1, (w*8 + (L >> 3))*3456 + ((((L >> 1) & 3) ^ (((L >> 4) & 1) | ((w & 1) << 1)))*2 + (L & 1))*16)
    for i, dst in enumerate((vD2, vD3)):
        X.set(dst, (w*8 + (L >> 4) + 4*i)*1280 + ((((L >> 1) & 7) ^ ((L >> 4) + 4*i))*2 + (L & 1))*16)
    for tl in range(4):
        X.set(vR1b+tl, (g*8 + ((L >> 2) & 3))*128 + ((((L >> 3) & 1) | ((g & 1) << 1)) ^ tl)*32 + (L & 3)*8)
        X.set(vR1b+4+tl, X.reg(vR1b+tl) + 65536)
    for n in range(8):
        X.set(vR2n+n, (g*4 + ((L >> 2) & 3))*256 + ((((g & 1)*4 + ((L >> 2) & 3)) ^ n)*32) + (L & 3)*8)
        X.set(vR2n+8+n, X.reg(vR2n+n) + 65536)
    A(f'v_mov_b32 v{vT0}, 0')
    for r in range(160): A(f'v_accvgpr_write_b32 a{80+r}, v{vT0}')
    A(f's_cmp_lt_u32 s{sQ}, 3')
    A(f's_cselect_b32 s{sN}, 7, 6')
    A(f's_lshl_b32 s{sO1}, s{sQ}, 7')
    A(f's_mul_i32 s{sO2}, s{sQ}, {64*1280}')
    A(f's_lshl_b32 s{sLB}, s{sW}, 10')
    A(f's_lshl_b32 s{sRB}, s{sW}, 11')
    NS, NC = 15, 30
    def issue(ci, nxt):
        o = []; lb = (ci % NS) * 8192
        if ci < 20:
            for m, sr in enumerate((R1, R2)):
                o.append(f's_add_u32 m0, s{sLB}, {lb + m*4096}')
                o.append(f's_add_u32 s{sT0}, s{sO1}, {ci*32*3456 + nxt*512}')
                o.append(f'buffer_load_dwordx4 v{vD1}, {sr}, s{sT0} offen lds')
        else:
            hb, cc = (ci - 20) // 5, (ci - 20) % 5
            for i in range(2):
                o.append(f's_add_u32 m0, s{sRB}, {lb + i*1024}')
                o.append(f's_add_u32 s{sT0}, s{sO2}, {hb*32*1280 + cc*256}')
                o.append(f'buffer_load_dwordx4 v{vD2 if i == 0 else vD3}, {R3}, s{sT0} offen lds')
        return o
    A('s_waitcnt vmcnt(0)')
    for ci in range(NS - 1): emit(A, issue(ci, 0))
    A.label('ffn_loop')
    for ci in range(NC):
        A(f's_waitcnt vmcnt({2*(NS-2)})')
        A('s_barrier')
        lb = (ci % NS) * 8192
        hi = 1 if lb >= 65536 else 0
        lb -= hi*65536
        nx = issue((ci + NS - 1) % NC, 1 if ci + NS - 1 >= NC else 0)
        mf = []
        if ci < 20:
            for n in range(8):
                m, tl = n >> 2, n & 3
                r = vWF + 4*n
                A(f'ds_read_b64_tr_b16 v[{r}:{r+1}], v{vR1b+4*hi+tl} offset:{lb + m*4096}')
                A(f'ds_read_b64_tr_b16 v[{r+2}:{r+3}], v{vR1b+4*hi+tl} offset:{lb + m*4096 + 512}')
            for n in range(8):
                mf.append(f's_waitcnt lgkmcnt({2*(7-n)})')
                mf.append(M32(v(vA1+4*n, 4), v(vWF+4*n, 4), a(4*ci, 4), '0' if ci == 0 else v(vA1+4*n, 4)))
        else:
            hb, cc = (ci - 20) // 5, (ci - 20) % 5
            for n in range(8):
                r = vWF + 4*n
                A(f'ds_read_b64_tr_b16 v[{r}:{r+1}], v{vR2n+8*hi+n} offset:{lb}')
                A(f'ds_read_b64_tr_b16 v[{r+2}:{r+3}], v{vR2n+8*hi+n} offset:{lb + 4096}')
            if ci == 20:
                for tl in range(4):
                    for r in (0, 2):
                        gx, ux = vA1 + 4*tl + r, vA1 + 16 + 4*tl + r
                        rbf2(A, gx, gx+1, vT0); rbf2(A, ux, ux+1, vT0)
                        silu(A, gx, vT0); silu(A, gx+1, vT1)
                        rbf2(A, gx, gx+1, vT0)
                        A(f'v_mul_f32 v{gx}, v{gx}, v{ux}')
                        A(f'v_mul_f32 v{gx+1}, v{gx+1}, v{ux+1}')
                        A(f'v_cvt_pk_bf16_f32 v{vH+2*tl+r//2}, v{gx}, v{gx+1}')
                A('s_nop 0')
            for n in range(8):
                ct = cc*8 + n
                mf.append(f's_waitcnt lgkmcnt({2*(7-n)})')
                mf.append(M32(a(80+4*ct, 4), v(vWF+4*n, 4), v(vH+4*hb, 4), a(80+4*ct, 4)))
        emit(A, weave(mf, nx, per=1))
    A(f's_add_u32 s{sO1}, s{sO1}, 512')
    A(f's_add_u32 s{sO2}, s{sO2}, {256*1280}')
    A(f's_sub_u32 s{sN}, s{sN}, 1')
    A(f's_cmp_lg_u32 s{sN}, 0')
    A('s_cbranch_scc1 ffn_loop')
    A('s_waitcnt vmcnt(0)')
    A('s_barrier')
    st()
    A(f's_lshl_b32 s{sT0}, s{sQ}, 7')
    A(f's_add_u32 s{sT0}, s{sT0}, s{sTile}')
    A(f's_mul_i32 s{sT0}, s{sT0}, 40960')
    A(f's_add_u32 s{sT0}, s{sT0}, {WS_G}')
    for ct in range(40):
        if ct and ct % 4 == 0: A(f's_add_u32 s{sT0}, s{sT0}, 4096')
        A(f'buffer_store_dwordx4 a[{80+4*ct}:{80+4*ct+3}], v{vL16}, {WS}, s{sT0} offen offset:{1024*(ct%4)} sc1')
    A('s_waitcnt vmcnt(0)')
    A('s_barrier')
    A(f's_lshl_b32 s{sT0}, s{sB}, 2')
    A(f's_add_u32 s{sT0}, s{sT0}, {WS_GFLAG}')
    A(f'buffer_store_dword v{vZf}, v{vZf}, {WS}, s{sT0} offen sc1')
    A(f's_cmp_ge_u32 s{sB}, 120')
    A('s_cbranch_scc1 bulk_end')
    A(f's_mul_i32 s{sTile}, s{sB}, 3277')
    A(f's_lshr_b32 s{sTile}, s{sTile}, 16')
    A(f's_mul_i32 s3, s{sTile}, 20')
    A(f's_sub_u32 s{sNG}, s{sB}, s3')
    srd(A, sR1, 56, 4096*DM*2)
    srd(A, sR2, 60, S_TOK*DM*2)
    srd(A, sR3, 50, S_TOK*DM*2)
    X.set(vD1, (L >> 2)*1280 + (L & 3)*16)
    X.set(vR1, w*40960 + (g*4 + ((L >> 2) & 3))*64 + (L & 3)*8)
    A(f's_mul_i32 s{sO1}, s{sW}, {1024*1280}')
    A(f's_lshl_b32 s3, s{sNG}, 6')
    A(f's_add_u32 s{sO1}, s{sO1}, s3')
    A(f's_mul_i32 s{sLB}, s{sW}, 40960')
    for rnd in range(2):
        for i in range(32):
            A(f's_add_u32 m0, s{sLB}, {1024*i}')
            A(f's_add_u32 s{sT1}, s{sO1}, {(rnd*512 + i*16)*1280}')
            A(f'buffer_load_dwordx4 v{vD1}, {R1}, s{sT1} offen lds')
        A('s_waitcnt vmcnt(0)')
        for t in range(16):
            for tl in range(2):
                r = ((rnd*16 + t)*2 + tl)*4
                A(f'ds_read_b64_tr_b16 a[{r}:{r+1}], v{vR1} offset:{t*2048 + tl*32}')
                A(f'ds_read_b64_tr_b16 a[{r+2}:{r+3}], v{vR1} offset:{t*2048 + tl*32 + 1024}')
            if t % 2 == 1: A('s_waitcnt lgkmcnt(4)')
        A('s_waitcnt lgkmcnt(0)')
    X.set(vRw, w*2048 + L16)
    X.set(vRr, (w & 1)*1024 + L16)
    X.set(vD2, w*32768 + L16)
    X.set(vGo, (w & 1)*1024 + L16)
    X.set(vXo, c*1280 + (w & 1)*32 + g*8)
    if stamps: X.set(vD3, X.sel(('lt', tid, 8), tid*4, OOB))
    spin_flags(A, 'g_poll', 'g_ok', WS_GFLAG, 8)
    A.label('g_ok')
    A('s_barrier')
    st()
    A(f's_mov_b32 s{sRB}, 0')
    A.label('op_loop')
    A(f's_lshr_b32 s{sT0}, s{sTile}, 1')
    A(f's_cmp_ge_u32 s{sT0}, 62')
    A('s_cbranch_scc1 op_final')
    A(f's_lshl_b32 s{sT0}, s{sT0}, 7')
    A(f's_add_u32 s{sT0}, s{sT0}, {WS_PROG}')
    A(f'v_mov_b32 v{vT2}, 0')
    A.label('p_poll')
    A(f'buffer_load_dword v{vT0}, v{vT2}, {WS}, s{sT0} offen sc1')
    A('s_waitcnt vmcnt(0)')
    A(f'v_cmp_eq_u32 vcc, -1, v{vT0}')
    A('s_cbranch_vccz op_go')
    A('s_sleep 8')
    A(f's_sub_u32 s{sTO}, s{sTO}, 1')
    A('s_cbranch_scc0 p_poll')
    A('s_branch bulk_abort')
    spin_flags(A, 'op_final', 'op_go', WS_FLAG, P.get('fsl', 2))
    A.label('op_go')
    A(f's_lshl_b32 s{sT0}, s{sTile}, 17')
    A(f's_add_u32 s{sT0}, s{sT0}, {WS_OF}')
    for t in range(32):
        if t and t % 4 == 0: A(f's_add_u32 s{sT0}, s{sT0}, 4096')
        A(f'buffer_load_dwordx4 v[{vOF+4*t}:{vOF+4*t+3}], v{vD2}, {WS}, s{sT0} offen offset:{1024*(t%4)} sc1')
    A(f's_mul_i32 s{sT0}, s{sTile}, 20480')
    A(f's_lshl_b32 s{sT1}, s{sNG}, 10')
    A(f's_add_u32 s{sT1}, s{sT1}, s{sT0}')
    A(f's_lshl_b32 s{sT1}, s{sT1}, 1')
    A(f's_add_u32 s{sT1}, s{sT1}, {WS_G}')
    for q in range(4):
        A(f'buffer_load_dwordx4 v[{vY+4*q}:{vY+4*q+3}], v{vGo}, {WS}, s{sT1} offen sc1')
        if q < 3: A(f's_add_u32 s{sT1}, s{sT1}, {128*40960}')
    A(f's_lshl_b32 s{sT1}, s{sNG}, 6')
    A(f's_add_u32 s{sO2}, s{sT1}, s{sT0}')
    A(f'buffer_load_dwordx2 v[{vH+2}:{vH+3}], v{vXo}, {R2}, s{sO2} offen')
    for t in range(32):
        A(f's_waitcnt vmcnt({36-t})')
        for tl in range(2):
            A(M32(v(vA1+4*tl, 4), a((2*t+tl)*4, 4), v(vOF+4*t, 4), '0' if t == 0 else v(vA1+4*tl, 4)))
    A(f'v_add_u32 v{vT2}, s{sRB}, v{vRw}')
    A(f'v_add_u32 v{vT3}, s{sRB}, v{vRr}')
    A.nop(6)
    A(f'ds_write_b128 v{vT2}, v[{vA1}:{vA1+3}]')
    A(f'ds_write_b128 v{vT2}, v[{vA1+4}:{vA1+7}] offset:1024')
    A(f's_xor_b32 s{sRB}, s{sRB}, 8192')
    A('s_waitcnt lgkmcnt(0)')
    A('s_barrier')
    A(f's_cmp_ge_u32 s{sW}, 2')
    A('s_cbranch_scc1 op_next')
    for p in range(4): A(f'ds_read_b128 v[{vWF+4*p}:{vWF+4*p+3}], v{vT3} offset:{2048*p}')
    A('s_waitcnt vmcnt(0) lgkmcnt(0)')
    for r in range(4):
        for bs in (vWF, vY):
            A(f'v_add_f32 v{bs+r}, v{bs+r}, v{bs+4+r}')
            A(f'v_add_f32 v{bs+8+r}, v{bs+8+r}, v{bs+12+r}')
            A(f'v_add_f32 v{bs+r}, v{bs+r}, v{bs+8+r}')
    for r in (0, 2):
        s0, s1 = vWF+r, vWF+r+1
        rbf2(A, vY+r, vY+r+1, vT0)
        silu(A, vY+r, vT0); silu(A, vY+r+1, vT1)
        rbf2(A, vY+r, vY+r+1, vT0)
        rbf2(A, s0, s1, vT0)
        A(f'v_mul_f32 v{s0}, v{s0}, v{vY+r}')
        A(f'v_mul_f32 v{s1}, v{s1}, v{vY+r+1}')
        rbf2(A, s0, s1, vT0)
        A(f'v_lshlrev_b32 v{vT0}, 16, v{vH+2+r//2}')
        A(f'v_and_b32 v{vT1}, 0xffff0000, v{vH+2+r//2}')
        A(f'v_add_f32 v{s0}, v{s0}, v{vT0}')
        A(f'v_add_f32 v{s1}, v{s1}, v{vT1}')
        A(f'v_cvt_pk_bf16_f32 v{vWF+16+r//2}, v{s0}, v{s1}')
    A(f'buffer_store_dwordx2 v[{vWF+16}:{vWF+17}], v{vXo}, {R3}, s{sO2} offen{P.get("outfl", "")}')
    A.label('op_next')
    A(f's_add_u32 s{sTile}, s{sTile}, 6')
    A(f's_cmp_lt_u32 s{sTile}, 128')
    A('s_cbranch_scc1 op_loop')
    if stamps:
        A('s_waitcnt vmcnt(0)')
        st()
        for q in range(nst[0]): A(f'v_writelane_b32 v{vT0}, s{70+2*q}, {q}')
        A(f's_lshl_b32 s{sT0}, s{sB}, 6')
        A(f's_add_u32 s{sT0}, s{sT0}, {WS_DBG + 0x400000}')
        A(f'buffer_store_dword v{vT0}, v{vD3}, {WS}, s{sT0} offen')
        if P.get('dbgout'):
            A(f'v_mov_b32 v{vT0}, s{70+2*(nst[0]-1)}')
            A(f'buffer_atomic_umax v{vT0}, v{vZf}, {R4}, 0 offen offset:8')
    A('s_endpgm')
    A.label('bulk_abort')
    A(f'v_mov_b32 v{vT0}, 9')
    A(f'v_mov_b32 v{vT1}, 4')
    A(f'buffer_store_dword v{vT0}, v{vT1}, {R4}, 0 offen')
    A.label('bulk_end')
    A('s_endpgm')
```

```python
from k7_common import *
NEG = -1.0e30
L_MEM = 0
L_Q   = 10240
L_K   = L_Q + 2048
L_O   = L_K + 2048
L_QX  = L_O + 8192
L_KX  = L_QX + 2048
L_XN  = 40960
LDS_BYTES = 163840
assert L_KX + 8192 <= L_XN
sWS, sWT, sC2 = 4, 8, 12
sKXm, sQXr = 14, 15
sCnt = 16
sPar, sQok = 28, 29
sW, sG, sJ, sH, sA, sStep, sTO, sXw = 30, 31, 32, 33, 34, 35, 36, 37
sX3r, sX1, sX2, sX3w, sVXr, sX2L, sXr, sT0, sT1, sOF, sNH = 38, 39, 40, 41, 42, 44, 45, 46, 47, 48, 49
sX3G, sX1H, sDB, sX2B, sHoff, sT2 = 50, 51, 52, 53, 54, 55
OFFB = 0x9000000
sST = 56
sWarm, sLrng, sZn, sZo = 88, 89, 90, 91
vDbg, vX2tab = 0, 1
vX3ld, vMemR, vX1st, vV1st, vQKld, vQKw, vQr, vKr, vVMld, vOw = 2, 3, 4, 5, 6, 7, 8, 9, 10, 11
vX2st, vSR, vOFst, vL16, vKXr, vXNr, vXA, vM2, vM = 12, 13, 14, 15, 16, 17, 18, 19, 20
vR = 21
vT0, vT1, vT2, vT3, vRinv, vRinv1 = 30, 31, 32, 33, 34, 35
vPL = 36
vBias = 40
vLS = 48
vVE = 52
vWO = 56
vKX = 104
vVX = 136
vS = 144
vAcc = 156
vAcc2 = 160
vP = 164
vVM4 = 168
vXACC = 172
vMW = 180
vOFR = 184
vSent4 = 188
vRG = 192
vPS = 224
vQS = 248
aSel, aOne, aSelH, aOneM = 240, 244, 248, 252
WS = f's[{sWS}:{sWS+3}]'

class Stamp:
    def __init__(self, A, on): self.A, self.on, self.n = A, on, 0
    def __call__(self, lvl=2):
        if self.on >= lvl:
            self.A(f'{"s_memrealtime" if self.on == 3 else "s_memtime"} s[{sST+2*self.n}:{sST+2*self.n+1}]')
            self.A('s_waitcnt lgkmcnt(0)')
            self.n += 1
    def flush(self):
        if not self.on: return
        A = self.A
        for k in range(self.n): A(f'v_writelane_b32 v{vT3}, s{sST+2*k}, {k}')
        for k in range(5): A(f'v_writelane_b32 v{vT3}, s{sCnt+k}, {10+k}')
        A(f'v_writelane_b32 v{vT3}, s100, 15')
        A(f's_lshl_b32 s{sT0}, s{sStep}, 6')
        A(f's_add_u32 s{sT0}, s{sT0}, s{sDB}')
        A(f'buffer_store_dword v{vT3}, v{vDbg}, {WS}, s{sT0} offen')

def slot_list(add):
    return [
    f's_add_u32 s{sT0}, s{sStep}, {add}',
    f's_and_b32 s{sT1}, s{sT0}, 63',
    f's_and_b32 s{sT0}, s{sT0}, 3',
    f's_mul_i32 s{sX3r}, s{sT0}, {X3_SLOT}',
    f's_add_u32 s{sX3r}, s{sX3r}, s{sX3G}',
    f'v_readlane_b32 s{sX2}, v{vX2tab}, s{sT1}',
    f's_mul_i32 s{sX2L}, s{sT0}, {X2_SLOT}',
    f's_add_u32 s{sX2L}, s{sX2L}, {WS_X2L}',
    f's_mul_i32 s{sX1}, s{sT0}, {X1_SLOT}',
    f's_add_u32 s{sX1}, s{sX1}, s{sX1H}',
    f's_add_u32 s{sT0}, s{sT0}, 1',
    f's_and_b32 s{sT0}, s{sT0}, 3',
    f's_mul_i32 s{sX3w}, s{sT0}, {X3_SLOT}',
    f's_add_u32 s{sX3w}, s{sX3w}, s{sX3G}']
def reset_list(fl):
    S4 = f'v[{vSent4}:{vSent4+3}]'
    o = [f's_add_u32 s{sT2}, s{sStep}, 2', f's_and_b32 s{sT2}, s{sT2}, 3',
         f's_mul_i32 s{sT0}, s{sT2}, {X2_SLOT}', f's_add_u32 s{sT0}, s{sT0}, {WS_X2L}']
    for i in range(3):
        o.append(f'buffer_store_dwordx4 {S4}, v{vR if i < 2 else vR+1}, {WS}, s{sT0} offen{fl}')
        if i < 2: o.append(f's_add_u32 s{sT0}, s{sT0}, 32768')
    o += [f's_mul_i32 s{sT1}, s{sT2}, {X1_SLOT}', f's_add_u32 s{sT1}, s{sT1}, s{sX1H}',
          f'buffer_store_dwordx4 {S4}, v{vR+2}, {WS}, s{sT1} offen{fl}',
          f'buffer_store_dwordx4 {S4}, v{vR+2}, {WS}, s{sT1} offen offset:1024{fl}',
          f's_add_u32 s{sT2}, s{sT2}, 1', f's_and_b32 s{sT2}, s{sT2}, 3',
          f's_mul_i32 s{sT1}, s{sT2}, {X3_SLOT}', f's_add_u32 s{sT1}, s{sT1}, s{sX3G}',
          f'buffer_store_dwordx4 {S4}, v{vR+3}, {WS}, s{sT1} offen{fl}']
    return o
def kv_list():
    return [f's_add_u32 m0, s{sKXm}, {L_KX}', f's_add_u32 s{sVXr}, s{sXr}, 8192',
            f'buffer_load_dwordx4 v{vL16}, {WS}, s{sXr} offen sc1 lds',
            f'buffer_load_dwordx4 v{vL16}, {WS}, s{sXr} offen offset:1024 sc1 lds',
            f'buffer_load_dwordx4 v[{vVX}:{vVX+3}], v{vL16}, {WS}, s{sVXr} offen sc1',
            f'buffer_load_dwordx4 v[{vVX+4}:{vVX+7}], v{vL16}, {WS}, s{sVXr} offen offset:1024 sc1',
            f's_add_u32 s{sXr}, s{sXr}, {XSEG}']
def qx_list():
    return [f's_mov_b32 m0, {L_QX}', 's_nop 0',
            f'buffer_load_dwordx4 v{vL16}, {WS}, s{sQXr} offen sc1 lds',
            f'buffer_load_dwordx4 v{vL16}, {WS}, s{sQXr} offen offset:1024 sc1 lds',
            f's_add_u32 s{sQXr}, s{sQXr}, {XSEG}']
def bounded(A, top, code):
    A(f's_sub_u32 s{sTO}, s{sTO}, 1')
    A(f's_cbranch_scc0 {top}')
    A(f's_mov_b32 s{sT0}, {code}')
    A('s_branch chain_abort')
def slow_poll(A, lab, back, issue, consume, nl, code, cnt):
    A.label(lab)
    for k in (0, 1):
        if cnt is not None: A(f's_add_u32 s{cnt}, s{cnt}, 1')
        emit(A, issue(k))
        if nl is not None: A(f's_waitcnt vmcnt({nl})')
        emit(A, consume(1 - k))
        A(f's_cbranch_vccz {back[1 - k] if isinstance(back, tuple) else back}')
    bounded(A, lab, code)
def qp_wait(A, lab, back, shifts=(2, 1)):
    A.label(lab)
    A(f'buffer_load_dword v{vT0}, v{vR+5}, {WS}, 0 offen sc1')
    A('s_waitcnt vmcnt(0)')
    for sh in shifts:
        A(f'v_min_i32_dpp v{vT0}, v{vT0}, v{vT0} row_ror:{sh} row_mask:0xf bank_mask:0xf')
        A('s_nop 1')
    A(f'v_readfirstlane_b32 s{sQok}, v{vT0}')
    A(f's_cmp_ge_i32 s{sQok}, s{sT1}')
    A(f's_cbranch_scc1 {back}')
    bounded(A, lab, 9)

def gen_loop(A, tag, fl, role, stamps, P):
    wv = dict(D=0, A=1, E=1, B=2, C=3)[role]
    st = Stamp(A, stamps)
    isA = role in 'ADE'
    recv = role in 'BCE'
    NU = 1
    N3 = 3 if isA else 2
    CH0 = (0, 3, 6, 8)[wv]
    cn = (lambda k: sCnt + k) if stamps else (lambda k: None)
    br = lambda nm: f's_cbranch_vccnz {nm}_{tag}' if nm not in P.get('nock', '') else 's_nop 2'
    tails = []
    def x3_issue(k):
        r = vPS + 12*k
        return [f'buffer_load_dwordx4 v[{r+4*i}:{r+4*i+3}], v{vX3ld}, {WS}, s{sX3r} offen offset:{1024*i} sc1' for i in range(N3)]
    def x3_consume(k):
        o = []
        for i in range(N3):
            r = vPS + 12*k + 4*i
            o.append(f's_waitcnt vmcnt({2*N3 - 1 - i})')
            o.append(f'ds_write_b128 v{vX3ld}, v[{r}:{r+3}] offset:{1024*i}')
            o += [f'v_max3_u32 v{vT0}, v{r}, v{r+1}, v{r+2}', f'v_max_u32 v{vT0}, v{vT0}, v{r+3}'] if i == 0 else \
                 [f'v_max3_u32 v{vT0}, v{vT0}, v{r}, v{r+1}', f'v_max3_u32 v{vT0}, v{vT0}, v{r+2}, v{r+3}']
        return o + [f'v_cmp_eq_u32 vcc, -1, v{vT0}', 's_waitcnt lgkmcnt(0)']
    def qk_issue(k):
        return [f'buffer_load_dwordx4 v[{vQS+4*k}:{vQS+4*k+3}], v{vQKld}, {WS}, s{sX1} offen sc1']
    def qk_consume(k):
        return [f'ds_write_b128 v{vQKw}, v[{vQS+4*k}:{vQS+4*k+3}]'] + check_sent(range(vQS+4*k, vQS+4*k+4), vT0) + ['s_waitcnt lgkmcnt(0)']
    LO = (3, 0, 1, 2)
    def x2_issue(k=0):
        return [f'buffer_load_dwordx4 v[{vKX+16*k+4*L}:{vKX+16*k+4*L+3}], v{vR+L}, {WS}, s{(sX2B if k else sX2) if L < 3 else sX2L} offen sc1' for L in LO]
    def x2_consume(young, k=0):
        o = []
        for i, L in enumerate(LO):
            r = vKX + 16*k + 4*L
            o.append(f's_waitcnt vmcnt({young + 3 - i})')
            o.append(M32(v(vAcc, 4), a(aSel, 4), v(r, 4), '0' if i == 0 else v(vAcc, 4)))
            o += [f'v_max3_u32 v{vT0}, v{r}, v{r+1}, v{r+2}', f'v_max_u32 v{vT0}, v{vT0}, v{r+3}'] if i == 0 else \
                 [f'v_max3_u32 v{vT0}, v{vT0}, v{r}, v{r+1}', f'v_max3_u32 v{vT0}, v{vT0}, v{r+2}, v{r+3}']
        return o + [f'v_cmp_eq_u32 vcc, -1, v{vT0}', 's_nop 3']
    top_young = N3

    A.label(f'entry_{tag}')
    emit(A, x3_issue(0))
    A('s_waitcnt vmcnt(0)')
    emit(A, x3_issue(1))
    if stamps:
        A('s_memrealtime s[96:97]')
        A('s_waitcnt lgkmcnt(0)')
    if P['al'] >= 0:
        A(f's_branch loop_{tag}')
        A.raw('.p2align 6')
        for _ in range(P['al']): A('s_nop 0')
    A.label(f'loop_{tag}')
    if stamps: A('s_memrealtime s[100:101]')
    st(1)
    emit(A, x3_consume(0))
    A(br('x3s'))
    A.label(f'x3ok_{tag}')
    def x3_light():
        NSET = P['x3l']
        base = [vPS, vPS+12, vKX, vKX+12]
        iss = lambda k: [f'buffer_load_dwordx4 v[{base[k]+4*i}:{base[k]+4*i+3}], v{vX3ld}, {WS}, s{sX3r} offen offset:{1024*i} sc1' for i in range(N3)]
        A.label(f'x3s_{tag}')
        for k in range(2, NSET): emit(A, iss(k))
        A.label(f'x3t_{tag}')
        for k in range(NSET):
            kk = (k + 1) % NSET
            if stamps: A(f's_add_u32 s{sCnt}, s{sCnt}, 1')
            emit(A, iss(k))
            A(f's_waitcnt vmcnt({N3*(NSET-1)})')
            emit(A, check_sent(range(base[kk], base[kk]+4*N3), vT0))
            A(f's_cbranch_vccz x3w{kk}_{tag}')
        bounded(A, f'x3t_{tag}', 1)
        for k in range(NSET):
            A.label(f'x3w{k}_{tag}')
            for i in range(N3): A(f'ds_write_b128 v{vX3ld}, v[{base[k]+4*i}:{base[k]+4*i+3}] offset:{1024*i}')
            A('s_waitcnt lgkmcnt(0)')
            A(f's_branch x3ok_{tag}')
    if P['x3l']: tails.append(x3_light)
    else: tails.append(lambda: slow_poll(A, f'x3s_{tag}', (f'x3ok_{tag}', f'x3o1_{tag}') if P['own'] else f'x3ok_{tag}', x3_issue, x3_consume, None, 1, cn(0)))
    A('s_barrier')
    st()
    MF = lambda i: (vRG + 4*i) if i < 8 else (vS + 4*(i-8))
    mine = list(range(CH0, CH0 + N3)) if P['own'] else []
    order = [i for i in range(10) if i not in mine] + mine
    def p2_head(k):
        for i in order: A(f'ds_read_b128 v[{MF(i)}:{MF(i)+3}], v{vMemR} offset:{1024*i}')
        for i, ch in enumerate(mine):
            r = vPS + 12*k + 4*i
            A(M32(v(vAcc, 4), a(8*ch, 4), v(r, 4), '0' if i == 0 else v(vAcc, 4)))
            A(M32(v(vAcc2, 4), a(8*ch+4, 4), v(r, 4), '0' if i == 0 else v(vAcc2, 4)))
    p2_head(0)
    A.label(f'p2c_{tag}')
    def p2_alt():
        A.label(f'x3o1_{tag}')
        A('s_barrier')
        p2_head(1)
        A(f's_branch p2c_{tag}')
    if mine: tails.append(p2_alt)
    for n, i in enumerate(order):
        if i in mine: break
        A(f's_waitcnt lgkmcnt({9-n})')
        first = (n == 0 and not mine)
        A(M32(v(vAcc, 4), a(8*i, 4), v(MF(i), 4), '0' if first else v(vAcc, 4)))
        A(M32(v(vAcc2, 4), a(8*i+4, 4), v(MF(i), 4), '0' if first else v(vAcc2, 4)))
    if mine: A('s_waitcnt lgkmcnt(0)')
    vm = [M32(v(vVE, 4), v(MF(i), 4), a(80+4*i, 4), '0' if i == 0 else v(vVE, 4)) for i in range(10)]
    NV = P['nv']
    emit(A, vm[:NV])
    if NV < 3: A('s_nop 1')
    for r in range(4): A(f'v_add_f32_dpp v{vAcc+r}, v{vAcc2+r}, v{vAcc+r} row_ror:8 row_mask:0xf bank_mask:0xf')
    if isA:
        A(f'v_pk_mul_f32 v[{vAcc}:{vAcc+1}], v[{vAcc}:{vAcc+1}], s[{sC2}:{sC2+1}]')
        A(f'v_pk_mul_f32 v[{vAcc+2}:{vAcc+3}], v[{vAcc+2}:{vAcc+3}], s[{sC2}:{sC2+1}]')
    A(f'v_cvt_pk_bf16_f32 v{vT0}, v{vAcc}, v{vAcc+1}')
    A(f'v_cvt_pk_bf16_f32 v{vT1}, v{vAcc+2}, v{vAcc+3}')
    A(f'v_min_u32 v{vT0}, -2, v{vT0}')
    A(f'v_min_u32 v{vT1}, -2, v{vT1}')
    A(f'buffer_store_dwordx2 v[{vT0}:{vT1}], v{vX1st}, {WS}, s{sX1} offen{fl}')
    st(3)
    QR = [vQS, vQS+4, vXACC, vXACC+4]
    qi = lambda k: f'buffer_load_dwordx4 v[{QR[k]}:{QR[k]+3}], v{vQKld}, {WS}, s{sX1} offen sc1'
    qc = lambda k: [f'ds_write_b128 v{vQKw}, v[{QR[k]}:{QR[k]+3}]'] + check_sent(range(QR[k], QR[k]+4), vT0) + ['s_waitcnt lgkmcnt(0)']
    late0 = P['qkA'] > 20
    emit(A, weave(vm[NV:], [] if late0 else [(P['qkA'], qi(0))]))
    if P['x3l'] > 2: A('s_waitcnt vmcnt(2)')
    for k in range(8):
        A(f'ds_read_b128 v[{vKX+4*k}:{vKX+4*k+3}], v{vL16} offset:{L_KX + 1024*k}')
        if k == 3 and P['q4']: A(qi(2))
    A(f'v_cvt_pk_bf16_f32 v{vT2}, v{vVE}, v{vVE+1}')
    A(f'v_cvt_pk_bf16_f32 v{vT3}, v{vVE+2}, v{vVE+3}')
    A(f'v_min_u32 v{vT2}, -2, v{vT2}')
    A(f'v_min_u32 v{vT3}, -2, v{vT3}')
    A(f'buffer_store_dwordx2 v[{vT2}:{vT3}], v{vV1st}, {WS}, s{sX1} offen{fl}')
    if wv == 1:
        A(f's_add_u32 s{sT1}, s{sStep}, 3')
        A(f's_lshr_b32 s{sT1}, s{sT1}, 1')
        A(f's_cmp_lt_i32 s{sQok}, s{sT1}')
        A(f's_cbranch_scc1 qp_{tag}')
        A.label(f'qpok_{tag}')
        tails.append(lambda: qp_wait(A, f'qp_{tag}', f'qpok_{tag}'))
    if P['q4']:
        A(qi(3))
        A.nop(P['q4'])
    if late0:
        A.nop(P['qkA'] - 20)
        A(qi(0))
    if P['qkgap']: A.nop(P['qkgap'])
    A(qi(1))
    for _ in range(P.get('wm1', 0)): A(M32(v(vLS, 4), a(aOne, 4), a(aOne, 4), '0'))
    st()
    A(f's_waitcnt vmcnt({4 if P["q4"] else 1 if late0 else 2})')
    emit(A, qc(0))
    A(br('qks'))
    A.label(f'qkok_{tag}')
    def qk_slow():
        A.label(f'qks_{tag}')
        if P['q4']:
            for k, n in ((2, 3), (3, 1)):
                if stamps: A(f's_add_u32 s{sCnt+1}, s{sCnt+1}, 1')
                A(f's_waitcnt vmcnt({n})')
                emit(A, qc(k))
                A(f's_cbranch_vccz qkok_{tag}')
        slow_poll(A, f'qkt_{tag}', f'qkok_{tag}', qk_issue, qk_consume, 1, 2, cn(1))
    tails.append(qk_slow)
    vm_ld = f'buffer_load_dwordx4 v[{vVM4}:{vVM4+3}], v{vVMld}, {WS}, s{sX1} offen sc1'
    if P['vpos'] in (0, 2): A(vm_ld)
    A('s_barrier')
    st()
    QF, KF = vRG, vRG + 16
    for t in range(4): A(f'ds_read_b128 v[{QF+4*t}:{QF+4*t+3}], v{vQr} offset:{512*t}')
    for t in range(4): A(f'ds_read_b128 v[{KF+4*t}:{KF+4*t+3}], v{vKr} offset:{512*t}')
    if P['vpos'] == 1: A(vm_ld)
    vm2 = f'buffer_load_dwordx4 v[{vXACC}:{vXACC+3}], v{vVMld}, {WS}, s{sX1} offen sc1'
    def smf(i, t):
        src = (vKX + 4*t, vKX + 16 + 4*t, KF + 4*t)[i]
        return M32(v(vS+4*i, 4), v(src, 4), v(QF+4*t, 4), (v(vBias+4*i, 4) if i < 2 else '0') if t == 0 else v(vS+4*i, 4))
    E = lambda r: f'v_exp_f32 v{vS+r}, v{vS+r}'
    C = lambda d, r: f'v_cvt_pk_bf16_f32 v{d}, v{vS+r}, v{vS+r+1}'
    for t in range(4):
        A(f's_waitcnt lgkmcnt({7-t})')
        A(smf(0, t))
    if P['vpos'] == 2: A(vm2)
    for t in range(4):
        A(f's_waitcnt lgkmcnt({3-t})')
        A(smf(2, t))
        if t >= 2: A(E(t - 2))
    A(smf(1, 0)); A(E(2))
    A(smf(1, 1)); A(E(3))
    A(smf(1, 2)); A(E(8))
    A(smf(1, 3)); A(E(9))
    A(E(10)); A(E(11))
    if P.get('att'): st()
    A(f's_waitcnt vmcnt({1 if P["vpos"] == 2 else 0})')
    if P.get('att'): st()
    emit(A, check_sent(range(vVM4, vVM4+4), vT2))
    A(C(vPL, 8)); A(C(vPL+1, 10))
    A(E(4))
    A(br('pvs'))
    A.label(f'pvok_{tag}')
    def pv_slow():
        A.label(f'pvs_{tag}')
        if P['vpos'] == 2:
            if stamps: A(f's_add_u32 s{sCnt+2}, s{sCnt+2}, 1')
            A('s_waitcnt vmcnt(0)')
            emit(A, check_sent(range(vXACC, vXACC+4), vT2))
            for r in range(4): A(f'v_mov_b32 v{vVM4+r}, v{vXACC+r}')
            A('s_nop 0')
            A(f's_cbranch_vccz pvok_{tag}')
        A.label(f'pvt_{tag}')
        if stamps: A(f's_add_u32 s{sCnt+2}, s{sCnt+2}, 1')
        A(vm_ld)
        A('s_waitcnt vmcnt(0)')
        emit(A, check_sent(range(vVM4, vVM4+4), vT2))
        A(f's_cbranch_vccz pvok_{tag}')
        bounded(A, f'pvt_{tag}', 3)
    tails.append(pv_slow)
    pvm = [M16(v(vAcc, 4), v(vVM4, 2), v(vPL, 2), '0'), M16(v(vAcc2, 4), v(vVM4+2, 2), v(vPL, 2), '0'),
           M16(v(vLS, 4), a(aOneM, 2), v(vPL, 2), '0')]
    A(pvm[0]); A(E(5))
    if wv == 1 and P['tatt']: A(f'buffer_load_dword v{vM2+0 if False else vXA}, v{vR+4}, {WS}, s{sWarm} offen sc1')
    if role == 'D' and P['tlb']: A(f'buffer_load_dword v{vXA}, v{vR+6}, {WS}, s{sXw} offen sc1')
    A(pvm[1]); A(E(6))
    if P['pt'] & 1: A(f'buffer_load_dword v{vXNr}, v{vSR}, {WS}, s{sX2} offen sc1')
    A(pvm[2]); A(E(7))
    if recv and P['pt'] & 2: A(f'buffer_load_dword v{vXNr}, v{vKXr}, {WS}, s{sX2} offen sc1')
    A(C(vP, 0)); A(C(vP+1, 2)); A(C(vP+2, 4)); A(C(vP+3, 6))
    A('s_nop 1')
    if P.get('att'): st()
    D = vPS
    NTL = 3 if isA else 2
    def pv_fin():
        A(M32(v(vAcc, 4), v(vVX, 4), v(vP, 4), v(vAcc, 4)))
        A(M32(v(vAcc2, 4), v(vVX+4, 4), v(vP, 4), v(vAcc2, 4)))
        A(M32(v(vLS, 4), a(aOne, 4), v(vP, 4), v(vLS, 4)))
        A.nop(P['pvnop'])
        A(f'v_cvt_pk_bf16_f32 v{vOFR}, v{vAcc}, v{vAcc+1}')
        A(f'v_cvt_pk_bf16_f32 v{vOFR+1}, v{vAcc+2}, v{vAcc+3}')
        A(f'v_cvt_pk_bf16_f32 v{vOFR+2}, v{vAcc2}, v{vAcc2+1}')
        A(f'v_cvt_pk_bf16_f32 v{vOFR+3}, v{vAcc2+2}, v{vAcc2+3}')
        A(f'ds_write_b128 v{vOw}, v[{vOFR}:{vOFR+3}]')
        A(f'v_rcp_f32 v{vRinv}, v{vLS}')
        for k in range(NTL): A(M32(v(D+4*k, 4), v(vWO+16*k+4*wv, 4), v(vOFR, 4), '0'))
    pv_fin()
    A(f'v_subrev_u32 v{vT0}, {f2u(2.0**-60):#x}, v{vLS}')
    A(f'v_cmp_le_u32 vcc, s{sLrng}, v{vT0}')
    A(f'v_mov_b32 v{vRinv1}, v{vRinv}')
    A(f's_cmp_eq_u32 s{sStep}, {NSEG-1}')
    A('s_waitcnt lgkmcnt(0)')
    A(br('smx'))
    A.label(f'smok_{tag}')
    def sm_slow():
        A.label(f'smx_{tag}')
        if stamps: A(f's_add_u32 s{sCnt+4}, s{sCnt+4}, 1')
        for i in range(3):
            for t in range(4): A(smf(i, t))
        A.nop(8)
        A(f'v_max3_f32 v{vM}, v{vS}, v{vS+1}, v{vS+2}')
        for r in range(3, 11, 2): A(f'v_max3_f32 v{vM}, v{vM}, v{vS+r}, v{vS+r+1}')
        A(f'v_max_f32 v{vM}, v{vM}, v{vS+11}')
        for sw in ('16', '32'):
            A(f'v_mov_b32 v{vT0}, v{vM}')
            A.nop(2)
            A(f'v_permlane{sw}_swap_b32 v{vT0}, v{vM}')
            A.nop(1)
            A(f'v_max_f32 v{vM}, v{vM}, v{vT0}')
        for r in range(12): A(f'v_sub_f32 v{vS+r}, v{vS+r}, v{vM}')
        for r in range(12): A(E(r))
        A.nop(1)
        A(C(vP, 0)); A(C(vP+1, 2)); A(C(vP+2, 4)); A(C(vP+3, 6)); A(C(vPL, 8)); A(C(vPL+1, 10))
        A.nop(2)
        emit(A, pvm)
        A.nop(6)
        pv_fin()
        A.nop(1)
        A(f'v_mov_b32 v{vRinv1}, v{vRinv}')
        A(f's_cmp_eq_u32 s{sStep}, {NSEG-1}')
        A('s_waitcnt lgkmcnt(0)')
        A(f's_branch smok_{tag}')
    tails.append(sm_slow)
    A(f's_cbranch_scc1 last_{tag}')
    A('s_barrier')
    st()
    OF4 = vRG
    TS = [t for t in range(4) if t != wv]
    for t in TS: A(f'ds_read_b128 v[{OF4+4*t}:{OF4+4*t+3}], v{vL16} offset:{L_O + 1024*t}')
    R = vS
    RI = f'v[{vRinv}:{vRinv1}]'
    def scale_cvt(k):
        return [f'v_pk_mul_f32 v[{D+4*k}:{D+4*k+1}], v[{D+4*k}:{D+4*k+1}], {RI}',
                f'v_pk_mul_f32 v[{D+4*k+2}:{D+4*k+3}], v[{D+4*k+2}:{D+4*k+3}], {RI}',
                f'v_cvt_pk_bf16_f32 v{D+4*k}, v{D+4*k}, v{D+4*k+1}',
                f'v_cvt_pk_bf16_f32 v{D+4*k+1}, v{D+4*k+2}, v{D+4*k+3}']
    mind = lambda d, s_, ctl: f'v_min_u32_dpp v{d}, v{s_}, v{vM2} ' + ctl.replace(' bank', ' row_mask:0xf bank')
    export = []
    for r in (0, 2):
        export.append(f'v_pk_mul_f32 v[{vAcc+r}:{vAcc+r+1}], v[{vAcc+r}:{vAcc+r+1}], {RI}')
        export.append(f'v_pk_mul_f32 v[{vAcc2+r}:{vAcc2+r+1}], v[{vAcc2+r}:{vAcc2+r+1}], {RI}')
    export += [f'v_cvt_pk_bf16_f32 v{vOFR}, v{vAcc}, v{vAcc+1}', f'v_cvt_pk_bf16_f32 v{vOFR+1}, v{vAcc+2}, v{vAcc+3}',
               f'v_cvt_pk_bf16_f32 v{vOFR+2}, v{vAcc2}, v{vAcc2+1}', f'v_cvt_pk_bf16_f32 v{vOFR+3}, v{vAcc2+2}, v{vAcc2+3}',
               f'buffer_store_dwordx4 v[{vOFR}:{vOFR+3}], v{vOFst}, {WS}, s{sOF} offen sc1',
               f's_add_u32 s{sOF}, s{sOF}, {2*128*1024}']
    emit(A, export[:6])
    op = []
    for n, k in enumerate([2, 0, 1] if isA else [0, 1]):
        for i, t in enumerate(TS):
            if n == 0: op.append(f's_waitcnt lgkmcnt({2-i})')
            op.append(M32(v(D+4*k, 4), v(vWO+16*k+4*t, 4), v(OF4+4*t, 4), v(D+4*k, 4)))
    ident = 'quad_perm:[0,1,2,3] bank_mask:0x3'
    if isA:
        single = scale_cvt(2) + ['s_nop 0', mind(R, D+8, 'row_shr:8 bank_mask:0xc'), mind(R+1, D+9, 'row_shr:8 bank_mask:0xc'),
                                 mind(R+2, D+8, 'row_shr:7 bank_mask:0xc'), mind(R+3, D+9, 'row_shr:7 bank_mask:0xc')]
        emit(A, weave(op, export[6:8] + [(6, x) for x in single], per=3))
    else:
        emit(A, weave(op, export[6:8]))
    emit(A, scale_cvt(0))
    A.nop(2)
    A(mind(R, D, ident)); A(mind(R+1, D+1, ident))
    emit(A, scale_cvt(1))
    A.nop(1)
    A(mind(R+2, D+4, ident)); A(mind(R+3, D+5, ident))
    A(f'buffer_store_dwordx4 v[{R}:{R+3}], v{vSR}, {WS}, s{sX2} offen sc1')
    A(f'buffer_store_dwordx4 v[{R}:{R+3}], v{vX2st}, {WS}, s{sX2L} offen{fl}')
    if P['two']: A(f'buffer_store_dwordx4 v[{R}:{R+3}], v{vSR}, {WS}, s{sX2B} offen sc1')
    st()
    pre = kv_list() if not P.get('nokv') else []
    late = list(export[8:])
    if role == 'D':
        A(f's_cmp_eq_u32 s{sStep}, s{sZn}')
        A(f's_cbranch_scc1 z1_{tag}')
        A.label(f'z1ok_{tag}')
        def z1():
            A.label(f'z1_{tag}')
            A(f'v_lshrrev_b32 v{vT2}, 1, v{vL16}')
            A(f'buffer_load_dwordx2 v[{vT0}:{vT1}], v{vT2}, {WS}, s{sZo} offen sc1')
            A('s_waitcnt vmcnt(0)')
            emit(A, check_sent([vT0, vT1], vT0))
            A(f's_cbranch_vccz z2_{tag}')
            bounded(A, f'z1_{tag}', 8)
            A.label(f'z2_{tag}')
            A(f's_add_u32 s{sZo}, s{sZo}, 512')
            A(f's_cmp_eq_u32 s{sZn}, 2')
            A(f's_cselect_b32 s{sZn}, 7, 23')
            A(f's_branch z1ok_{tag}')
        tails.append(z1)
        late += reset_list(fl)
        late += [f's_add_u32 s{sT0}, s{sStep}, 5', f's_min_u32 s{sT0}, s{sT0}, 63', f'v_readlane_b32 s{sXw}, v{vX2tab}, s{sT0}',
                 f's_xor_b32 s{sXw}, s{sXw}, 8192']
        late += [f's_lshl_b32 s{sT0}, s{sStep}, 7', f's_add_u32 s{sT0}, s{sT0}, {WS_PROG - 256}',
                 f'buffer_store_dword v{vM2}, v{vR+5}, {WS}, s{sT0} offen sc1']
    if wv == 1:
        touch = [f'buffer_load_dword v{vM}, v{vR+4}, {WS}, s{sWarm} offen sc1', f's_add_u32 s{sWarm}, s{sWarm}, {XSEG}']
        if P.get('notouch') or P['tatt']: touch = touch[1:]
        dl = []
        n = P['tdel']
        while n > 0: dl.append(f's_nop {min(n,16)-1}'); n -= 16
        pre = (touch + qx_list() + pre) if P['tfirst'] else (qx_list() + pre + dl + touch)
    if recv:
        if not isA and P['kvS']: A(f's_sleep {P["kvS"]}')
        emit(A, pre)
        A(f's_sleep {P["pollS"] - (P["pollE"] if isA else P["kvS"])}')
        emit(A, x2_issue())
        emit(A, late)
        st()
        if P.get('diag'):
            A(f's_waitcnt vmcnt({nvm(late) + 4*NU + 4})'); st()
            A(f's_waitcnt vmcnt({nvm(late) + 4*NU})'); st()
        if P['two']:
            A(f's_sleep {P["two"]}')
            emit(A, x2_issue(1))
        emit(A, x2_consume(nvm(late) + (4 if P['two'] else 0)))
        A(br('x2s'))
        A.label(f'x2ok_{tag}')
        def x2_slow():
            A.label(f'x2s_{tag}')
            if P['two']:
                if stamps: A(f's_add_u32 s{sCnt+2}, s{sCnt+2}, 1')
                emit(A, x2_consume(0, 1))
                A(f's_cbranch_vccz x2ok_{tag}')
            A.label(f'x2t_{tag}')
            if stamps: A(f's_add_u32 s{sCnt+3}, s{sCnt+3}, 1')
            emit(A, x2_issue())
            emit(A, x2_consume(0))
            A(f's_cbranch_vccz x2ok_{tag}')
            bounded(A, f'x2t_{tag}', 4)
        tails.append(x2_slow)
        st()
        for r in range(4): A(f'v_add_f32_dpp v{vAcc2+r}, v{vAcc+r}, v{vAcc+r} row_ror:8 row_mask:0xf bank_mask:0xf')
        A(f'v_cvt_pk_bf16_f32 v{vT0}, v{vAcc2}, v{vAcc2+1}')
        A(f'v_cvt_pk_bf16_f32 v{vT1}, v{vAcc2+2}, v{vAcc2+3}')
        A(f'v_min_u32 v{vT0}, -2, v{vT0}')
        A(f'v_min_u32 v{vT1}, -2, v{vT1}')
        A(f'buffer_store_dwordx2 v[{vT0}:{vT1}], v{vR+8}, {WS}, s{sX3w} offen{fl}')
    else:
        emit(A, pre)
        if P['lateS']: A(f's_sleep {P["lateS"]}')
        emit(A, late)
        st(); st()
    sl = slot_list(1)
    if not recv: emit(A, sl)
    if P['nob4'] == 0: A('s_barrier')
    elif not recv: A.nop(P['nob4'] - (60 if role == 'D' else 0))
    st.flush()
    if recv: emit(A, sl[:5])
    A.nop(P['x3d'] if not recv else max(0, P['x3d'] - 8))
    emit(A, x3_issue(0))
    if recv: emit(A, sl[5:])
    A(f's_add_u32 s{sStep}, s{sStep}, 1')
    A('s_sleep 1')
    emit(A, x3_issue(1))
    for _ in range(P.get('wm3', 0)): A(M32(v(vVE, 4), a(aOne, 4), a(aOne, 4), '0'))
    A(f's_branch loop_{tag}')
    A.label(f'last_{tag}')
    emit(A, export)
    if role == 'D':
        A(f's_mov_b32 s{sT0}, {WS_PROG + 61*128}')
        A(f'buffer_store_dword v{vM2}, v{vR+5}, {WS}, s{sT0} offen sc1')
    A('s_waitcnt vmcnt(0)')
    A('s_barrier')
    if role == 'D':
        A(f's_lshl_b32 s{sT0}, s{sG}, 5')
        A(f's_add_u32 s{sT0}, s{sT0}, s{sJ}')
        A(f's_lshl_b32 s{sT0}, s{sT0}, 2')
        A(f's_add_u32 s{sT0}, s{sT0}, {WS_FLAG}')
        A(f'v_cmp_eq_u32 vcc, 0, v{vL16}')
        A(f'v_mov_b32 v{vT0}, {OOB:#x}')
        A('s_nop 1')
        A(f'v_cndmask_b32 v{vT0}, v{vT0}, 0, vcc')
        A(f'buffer_store_dword v{vM2}, v{vT0}, {WS}, s{sT0} offen sc1')
    if stamps:
        A('s_memrealtime s[100:101]')
        A('s_waitcnt lgkmcnt(0)')
        A(f'v_writelane_b32 v{vT3}, s{sST}, 0')
        for k, r in enumerate((94, 96, 100, 76, 78, 80, 82, 84, 86)): A(f'v_writelane_b32 v{vT3}, s{r}, {1+k}')
        A(f's_add_u32 s{sT0}, s{sDB}, {63*64}')
        A(f'buffer_store_dword v{vT3}, v{vDbg}, {WS}, s{sT0} offen')
        if P.get('dbgout') and role == 'D':
            A(f'v_writelane_b32 v{vT3}, s74, 10')
            A(f'v_readlane_b32 s{sT0}, v{vX2tab}, 0')
            A(f'v_writelane_b32 v{vT3}, s{sT0}, 11')
            A(f'v_writelane_b32 v{vT3}, s98, 12')
            srd(A, sWT, 24, 64)
            A(f's_add_u32 s{sT0}, s{sJ}, s{sG}')
            A(f's_cmp_eq_u32 s{sT0}, 0')
            A(f's_cselect_b32 s{sT0}, 12, 64')
            A(f'buffer_store_dword v{vT3}, v{vDbg}, s[{sWT}:{sWT+3}], s{sT0} offen')
    A('s_endpgm')
    for t in tails: t()

DEFAULT_P = dict(two=0, own=0, lin2=0, rot=1, kvS=2, nv=3, coop=0, ns0=0, bdel=0, vpos=0, pollE=2, al=0, x3l=0, lateS=0, pt=0, lin=0, cpf=1, pollS=5, q4=0, x3d=0, nob4=0, tlb=1, tatt=1, tdel=0, tfirst=0, pollA=80, qkA=5, qkgap=0, x3A=4, x3B=8, x3gap=16, pvnop=6)

def gen_chain(A, stamps, P):
    wt = f's[{sWT}:{sWT+3}]'
    npst = [0]
    def pst():
        if stamps == 1:
            A(f's_memrealtime s[{76+2*npst[0]}:{77+2*npst[0]}]'); A('s_waitcnt lgkmcnt(0)'); npst[0] += 1
    if stamps: A('s_memrealtime s[94:95]')
    if P['cpf']: code_prefetch(A, 250, 8)
    A('s_load_dwordx4 s[16:19], s[0:1], 16')
    A('s_load_dwordx4 s[20:23], s[0:1], 32')
    A('s_load_dwordx4 s[24:27], s[0:1], 96')
    A('s_load_dwordx2 s[72:73], s[0:1], 8')
    F = 232
    X = VX(A, vRG, F, 3)
    A(f'v_lshrrev_b32 v{F+3}, 6, v0')
    A(f'v_and_b32 v{F}, 63, v0')
    A(f'v_readfirstlane_b32 s{sW}, v{F+3}')
    A(f'v_bfe_u32 v{F+1}, v0, 4, 2')
    A(f'v_and_b32 v{F+2}, 15, v0')
    A(f's_and_b32 s{sG}, s2, 3')
    A(f's_lshr_b32 s{sJ}, s2, 3')
    A(f's_lshr_b32 s{sH}, s{sJ}, 2')
    A(f's_lshl_b32 s3, s{sG}, 3')
    A(f's_add_u32 s{sH}, s{sH}, s3')
    A(f's_and_b32 s{sA}, s{sJ}, 3')
    A(f's_and_b32 s{sPar}, s{sA}, 1')
    A(f's_mov_b32 s{sTO}, 0x400000')
    for i, sr in enumerate((sA, sH, sJ, sG)): A(f'v_mov_b32 v{F+4+i}, s{sr}')
    A(f'v_mov_b32 v{F+8}, v0')
    L, g, c, w, a_, h, j, G, tid = [X.reg(F+i) for i in range(9)]
    X.set(vL16, L*16)
    L16 = X.reg(vL16)
    def frag_addr(dst, it):
        X.set(vT1, ((it >> 3)*3277) >> 16)
        ua = X.reg(vT1)
        X.set(vT2, (it >> 3) - ua*20)
        u = X.reg(vT2)
        g1, r1, gh = (lambda: (it >> 2) & 1), (lambda: (it >> 1) & 1), (lambda: it & 1)
        X.set(vT3, (ua*5 + (u >> 2))*512 + ((g1()*2 + gh())*8 + (u & 3)*2 + r1())*16)
        X.set(dst, (ua*5 + 4)*512 + (((u & 2) + gh())*8 + (u & 1)*4 + r1()*2 + g1())*16)
        X.set(dst, X.sel(('lt', u, 16), X.reg(vT3), X.reg(dst)))
    TQ, TA_, TV, TO1, TO2 = [vXACC + i for i in range(5)]
    X.set(TQ, (L >> 2)*8192 + (((L >> 1) & 1) ^ ((L >> 5) & 1))*32 + (L & 1)*16 + h*256 + a_*64)
    A('s_waitcnt lgkmcnt(0)')
    srd(A, sWS, 26, WS_SIZE)
    if P['lin']: lin_touch(A, X, tid, vKX, sWT, (16, 18, 20, 22))
    A(f's_lshl_b32 s3, s{sG}, 5')
    A(f's_add_u32 s3, s3, s{sJ}')
    A(f's_lshl_b32 s60, s{sW}, 7')
    A('s_add_u32 s3, s3, s60')
    A('s_cmp_ge_u32 s3, 22')
    A('s_cbranch_scc1 cal_done')
    A('s_sub_u32 s60, 0, s26')
    A('s_and_b32 s60, s60, 0x1fffff')
    A(f's_lshl_b32 s61, s{sJ}, 21')
    A('s_add_u32 s60, s60, s61')
    A(f's_add_u32 s60, s60, {WS_X2 + 0x1f8000}')
    A('s_add_u32 s70, s26, s60')
    A('s_addc_u32 s71, s27, 0')
    A('s_mov_b32 s62, -1')
    A('s_mov_b32 s63, -1')
    for rep in range(P['calrep']):
        for hf in range(2):
            A('s_mov_b32 s61, 0')
            A('s_memtime s[64:65]')
            A('s_waitcnt lgkmcnt(0)')
            A(f's_atomic_or s61, s[70:71], {hf*8192 + (rep&1)*4096} glc')
            A('s_waitcnt lgkmcnt(0)')
            A('s_memtime s[66:67]')
            A('s_waitcnt lgkmcnt(0)')
            A('s_sub_u32 s64, s66, s64')
            A(f's_min_u32 s{62+hf}, s{62+hf}, s64')
    A('s_cmp_lt_u32 s63, s62')
    A('s_cselect_b32 s61, 1, 0')
    A(f's_lshl_b32 s61, s61, s{sJ}')
    if P.get('rot'):
        rot_poll(A, 24, 60, sTO, 'chain_abort10')
        A(f's_cmp_lg_u32 s60, s{sRot}')
        A('s_cbranch_scc1 cal_done')
    A(f's_atomic_or s61, s[24:25], {DBG_MASK} glc')
    A('s_waitcnt lgkmcnt(0)')
    arrive_s(A, 24, 61, 'cal_done')
    A.label('cal_done')
    if P['coop']:
        for i in range(2):
            X.set(vKX+i, X.sel(('lt', tid + 256*i, 320), (j*20 + ((tid + 256*i) >> 4))*8192 + G*2048 + (tid & 15)*128, OOB))
        for m, ptr in enumerate((16, 18, 20)):
            srd(A, sWT, ptr, DM * 4096 * 2)
            for i in range(2): A(f'buffer_load_dword v{vKX+4+2*m+i}, v{vKX+i}, {wt}, 0 offen')
        srd(A, sWT, 22, 4096 * DM * 2)
        for i in range(2):
            X.set(vT1, X.sel(('lt', tid + 256*i, 320), (G*32 + j)*40960 + (tid + 256*i)*128, OOB))
            A(f'buffer_load_dword v{vKX+10+i}, v{vT1}, {wt}, 0 offen')
    for m, ptr in enumerate((16, 18, 20)):
        srd(A, sWT, ptr, DM * 4096 * 2)
        A(f's_lshl_b32 s63, s{sW}, 10')
        A(f's_add_u32 s63, s63, {40960*(m+1)}')
        A(f's_mul_i32 s64, s{sW}, {16*8192}')
        for i in range(10):
            A('s_mov_b32 m0, s63')
            A(f's_add_u32 s63, s63, 4096')
            A(f'buffer_load_dwordx4 v{TQ}, {wt}, s64 offen lds')
            A(f's_add_u32 s64, s64, {64*8192}')
    srd(A, sWT, 22, 4096 * DM * 2)
    A(f's_mul_i32 s64, s{sH}, {128*1280}')
    A(f's_mul_i32 s3, s{sA}, 320')
    A(f's_add_u32 s64, s64, s3')
    A(f's_lshl_b32 s63, s{sW}, 10')
    for i in range(10):
        cid = tid + 256*i
        row = (cid*3277) >> 16
        X.set(vT0, row*1280 + (cid - row*20)*16)
        A('s_mov_b32 m0, s63')
        A(f's_add_u32 s63, s63, 4096')
        A(f'buffer_load_dwordx4 v{vT0}, {wt}, s64 offen lds')
    if P.get('rot'): rot_verify(A, 24, 60, sTO, 'chain_abort10')
    for q in range(4): X.set(vSent4+q, -1)
    S4 = f'v[{vSent4}:{vSent4+3}]'
    srd(A, sWT, 72, NM*DM*2)
    idn = lambda: j*20 + tid
    X.set(vT2, X.sel(('lt', tid, 20), (idn() & 7)*1280 + (idn() >> 3)*16, OOB))
    A(f'buffer_load_dwordx4 v[{vS}:{vS+3}], v{vT2}, {wt}, 0 offen')
    per = -(-(WS_FILL_END - WS_FILL_BEG) // (128 * 4096))
    X.set(vT1, (G*32 + j)*(per*4096) + tid*16 + WS_FILL_BEG)
    A(f's_mov_b32 s{sWS+2}, {WS_FILL_END:#x}')
    for r in range(per):
        A(f'buffer_store_dwordx4 {S4}, v{vT1}, {WS}, 0 offen sc1')
        A(f'v_add_u32 v{vT1}, 4096, v{vT1}')
    A(f's_mov_b32 s{sWS+2}, {WS_SIZE:#x}')
    A('s_sub_u32 s60, 0, s26')
    A('s_and_b32 s60, s60, 0x1fffff')
    A(f's_add_u32 s60, s60, {WS_X2}')
    X.set(vT1, X.sel(('lt', G*32 + j, 120), (G*32 + j)*16384 + tid*16, OOB))
    for r in range(4):
        A(f'buffer_store_dwordx4 {S4}, v{vT1}, {WS}, s60 offen sc1')
        if P['two']:
            A(f's_add_u32 s61, s60, {OFFB}')
            A(f'buffer_store_dwordx4 {S4}, v{vT1}, {WS}, s61 offen sc1')
        A('s_add_u32 s60, s60, 4096')
    X.set(vS+4, X.sel(('lt', tid, 20), idn()*16 + G*X3_G + WS_X3, OOB))
    X.set(vM2, -2)
    clt8 = ('lt', c, 8); glt2 = ('lt', g, 2); wlt2 = ('lt', w, 2); w0 = ('eq', w, 0)
    X.set(vT0, 0x3f803f80)
    for q in range(4): A(f'v_accvgpr_write_b32 a{aOne+q}, v{vT0}')
    X.set(vT0, X.sel(glt2, 0x3f803f80, 0))
    for q in range(2): A(f'v_accvgpr_write_b32 a{aOneM+q}, v{vT0}')
    slot = lambda: (g*8 + (c & 7))*16
    X.set(vMemR, slot() + (c >> 3)*512)
    X.set(vX3ld, X.sel(wlt2, w*3072, w*2048 + 2048) + X.reg(vMemR))
    X.set(vKr, slot() + L_K)
    X.set(vQr, X.sel(clt8, L_Q, L_QX) + slot())
    tq = lambda: (a_ & 2) + (w & 1)
    tt = lambda: a_ & 1
    X.set(vX1st, X.sel(clt8, tq()*1024 + (w >> 1)*512 + slot() + tt()*8, OOB))
    X.set(vV1st, X.sel(('eq', g >> 1, w >> 1), a_*1024 + L16 + (w & 1)*8 + 4096, OOB))
    X.set(vVMld, w*1024 + L16 + 4096)
    X.set(vQKld, w*1024 + L16)
    X.set(vOw, w*1024 + L16 + L_O)
    X.set(vQKw, X.sel(glt2, L_Q, L_K - 512) + w*512 + L16)
    X.set(vT0, (a_*20 + w*4 + (c >> 1))*4096 + ((c & 1)*4 + g)*16)
    X.set(vT1, (a_*20 + 16 + w*2 + ((c >> 2) & 1))*4096 + (((c >> 1) & 1)*4 + g)*16)
    X.set(vT1, X.sel(('eq', (c & 1) + (w & 2), 0), X.reg(vT1), OOB))
    X.set(vX2st, X.sel(clt8, X.reg(vT0), X.reg(vT1)) + h*128)
    xs = X.reg(vX2st)
    X.set(vSR, X.sel(('lt', xs, OOB), (xs >> 13)*16384 + (xs & 8191), OOB))
    X.set(vOFst, X.sel(clt8, OOB, ((a_ >> 1)*128 + h*4 + w)*1024 + tt()*128 + L16 - 128))
    X.set(vT0, X.sel(('lt', j, 16), j*3 + X.sel(wlt2, 2, w & 1), j*2 + 16 + (w & 1)))
    U = X.reg(vT0)
    x2a = lambda Uq, Lq: (Uq*4096 if Lq == 3 else (Uq >> 1)*16384 + (Uq & 1)*4096) + L16 + ((G + (Lq+1)) & 3)*1024
    lo = [lambda: (a_*20 + (L >> 3))*4096 + h*128 + (L & 7)*16,
          lambda: X.sel(('lt', L, 32), X.reg(vR), OOB),
          lambda: a_*2048 + L16,
          lambda: X.sel(('lt', L, 20), j*320 + L16, OOB)]
    for i in range(4):
        X.set(vR+i, X.sel(w0, lo[i](), x2a(U, i)))
    X.set(vR+4, X.sel(('lt', L, 32), a_*4096 + L*128, X.sel(('lt', L, 48), a_*2048 + L*128 + (16384 - 4096), OOB)))
    X.set(vR+5, X.sel(w0, X.sel(('eq', L + j + G, 0), 0, OOB), h*16 + (L & 3)*4 + WS_QP))
    X.set(vR+6, X.sel(('eq', L, 0), 0, OOB))
    if P['pt']: X.set(vKXr, X.sel(('lt', L, 2), ((U + L) >> 1)*16384 + ((U + L) & 1)*4096 + G*1024, OOB))
    X.set(vRinv1, (U + (g >> 1))*8 + (g & 1)*4 + ((c & 7) >> 1))
    frag_addr(vRinv, X.reg(vRinv1))
    X.set(vR+8, X.sel(('eq', (c >> 3) + (g >> 1), 0), X.reg(vRinv) + (c & 1)*8, OOB))
    for q in range(4):
        X.set(vT1, X.sel(('eq', c >> 1, q), X.sel(('eq', c & 1, 0), 0x3f80, 0x3f800000), 0))
        A(f'v_accvgpr_write_b32 a{aSel+q if q < 4 else aSelH+q-4}, v{vT1}')
    X.set(vT1, X.sel(clt8, 63, a_*8 + c - 8))
    for kt in range(2):
        for r in range(4):
            X.set(vBias+4*kt+r, X.sel(('gt', g*4 + (16*kt + r), X.reg(vT1)), f2u(NEG), 0))
    trb = lambda: (g*8 + ((L >> 2) & 3))*64 + ((w & 1) ^ (g & 1))*32 + (L & 3)*8
    X.set(TA_, trb() + (w >> 1)*40960 + 40960)
    X.set(TV, trb() + (w >> 1)*2048 + 122880)
    wob = lambda: (g*4 + ((L >> 2) & 3))*320 + (L & 3)*8
    X.set(TO1, wob() + w*64)
    X.set(TO2, wob() + (w & 1)*32 + 256)
    X.set(vP+1, X.sel(('eq', tid, 0), 0, OOB))
    X.set(vP+2, (L & 31)*4)
    X.set(vDbg, X.sel(('lt', L, 16), L*4, OOB))
    A(f's_mov_b32 s{sOF}, {WS_OF}')
    A(f's_cmp_lt_u32 s{sJ}, 16')
    A(f's_cselect_b32 s{sNH}, 3, 2')
    A(f's_mov_b32 s{sC2}, {f2u(QSCALE):#x}')
    A(f's_mov_b32 s{sC2+1}, {f2u(QSCALE):#x}')
    A(f's_mul_i32 s{sX3G}, s{sG}, {X3_G}')
    A(f's_add_u32 s{sX3G}, s{sX3G}, {WS_X3}')
    A(f's_lshl_b32 s{sX1H}, s{sH}, 13')
    A(f's_add_u32 s{sX1H}, s{sX1H}, {WS_X1}')
    A(f's_mul_i32 s{sHoff}, s{sH}, {XH}')
    A(f's_add_u32 s{sHoff}, s{sHoff}, {WS_KX}')
    A(f's_lshl_b32 s75, s{sG}, 5')
    A(f's_add_u32 s75, s75, s{sJ}')
    A(f's_lshl_b32 s{sDB}, s75, 2')
    A(f's_add_u32 s{sDB}, s{sDB}, s{sW}')
    A(f's_lshl_b32 s{sDB}, s{sDB}, 12')
    A(f's_add_u32 s{sDB}, s{sDB}, {WS_DBG:#x}')
    A(f's_lshl_b32 s{sKXm}, s{sW}, 11')
    A(f's_lshl_b32 s{sQXr}, s{sA}, 11')
    A(f's_add_u32 s{sQXr}, s{sQXr}, s{sHoff}')
    A(f's_add_u32 s{sQXr}, s{sQXr}, 16384')
    A(f's_add_u32 s{sXr}, s{sHoff}, s{sKXm}')
    A(f's_mov_b32 s{sLrng}, {f2u(2.0**64) - f2u(2.0**-60):#x}')
    A(f's_add_u32 s{sWarm}, s{sHoff}, {XSEG}')
    pst()
    A('s_waitcnt vmcnt(0)')
    for k in range(4): A(f'v_min_u32 v{vS+k}, -2, v{vS+k}')
    A(f'buffer_store_dwordx4 v[{vS}:{vS+3}], v{vS+4}, {WS}, 0 offen sc1')
    A('s_barrier')
    pst()
    for t in range(20):
        A(f'ds_read_b64_tr_b16 a[{4*t}:{4*t+1}], v{TA_} offset:{2048*t}')
        A(f'ds_read_b64_tr_b16 a[{4*t+2}:{4*t+3}], v{TA_} offset:{2048*t+256}')
        if t % 4 == 3: A('s_waitcnt lgkmcnt(4)')
    for i in range(10):
        A(f'ds_read_b64_tr_b16 a[{80+4*i}:{80+4*i+1}], v{TV} offset:{4096*i}')
        A(f'ds_read_b64_tr_b16 a[{80+4*i+2}:{80+4*i+3}], v{TV} offset:{4096*i+256}')
        if i % 4 == 3: A('s_waitcnt lgkmcnt(4)')
    for k in range(3):
        for t in range(4):
            r, o = (TO1, 32*320*t + 32*k) if k < 2 else (TO2, 32*320*t)
            A(f'ds_read_b64_tr_b16 v[{vWO+16*k+4*t}:{vWO+16*k+4*t+1}], v{r} offset:{o}')
            A(f'ds_read_b64_tr_b16 v[{vWO+16*k+4*t+2}:{vWO+16*k+4*t+3}], v{r} offset:{o+16*320}')
        A('s_waitcnt lgkmcnt(0)')
    pst()
    srd(A, sWT, 24, 256)
    wait_start(A, wt, vT0, 74, sTO, 'start_ok', 'chain_abort10', sleep=4)
    pst()
    NS0 = 0
    x2_table(A, X, L, vX2tab, 74, 26, vT1)
    if P.get('dbgout'): A('s_mov_b32 s98, s74')
    A(f's_getreg_b32 s74, hwreg(HW_REG_XCC_ID, 0, 4)')
    A(f's_lshl_b32 s3, s75, 2')
    A(f's_add_u32 s3, s3, {WS_TAB}')
    A(f'v_mov_b32 v{vT1}, s74')
    A(f'buffer_store_dword v{vT1}, v{vP+1}, {WS}, s3 offen sc1')
    if NS0 == 0:
        A(f's_cmp_lg_u32 s{sW}, 1')
        A('s_cbranch_scc1 qp0_ok')
        A(f's_mov_b32 s{sT1}, 1')
        qp_wait(A, 'qp0', 'qp0_ok', shifts=(2,))
        A.label('qp0_ok')
        A('s_barrier')
    A(f's_mov_b32 s{sQok}, {NS0 // 2}')
    pst()
    A(f's_mov_b32 s{sZn}, 2')
    A(f's_mov_b32 s{sZo}, {WS_ZFLAG}')
    A(f's_lshl_b32 s3, s{sG}, 7')
    A(f's_add_u32 s3, s3, {WS_TAB}')
    A(f's_mov_b32 s60, {WS_TAB}')
    A(f'v_lshrrev_b32 v{vT2}, 1, v{vL16}')
    A.label('tab_poll')
    A(f'buffer_load_dwordx2 v[{vRinv}:{vRinv1}], v{vT2}, {WS}, s60 offen sc1')
    A(f'buffer_load_dword v{vT0}, v{vP+2}, {WS}, s3 offen sc1')
    A('s_waitcnt vmcnt(0)')
    emit(A, check_sent([vRinv, vRinv1, vT0], vT3))
    A('s_cbranch_vccz tab_ok')
    bounded(A, 'tab_poll', 5)
    A.label('tab_ok')
    pst()
    A(f'v_cmp_ne_u32 s[68:69], v{vT1}, v{vT0}')
    A(f's_mov_b32 s{sStep}, 0')
    emit(A, kv_list())
    A(f's_cmp_lg_u32 s{sW}, 1')
    A('s_cbranch_scc1 no_q0')
    emit(A, qx_list())
    A(f'buffer_load_dword v{vM}, v{vR+4}, {WS}, s{sWarm} offen sc1')
    A(f's_add_u32 s{sWarm}, s{sWarm}, {XSEG}')
    A.label('no_q0')
    emit(A, slot_list(0))
    A(f'v_readlane_b32 s{sXw}, v{vX2tab}, 4')
    A(f's_xor_b32 s{sXw}, s{sXw}, 8192')
    for k in range(5): A(f's_mov_b32 s{sCnt+k}, 0')
    for mode in ('f', 's'):
        if mode == 'f':
            A('s_cmp_lg_u64 s[68:69], 0')
            A('s_cbranch_scc1 disp_s')
        else:
            A.label('disp_s')
        A(f's_cmp_eq_u32 s{sW}, 0')
        A(f's_cbranch_scc1 j_{mode}D')
        A(f's_cmp_eq_u32 s{sW}, 2')
        A(f's_cbranch_scc1 j_{mode}B')
        A(f's_cmp_eq_u32 s{sW}, 3')
        A(f's_cbranch_scc1 j_{mode}C')
        A(f's_cmp_eq_u32 s{sNH}, 3')
        A(f's_cbranch_scc1 j_{mode}E')
        A(f's_branch entry_{mode}A')
        for r in 'BDEC':
            A.label(f'j_{mode}{r}')
            A(f's_branch entry_{mode}{r}')
    for mode, fl in (('f', ''), ('s', ' sc1')):
        for role in 'DABEC':
            gen_loop(A, mode + role, fl, role, stamps, P)
    A.label('chain_abort10')
    A(f's_mov_b32 s{sT0}, 10')
    A.label('chain_abort')
    srd(A, sWT, 24, 256)
    A(f'v_mov_b32 v{vT0}, s{sT0}')
    A(f'v_mov_b32 v{vT1}, 0')
    A(f'buffer_store_dword v{vT0}, v{vT1}, {wt}, 0 offen')
    A('s_endpgm')
```

```python
from k7_common import *
LOG2E = math.log2(math.e)
sWS, sR1, sR2, sR3, sR4 = 4, 8, 12, 16, 20
sM = 92
sC2 = 24
sW, sB, sN, sO1, sO2, sLB, sT0, sT1, sTO, sTile, sNG, sRB, sZs, sQ = 30, 31, 32, 33, 34, 35, 36, 37, 38, 39, 40, 41, 42, 43
WS = f's[{sWS}:{sWS+3}]'
R1, R2, R3, R4 = [f's[{r}:{r+3}]' for r in (sR1, sR2, sR3, sR4)]
vL16, vD1, vD2, vD3, vR1, vT0, vT1, vT2, vT3 = 1, 2, 3, 4, 5, 6, 7, 8, 9
vGo, vXo, vRw, vRr, vFl, vZt, vZf = 10, 11, 12, 13, 14, 15, 16
vZu = 17
vH = 24
vA1 = 32
vWF = 64
vY = 84
vR1b = 100
vR2n = 112
vOF = 112
F = 244

def rbf2(A, x, y, t):
    A(f'v_cvt_pk_bf16_f32 v{t}, v{x}, v{y}')
    A(f'v_lshlrev_b32 v{x}, 16, v{t}')
    A(f'v_and_b32 v{y}, 0xffff0000, v{t}')
def rbf(A, x):
    A(f'v_cvt_pk_bf16_f32 v{x}, v{x}, v{x}')
    A(f'v_and_b32 v{x}, 0xffff0000, v{x}')
def silu(A, x, t):
    A(f'v_mul_f32 v{t}, {f2u(-LOG2E):#x}, v{x}')
    A(f'v_exp_f32 v{t}, v{t}')
    A('s_nop 0')
    A(f'v_add_f32 v{t}, 1.0, v{t}')
    A(f'v_rcp_f32 v{t}, v{t}')
    A('s_nop 0')
    A(f'v_mul_f32 v{x}, v{x}, v{t}')
def xsum_g(A, x, t):
    for sw in ('16', '32'):
        A(f'v_mov_b32 v{t}, v{x}')
        A.nop(2)
        A(f'v_permlane{sw}_swap_b32 v{t}, v{x}')
        A.nop(1)
        A(f'v_add_f32 v{x}, v{x}, v{t}')
def spin_flags(A, lab, ok, off, sleep):
    A.label(lab)
    A(f's_mov_b32 s{sT0}, {off}')
    A(f'buffer_load_dwordx2 v[{vT0}:{vT1}], v{vFl}, {WS}, s{sT0} offen sc1')
    A('s_waitcnt vmcnt(0)')
    emit(A, check_sent([vT0, vT1], vT0))
    A(f's_cbranch_vccz {ok}')
    A(f's_sleep {sleep}')
    A(f's_sub_u32 s{sTO}, s{sTO}, 1')
    A(f's_cbranch_scc0 {lab}')
    A('s_branch bulk_abort')

def gen_bulk(A, stamps, P):
    nst = [0]
    def st():
        if stamps:
            A(f's_memrealtime s[{70+2*nst[0]}:{71+2*nst[0]}]'); A('s_waitcnt lgkmcnt(0)'); nst[0] += 1
    A.label('bulk_entry')
    st()
    if P['cpf']: code_prefetch(A, 252, P['cpfb'])
    A('s_load_dwordx4 s[44:47], s[0:1], 64')
    A('s_load_dwordx4 s[48:51], s[0:1], 80')
    A('s_load_dwordx4 s[52:55], s[0:1], 96')
    A('s_load_dwordx2 s[56:57], s[0:1], 40')
    A('s_load_dwordx4 s[60:63], s[0:1], 0')
    A('s_load_dwordx4 s[88:91], s[0:1], 16')
    A('s_load_dwordx2 s[58:59], s[0:1], 32')
    X = VX(A, 200, F, 3)
    A(f'v_lshrrev_b32 v{F+3}, 6, v0')
    A(f'v_and_b32 v{F}, 63, v0')
    A(f'v_readfirstlane_b32 s{sW}, v{F+3}')
    A(f'v_bfe_u32 v{F+1}, v0, 4, 2')
    A(f'v_and_b32 v{F+2}, 15, v0')
    A(f's_lshr_b32 s{sB}, s2, 3')
    A(f's_lshl_b32 s{sB}, s{sB}, 2')
    A(f's_and_b32 s{sQ}, s2, 3')
    A(f's_add_u32 s{sB}, s{sB}, s{sQ}')
    A(f'v_mov_b32 v{F+4}, s{sB}')
    A(f's_lshl_b32 s{sM}, s{sQ}, 5')
    A(f's_lshr_b32 s3, s{sB}, 2')
    A(f's_add_u32 s{sM}, s{sM}, s3')
    A(f'v_mov_b32 v{F+5}, s{sM}')
    L, g, c, w, b, m_ = [X.reg(F+i) for i in range(6)]
    tid = X.reg(0)
    A(f's_mov_b32 s{sTO}, 0x400000')
    X.set(vL16, L*16)
    L16 = X.reg(vL16)
    n_ = lambda: m_ >> 1
    X.set(vT0, (n_()*32 + c)*1280 + w*320 + g*16)
    BR = P['brm']
    if BR: X.set(vD1, (((L >> 3) & 3) + (L >> 5)*320)*8192 + ((((L >> 1) & 3) ^ (((L >> 4) & 1) | (w & 2)))*2 + (L & 1))*16 + (m_ >> 2)*256 + (m_ & 2)*64)
    else: X.set(vD1, (L >> 3)*8192 + ((((L >> 1) & 3) ^ (((L >> 4) & 1) | ((w & 1) << 1)))*2 + (L & 1))*16 + (m_ >> 2)*256 + (m_ & 2)*64)
    A('s_waitcnt lgkmcnt(0)')
    srd(A, sWS, 54, WS_SIZE)
    srd(A, sR1, 60, S_TOK*DM*2)
    srd(A, sR4, 52, 256)
    X.set(vZf, X.sel(('eq', tid, 0), 0, OOB))
    X.set(vFl, L*8)
    A(f's_and_b32 s3, s{sM}, 1')
    A('s_cbranch_scc0 b_even')
    XR, XR2, FL = 32, 112, 64
    A('s_movk_i32 s26, 0x5000')
    for t in range(5):
        A(f'buffer_load_dwordx4 v[{XR+4*t}:{XR+4*t+3}], v{vT0}, {R1}, 0 offen offset:{64*t}')
    for t in range(5):
        A(f'buffer_load_dwordx4 v[{XR2+4*t}:{XR2+4*t+3}], v{vT0}, {R1}, s26 offen offset:{64*t}')
    if P['lin2']:
        for i in range(3):
            X.set(160+i, X.sel(('lt', tid + 256*i, 640), n_()*81920 + (tid + 256*i)*128, OOB))
        for mm, ptr in enumerate((88, 90, 58, 56)):
            srd(A, sR2, ptr, DM*4096*2)
            for i in range(3): A(f'buffer_load_dword v{164+3*mm+i}, v{160+i}, {R2}, 0 offen')
    if P['vhelp'] == 2:
        srd(A, sR2, 58, DM*4096*2)
        for i in range(3):
            X.set(vT1, X.sel(('lt', tid + 256*i, 640), (tid + 256*i)*8192 + (m_ >> 2)*256 + (m_ & 2)*64, OOB))
            A(f'buffer_load_dword v{160+i}, v{vT1}, {R2}, 0 offen')
    X.set(vT1, n_()*40960 + w*5120 + L16 + WS_XN)
    X.set(vRw, w*64 + c*4)
    X.set(vRr, c*4)
    A(f's_mov_b32 s{sN}, 0')
    A(f's_waitcnt vmcnt({3 if P["vhelp"] == 2 else 0})')
    A.label('ln_loop')
    for k in range(20):
        A(f'v_lshlrev_b32 v{FL+2*k}, 16, v{XR+k}')
        A(f'v_and_b32 v{FL+2*k+1}, 0xffff0000, v{XR+k}')
    A(f'v_add_f32 v{vT2}, v{FL}, v{FL+1}')
    for k in range(2, 40): A(f'v_add_f32 v{vT2}, v{vT2}, v{FL+k}')
    def wg_sum(dst, off):
        xsum_g(A, vT2, vT3)
        A(f'ds_write_b32 v{vRw}, v{vT2} offset:{off}')
        A('s_waitcnt lgkmcnt(0)')
        A('s_barrier')
        for k in range(4): A(f'ds_read_b32 v{dst+k}, v{vRr} offset:{off+64*k}')
        A('s_waitcnt lgkmcnt(0)')
        A(f'v_add_f32 v{dst}, v{dst}, v{dst+1}')
        A(f'v_add_f32 v{dst+2}, v{dst+2}, v{dst+3}')
        A(f'v_add_f32 v{dst}, v{dst}, v{dst+2}')
        A(f'v_mul_f32 v{dst}, {f2u(1.0/640):#x}, v{dst}')
    MN, VR = 104, 108
    wg_sum(MN, 0)
    A(f'v_sub_f32 v{vT3}, v{FL}, v{MN}')
    A(f'v_mul_f32 v{vT2}, v{vT3}, v{vT3}')
    for k in range(1, 40):
        A(f'v_sub_f32 v{vT3}, v{FL+k}, v{MN}')
        A(f'v_fmac_f32 v{vT2}, v{vT3}, v{vT3}')
    wg_sum(VR, 256)
    rbf(A, VR)
    A(f'v_add_f32 v{VR}, 0x3727c5ac, v{VR}')
    rbf(A, VR)
    A(f'v_sqrt_f32 v{VR}, v{VR}')
    A.nop(1)
    rbf(A, VR)
    A(f'v_rcp_f32 v{VR}, v{VR}')
    rbf(A, MN)
    A(f'v_mov_b32 v{MN+1}, v{MN}')
    A(f'v_mov_b32 v{VR+1}, v{VR}')
    YR = 136
    for k in range(20):
        A(f'v_pk_add_f32 v[{FL+2*k}:{FL+2*k+1}], v[{FL+2*k}:{FL+2*k+1}], v[{MN}:{MN+1}] neg_lo:[0,1] neg_hi:[0,1]')
        rbf2(A, FL+2*k, FL+2*k+1, vT3)
        A(f'v_pk_mul_f32 v[{FL+2*k}:{FL+2*k+1}], v[{FL+2*k}:{FL+2*k+1}], v[{VR}:{VR+1}]')
        A(f'v_cvt_pk_bf16_f32 v{YR+k}, v{FL+2*k}, v{FL+2*k+1}')
    A(f'v_add_u32 v{vT2}, 4096, v{vT1}')
    for t in range(5):
        A(f'buffer_store_dwordx4 v[{YR+4*t}:{YR+4*t+3}], v{vT1 if t < 4 else vT2}, {WS}, 0 offen offset:{1024*(t%4)} sc1')
    for k in range(20): A(f'v_mov_b32 v{XR+k}, v{XR2+k}')
    A(f'v_add_u32 v{vT1}, 20480, v{vT1}')
    A(f's_add_u32 s{sN}, s{sN}, 1')
    A(f's_cmp_lt_u32 s{sN}, 2')
    A('s_cbranch_scc1 ln_loop')
    if P.get('rot'): rot_verify(A, 52, 26, sTO, 'bulk_abort')
    for q in range(4): A(f'v_mov_b32 v{vH+q}, -1')
    X.set(vT1, X.sel(('lt', tid, 16), n_()*256 + tid*16 + WS_TAB, OOB))
    A(f'buffer_store_dwordx4 v[{vH}:{vH+3}], v{vT1}, {WS}, 0 offen sc1')
    A('s_waitcnt vmcnt(0)')
    A('s_barrier')
    if P['vhelp'] == 1:
        srd(A, sR2, 58, DM*4096*2)
        for i in range(3):
            X.set(vT1, X.sel(('lt', tid + 256*i, 640), (tid + 256*i)*8192 + (m_ >> 2)*256 + (m_ & 2)*64, OOB))
            A(f'buffer_load_dword v{116+i}, v{vT1}, {R2}, 0 offen')
    A(f's_cmp_lg_u32 s{sW}, 0')
    A('s_cbranch_scc1 b_arrived')
    arrive_s(A, 52, 26, 'b_arrived')
    A('s_branch b_arrived')
    A.label('b_even')
    if P['coop']:
        for i in range(3):
            X.set(112+i, X.sel(('lt', tid + 256*i, 640), (((m_ >> 1) & 15)*40 + ((tid + 256*i) >> 4))*8192 + (m_ >> 5)*2048 + (tid & 15)*128, OOB))
        for mm, ptr in enumerate((88, 90, 58)):
            srd(A, sR2, ptr, DM*4096*2)
            for i in range(3): A(f'buffer_load_dword v{116+3*mm+i}, v{112+i}, {R2}, 0 offen')
    for _ in range(P['bdel']): A('s_sleep 32')
    if P['lin']: lin_touch(A, X, tid, 160, sR2, (88, 90, 58, 56))
    A.label('b_arrived')
    RS = 4 if BR else 8
    def wst(sr, va, base, i):
        A(f's_add_u32 m0, s{sT0}, {base + 4096*i}')
        A(f's_add_u32 s3, s{sT1}, {i*4*RS*8192}')
        A(f'buffer_load_dwordx4 v{va}, {sr}, s3 offen lds')
    def stage(ptr, base):
        srd(A, sR2, ptr, DM*4096*2)
        A(f's_lshl_b32 s{sT0}, s{sW}, 10')
        A(f's_mul_i32 s{sT1}, s{sW}, {RS*8192}')
        for i in range(20): wst(R2, vD1, base, i)
    X.set(vD2, X.reg(vD1) ^ (128 if P['bil'] else 0))
    srd(A, sR2, 88, DM*4096*2)
    srd(A, sR3, 90, DM*4096*2)
    A(f's_lshl_b32 s{sT0}, s{sW}, 10')
    A(f's_mul_i32 s{sT1}, s{sW}, {RS*8192}')
    if P['bil']:
        for i in range(20): wst(R2, vD1, 0, i); wst(R3, vD2, 81920, i)
    else:
        for i in range(20): wst(R2, vD1, 0, i)
        for i in range(20): wst(R3, vD2, 81920, i)
    if not P['coop']:
        srd(A, sR2, 58, DM*4096*2)
        for i in range(3):
            X.set(vT1, X.sel(('lt', tid + 256*i, 640), (tid + 256*i)*8192 + (m_ >> 2)*256 + (m_ & 2)*64, OOB))
            A(f'buffer_load_dword v{112+i}, v{vT1}, {R2}, 0 offen')
    if P.get('rot'): rot_verify(A, 52, 26, sTO, 'bulk_abort')
    trb = lambda le: g*(2048 if BR else 1024) + ((L >> 2) & 3)*128 + (le ^ (((L >> 3) & 1) | ((g & 1) << 1)))*32 + (L & 3)*8
    toff = lambda t: (8192*(t % 10) + 512*(t // 10)) if BR else 4096*t
    thalf = 1024 if BR else 512
    def trload(abase, R0):
        A(f'v_add_u32 v{vT3}, 0x10000, v{R0}')
        for t in range(20):
            r, o = (R0, toff(t)) if toff(t) < 65536 else (vT3, toff(t) - 65536)
            A(f'ds_read_b64_tr_b16 a[{abase+4*t}:{abase+4*t+1}], v{r} offset:{o}')
            A(f'ds_read_b64_tr_b16 a[{abase+4*t+2}:{abase+4*t+3}], v{r} offset:{o+thalf}')
            if t % 4 == 3: A('s_waitcnt lgkmcnt(4)')
    X.set(vR1, trb(w & 1) + (w >> 1)*81920)
    X.set(vD3, trb((w & 1) + 2) + (w >> 1)*81920)
    A(f's_waitcnt vmcnt({0 if P["coop"] else 3})')
    A('s_barrier')
    trload(0, vR1)
    trload(160, vD3)
    A('s_waitcnt lgkmcnt(0)')
    A('s_barrier')
    stage(58, 81920)
    X.set(vR1, trb(w) + 81920)
    A(f's_and_b32 s{sT0}, s{sB}, 15')
    A(f's_mul_i32 s{sT0}, s{sT0}, 5')
    A(f'v_mov_b32 v{vT0}, s{sT0}')
    for u in range(5):
        uu = X.reg(vT0) + u
        X.set(vZu+u, (uu >> 1)*16384 + (uu & 1)*4096 + tid*16)
    A('s_waitcnt vmcnt(0)')
    A('s_barrier')
    trload(80, vR1)
    A(f's_lshr_b32 s{sZs}, s{sB}, 4')
    def fill(nph, flag):
        for q in range(4): A(f'v_mov_b32 v{vH+q}, -1')
        for ph in range(nph):
            A(f'v_readlane_b32 s{sT0}, v{vZt}, s{sZs}')
            if flag == 0:
                A(f's_cmp_lt_u32 s{sZs}, 3')
                A(f's_cselect_b32 s{sT0}, {OOB:#x}, s{sT0}')
            A(f's_add_u32 s{sZs}, s{sZs}, 8')
            A.nop(4)
            for u in range(5):
                A(f'buffer_store_dwordx4 v[{vH}:{vH+3}], v{vZu+u}, {WS}, s{sT0} offen sc1')
            if P['two']:
                A(f's_add_u32 s{sT0}, s{sT0}, 0x9000000')
                for u in range(5):
                    A(f'buffer_store_dwordx4 v[{vH}:{vH+3}], v{vZu+u}, {WS}, s{sT0} offen sc1')
        A('s_waitcnt vmcnt(0)')
        A('s_barrier')
        A(f's_lshl_b32 s{sT0}, s{sB}, 2')
        A(f's_add_u32 s{sT0}, s{sT0}, {WS_ZFLAG + 512*flag}')
        A(f'buffer_store_dword v{vZf}, v{vZf}, {WS}, s{sT0} offen sc1')
    A(f's_cmp_lt_u32 s{sW}, 2')
    A(f's_cselect_b32 s{sC2}, {f2u(QSCALE):#x}, 1.0')
    A(f's_mov_b32 s{sC2+1}, s{sC2}')
    tq = lambda: (((m_ ^ w) if P['bil'] else m_) & 2) + (w & 1)
    X.set(vGo, X.sel(('lt', w, 2), (c >> 3)*2048 + tq()*512 + (g*8 + (c & 7))*16 + 16384, tq()*1024 + L16))
    X.set(vXo, ((m_ & 2)*2 + w)*1024 + L16 + 8192)
    X.set(vRr, X.sel(('eq', tid, 0), m_*4 + WS_QP, OOB))
    A(f's_and_b32 s3, s{sM}, 1')
    A(f's_mul_i32 s{sO1}, s3, 40960')
    A(f's_mul_i32 s{sLB}, s{sW}, 5120')
    A(f's_add_u32 s{sO1}, s{sO1}, {40960*P["ns0"]}')
    A(f's_add_u32 s{sO1}, s{sO1}, s{sLB}')
    A(f's_mul_i32 s{sO2}, s3, {XSEG}')
    A(f's_lshr_b32 s3, s{sM}, 2')
    A(f's_mul_i32 s3, s3, {XH}')
    A(f's_add_u32 s{sO2}, s{sO2}, s3')
    A(f's_add_u32 s{sO2}, s{sO2}, {WS_KX + XSEG*P["ns0"]}')
    A(f's_mov_b32 s{sN}, {P["ns0"]//2}')
    RG, XA, PK, PV = 40, 72, 84, 88
    def x_dma(buf, adv):
        o = [f's_add_u32 m0, s{sLB}, {20480*buf}', f's_add_u32 s{sT0}, s{sO1}, 4096']
        o += [f'buffer_load_dwordx4 v{vL16}, {WS}, s{sO1} offen offset:{1024*k} sc1 lds' for k in range(4)]
        o += [f's_add_u32 m0, s{sLB}, {20480*buf + 4096}', f's_add_u32 s{sO1}, s{sO1}, {adv}',
              f'buffer_load_dwordx4 v{vL16}, {WS}, s{sT0} offen sc1 lds']
        return o
    def x_tile(tt, young):
        A(f's_waitcnt vmcnt({young})')
        A('s_barrier')
        fl = x_dma(1 - tt, 61440 if tt == 0 else 20480)
        if tt == 1:
            fl = [f'v_mov_b32 v{vT0}, s{sN}', f'buffer_store_dword v{vT0}, v{vRr}, {WS}, 0 offen sc1'] + fl
        o = []
        rd = lambda t: f'ds_read_b128 v[{RG+4*(t%8)}:{RG+4*(t%8)+3}], v{vL16} offset:{20480*tt + 1024*t}'
        for t in range(6): o.append(rd(t))
        for t in range(20):
            o.append(f's_waitcnt lgkmcnt({min(20, t + 6) - t - 1})')
            f = v(RG + 4*(t % 8), 4)
            o.append(M32(v(XA, 4), a(4*t, 4), f, '0' if t == 0 else v(XA, 4)))
            o.append(M32(v(XA+4, 4), a(160+4*t, 4), f, '0' if t == 0 else v(XA+4, 4)))
            o.append(M32(v(XA+8, 4), f, a(80+4*t, 4), '0' if t == 0 else v(XA+8, 4)))
            if t + 6 < 20: o.append(rd(t + 6))
        emit(A, weave(o, fl, per=1))
        if tt: A(f's_add_u32 s{sT1}, s{sO2}, 4096')
        A.nop(6)
        for r in range(0, 8, 2): A(f'v_pk_mul_f32 v[{XA+r}:{XA+r+1}], v[{XA+r}:{XA+r+1}], s[{sC2}:{sC2+1}]')
        for r in range(4): A(f'v_cvt_pk_bf16_f32 v{PK+r}, v{XA+2*r}, v{XA+2*r+1}')
        A(f'buffer_store_dwordx4 v[{PK}:{PK+3}], v{vGo}, {WS}, s{sT1 if tt else sO2} offen sc1')
        for r in range(2): A(f'v_cvt_pk_bf16_f32 v{PV+2*tt+r}, v{XA+8+2*r}, v{XA+8+2*r+1}')
        if tt:
            A(f'buffer_store_dwordx4 v[{PV}:{PV+3}], v{vXo}, {WS}, s{sO2} offen sc1')
            A(f's_add_u32 s{sO2}, s{sO2}, {2*XSEG}')
            A(f's_add_u32 s{sN}, s{sN}, 1')
    wait_start(A, R4, vT0, 26, sTO, 'b_start', 'bulk_abort', sleep=2)
    emit(A, x_dma(0, 20480))
    x2_table(A, X, L, vZt, 26, 54, vT1)
    st()
    if P['ns0']: fill(1, 0)
    A('s_waitcnt vmcnt(0) lgkmcnt(0)')
    A.label('q_loop')
    x_tile(0, 2); x_tile(1, 1)
    A(f's_cmp_eq_u32 s{sN}, {P["ns0"]//2 + 1}')
    A('s_cbranch_scc1 q_fill0')
    A(f's_cmp_eq_u32 s{sN}, 6')
    A('s_cbranch_scc1 q_fill')
    A(f's_cmp_eq_u32 s{sN}, 16')
    A('s_cbranch_scc1 q_fill2')
    A.label('q_back')
    A(f's_cmp_lt_u32 s{sN}, 32')
    A('s_cbranch_scc1 q_loop')
    A('s_branch q_done')
    A.label('q_fill0')
    A('s_waitcnt vmcnt(0)')
    A('s_barrier')
    A(f'v_mov_b32 v{vT0}, s{sN}')
    A(f'buffer_store_dword v{vT0}, v{vRr}, {WS}, 0 offen sc1')
    if not P['ns0']: fill(1, 0)
    A('s_branch q_back')
    A.label('q_fill')
    fill(2, 1)
    A('s_branch q_back')
    A.label('q_fill2')
    fill(5, 2)
    A('s_branch q_back')
    A.label('q_done')
    A('s_waitcnt vmcnt(0)')
    A('s_barrier')
    A(f'v_mov_b32 v{vT0}, 64')
    A(f'buffer_store_dword v{vT0}, v{vRr}, {WS}, 0 offen sc1')
    st()
    srd(A, sR1, 44, DM*FF*2)
    srd(A, sR2, 46, DM*FF*2)
    srd(A, sR3, 48, FF*DM*2)
    jj, qq = (lambda: b >> 2), (lambda: b & 3)
    X.set(vT2, X.sel(('lt', tid, 160), ((tid >> 3)*32 + jj())*3456 + ((tid & 7)*4 + qq())*128, OOB))
    A(f'buffer_load_dword v{vWF}, v{vT2}, {R1}, 0 offen')
    A(f'buffer_load_dword v{vWF+1}, v{vT2}, {R2}, 0 offen')
    X.set(vT3, (tid*6554) >> 16)
    rr = X.reg(vT3)
    X.set(vT2, X.sel(('lt', tid, 140), (((rr >> 1)*4 + qq())*64 + (rr & 1)*32 + jj())*1280 + (tid - rr*10)*128, OOB))
    A(f'buffer_load_dword v{vWF+2}, v{vT2}, {R3}, 0 offen')
    A(f's_and_b32 s{sTile}, s{sB}, 0x7c')
    A(f's_add_u32 s{sTile}, s{sTile}, s{sW}')
    A(f's_mul_i32 s{sT0}, s{sTile}, 20480')
    for t in range(20):
        if t and t % 4 == 0: A(f's_add_u32 s{sT0}, s{sT0}, 4096')
        A(f'buffer_load_dwordx4 a[{4*t}:{4*t+3}], v{vL16}, {WS}, s{sT0} offen offset:{1024*(t%4)} sc1')
    st()
    X.set(vD1, (w*8 + (L >> 3))*3456 + ((((L >> 1) & 3) ^ (((L >> 4) & 1) | ((w & 1) << 1)))*2 + (L & 1))*16)
    for i, dst in enumerate((vD2, vD3)):
        X.set(dst, (w*8 + (L >> 4) + 4*i)*1280 + ((((L >> 1) & 7) ^ ((L >> 4) + 4*i))*2 + (L & 1))*16)
    for tl in range(4):
        X.set(vR1b+tl, (g*8 + ((L >> 2) & 3))*128 + ((((L >> 3) & 1) | ((g & 1) << 1)) ^ tl)*32 + (L & 3)*8)
        X.set(vR1b+4+tl, X.reg(vR1b+tl) + 65536)
    for n in range(8):
        X.set(vR2n+n, (g*4 + ((L >> 2) & 3))*256 + ((((g & 1)*4 + ((L >> 2) & 3)) ^ n)*32) + (L & 3)*8)
        X.set(vR2n+8+n, X.reg(vR2n+n) + 65536)
    A(f'v_mov_b32 v{vT0}, 0')
    for r in range(160): A(f'v_accvgpr_write_b32 a{80+r}, v{vT0}')
    A(f's_cmp_lt_u32 s{sQ}, 3')
    A(f's_cselect_b32 s{sN}, 7, 6')
    A(f's_lshl_b32 s{sO1}, s{sQ}, 7')
    A(f's_mul_i32 s{sO2}, s{sQ}, {64*1280}')
    A(f's_lshl_b32 s{sLB}, s{sW}, 10')
    A(f's_lshl_b32 s{sRB}, s{sW}, 11')
    NS, NC = 15, 30
    def issue(ci, nxt):
        o = []; lb = (ci % NS) * 8192
        if ci < 20:
            for m, sr in enumerate((R1, R2)):
                o.append(f's_add_u32 m0, s{sLB}, {lb + m*4096}')
                o.append(f's_add_u32 s{sT0}, s{sO1}, {ci*32*3456 + nxt*512}')
                o.append(f'buffer_load_dwordx4 v{vD1}, {sr}, s{sT0} offen lds')
        else:
            hb, cc = (ci - 20) // 5, (ci - 20) % 5
            for i in range(2):
                o.append(f's_add_u32 m0, s{sRB}, {lb + i*1024}')
                o.append(f's_add_u32 s{sT0}, s{sO2}, {hb*32*1280 + cc*256}')
                o.append(f'buffer_load_dwordx4 v{vD2 if i == 0 else vD3}, {R3}, s{sT0} offen lds')
        return o
    A('s_waitcnt vmcnt(0)')
    for ci in range(NS - 1): emit(A, issue(ci, 0))
    A.label('ffn_loop')
    for ci in range(NC):
        A(f's_waitcnt vmcnt({2*(NS-2)})')
        A('s_barrier')
        lb = (ci % NS) * 8192
        hi = 1 if lb >= 65536 else 0
        lb -= hi*65536
        nx = issue((ci + NS - 1) % NC, 1 if ci + NS - 1 >= NC else 0)
        mf = []
        if ci < 20:
            for n in range(8):
                m, tl = n >> 2, n & 3
                r = vWF + 4*n
                A(f'ds_read_b64_tr_b16 v[{r}:{r+1}], v{vR1b+4*hi+tl} offset:{lb + m*4096}')
                A(f'ds_read_b64_tr_b16 v[{r+2}:{r+3}], v{vR1b+4*hi+tl} offset:{lb + m*4096 + 512}')
            for n in range(8):
                mf.append(f's_waitcnt lgkmcnt({2*(7-n)})')
                mf.append(M32(v(vA1+4*n, 4), v(vWF+4*n, 4), a(4*ci, 4), '0' if ci == 0 else v(vA1+4*n, 4)))
        else:
            hb, cc = (ci - 20) // 5, (ci - 20) % 5
            for n in range(8):
                r = vWF + 4*n
                A(f'ds_read_b64_tr_b16 v[{r}:{r+1}], v{vR2n+8*hi+n} offset:{lb}')
                A(f'ds_read_b64_tr_b16 v[{r+2}:{r+3}], v{vR2n+8*hi+n} offset:{lb + 4096}')
            if ci == 20:
                for tl in range(4):
                    for r in (0, 2):
                        gx, ux = vA1 + 4*tl + r, vA1 + 16 + 4*tl + r
                        rbf2(A, gx, gx+1, vT0); rbf2(A, ux, ux+1, vT0)
                        silu(A, gx, vT0); silu(A, gx+1, vT1)
                        rbf2(A, gx, gx+1, vT0)
                        A(f'v_mul_f32 v{gx}, v{gx}, v{ux}')
                        A(f'v_mul_f32 v{gx+1}, v{gx+1}, v{ux+1}')
                        A(f'v_cvt_pk_bf16_f32 v{vH+2*tl+r//2}, v{gx}, v{gx+1}')
                A('s_nop 0')
            for n in range(8):
                ct = cc*8 + n
                mf.append(f's_waitcnt lgkmcnt({2*(7-n)})')
                mf.append(M32(a(80+4*ct, 4), v(vWF+4*n, 4), v(vH+4*hb, 4), a(80+4*ct, 4)))
        emit(A, weave(mf, nx, per=1))
    A(f's_add_u32 s{sO1}, s{sO1}, 512')
    A(f's_add_u32 s{sO2}, s{sO2}, {256*1280}')
    A(f's_sub_u32 s{sN}, s{sN}, 1')
    A(f's_cmp_lg_u32 s{sN}, 0')
    A('s_cbranch_scc1 ffn_loop')
    A('s_waitcnt vmcnt(0)')
    A('s_barrier')
    st()
    A(f's_lshl_b32 s{sT0}, s{sQ}, 7')
    A(f's_add_u32 s{sT0}, s{sT0}, s{sTile}')
    A(f's_mul_i32 s{sT0}, s{sT0}, 40960')
    A(f's_add_u32 s{sT0}, s{sT0}, {WS_G}')
    for ct in range(40):
        if ct and ct % 4 == 0: A(f's_add_u32 s{sT0}, s{sT0}, 4096')
        A(f'buffer_store_dwordx4 a[{80+4*ct}:{80+4*ct+3}], v{vL16}, {WS}, s{sT0} offen offset:{1024*(ct%4)} sc1')
    A('s_waitcnt vmcnt(0)')
    A('s_barrier')
    A(f's_lshl_b32 s{sT0}, s{sB}, 2')
    A(f's_add_u32 s{sT0}, s{sT0}, {WS_GFLAG}')
    A(f'buffer_store_dword v{vZf}, v{vZf}, {WS}, s{sT0} offen sc1')
    A(f's_cmp_ge_u32 s{sB}, 120')
    A('s_cbranch_scc1 bulk_end')
    A(f's_mul_i32 s{sTile}, s{sB}, 3277')
    A(f's_lshr_b32 s{sTile}, s{sTile}, 16')
    A(f's_mul_i32 s3, s{sTile}, 20')
    A(f's_sub_u32 s{sNG}, s{sB}, s3')
    srd(A, sR1, 56, 4096*DM*2)
    srd(A, sR2, 60, S_TOK*DM*2)
    srd(A, sR3, 50, S_TOK*DM*2)
    X.set(vD1, (L >> 2)*1280 + (L & 3)*16)
    X.set(vR1, w*40960 + (g*4 + ((L >> 2) & 3))*64 + (L & 3)*8)
    A(f's_mul_i32 s{sO1}, s{sW}, {1024*1280}')
    A(f's_lshl_b32 s3, s{sNG}, 6')
    A(f's_add_u32 s{sO1}, s{sO1}, s3')
    A(f's_mul_i32 s{sLB}, s{sW}, 40960')
    for rnd in range(2):
        for i in range(32):
            A(f's_add_u32 m0, s{sLB}, {1024*i}')
            A(f's_add_u32 s{sT1}, s{sO1}, {(rnd*512 + i*16)*1280}')
            A(f'buffer_load_dwordx4 v{vD1}, {R1}, s{sT1} offen lds')
        A('s_waitcnt vmcnt(0)')
        for t in range(16):
            for tl in range(2):
                r = ((rnd*16 + t)*2 + tl)*4
                A(f'ds_read_b64_tr_b16 a[{r}:{r+1}], v{vR1} offset:{t*2048 + tl*32}')
                A(f'ds_read_b64_tr_b16 a[{r+2}:{r+3}], v{vR1} offset:{t*2048 + tl*32 + 1024}')
            if t % 2 == 1: A('s_waitcnt lgkmcnt(4)')
        A('s_waitcnt lgkmcnt(0)')
    X.set(vRw, w*2048 + L16)
    X.set(vRr, (w & 1)*1024 + L16)
    X.set(vD2, w*32768 + L16)
    X.set(vGo, (w & 1)*1024 + L16)
    X.set(vXo, c*1280 + (w & 1)*32 + g*8)
    if stamps: X.set(vD3, X.sel(('lt', tid, 8), tid*4, OOB))
    spin_flags(A, 'g_poll', 'g_ok', WS_GFLAG, 8)
    A.label('g_ok')
    A('s_barrier')
    st()
    A(f's_mov_b32 s{sRB}, 0')
    A.label('op_loop')
    A(f's_lshr_b32 s{sT0}, s{sTile}, 1')
    A(f's_cmp_ge_u32 s{sT0}, 62')
    A('s_cbranch_scc1 op_final')
    A(f's_lshl_b32 s{sT0}, s{sT0}, 7')
    A(f's_add_u32 s{sT0}, s{sT0}, {WS_PROG}')
    A(f'v_mov_b32 v{vT2}, 0')
    A.label('p_poll')
    A(f'buffer_load_dword v{vT0}, v{vT2}, {WS}, s{sT0} offen sc1')
    A('s_waitcnt vmcnt(0)')
    A(f'v_cmp_eq_u32 vcc, -1, v{vT0}')
    A('s_cbranch_vccz op_go')
    A('s_sleep 8')
    A(f's_sub_u32 s{sTO}, s{sTO}, 1')
    A('s_cbranch_scc0 p_poll')
    A('s_branch bulk_abort')
    spin_flags(A, 'op_final', 'op_go', WS_FLAG, P.get('fsl', 2))
    A.label('op_go')
    A(f's_lshl_b32 s{sT0}, s{sTile}, 17')
    A(f's_add_u32 s{sT0}, s{sT0}, {WS_OF}')
    for t in range(32):
        if t and t % 4 == 0: A(f's_add_u32 s{sT0}, s{sT0}, 4096')
        A(f'buffer_load_dwordx4 v[{vOF+4*t}:{vOF+4*t+3}], v{vD2}, {WS}, s{sT0} offen offset:{1024*(t%4)} sc1')
    A(f's_mul_i32 s{sT0}, s{sTile}, 20480')
    A(f's_lshl_b32 s{sT1}, s{sNG}, 10')
    A(f's_add_u32 s{sT1}, s{sT1}, s{sT0}')
    A(f's_lshl_b32 s{sT1}, s{sT1}, 1')
    A(f's_add_u32 s{sT1}, s{sT1}, {WS_G}')
    for q in range(4):
        A(f'buffer_load_dwordx4 v[{vY+4*q}:{vY+4*q+3}], v{vGo}, {WS}, s{sT1} offen sc1')
        if q < 3: A(f's_add_u32 s{sT1}, s{sT1}, {128*40960}')
    A(f's_lshl_b32 s{sT1}, s{sNG}, 6')
    A(f's_add_u32 s{sO2}, s{sT1}, s{sT0}')
    A(f'buffer_load_dwordx2 v[{vH+2}:{vH+3}], v{vXo}, {R2}, s{sO2} offen')
    for t in range(32):
        A(f's_waitcnt vmcnt({36-t})')
        for tl in range(2):
            A(M32(v(vA1+4*tl, 4), a((2*t+tl)*4, 4), v(vOF+4*t, 4), '0' if t == 0 else v(vA1+4*tl, 4)))
    A(f'v_add_u32 v{vT2}, s{sRB}, v{vRw}')
    A(f'v_add_u32 v{vT3}, s{sRB}, v{vRr}')
    A.nop(6)
    A(f'ds_write_b128 v{vT2}, v[{vA1}:{vA1+3}]')
    A(f'ds_write_b128 v{vT2}, v[{vA1+4}:{vA1+7}] offset:1024')
    A(f's_xor_b32 s{sRB}, s{sRB}, 8192')
    A('s_waitcnt lgkmcnt(0)')
    A('s_barrier')
    A(f's_cmp_ge_u32 s{sW}, 2')
    A('s_cbranch_scc1 op_next')
    for p in range(4): A(f'ds_read_b128 v[{vWF+4*p}:{vWF+4*p+3}], v{vT3} offset:{2048*p}')
    A('s_waitcnt vmcnt(0) lgkmcnt(0)')
    for r in range(4):
        for bs in (vWF, vY):
            A(f'v_add_f32 v{bs+r}, v{bs+r}, v{bs+4+r}')
            A(f'v_add_f32 v{bs+8+r}, v{bs+8+r}, v{bs+12+r}')
            A(f'v_add_f32 v{bs+r}, v{bs+r}, v{bs+8+r}')
    for r in (0, 2):
        s0, s1 = vWF+r, vWF+r+1
        rbf2(A, vY+r, vY+r+1, vT0)
        silu(A, vY+r, vT0); silu(A, vY+r+1, vT1)
        rbf2(A, vY+r, vY+r+1, vT0)
        rbf2(A, s0, s1, vT0)
        A(f'v_mul_f32 v{s0}, v{s0}, v{vY+r}')
        A(f'v_mul_f32 v{s1}, v{s1}, v{vY+r+1}')
        rbf2(A, s0, s1, vT0)
        A(f'v_lshlrev_b32 v{vT0}, 16, v{vH+2+r//2}')
        A(f'v_and_b32 v{vT1}, 0xffff0000, v{vH+2+r//2}')
        A(f'v_add_f32 v{s0}, v{s0}, v{vT0}')
        A(f'v_add_f32 v{s1}, v{s1}, v{vT1}')
        A(f'v_cvt_pk_bf16_f32 v{vWF+16+r//2}, v{s0}, v{s1}')
    A(f'buffer_store_dwordx2 v[{vWF+16}:{vWF+17}], v{vXo}, {R3}, s{sO2} offen{P.get("outfl", "")}')
    A.label('op_next')
    A(f's_add_u32 s{sTile}, s{sTile}, 6')
    A(f's_cmp_lt_u32 s{sTile}, 128')
    A('s_cbranch_scc1 op_loop')
    if stamps:
        A('s_waitcnt vmcnt(0)')
        st()
        for q in range(nst[0]): A(f'v_writelane_b32 v{vT0}, s{70+2*q}, {q}')
        A(f's_lshl_b32 s{sT0}, s{sB}, 6')
        A(f's_add_u32 s{sT0}, s{sT0}, {WS_DBG + 0x400000}')
        A(f'buffer_store_dword v{vT0}, v{vD3}, {WS}, s{sT0} offen')
        if P.get('dbgout'):
            A(f'v_mov_b32 v{vT0}, s{70+2*(nst[0]-1)}')
            A(f'buffer_atomic_umax v{vT0}, v{vZf}, {R4}, 0 offen offset:8')
    A('s_endpgm')
    A.label('bulk_abort')
    A(f'v_mov_b32 v{vT0}, 9')
    A(f'v_mov_b32 v{vT1}, 4')
    A(f'buffer_store_dword v{vT0}, v{vT1}, {R4}, 0 offen')
    A.label('bulk_end')
    A('s_endpgm')
```

```python
from k7_common import *
NEG = -1.0e30
L_MEM = 0
L_Q   = 10240
L_K   = L_Q + 2048
L_O   = L_K + 2048
L_QX  = L_O + 8192
L_KX  = L_QX + 2048
L_XN  = 40960
LDS_BYTES = 163840
assert L_KX + 8192 <= L_XN
sWS, sWT, sC2 = 4, 8, 12
sKXm, sQXr = 14, 15
sCnt = 16
sPar, sQok = 28, 29
sW, sG, sJ, sH, sA, sStep, sTO, sXw = 30, 31, 32, 33, 34, 35, 36, 37
sX3r, sX1, sX2, sX3w, sVXr, sX2L, sXr, sT0, sT1, sOF, sNH = 38, 39, 40, 41, 42, 44, 45, 46, 47, 48, 49
sX3G, sX1H, sDB, sX2B, sHoff, sT2 = 50, 51, 52, 53, 54, 55
OFFB = 0x9000000
sST = 56
sWarm, sLrng, sZn, sZo = 88, 89, 90, 91
vDbg, vX2tab = 0, 1
vX3ld, vMemR, vX1st, vV1st, vQKld, vQKw, vQr, vKr, vVMld, vOw = 2, 3, 4, 5, 6, 7, 8, 9, 10, 11
vX2st, vSR, vOFst, vL16, vKXr, vXNr, vXA, vM2, vM = 12, 13, 14, 15, 16, 17, 18, 19, 20
vR = 21
vT0, vT1, vT2, vT3, vRinv, vRinv1 = 30, 31, 32, 33, 34, 35
vPL = 36
vBias = 40
vLS = 48
vVE = 52
vWO = 56
vKX = 104
vVX = 136
vS = 144
vAcc = 156
vAcc2 = 160
vP = 164
vVM4 = 168
vXACC = 172
vMW = 180
vOFR = 184
vSent4 = 188
vRG = 192
vPS = 224
vQS = 248
aSel, aOne, aSelH, aOneM = 240, 244, 248, 252
WS = f's[{sWS}:{sWS+3}]'

class Stamp:
    def __init__(self, A, on): self.A, self.on, self.n = A, on, 0
    def __call__(self, lvl=2):
        if self.on >= lvl:
            self.A(f'{"s_memrealtime" if self.on == 3 else "s_memtime"} s[{sST+2*self.n}:{sST+2*self.n+1}]')
            self.A('s_waitcnt lgkmcnt(0)')
            self.n += 1
    def flush(self):
        if not self.on: return
        A = self.A
        for k in range(self.n): A(f'v_writelane_b32 v{vT3}, s{sST+2*k}, {k}')
        for k in range(5): A(f'v_writelane_b32 v{vT3}, s{sCnt+k}, {10+k}')
        A(f'v_writelane_b32 v{vT3}, s100, 15')
        A(f's_lshl_b32 s{sT0}, s{sStep}, 6')
        A(f's_add_u32 s{sT0}, s{sT0}, s{sDB}')
        A(f'buffer_store_dword v{vT3}, v{vDbg}, {WS}, s{sT0} offen')

def slot_list(add):
    return [
    f's_add_u32 s{sT0}, s{sStep}, {add}',
    f's_and_b32 s{sT1}, s{sT0}, 63',
    f's_and_b32 s{sT0}, s{sT0}, 3',
    f's_mul_i32 s{sX3r}, s{sT0}, {X3_SLOT}',
    f's_add_u32 s{sX3r}, s{sX3r}, s{sX3G}',
    f'v_readlane_b32 s{sX2}, v{vX2tab}, s{sT1}',
    f's_mul_i32 s{sX2L}, s{sT0}, {X2_SLOT}',
    f's_add_u32 s{sX2L}, s{sX2L}, {WS_X2L}',
    f's_mul_i32 s{sX1}, s{sT0}, {X1_SLOT}',
    f's_add_u32 s{sX1}, s{sX1}, s{sX1H}',
    f's_add_u32 s{sT0}, s{sT0}, 1',
    f's_and_b32 s{sT0}, s{sT0}, 3',
    f's_mul_i32 s{sX3w}, s{sT0}, {X3_SLOT}',
    f's_add_u32 s{sX3w}, s{sX3w}, s{sX3G}']
def reset_list(fl):
    S4 = f'v[{vSent4}:{vSent4+3}]'
    o = [f's_add_u32 s{sT2}, s{sStep}, 2', f's_and_b32 s{sT2}, s{sT2}, 3',
         f's_mul_i32 s{sT0}, s{sT2}, {X2_SLOT}', f's_add_u32 s{sT0}, s{sT0}, {WS_X2L}']
    for i in range(3):
        o.append(f'buffer_store_dwordx4 {S4}, v{vR if i < 2 else vR+1}, {WS}, s{sT0} offen{fl}')
        if i < 2: o.append(f's_add_u32 s{sT0}, s{sT0}, 32768')
    o += [f's_mul_i32 s{sT1}, s{sT2}, {X1_SLOT}', f's_add_u32 s{sT1}, s{sT1}, s{sX1H}',
          f'buffer_store_dwordx4 {S4}, v{vR+2}, {WS}, s{sT1} offen{fl}',
          f'buffer_store_dwordx4 {S4}, v{vR+2}, {WS}, s{sT1} offen offset:1024{fl}',
          f's_add_u32 s{sT2}, s{sT2}, 1', f's_and_b32 s{sT2}, s{sT2}, 3',
          f's_mul_i32 s{sT1}, s{sT2}, {X3_SLOT}', f's_add_u32 s{sT1}, s{sT1}, s{sX3G}',
          f'buffer_store_dwordx4 {S4}, v{vR+3}, {WS}, s{sT1} offen{fl}']
    return o
def kv_list():
    return [f's_add_u32 m0, s{sKXm}, {L_KX}', f's_add_u32 s{sVXr}, s{sXr}, 8192',
            f'buffer_load_dwordx4 v{vL16}, {WS}, s{sXr} offen sc1 lds',
            f'buffer_load_dwordx4 v{vL16}, {WS}, s{sXr} offen offset:1024 sc1 lds',
            f'buffer_load_dwordx4 v[{vVX}:{vVX+3}], v{vL16}, {WS}, s{sVXr} offen sc1',
            f'buffer_load_dwordx4 v[{vVX+4}:{vVX+7}], v{vL16}, {WS}, s{sVXr} offen offset:1024 sc1',
            f's_add_u32 s{sXr}, s{sXr}, {XSEG}']
def qx_list():
    return [f's_mov_b32 m0, {L_QX}', 's_nop 0',
            f'buffer_load_dwordx4 v{vL16}, {WS}, s{sQXr} offen sc1 lds',
            f'buffer_load_dwordx4 v{vL16}, {WS}, s{sQXr} offen offset:1024 sc1 lds',
            f's_add_u32 s{sQXr}, s{sQXr}, {XSEG}']
def bounded(A, top, code):
    A(f's_sub_u32 s{sTO}, s{sTO}, 1')
    A(f's_cbranch_scc0 {top}')
    A(f's_mov_b32 s{sT0}, {code}')
    A('s_branch chain_abort')
def slow_poll(A, lab, back, issue, consume, nl, code, cnt):
    A.label(lab)
    for k in (0, 1):
        if cnt is not None: A(f's_add_u32 s{cnt}, s{cnt}, 1')
        emit(A, issue(k))
        if nl is not None: A(f's_waitcnt vmcnt({nl})')
        emit(A, consume(1 - k))
        A(f's_cbranch_vccz {back[1 - k] if isinstance(back, tuple) else back}')
    bounded(A, lab, code)
def qp_wait(A, lab, back, shifts=(2, 1)):
    A.label(lab)
    A(f'buffer_load_dword v{vT0}, v{vR+5}, {WS}, 0 offen sc1')
    A('s_waitcnt vmcnt(0)')
    for sh in shifts:
        A(f'v_min_i32_dpp v{vT0}, v{vT0}, v{vT0} row_ror:{sh} row_mask:0xf bank_mask:0xf')
        A('s_nop 1')
    A(f'v_readfirstlane_b32 s{sQok}, v{vT0}')
    A(f's_cmp_ge_i32 s{sQok}, s{sT1}')
    A(f's_cbranch_scc1 {back}')
    bounded(A, lab, 9)

def gen_loop(A, tag, fl, role, stamps, P):
    wv = dict(D=0, A=1, E=1, B=2, C=3)[role]
    st = Stamp(A, stamps)
    isA = role in 'ADE'
    recv = role in 'BCE'
    NU = 1
    N3 = 3 if isA else 2
    CH0 = (0, 3, 6, 8)[wv]
    cn = (lambda k: sCnt + k) if stamps else (lambda k: None)
    br = lambda nm: f's_cbranch_vccnz {nm}_{tag}' if nm not in P.get('nock', '') else 's_nop 2'
    tails = []
    def x3_issue(k):
        r = vPS + 12*k
        return [f'buffer_load_dwordx4 v[{r+4*i}:{r+4*i+3}], v{vX3ld}, {WS}, s{sX3r} offen offset:{1024*i} sc1' for i in range(N3)]
    def x3_consume(k):
        o = []
        for i in range(N3):
            r = vPS + 12*k + 4*i
            o.append(f's_waitcnt vmcnt({2*N3 - 1 - i})')
            o.append(f'ds_write_b128 v{vX3ld}, v[{r}:{r+3}] offset:{1024*i}')
            o += [f'v_max3_u32 v{vT0}, v{r}, v{r+1}, v{r+2}', f'v_max_u32 v{vT0}, v{vT0}, v{r+3}'] if i == 0 else \
                 [f'v_max3_u32 v{vT0}, v{vT0}, v{r}, v{r+1}', f'v_max3_u32 v{vT0}, v{vT0}, v{r+2}, v{r+3}']
        return o + [f'v_cmp_eq_u32 vcc, -1, v{vT0}', 's_waitcnt lgkmcnt(0)']
    def qk_issue(k):
        return [f'buffer_load_dwordx4 v[{vQS+4*k}:{vQS+4*k+3}], v{vQKld}, {WS}, s{sX1} offen sc1']
    def qk_consume(k):
        return [f'ds_write_b128 v{vQKw}, v[{vQS+4*k}:{vQS+4*k+3}]'] + check_sent(range(vQS+4*k, vQS+4*k+4), vT0) + ['s_waitcnt lgkmcnt(0)']
    LO = (3, 0, 1, 2)
    def x2_issue(k=0):
        return [f'buffer_load_dwordx4 v[{vKX+16*k+4*L}:{vKX+16*k+4*L+3}], v{vR+L}, {WS}, s{(sX2B if k else sX2) if L < 3 else sX2L} offen sc1' for L in LO]
    def x2_consume(young, k=0):
        o = []
        for i, L in enumerate(LO):
            r = vKX + 16*k + 4*L
            o.append(f's_waitcnt vmcnt({young + 3 - i})')
            o.append(M32(v(vAcc, 4), a(aSel, 4), v(r, 4), '0' if i == 0 else v(vAcc, 4)))
            o += [f'v_max3_u32 v{vT0}, v{r}, v{r+1}, v{r+2}', f'v_max_u32 v{vT0}, v{vT0}, v{r+3}'] if i == 0 else \
                 [f'v_max3_u32 v{vT0}, v{vT0}, v{r}, v{r+1}', f'v_max3_u32 v{vT0}, v{vT0}, v{r+2}, v{r+3}']
        return o + [f'v_cmp_eq_u32 vcc, -1, v{vT0}', 's_nop 3']
    top_young = N3

    A.label(f'entry_{tag}')
    emit(A, x3_issue(0))
    A('s_waitcnt vmcnt(0)')
    emit(A, x3_issue(1))
    if stamps:
        A('s_memrealtime s[96:97]')
        A('s_waitcnt lgkmcnt(0)')
    if P['al'] >= 0:
        A(f's_branch loop_{tag}')
        A.raw('.p2align 6')
        for _ in range(P['al']): A('s_nop 0')
    A.label(f'loop_{tag}')
    if stamps: A('s_memrealtime s[100:101]')
    st(1)
    emit(A, x3_consume(0))
    A(br('x3s'))
    A.label(f'x3ok_{tag}')
    def x3_light():
        NSET = P['x3l']
        base = [vPS, vPS+12, vKX, vKX+12]
        iss = lambda k: [f'buffer_load_dwordx4 v[{base[k]+4*i}:{base[k]+4*i+3}], v{vX3ld}, {WS}, s{sX3r} offen offset:{1024*i} sc1' for i in range(N3)]
        A.label(f'x3s_{tag}')
        for k in range(2, NSET): emit(A, iss(k))
        A.label(f'x3t_{tag}')
        for k in range(NSET):
            kk = (k + 1) % NSET
            if stamps: A(f's_add_u32 s{sCnt}, s{sCnt}, 1')
            emit(A, iss(k))
            A(f's_waitcnt vmcnt({N3*(NSET-1)})')
            emit(A, check_sent(range(base[kk], base[kk]+4*N3), vT0))
            A(f's_cbranch_vccz x3w{kk}_{tag}')
        bounded(A, f'x3t_{tag}', 1)
        for k in range(NSET):
            A.label(f'x3w{k}_{tag}')
            for i in range(N3): A(f'ds_write_b128 v{vX3ld}, v[{base[k]+4*i}:{base[k]+4*i+3}] offset:{1024*i}')
            A('s_waitcnt lgkmcnt(0)')
            A(f's_branch x3ok_{tag}')
    if P['x3l']: tails.append(x3_light)
    else: tails.append(lambda: slow_poll(A, f'x3s_{tag}', (f'x3ok_{tag}', f'x3o1_{tag}') if P['own'] else f'x3ok_{tag}', x3_issue, x3_consume, None, 1, cn(0)))
    A('s_barrier')
    st()
    MF = lambda i: (vRG + 4*i) if i < 8 else (vS + 4*(i-8))
    mine = list(range(CH0, CH0 + N3)) if P['own'] else []
    order = [i for i in range(10) if i not in mine] + mine
    def p2_head(k):
        for i in order: A(f'ds_read_b128 v[{MF(i)}:{MF(i)+3}], v{vMemR} offset:{1024*i}')
        for i, ch in enumerate(mine):
            r = vPS + 12*k + 4*i
            A(M32(v(vAcc, 4), a(8*ch, 4), v(r, 4), '0' if i == 0 else v(vAcc, 4)))
            A(M32(v(vAcc2, 4), a(8*ch+4, 4), v(r, 4), '0' if i == 0 else v(vAcc2, 4)))
    p2_head(0)
    A.label(f'p2c_{tag}')
    def p2_alt():
        A.label(f'x3o1_{tag}')
        A('s_barrier')
        p2_head(1)
        A(f's_branch p2c_{tag}')
    if mine: tails.append(p2_alt)
    for n, i in enumerate(order):
        if i in mine: break
        A(f's_waitcnt lgkmcnt({9-n})')
        first = (n == 0 and not mine)
        A(M32(v(vAcc, 4), a(8*i, 4), v(MF(i), 4), '0' if first else v(vAcc, 4)))
        A(M32(v(vAcc2, 4), a(8*i+4, 4), v(MF(i), 4), '0' if first else v(vAcc2, 4)))
    if mine: A('s_waitcnt lgkmcnt(0)')
    vm = [M32(v(vVE, 4), v(MF(i), 4), a(80+4*i, 4), '0' if i == 0 else v(vVE, 4)) for i in range(10)]
    NV = P['nv']
    emit(A, vm[:NV])
    if NV < 3: A('s_nop 1')
    for r in range(4): A(f'v_add_f32_dpp v{vAcc+r}, v{vAcc2+r}, v{vAcc+r} row_ror:8 row_mask:0xf bank_mask:0xf')
    if isA:
        A(f'v_pk_mul_f32 v[{vAcc}:{vAcc+1}], v[{vAcc}:{vAcc+1}], s[{sC2}:{sC2+1}]')
        A(f'v_pk_mul_f32 v[{vAcc+2}:{vAcc+3}], v[{vAcc+2}:{vAcc+3}], s[{sC2}:{sC2+1}]')
    A(f'v_cvt_pk_bf16_f32 v{vT0}, v{vAcc}, v{vAcc+1}')
    A(f'v_cvt_pk_bf16_f32 v{vT1}, v{vAcc+2}, v{vAcc+3}')
    A(f'v_min_u32 v{vT0}, -2, v{vT0}')
    A(f'v_min_u32 v{vT1}, -2, v{vT1}')
    A(f'buffer_store_dwordx2 v[{vT0}:{vT1}], v{vX1st}, {WS}, s{sX1} offen{fl}')
    st(3)
    QR = [vQS, vQS+4, vXACC, vXACC+4]
    qi = lambda k: f'buffer_load_dwordx4 v[{QR[k]}:{QR[k]+3}], v{vQKld}, {WS}, s{sX1} offen sc1'
    qc = lambda k: [f'ds_write_b128 v{vQKw}, v[{QR[k]}:{QR[k]+3}]'] + check_sent(range(QR[k], QR[k]+4), vT0) + ['s_waitcnt lgkmcnt(0)']
    late0 = P['qkA'] > 20
    emit(A, weave(vm[NV:], [] if late0 else [(P['qkA'], qi(0))]))
    if P['x3l'] > 2: A('s_waitcnt vmcnt(2)')
    for k in range(8):
        A(f'ds_read_b128 v[{vKX+4*k}:{vKX+4*k+3}], v{vL16} offset:{L_KX + 1024*k}')
        if k == 3 and P['q4']: A(qi(2))
    A(f'v_cvt_pk_bf16_f32 v{vT2}, v{vVE}, v{vVE+1}')
    A(f'v_cvt_pk_bf16_f32 v{vT3}, v{vVE+2}, v{vVE+3}')
    A(f'v_min_u32 v{vT2}, -2, v{vT2}')
    A(f'v_min_u32 v{vT3}, -2, v{vT3}')
    A(f'buffer_store_dwordx2 v[{vT2}:{vT3}], v{vV1st}, {WS}, s{sX1} offen{fl}')
    if wv == 1:
        A(f's_add_u32 s{sT1}, s{sStep}, 3')
        A(f's_lshr_b32 s{sT1}, s{sT1}, 1')
        A(f's_cmp_lt_i32 s{sQok}, s{sT1}')
        A(f's_cbranch_scc1 qp_{tag}')
        A.label(f'qpok_{tag}')
        tails.append(lambda: qp_wait(A, f'qp_{tag}', f'qpok_{tag}'))
    if P['q4']:
        A(qi(3))
        A.nop(P['q4'])
    if late0:
        A.nop(P['qkA'] - 20)
        A(qi(0))
    if P['qkgap']: A.nop(P['qkgap'])
    A(qi(1))
    for _ in range(P.get('wm1', 0)): A(M32(v(vLS, 4), a(aOne, 4), a(aOne, 4), '0'))
    st()
    A(f's_waitcnt vmcnt({4 if P["q4"] else 1 if late0 else 2})')
    emit(A, qc(0))
    A(br('qks'))
    A.label(f'qkok_{tag}')
    def qk_slow():
        A.label(f'qks_{tag}')
        if P['q4']:
            for k, n in ((2, 3), (3, 1)):
                if stamps: A(f's_add_u32 s{sCnt+1}, s{sCnt+1}, 1')
                A(f's_waitcnt vmcnt({n})')
                emit(A, qc(k))
                A(f's_cbranch_vccz qkok_{tag}')
        slow_poll(A, f'qkt_{tag}', f'qkok_{tag}', qk_issue, qk_consume, 1, 2, cn(1))
    tails.append(qk_slow)
    vm_ld = f'buffer_load_dwordx4 v[{vVM4}:{vVM4+3}], v{vVMld}, {WS}, s{sX1} offen sc1'
    if P['vpos'] in (0, 2): A(vm_ld)
    A('s_barrier')
    st()
    QF, KF = vRG, vRG + 16
    for t in range(4): A(f'ds_read_b128 v[{QF+4*t}:{QF+4*t+3}], v{vQr} offset:{512*t}')
    for t in range(4): A(f'ds_read_b128 v[{KF+4*t}:{KF+4*t+3}], v{vKr} offset:{512*t}')
    if P['vpos'] == 1: A(vm_ld)
    vm2 = f'buffer_load_dwordx4 v[{vXACC}:{vXACC+3}], v{vVMld}, {WS}, s{sX1} offen sc1'
    def smf(i, t):
        src = (vKX + 4*t, vKX + 16 + 4*t, KF + 4*t)[i]
        return M32(v(vS+4*i, 4), v(src, 4), v(QF+4*t, 4), (v(vBias+4*i, 4) if i < 2 else '0') if t == 0 else v(vS+4*i, 4))
    E = lambda r: f'v_exp_f32 v{vS+r}, v{vS+r}'
    C = lambda d, r: f'v_cvt_pk_bf16_f32 v{d}, v{vS+r}, v{vS+r+1}'
    for t in range(4):
        A(f's_waitcnt lgkmcnt({7-t})')
        A(smf(0, t))
    if P['vpos'] == 2: A(vm2)
    for t in range(4):
        A(f's_waitcnt lgkmcnt({3-t})')
        A(smf(2, t))
        if t >= 2: A(E(t - 2))
    A(smf(1, 0)); A(E(2))
    A(smf(1, 1)); A(E(3))
    A(smf(1, 2)); A(E(8))
    A(smf(1, 3)); A(E(9))
    A(E(10)); A(E(11))
    if P.get('att'): st()
    A(f's_waitcnt vmcnt({1 if P["vpos"] == 2 else 0})')
    if P.get('att'): st()
    emit(A, check_sent(range(vVM4, vVM4+4), vT2))
    A(C(vPL, 8)); A(C(vPL+1, 10))
    A(E(4))
    A(br('pvs'))
    A.label(f'pvok_{tag}')
    def pv_slow():
        A.label(f'pvs_{tag}')
        if P['vpos'] == 2:
            if stamps: A(f's_add_u32 s{sCnt+2}, s{sCnt+2}, 1')
            A('s_waitcnt vmcnt(0)')
            emit(A, check_sent(range(vXACC, vXACC+4), vT2))
            for r in range(4): A(f'v_mov_b32 v{vVM4+r}, v{vXACC+r}')
            A('s_nop 0')
            A(f's_cbranch_vccz pvok_{tag}')
        A.label(f'pvt_{tag}')
        if stamps: A(f's_add_u32 s{sCnt+2}, s{sCnt+2}, 1')
        A(vm_ld)
        A('s_waitcnt vmcnt(0)')
        emit(A, check_sent(range(vVM4, vVM4+4), vT2))
        A(f's_cbranch_vccz pvok_{tag}')
        bounded(A, f'pvt_{tag}', 3)
    tails.append(pv_slow)
    pvm = [M16(v(vAcc, 4), v(vVM4, 2), v(vPL, 2), '0'), M16(v(vAcc2, 4), v(vVM4+2, 2), v(vPL, 2), '0'),
           M16(v(vLS, 4), a(aOneM, 2), v(vPL, 2), '0')]
    A(pvm[0]); A(E(5))
    if wv == 1 and P['tatt']: A(f'buffer_load_dword v{vM2+0 if False else vXA}, v{vR+4}, {WS}, s{sWarm} offen sc1')
    if role == 'D' and P['tlb']: A(f'buffer_load_dword v{vXA}, v{vR+6}, {WS}, s{sXw} offen sc1')
    A(pvm[1]); A(E(6))
    if P['pt'] & 1: A(f'buffer_load_dword v{vXNr}, v{vSR}, {WS}, s{sX2} offen sc1')
    A(pvm[2]); A(E(7))
    if recv and P['pt'] & 2: A(f'buffer_load_dword v{vXNr}, v{vKXr}, {WS}, s{sX2} offen sc1')
    A(C(vP, 0)); A(C(vP+1, 2)); A(C(vP+2, 4)); A(C(vP+3, 6))
    A('s_nop 1')
    if P.get('att'): st()
    D = vPS
    NTL = 3 if isA else 2
    def pv_fin():
        A(M32(v(vAcc, 4), v(vVX, 4), v(vP, 4), v(vAcc, 4)))
        A(M32(v(vAcc2, 4), v(vVX+4, 4), v(vP, 4), v(vAcc2, 4)))
        A(M32(v(vLS, 4), a(aOne, 4), v(vP, 4), v(vLS, 4)))
        A.nop(P['pvnop'])
        A(f'v_cvt_pk_bf16_f32 v{vOFR}, v{vAcc}, v{vAcc+1}')
        A(f'v_cvt_pk_bf16_f32 v{vOFR+1}, v{vAcc+2}, v{vAcc+3}')
        A(f'v_cvt_pk_bf16_f32 v{vOFR+2}, v{vAcc2}, v{vAcc2+1}')
        A(f'v_cvt_pk_bf16_f32 v{vOFR+3}, v{vAcc2+2}, v{vAcc2+3}')
        A(f'ds_write_b128 v{vOw}, v[{vOFR}:{vOFR+3}]')
        A(f'v_rcp_f32 v{vRinv}, v{vLS}')
        for k in range(NTL): A(M32(v(D+4*k, 4), v(vWO+16*k+4*wv, 4), v(vOFR, 4), '0'))
    pv_fin()
    A(f'v_subrev_u32 v{vT0}, {f2u(2.0**-60):#x}, v{vLS}')
    A(f'v_cmp_le_u32 vcc, s{sLrng}, v{vT0}')
    A(f'v_mov_b32 v{vRinv1}, v{vRinv}')
    A(f's_cmp_eq_u32 s{sStep}, {NSEG-1}')
    A('s_waitcnt lgkmcnt(0)')
    A(br('smx'))
    A.label(f'smok_{tag}')
    def sm_slow():
        A.label(f'smx_{tag}')
        if stamps: A(f's_add_u32 s{sCnt+4}, s{sCnt+4}, 1')
        for i in range(3):
            for t in range(4): A(smf(i, t))
        A.nop(8)
        A(f'v_max3_f32 v{vM}, v{vS}, v{vS+1}, v{vS+2}')
        for r in range(3, 11, 2): A(f'v_max3_f32 v{vM}, v{vM}, v{vS+r}, v{vS+r+1}')
        A(f'v_max_f32 v{vM}, v{vM}, v{vS+11}')
        for sw in ('16', '32'):
            A(f'v_mov_b32 v{vT0}, v{vM}')
            A.nop(2)
            A(f'v_permlane{sw}_swap_b32 v{vT0}, v{vM}')
            A.nop(1)
            A(f'v_max_f32 v{vM}, v{vM}, v{vT0}')
        for r in range(12): A(f'v_sub_f32 v{vS+r}, v{vS+r}, v{vM}')
        for r in range(12): A(E(r))
        A.nop(1)
        A(C(vP, 0)); A(C(vP+1, 2)); A(C(vP+2, 4)); A(C(vP+3, 6)); A(C(vPL, 8)); A(C(vPL+1, 10))
        A.nop(2)
        emit(A, pvm)
        A.nop(6)
        pv_fin()
        A.nop(1)
        A(f'v_mov_b32 v{vRinv1}, v{vRinv}')
        A(f's_cmp_eq_u32 s{sStep}, {NSEG-1}')
        A('s_waitcnt lgkmcnt(0)')
        A(f's_branch smok_{tag}')
    tails.append(sm_slow)
    A(f's_cbranch_scc1 last_{tag}')
    A('s_barrier')
    st()
    OF4 = vRG
    TS = [t for t in range(4) if t != wv]
    for t in TS: A(f'ds_read_b128 v[{OF4+4*t}:{OF4+4*t+3}], v{vL16} offset:{L_O + 1024*t}')
    R = vS
    RI = f'v[{vRinv}:{vRinv1}]'
    def scale_cvt(k):
        return [f'v_pk_mul_f32 v[{D+4*k}:{D+4*k+1}], v[{D+4*k}:{D+4*k+1}], {RI}',
                f'v_pk_mul_f32 v[{D+4*k+2}:{D+4*k+3}], v[{D+4*k+2}:{D+4*k+3}], {RI}',
                f'v_cvt_pk_bf16_f32 v{D+4*k}, v{D+4*k}, v{D+4*k+1}',
                f'v_cvt_pk_bf16_f32 v{D+4*k+1}, v{D+4*k+2}, v{D+4*k+3}']
    mind = lambda d, s_, ctl: f'v_min_u32_dpp v{d}, v{s_}, v{vM2} ' + ctl.replace(' bank', ' row_mask:0xf bank')
    export = []
    for r in (0, 2):
        export.append(f'v_pk_mul_f32 v[{vAcc+r}:{vAcc+r+1}], v[{vAcc+r}:{vAcc+r+1}], {RI}')
        export.append(f'v_pk_mul_f32 v[{vAcc2+r}:{vAcc2+r+1}], v[{vAcc2+r}:{vAcc2+r+1}], {RI}')
    export += [f'v_cvt_pk_bf16_f32 v{vOFR}, v{vAcc}, v{vAcc+1}', f'v_cvt_pk_bf16_f32 v{vOFR+1}, v{vAcc+2}, v{vAcc+3}',
               f'v_cvt_pk_bf16_f32 v{vOFR+2}, v{vAcc2}, v{vAcc2+1}', f'v_cvt_pk_bf16_f32 v{vOFR+3}, v{vAcc2+2}, v{vAcc2+3}',
               f'buffer_store_dwordx4 v[{vOFR}:{vOFR+3}], v{vOFst}, {WS}, s{sOF} offen sc1',
               f's_add_u32 s{sOF}, s{sOF}, {2*128*1024}']
    emit(A, export[:6])
    op = []
    for n, k in enumerate([2, 0, 1] if isA else [0, 1]):
        for i, t in enumerate(TS):
            if n == 0: op.append(f's_waitcnt lgkmcnt({2-i})')
            op.append(M32(v(D+4*k, 4), v(vWO+16*k+4*t, 4), v(OF4+4*t, 4), v(D+4*k, 4)))
    ident = 'quad_perm:[0,1,2,3] bank_mask:0x3'
    if isA:
        single = scale_cvt(2) + ['s_nop 0', mind(R, D+8, 'row_shr:8 bank_mask:0xc'), mind(R+1, D+9, 'row_shr:8 bank_mask:0xc'),
                                 mind(R+2, D+8, 'row_shr:7 bank_mask:0xc'), mind(R+3, D+9, 'row_shr:7 bank_mask:0xc')]
        emit(A, weave(op, export[6:8] + [(6, x) for x in single], per=3))
    else:
        emit(A, weave(op, export[6:8]))
    emit(A, scale_cvt(0))
    A.nop(2)
    A(mind(R, D, ident)); A(mind(R+1, D+1, ident))
    emit(A, scale_cvt(1))
    A.nop(1)
    A(mind(R+2, D+4, ident)); A(mind(R+3, D+5, ident))
    A(f'buffer_store_dwordx4 v[{R}:{R+3}], v{vSR}, {WS}, s{sX2} offen sc1')
    A(f'buffer_store_dwordx4 v[{R}:{R+3}], v{vX2st}, {WS}, s{sX2L} offen{fl}')
    if P['two']: A(f'buffer_store_dwordx4 v[{R}:{R+3}], v{vSR}, {WS}, s{sX2B} offen sc1')
    st()
    pre = kv_list() if not P.get('nokv') else []
    late = list(export[8:])
    if role == 'D':
        A(f's_cmp_eq_u32 s{sStep}, s{sZn}')
        A(f's_cbranch_scc1 z1_{tag}')
        A.label(f'z1ok_{tag}')
        def z1():
            A.label(f'z1_{tag}')
            A(f'v_lshrrev_b32 v{vT2}, 1, v{vL16}')
            A(f'buffer_load_dwordx2 v[{vT0}:{vT1}], v{vT2}, {WS}, s{sZo} offen sc1')
            A('s_waitcnt vmcnt(0)')
            emit(A, check_sent([vT0, vT1], vT0))
            A(f's_cbranch_vccz z2_{tag}')
            bounded(A, f'z1_{tag}', 8)
            A.label(f'z2_{tag}')
            A(f's_add_u32 s{sZo}, s{sZo}, 512')
            A(f's_cmp_eq_u32 s{sZn}, 2')
            A(f's_cselect_b32 s{sZn}, 7, 23')
            A(f's_branch z1ok_{tag}')
        tails.append(z1)
        late += reset_list(fl)
        late += [f's_add_u32 s{sT0}, s{sStep}, 5', f's_min_u32 s{sT0}, s{sT0}, 63', f'v_readlane_b32 s{sXw}, v{vX2tab}, s{sT0}',
                 f's_xor_b32 s{sXw}, s{sXw}, 8192']
        late += [f's_lshl_b32 s{sT0}, s{sStep}, 7', f's_add_u32 s{sT0}, s{sT0}, {WS_PROG - 256}',
                 f'buffer_store_dword v{vM2}, v{vR+5}, {WS}, s{sT0} offen sc1']
    if wv == 1:
        touch = [f'buffer_load_dword v{vM}, v{vR+4}, {WS}, s{sWarm} offen sc1', f's_add_u32 s{sWarm}, s{sWarm}, {XSEG}']
        if P.get('notouch') or P['tatt']: touch = touch[1:]
        dl = []
        n = P['tdel']
        while n > 0: dl.append(f's_nop {min(n,16)-1}'); n -= 16
        pre = (touch + qx_list() + pre) if P['tfirst'] else (qx_list() + pre + dl + touch)
    if recv:
        if not isA and P['kvS']: A(f's_sleep {P["kvS"]}')
        emit(A, pre)
        A(f's_sleep {P["pollS"] - (P["pollE"] if isA else P["kvS"])}')
        emit(A, x2_issue())
        emit(A, late)
        st()
        if P.get('diag'):
            A(f's_waitcnt vmcnt({nvm(late) + 4*NU + 4})'); st()
            A(f's_waitcnt vmcnt({nvm(late) + 4*NU})'); st()
        if P['two']:
            A(f's_sleep {P["two"]}')
            emit(A, x2_issue(1))
        emit(A, x2_consume(nvm(late) + (4 if P['two'] else 0)))
        A(br('x2s'))
        A.label(f'x2ok_{tag}')
        def x2_slow():
            A.label(f'x2s_{tag}')
            if P['two']:
                if stamps: A(f's_add_u32 s{sCnt+2}, s{sCnt+2}, 1')
                emit(A, x2_consume(0, 1))
                A(f's_cbranch_vccz x2ok_{tag}')
            A.label(f'x2t_{tag}')
            if stamps: A(f's_add_u32 s{sCnt+3}, s{sCnt+3}, 1')
            emit(A, x2_issue())
            emit(A, x2_consume(0))
            A(f's_cbranch_vccz x2ok_{tag}')
            bounded(A, f'x2t_{tag}', 4)
        tails.append(x2_slow)
        st()
        for r in range(4): A(f'v_add_f32_dpp v{vAcc2+r}, v{vAcc+r}, v{vAcc+r} row_ror:8 row_mask:0xf bank_mask:0xf')
        A(f'v_cvt_pk_bf16_f32 v{vT0}, v{vAcc2}, v{vAcc2+1}')
        A(f'v_cvt_pk_bf16_f32 v{vT1}, v{vAcc2+2}, v{vAcc2+3}')
        A(f'v_min_u32 v{vT0}, -2, v{vT0}')
        A(f'v_min_u32 v{vT1}, -2, v{vT1}')
        A(f'buffer_store_dwordx2 v[{vT0}:{vT1}], v{vR+8}, {WS}, s{sX3w} offen{fl}')
    else:
        emit(A, pre)
        if P['lateS']: A(f's_sleep {P["lateS"]}')
        emit(A, late)
        st(); st()
    sl = slot_list(1)
    if not recv: emit(A, sl)
    if P['nob4'] == 0: A('s_barrier')
    elif not recv: A.nop(P['nob4'] - (60 if role == 'D' else 0))
    st.flush()
    if recv: emit(A, sl[:5])
    A.nop(P['x3d'] if not recv else max(0, P['x3d'] - 8))
    emit(A, x3_issue(0))
    if recv: emit(A, sl[5:])
    A(f's_add_u32 s{sStep}, s{sStep}, 1')
    A('s_sleep 1')
    emit(A, x3_issue(1))
    for _ in range(P.get('wm3', 0)): A(M32(v(vVE, 4), a(aOne, 4), a(aOne, 4), '0'))
    A(f's_branch loop_{tag}')
    A.label(f'last_{tag}')
    emit(A, export)
    if role == 'D':
        A(f's_mov_b32 s{sT0}, {WS_PROG + 61*128}')
        A(f'buffer_store_dword v{vM2}, v{vR+5}, {WS}, s{sT0} offen sc1')
    A('s_waitcnt vmcnt(0)')
    A('s_barrier')
    if role == 'D':
        A(f's_lshl_b32 s{sT0}, s{sG}, 5')
        A(f's_add_u32 s{sT0}, s{sT0}, s{sJ}')
        A(f's_lshl_b32 s{sT0}, s{sT0}, 2')
        A(f's_add_u32 s{sT0}, s{sT0}, {WS_FLAG}')
        A(f'v_cmp_eq_u32 vcc, 0, v{vL16}')
        A(f'v_mov_b32 v{vT0}, {OOB:#x}')
        A('s_nop 1')
        A(f'v_cndmask_b32 v{vT0}, v{vT0}, 0, vcc')
        A(f'buffer_store_dword v{vM2}, v{vT0}, {WS}, s{sT0} offen sc1')
    if stamps:
        A('s_memrealtime s[100:101]')
        A('s_waitcnt lgkmcnt(0)')
        A(f'v_writelane_b32 v{vT3}, s{sST}, 0')
        for k, r in enumerate((94, 96, 100, 76, 78, 80, 82, 84, 86)): A(f'v_writelane_b32 v{vT3}, s{r}, {1+k}')
        A(f's_add_u32 s{sT0}, s{sDB}, {63*64}')
        A(f'buffer_store_dword v{vT3}, v{vDbg}, {WS}, s{sT0} offen')
        if P.get('dbgout') and role == 'D':
            A(f'v_writelane_b32 v{vT3}, s74, 10')
            A(f'v_readlane_b32 s{sT0}, v{vX2tab}, 0')
            A(f'v_writelane_b32 v{vT3}, s{sT0}, 11')
            A(f'v_writelane_b32 v{vT3}, s98, 12')
            srd(A, sWT, 24, 64)
            A(f's_add_u32 s{sT0}, s{sJ}, s{sG}')
            A(f's_cmp_eq_u32 s{sT0}, 0')
            A(f's_cselect_b32 s{sT0}, 12, 64')
            A(f'buffer_store_dword v{vT3}, v{vDbg}, s[{sWT}:{sWT+3}], s{sT0} offen')
    A('s_endpgm')
    for t in tails: t()

DEFAULT_P = dict(il=0, k2=0, bil=0, brm=0, vhelp=0, rmap=0, wfl='', two=0, own=0, lin2=0, rot=1, kvS=2, nv=3, coop=0, ns0=0, bdel=0, vpos=0, pollE=2, al=0, x3l=0, lateS=0, pt=0, lin=0, cpf=1, pollS=5, q4=0, x3d=0, nob4=0, tlb=1, tatt=1, tdel=0, tfirst=0, pollA=80, qkA=5, qkgap=0, x3A=4, x3B=8, x3gap=16, pvnop=6)

def gen_chain(A, stamps, P):
    wt = f's[{sWT}:{sWT+3}]'
    npst = [0]
    def pst():
        if stamps == 1:
            A(f's_memrealtime s[{76+2*npst[0]}:{77+2*npst[0]}]'); A('s_waitcnt lgkmcnt(0)'); npst[0] += 1
    if stamps: A('s_memrealtime s[94:95]')
    if P['cpf']: code_prefetch(A, 250, 8)
    A('s_load_dwordx4 s[16:19], s[0:1], 16')
    A('s_load_dwordx4 s[20:23], s[0:1], 32')
    A('s_load_dwordx4 s[24:27], s[0:1], 96')
    A('s_load_dwordx2 s[72:73], s[0:1], 8')
    F = 232
    X = VX(A, vRG, F, 3)
    A(f'v_lshrrev_b32 v{F+3}, 6, v0')
    A(f'v_and_b32 v{F}, 63, v0')
    A(f'v_readfirstlane_b32 s{sW}, v{F+3}')
    A(f'v_bfe_u32 v{F+1}, v0, 4, 2')
    A(f'v_and_b32 v{F+2}, 15, v0')
    A(f's_and_b32 s{sG}, s2, 3')
    A(f's_lshr_b32 s{sJ}, s2, 3')
    A(f's_lshr_b32 s{sH}, s{sJ}, 2')
    A(f's_lshl_b32 s3, s{sG}, 3')
    A(f's_add_u32 s{sH}, s{sH}, s3')
    A(f's_and_b32 s{sA}, s{sJ}, 3')
    A(f's_and_b32 s{sPar}, s{sA}, 1')
    A(f's_mov_b32 s{sTO}, 0x400000')
    for i, sr in enumerate((sA, sH, sJ, sG)): A(f'v_mov_b32 v{F+4+i}, s{sr}')
    A(f'v_mov_b32 v{F+8}, v0')
    L, g, c, w, a_, h, j, G, tid = [X.reg(F+i) for i in range(9)]
    X.set(vL16, L*16)
    L16 = X.reg(vL16)
    def frag_addr(dst, it):
        X.set(vT1, ((it >> 3)*3277) >> 16)
        ua = X.reg(vT1)
        X.set(vT2, (it >> 3) - ua*20)
        u = X.reg(vT2)
        g1, r1, gh = (lambda: (it >> 2) & 1), (lambda: (it >> 1) & 1), (lambda: it & 1)
        X.set(vT3, (ua*5 + (u >> 2))*512 + ((g1()*2 + gh())*8 + (u & 3)*2 + r1())*16)
        X.set(dst, (ua*5 + 4)*512 + (((u & 2) + gh())*8 + (u & 1)*4 + r1()*2 + g1())*16)
        X.set(dst, X.sel(('lt', u, 16), X.reg(vT3), X.reg(dst)))
    TQ, TA_, TV, TO1, TO2 = [vXACC + i for i in range(5)]
    RM = P['rmap']
    if RM: X.set(TQ, (((L >> 2) & 3) + (L >> 4)*160)*8192 + (((L >> 1) & 1) ^ (w >> 1))*32 + (L & 1)*16 + h*256 + a_*64)
    else: X.set(TQ, (L >> 2)*8192 + (((L >> 1) & 1) ^ ((L >> 5) & 1))*32 + (L & 1)*16 + h*256 + a_*64)
    A('s_waitcnt lgkmcnt(0)')
    srd(A, sWS, 26, WS_SIZE)
    if P['lin']: lin_touch(A, X, tid, vKX, sWT, (16, 18, 20, 22))
    A(f's_lshl_b32 s3, s{sG}, 5')
    A(f's_add_u32 s3, s3, s{sJ}')
    A(f's_lshl_b32 s60, s{sW}, 7')
    A('s_add_u32 s3, s3, s60')
    A('s_cmp_ge_u32 s3, 22')
    A('s_cbranch_scc1 cal_done')
    A('s_sub_u32 s60, 0, s26')
    A('s_and_b32 s60, s60, 0x1fffff')
    A(f's_lshl_b32 s61, s{sJ}, 21')
    A('s_add_u32 s60, s60, s61')
    A(f's_add_u32 s60, s60, {WS_X2 + 0x1f8000}')
    A('s_add_u32 s70, s26, s60')
    A('s_addc_u32 s71, s27, 0')
    A('s_mov_b32 s62, -1')
    A('s_mov_b32 s63, -1')
    for rep in range(P['calrep']):
        for hf in range(2):
            A('s_mov_b32 s61, 0')
            A('s_memtime s[64:65]')
            A('s_waitcnt lgkmcnt(0)')
            A(f's_atomic_or s61, s[70:71], {hf*8192 + (rep&1)*4096} glc')
            A('s_waitcnt lgkmcnt(0)')
            A('s_memtime s[66:67]')
            A('s_waitcnt lgkmcnt(0)')
            A('s_sub_u32 s64, s66, s64')
            A(f's_min_u32 s{62+hf}, s{62+hf}, s64')
    A('s_cmp_lt_u32 s63, s62')
    A('s_cselect_b32 s61, 1, 0')
    A(f's_lshl_b32 s61, s61, s{sJ}')
    if P.get('rot'):
        rot_poll(A, 24, 60, sTO, 'chain_abort10')
        A(f's_cmp_lg_u32 s60, s{sRot}')
        A('s_cbranch_scc1 cal_done')
    A(f's_atomic_or s61, s[24:25], {DBG_MASK} glc')
    A('s_waitcnt lgkmcnt(0)')
    arrive_s(A, 24, 61, 'cal_done')
    A.label('cal_done')
    if P['coop']:
        for i in range(2):
            X.set(vKX+i, X.sel(('lt', tid + 256*i, 320), (j*20 + ((tid + 256*i) >> 4))*8192 + G*2048 + (tid & 15)*128, OOB))
        for m, ptr in enumerate((16, 18, 20)):
            srd(A, sWT, ptr, DM * 4096 * 2)
            for i in range(2): A(f'buffer_load_dword v{vKX+4+2*m+i}, v{vKX+i}, {wt}, 0 offen')
        srd(A, sWT, 22, 4096 * DM * 2)
        for i in range(2):
            X.set(vT1, X.sel(('lt', tid + 256*i, 320), (G*32 + j)*40960 + (tid + 256*i)*128, OOB))
            A(f'buffer_load_dword v{vKX+10+i}, v{vT1}, {wt}, 0 offen')
    TK = vXACC + 5
    X.set(TK, X.reg(TQ) ^ (128 if P['k2'] else 0))
    SR = (sWT, 56, 60, 64)
    for sr, ptr in zip(SR, (16, 18, 20, 22)): srd(A, sr, ptr, DM * 4096 * 2)
    A(f's_lshl_b32 s70, s{sW}, 10')
    A(f's_mul_i32 s71, s{sW}, {(4 if RM else 16)*8192}')
    A(f's_mul_i32 s74, s{sH}, {128*1280}')
    A(f's_mul_i32 s3, s{sA}, 320')
    A(f's_add_u32 s74, s74, s3')
    def wq(m, i):
        A(f's_add_u32 m0, s70, {40960*(m+1) + 4096*i}')
        A(f's_add_u32 s3, s71, {i*(16 if RM else 64)*8192}')
        A(f'buffer_load_dwordx4 v{TK if m == 1 else TQ}, s[{SR[m]}:{SR[m]+3}], s3 offen lds')
    def wo(i):
        cid = tid + 256*i
        row = (cid*3277) >> 16
        X.set(vT0, row*1280 + (cid - row*20)*16)
        A(f's_add_u32 m0, s70, {4096*i}')
        A('s_nop 0')
        A(f'buffer_load_dwordx4 v{vT0}, s[64:67], s74 offen lds')
    if P['il']:
        for i in range(10):
            for m in range(3): wq(m, i)
            wo(i)
    else:
        for m in range(3):
            for i in range(10): wq(m, i)
        for i in range(10): wo(i)
    if P.get('rot'): rot_verify(A, 24, 60, sTO, 'chain_abort10')
    for q in range(4): X.set(vSent4+q, -1)
    S4 = f'v[{vSent4}:{vSent4+3}]'
    srd(A, sWT, 72, NM*DM*2)
    idn = lambda: j*20 + tid
    X.set(vT2, X.sel(('lt', tid, 20), (idn() & 7)*1280 + (idn() >> 3)*16, OOB))
    A(f'buffer_load_dwordx4 v[{vS}:{vS+3}], v{vT2}, {wt}, 0 offen')
    per = -(-(WS_FILL_END - WS_FILL_BEG) // (128 * 4096))
    X.set(vT1, (G*32 + j)*(per*4096) + tid*16 + WS_FILL_BEG)
    A(f's_mov_b32 s{sWS+2}, {WS_FILL_END:#x}')
    for r in range(per):
        A(f'buffer_store_dwordx4 {S4}, v{vT1}, {WS}, 0 offen sc1')
        A(f'v_add_u32 v{vT1}, 4096, v{vT1}')
    A(f's_mov_b32 s{sWS+2}, {WS_SIZE:#x}')
    A('s_sub_u32 s60, 0, s26')
    A('s_and_b32 s60, s60, 0x1fffff')
    A(f's_add_u32 s60, s60, {WS_X2}')
    X.set(vT1, X.sel(('lt', G*32 + j, 120), (G*32 + j)*16384 + tid*16, OOB))
    for r in range(4):
        A(f'buffer_store_dwordx4 {S4}, v{vT1}, {WS}, s60 offen sc1')
        if P['two']:
            A(f's_add_u32 s61, s60, {OFFB}')
            A(f'buffer_store_dwordx4 {S4}, v{vT1}, {WS}, s61 offen sc1')
        A('s_add_u32 s60, s60, 4096')
    X.set(vS+4, X.sel(('lt', tid, 20), idn()*16 + G*X3_G + WS_X3, OOB))
    X.set(vM2, -2)
    clt8 = ('lt', c, 8); glt2 = ('lt', g, 2); wlt2 = ('lt', w, 2); w0 = ('eq', w, 0)
    X.set(vT0, 0x3f803f80)
    for q in range(4): A(f'v_accvgpr_write_b32 a{aOne+q}, v{vT0}')
    X.set(vT0, X.sel(glt2, 0x3f803f80, 0))
    for q in range(2): A(f'v_accvgpr_write_b32 a{aOneM+q}, v{vT0}')
    slot = lambda: (g*8 + (c & 7))*16
    X.set(vMemR, slot() + (c >> 3)*512)
    X.set(vX3ld, X.sel(wlt2, w*3072, w*2048 + 2048) + X.reg(vMemR))
    X.set(vKr, slot() + L_K)
    X.set(vQr, X.sel(clt8, L_Q, L_QX) + slot())
    tq = lambda: (((a_ ^ w) if P['k2'] else a_) & 2) + (w & 1)
    tt = lambda: a_ & 1
    X.set(vX1st, X.sel(clt8, tq()*1024 + (w >> 1)*512 + slot() + tt()*8, OOB))
    X.set(vV1st, X.sel(('eq', g >> 1, w >> 1), a_*1024 + L16 + (w & 1)*8 + 4096, OOB))
    X.set(vVMld, w*1024 + L16 + 4096)
    X.set(vQKld, w*1024 + L16)
    X.set(vOw, w*1024 + L16 + L_O)
    X.set(vQKw, X.sel(glt2, L_Q, L_K - 512) + w*512 + L16)
    X.set(vT0, (a_*20 + w*4 + (c >> 1))*4096 + ((c & 1)*4 + g)*16)
    X.set(vT1, (a_*20 + 16 + w*2 + ((c >> 2) & 1))*4096 + (((c >> 1) & 1)*4 + g)*16)
    X.set(vT1, X.sel(('eq', (c & 1) + (w & 2), 0), X.reg(vT1), OOB))
    X.set(vX2st, X.sel(clt8, X.reg(vT0), X.reg(vT1)) + h*128)
    xs = X.reg(vX2st)
    X.set(vSR, X.sel(('lt', xs, OOB), (xs >> 13)*16384 + (xs & 8191), OOB))
    X.set(vOFst, X.sel(clt8, OOB, ((a_ >> 1)*128 + h*4 + w)*1024 + tt()*128 + L16 - 128))
    X.set(vT0, X.sel(('lt', j, 16), j*3 + X.sel(wlt2, 2, w & 1), j*2 + 16 + (w & 1)))
    U = X.reg(vT0)
    x2a = lambda Uq, Lq: (Uq*4096 if Lq == 3 else (Uq >> 1)*16384 + (Uq & 1)*4096) + L16 + ((G + (Lq+1)) & 3)*1024
    lo = [lambda: (a_*20 + (L >> 3))*4096 + h*128 + (L & 7)*16,
          lambda: X.sel(('lt', L, 32), X.reg(vR), OOB),
          lambda: a_*2048 + L16,
          lambda: X.sel(('lt', L, 20), j*320 + L16, OOB)]
    for i in range(4):
        X.set(vR+i, X.sel(w0, lo[i](), x2a(U, i)))
    X.set(vR+4, X.sel(('lt', L, 32), a_*4096 + L*128, X.sel(('lt', L, 48), a_*2048 + L*128 + (16384 - 4096), OOB)))
    X.set(vR+5, X.sel(w0, X.sel(('eq', L + j + G, 0), 0, OOB), h*16 + (L & 3)*4 + WS_QP))
    X.set(vR+6, X.sel(('eq', L, 0), 0, OOB))
    if P['pt']: X.set(vKXr, X.sel(('lt', L, 2), ((U + L) >> 1)*16384 + ((U + L) & 1)*4096 + G*1024, OOB))
    X.set(vRinv1, (U + (g >> 1))*8 + (g & 1)*4 + ((c & 7) >> 1))
    frag_addr(vRinv, X.reg(vRinv1))
    X.set(vR+8, X.sel(('eq', (c >> 3) + (g >> 1), 0), X.reg(vRinv) + (c & 1)*8, OOB))
    for q in range(4):
        X.set(vT1, X.sel(('eq', c >> 1, q), X.sel(('eq', c & 1, 0), 0x3f80, 0x3f800000), 0))
        A(f'v_accvgpr_write_b32 a{aSel+q if q < 4 else aSelH+q-4}, v{vT1}')
    X.set(vT1, X.sel(clt8, 63, a_*8 + c - 8))
    for kt in range(2):
        for r in range(4):
            X.set(vBias+4*kt+r, X.sel(('gt', g*4 + (16*kt + r), X.reg(vT1)), f2u(NEG), 0))
    trb = lambda: g*(2048 if RM else 512) + ((L >> 2) & 3)*64 + ((w & 1) ^ (g & 1))*32 + (L & 3)*8
    toff = lambda t: (8192*(t % 5) + 256*(t // 5)) if RM else 2048*t
    thalf = 1024 if RM else 256
    X.set(TA_, trb() + (w >> 1)*40960 + 40960)
    X.set(TV, trb() + 122880)
    wob = lambda: (g*4 + ((L >> 2) & 3))*320 + (L & 3)*8
    X.set(TO1, wob() + w*64)
    X.set(TO2, wob() + (w & 1)*32 + 256)
    X.set(vP+1, X.sel(('eq', tid, 0), 0, OOB))
    X.set(vP+2, (L & 31)*4)
    X.set(vDbg, X.sel(('lt', L, 16), L*4, OOB))
    A(f's_mov_b32 s{sOF}, {WS_OF}')
    A(f's_cmp_lt_u32 s{sJ}, 16')
    A(f's_cselect_b32 s{sNH}, 3, 2')
    A(f's_mov_b32 s{sC2}, {f2u(QSCALE):#x}')
    A(f's_mov_b32 s{sC2+1}, {f2u(QSCALE):#x}')
    A(f's_mul_i32 s{sX3G}, s{sG}, {X3_G}')
    A(f's_add_u32 s{sX3G}, s{sX3G}, {WS_X3}')
    A(f's_lshl_b32 s{sX1H}, s{sH}, 13')
    A(f's_add_u32 s{sX1H}, s{sX1H}, {WS_X1}')
    A(f's_mul_i32 s{sHoff}, s{sH}, {XH}')
    A(f's_add_u32 s{sHoff}, s{sHoff}, {WS_KX}')
    A(f's_lshl_b32 s75, s{sG}, 5')
    A(f's_add_u32 s75, s75, s{sJ}')
    A(f's_lshl_b32 s{sDB}, s75, 2')
    A(f's_add_u32 s{sDB}, s{sDB}, s{sW}')
    A(f's_lshl_b32 s{sDB}, s{sDB}, 12')
    A(f's_add_u32 s{sDB}, s{sDB}, {WS_DBG:#x}')
    A(f's_lshl_b32 s{sKXm}, s{sW}, 11')
    A(f's_lshl_b32 s{sQXr}, s{sA}, 11')
    A(f's_add_u32 s{sQXr}, s{sQXr}, s{sHoff}')
    A(f's_add_u32 s{sQXr}, s{sQXr}, 16384')
    A(f's_add_u32 s{sXr}, s{sHoff}, s{sKXm}')
    A(f's_mov_b32 s{sLrng}, {f2u(2.0**64) - f2u(2.0**-60):#x}')
    A(f's_add_u32 s{sWarm}, s{sHoff}, {XSEG}')
    pst()
    A('s_waitcnt vmcnt(0)')
    for k in range(4): A(f'v_min_u32 v{vS+k}, -2, v{vS+k}')
    A(f'buffer_store_dwordx4 v[{vS}:{vS+3}], v{vS+4}, {WS}, 0 offen sc1')
    A('s_barrier')
    pst()
    for t in range(20):
        A(f'ds_read_b64_tr_b16 a[{4*t}:{4*t+1}], v{TA_} offset:{toff(t)}')
        A(f'ds_read_b64_tr_b16 a[{4*t+2}:{4*t+3}], v{TA_} offset:{toff(t)+thalf}')
        if t % 4 == 3: A('s_waitcnt lgkmcnt(4)')
    A(f's_cmp_ge_u32 s{sW}, 2')
    A('s_cbranch_scc1 v_odd')
    for par in range(2):
        if par: A.label('v_odd')
        for i in range(10):
            A(f'ds_read_b64_tr_b16 a[{80+4*i}:{80+4*i+1}], v{TV} offset:{toff(2*i+par)}')
            A(f'ds_read_b64_tr_b16 a[{80+4*i+2}:{80+4*i+3}], v{TV} offset:{toff(2*i+par)+thalf}')
            if i % 4 == 3: A('s_waitcnt lgkmcnt(4)')
        if not par: A('s_branch v_done')
    A.label('v_done')
    for k in range(3):
        for t in range(4):
            r, o = (TO1, 32*320*t + 32*k) if k < 2 else (TO2, 32*320*t)
            A(f'ds_read_b64_tr_b16 v[{vWO+16*k+4*t}:{vWO+16*k+4*t+1}], v{r} offset:{o}')
            A(f'ds_read_b64_tr_b16 v[{vWO+16*k+4*t+2}:{vWO+16*k+4*t+3}], v{r} offset:{o+16*320}')
        A('s_waitcnt lgkmcnt(0)')
    pst()
    srd(A, sWT, 24, 256)
    wait_start(A, wt, vT0, 74, sTO, 'start_ok', 'chain_abort10', sleep=4)
    pst()
    NS0 = 0
    x2_table(A, X, L, vX2tab, 74, 26, vT1)
    if P.get('dbgout'): A('s_mov_b32 s98, s74')
    A(f's_getreg_b32 s74, hwreg(HW_REG_XCC_ID, 0, 4)')
    A(f's_lshl_b32 s3, s75, 2')
    A(f's_add_u32 s3, s3, {WS_TAB}')
    A(f'v_mov_b32 v{vT1}, s74')
    A(f'buffer_store_dword v{vT1}, v{vP+1}, {WS}, s3 offen sc1')
    if NS0 == 0:
        A(f's_cmp_lg_u32 s{sW}, 1')
        A('s_cbranch_scc1 qp0_ok')
        A(f's_mov_b32 s{sT1}, 1')
        qp_wait(A, 'qp0', 'qp0_ok', shifts=(2,))
        A.label('qp0_ok')
        A('s_barrier')
    A(f's_mov_b32 s{sQok}, {NS0 // 2}')
    pst()
    A(f's_mov_b32 s{sZn}, 2')
    A(f's_mov_b32 s{sZo}, {WS_ZFLAG}')
    A(f's_lshl_b32 s3, s{sG}, 7')
    A(f's_add_u32 s3, s3, {WS_TAB}')
    A(f's_mov_b32 s60, {WS_TAB}')
    A(f'v_lshrrev_b32 v{vT2}, 1, v{vL16}')
    A.label('tab_poll')
    A(f'buffer_load_dwordx2 v[{vRinv}:{vRinv1}], v{vT2}, {WS}, s60 offen sc1')
    A(f'buffer_load_dword v{vT0}, v{vP+2}, {WS}, s3 offen sc1')
    A('s_waitcnt vmcnt(0)')
    emit(A, check_sent([vRinv, vRinv1, vT0], vT3))
    A('s_cbranch_vccz tab_ok')
    bounded(A, 'tab_poll', 5)
    A.label('tab_ok')
    pst()
    A(f'v_cmp_ne_u32 s[68:69], v{vT1}, v{vT0}')
    A(f's_mov_b32 s{sStep}, 0')
    emit(A, kv_list())
    A(f's_cmp_lg_u32 s{sW}, 1')
    A('s_cbranch_scc1 no_q0')
    emit(A, qx_list())
    A(f'buffer_load_dword v{vM}, v{vR+4}, {WS}, s{sWarm} offen sc1')
    A(f's_add_u32 s{sWarm}, s{sWarm}, {XSEG}')
    A.label('no_q0')
    emit(A, slot_list(0))
    A(f'v_readlane_b32 s{sXw}, v{vX2tab}, 4')
    A(f's_xor_b32 s{sXw}, s{sXw}, 8192')
    for k in range(5): A(f's_mov_b32 s{sCnt+k}, 0')
    for mode in ('f', 's'):
        if mode == 'f':
            A('s_cmp_lg_u64 s[68:69], 0')
            A('s_cbranch_scc1 disp_s')
        else:
            A.label('disp_s')
        A(f's_cmp_eq_u32 s{sW}, 0')
        A(f's_cbranch_scc1 j_{mode}D')
        A(f's_cmp_eq_u32 s{sW}, 2')
        A(f's_cbranch_scc1 j_{mode}B')
        A(f's_cmp_eq_u32 s{sW}, 3')
        A(f's_cbranch_scc1 j_{mode}C')
        A(f's_cmp_eq_u32 s{sNH}, 3')
        A(f's_cbranch_scc1 j_{mode}E')
        A(f's_branch entry_{mode}A')
        for r in 'BDEC':
            A.label(f'j_{mode}{r}')
            A(f's_branch entry_{mode}{r}')
    for mode, fl in (('f', ''), ('s', ' sc1')):
        for role in 'DABEC':
            gen_loop(A, mode + role, fl, role, stamps, P)
    A.label('chain_abort10')
    A(f's_mov_b32 s{sT0}, 10')
    A.label('chain_abort')
    srd(A, sWT, 24, 256)
    A(f'v_mov_b32 v{vT0}, s{sT0}')
    A(f'v_mov_b32 v{vT1}, 0')
    A(f'buffer_store_dword v{vT0}, v{vT1}, {wt}, 0 offen')
    A('s_endpgm')
```

```python
from k7_common import *
LOG2E = math.log2(math.e)
sWS, sR1, sR2, sR3, sR4 = 4, 8, 12, 16, 20
sM = 92
sC2 = 24
sW, sB, sN, sO1, sO2, sLB, sT0, sT1, sTO, sTile, sNG, sRB, sZs, sQ = 30, 31, 32, 33, 34, 35, 36, 37, 38, 39, 40, 41, 42, 43
WS = f's[{sWS}:{sWS+3}]'
R1, R2, R3, R4 = [f's[{r}:{r+3}]' for r in (sR1, sR2, sR3, sR4)]
vL16, vD1, vD2, vD3, vR1, vT0, vT1, vT2, vT3 = 1, 2, 3, 4, 5, 6, 7, 8, 9
vGo, vXo, vRw, vRr, vFl, vZt, vZf = 10, 11, 12, 13, 14, 15, 16
vZu = 17
vH = 24
vA1 = 32
vWF = 64
vY = 84
vR1b = 100
vR2n = 112
vOF = 112
F = 244

def rbf2(A, x, y, t):
    A(f'v_cvt_pk_bf16_f32 v{t}, v{x}, v{y}')
    A(f'v_lshlrev_b32 v{x}, 16, v{t}')
    A(f'v_and_b32 v{y}, 0xffff0000, v{t}')
def rbf(A, x):
    A(f'v_cvt_pk_bf16_f32 v{x}, v{x}, v{x}')
    A(f'v_and_b32 v{x}, 0xffff0000, v{x}')
def silu(A, x, t):
    A(f'v_mul_f32 v{t}, {f2u(-LOG2E):#x}, v{x}')
    A(f'v_exp_f32 v{t}, v{t}')
    A('s_nop 0')
    A(f'v_add_f32 v{t}, 1.0, v{t}')
    A(f'v_rcp_f32 v{t}, v{t}')
    A('s_nop 0')
    A(f'v_mul_f32 v{x}, v{x}, v{t}')
def xsum_g(A, x, t):
    for sw in ('16', '32'):
        A(f'v_mov_b32 v{t}, v{x}')
        A.nop(2)
        A(f'v_permlane{sw}_swap_b32 v{t}, v{x}')
        A.nop(1)
        A(f'v_add_f32 v{x}, v{x}, v{t}')
def spin_flags(A, lab, ok, off, sleep):
    A.label(lab)
    A(f's_mov_b32 s{sT0}, {off}')
    A(f'buffer_load_dwordx2 v[{vT0}:{vT1}], v{vFl}, {WS}, s{sT0} offen sc1')
    A('s_waitcnt vmcnt(0)')
    emit(A, check_sent([vT0, vT1], vT0))
    A(f's_cbranch_vccz {ok}')
    A(f's_sleep {sleep}')
    A(f's_sub_u32 s{sTO}, s{sTO}, 1')
    A(f's_cbranch_scc0 {lab}')
    A('s_branch bulk_abort')

def gen_bulk(A, stamps, P):
    nst = [0]
    def st():
        if stamps:
            A(f's_memrealtime s[{70+2*nst[0]}:{71+2*nst[0]}]'); A('s_waitcnt lgkmcnt(0)'); nst[0] += 1
    A.label('bulk_entry')
    st()
    if P['cpf']: code_prefetch(A, 252, P['cpfb'])
    A('s_load_dwordx4 s[44:47], s[0:1], 64')
    A('s_load_dwordx4 s[48:51], s[0:1], 80')
    A('s_load_dwordx4 s[52:55], s[0:1], 96')
    A('s_load_dwordx2 s[56:57], s[0:1], 40')
    A('s_load_dwordx4 s[60:63], s[0:1], 0')
    A('s_load_dwordx4 s[88:91], s[0:1], 16')
    A('s_load_dwordx2 s[58:59], s[0:1], 32')
    X = VX(A, 200, F, 3)
    A(f'v_lshrrev_b32 v{F+3}, 6, v0')
    A(f'v_and_b32 v{F}, 63, v0')
    A(f'v_readfirstlane_b32 s{sW}, v{F+3}')
    A(f'v_bfe_u32 v{F+1}, v0, 4, 2')
    A(f'v_and_b32 v{F+2}, 15, v0')
    A(f's_lshr_b32 s{sB}, s2, 3')
    A(f's_lshl_b32 s{sB}, s{sB}, 2')
    A(f's_and_b32 s{sQ}, s2, 3')
    A(f's_add_u32 s{sB}, s{sB}, s{sQ}')
    A(f'v_mov_b32 v{F+4}, s{sB}')
    A(f's_lshl_b32 s{sM}, s{sQ}, 5')
    A(f's_lshr_b32 s3, s{sB}, 2')
    A(f's_add_u32 s{sM}, s{sM}, s3')
    A(f'v_mov_b32 v{F+5}, s{sM}')
    L, g, c, w, b, m_ = [X.reg(F+i) for i in range(6)]
    tid = X.reg(0)
    A(f's_mov_b32 s{sTO}, 0x400000')
    X.set(vL16, L*16)
    L16 = X.reg(vL16)
    n_ = lambda: m_ >> 1
    X.set(vT0, (n_()*32 + c)*1280 + w*320 + g*16)
    BR = P['brm']
    if BR: X.set(vD1, (((L >> 3) & 3) + (L >> 5)*320)*8192 + ((((L >> 1) & 3) ^ (((L >> 4) & 1) | (w & 2)))*2 + (L & 1))*16 + (m_ >> 2)*256 + (m_ & 2)*64)
    else: X.set(vD1, (L >> 3)*8192 + ((((L >> 1) & 3) ^ (((L >> 4) & 1) | ((w & 1) << 1)))*2 + (L & 1))*16 + (m_ >> 2)*256 + (m_ & 2)*64)
    A('s_waitcnt lgkmcnt(0)')
    srd(A, sWS, 54, WS_SIZE)
    srd(A, sR1, 60, S_TOK*DM*2)
    srd(A, sR4, 52, 256)
    X.set(vZf, X.sel(('eq', tid, 0), 0, OOB))
    X.set(vFl, L*8)
    A(f's_and_b32 s3, s{sM}, 1')
    A('s_cbranch_scc0 b_even')
    XR, XR2, FL = 32, 112, 64
    A('s_movk_i32 s26, 0x5000')
    for t in range(5):
        A(f'buffer_load_dwordx4 v[{XR+4*t}:{XR+4*t+3}], v{vT0}, {R1}, 0 offen offset:{64*t}')
    for t in range(5):
        A(f'buffer_load_dwordx4 v[{XR2+4*t}:{XR2+4*t+3}], v{vT0}, {R1}, s26 offen offset:{64*t}')
    if P['lin2']:
        for i in range(3):
            X.set(160+i, X.sel(('lt', tid + 256*i, 640), n_()*81920 + (tid + 256*i)*128, OOB))
        for mm, ptr in enumerate((88, 90, 58, 56)):
            srd(A, sR2, ptr, DM*4096*2)
            for i in range(3): A(f'buffer_load_dword v{164+3*mm+i}, v{160+i}, {R2}, 0 offen')
    if P['vhelp'] == 2:
        srd(A, sR2, 58, DM*4096*2)
        for i in range(3):
            X.set(vT1, X.sel(('lt', tid + 256*i, 640), (tid + 256*i)*8192 + (m_ >> 2)*256 + (m_ & 2)*64, OOB))
            A(f'buffer_load_dword v{160+i}, v{vT1}, {R2}, 0 offen')
    X.set(vT1, n_()*40960 + w*5120 + L16 + WS_XN)
    X.set(vRw, w*64 + c*4)
    X.set(vRr, c*4)
    A(f's_mov_b32 s{sN}, 0')
    A(f's_waitcnt vmcnt({3 if P["vhelp"] == 2 else 0})')
    A.label('ln_loop')
    for k in range(20):
        A(f'v_lshlrev_b32 v{FL+2*k}, 16, v{XR+k}')
        A(f'v_and_b32 v{FL+2*k+1}, 0xffff0000, v{XR+k}')
    A(f'v_add_f32 v{vT2}, v{FL}, v{FL+1}')
    for k in range(2, 40): A(f'v_add_f32 v{vT2}, v{vT2}, v{FL+k}')
    def wg_sum(dst, off):
        xsum_g(A, vT2, vT3)
        A(f'ds_write_b32 v{vRw}, v{vT2} offset:{off}')
        A('s_waitcnt lgkmcnt(0)')
        A('s_barrier')
        for k in range(4): A(f'ds_read_b32 v{dst+k}, v{vRr} offset:{off+64*k}')
        A('s_waitcnt lgkmcnt(0)')
        A(f'v_add_f32 v{dst}, v{dst}, v{dst+1}')
        A(f'v_add_f32 v{dst+2}, v{dst+2}, v{dst+3}')
        A(f'v_add_f32 v{dst}, v{dst}, v{dst+2}')
        A(f'v_mul_f32 v{dst}, {f2u(1.0/640):#x}, v{dst}')
    MN, VR = 104, 108
    wg_sum(MN, 0)
    A(f'v_sub_f32 v{vT3}, v{FL}, v{MN}')
    A(f'v_mul_f32 v{vT2}, v{vT3}, v{vT3}')
    for k in range(1, 40):
        A(f'v_sub_f32 v{vT3}, v{FL+k}, v{MN}')
        A(f'v_fmac_f32 v{vT2}, v{vT3}, v{vT3}')
    wg_sum(VR, 256)
    rbf(A, VR)
    A(f'v_add_f32 v{VR}, 0x3727c5ac, v{VR}')
    rbf(A, VR)
    A(f'v_sqrt_f32 v{VR}, v{VR}')
    A.nop(1)
    rbf(A, VR)
    A(f'v_rcp_f32 v{VR}, v{VR}')
    rbf(A, MN)
    A(f'v_mov_b32 v{MN+1}, v{MN}')
    A(f'v_mov_b32 v{VR+1}, v{VR}')
    YR = 136
    for k in range(20):
        A(f'v_pk_add_f32 v[{FL+2*k}:{FL+2*k+1}], v[{FL+2*k}:{FL+2*k+1}], v[{MN}:{MN+1}] neg_lo:[0,1] neg_hi:[0,1]')
        rbf2(A, FL+2*k, FL+2*k+1, vT3)
        A(f'v_pk_mul_f32 v[{FL+2*k}:{FL+2*k+1}], v[{FL+2*k}:{FL+2*k+1}], v[{VR}:{VR+1}]')
        A(f'v_cvt_pk_bf16_f32 v{YR+k}, v{FL+2*k}, v{FL+2*k+1}')
    A(f'v_add_u32 v{vT2}, 4096, v{vT1}')
    for t in range(5):
        A(f'buffer_store_dwordx4 v[{YR+4*t}:{YR+4*t+3}], v{vT1 if t < 4 else vT2}, {WS}, 0 offen offset:{1024*(t%4)} sc1')
    for k in range(20): A(f'v_mov_b32 v{XR+k}, v{XR2+k}')
    A(f'v_add_u32 v{vT1}, 20480, v{vT1}')
    A(f's_add_u32 s{sN}, s{sN}, 1')
    A(f's_cmp_lt_u32 s{sN}, 2')
    A('s_cbranch_scc1 ln_loop')
    if P.get('rot'): rot_verify(A, 52, 26, sTO, 'bulk_abort')
    for q in range(4): A(f'v_mov_b32 v{vH+q}, -1')
    X.set(vT1, X.sel(('lt', tid, 16), n_()*256 + tid*16 + WS_TAB, OOB))
    A(f'buffer_store_dwordx4 v[{vH}:{vH+3}], v{vT1}, {WS}, 0 offen sc1')
    A('s_waitcnt vmcnt(0)')
    A('s_barrier')
    if P['vhelp'] == 1:
        srd(A, sR2, 58, DM*4096*2)
        for i in range(3):
            X.set(vT1, X.sel(('lt', tid + 256*i, 640), (tid + 256*i)*8192 + (m_ >> 2)*256 + (m_ & 2)*64, OOB))
            A(f'buffer_load_dword v{116+i}, v{vT1}, {R2}, 0 offen')
    A(f's_cmp_lg_u32 s{sW}, 0')
    A('s_cbranch_scc1 b_arrived')
    arrive_s(A, 52, 26, 'b_arrived')
    A('s_branch b_arrived')
    A.label('b_even')
    if P['coop']:
        for i in range(3):
            X.set(112+i, X.sel(('lt', tid + 256*i, 640), (((m_ >> 1) & 15)*40 + ((tid + 256*i) >> 4))*8192 + (m_ >> 5)*2048 + (tid & 15)*128, OOB))
        for mm, ptr in enumerate((88, 90, 58)):
            srd(A, sR2, ptr, DM*4096*2)
            for i in range(3): A(f'buffer_load_dword v{116+3*mm+i}, v{112+i}, {R2}, 0 offen')
    for _ in range(P['bdel']): A('s_sleep 32')
    if P['lin']: lin_touch(A, X, tid, 160, sR2, (88, 90, 58, 56))
    A.label('b_arrived')
    RS = 4 if BR else 8
    def wst(sr, va, base, i):
        A(f's_add_u32 m0, s{sT0}, {base + 4096*i}')
        A(f's_add_u32 s3, s{sT1}, {i*4*RS*8192}')
        A(f'buffer_load_dwordx4 v{va}, {sr}, s3 offen lds')
    def stage(ptr, base):
        srd(A, sR2, ptr, DM*4096*2)
        A(f's_lshl_b32 s{sT0}, s{sW}, 10')
        A(f's_mul_i32 s{sT1}, s{sW}, {RS*8192}')
        for i in range(20): wst(R2, vD1, base, i)
    X.set(vD2, X.reg(vD1) ^ (128 if P['bil'] else 0))
    srd(A, sR2, 88, DM*4096*2)
    srd(A, sR3, 90, DM*4096*2)
    A(f's_lshl_b32 s{sT0}, s{sW}, 10')
    A(f's_mul_i32 s{sT1}, s{sW}, {RS*8192}')
    if P['bil']:
        for i in range(20): wst(R2, vD1, 0, i); wst(R3, vD2, 81920, i)
    else:
        for i in range(20): wst(R2, vD1, 0, i)
        for i in range(20): wst(R3, vD2, 81920, i)
    if not P['coop']:
        srd(A, sR2, 58, DM*4096*2)
        for i in range(3):
            X.set(vT1, X.sel(('lt', tid + 256*i, 640), (tid + 256*i)*8192 + (m_ >> 2)*256 + (m_ & 2)*64, OOB))
            A(f'buffer_load_dword v{112+i}, v{vT1}, {R2}, 0 offen')
    if P.get('rot'): rot_verify(A, 52, 26, sTO, 'bulk_abort')
    trb = lambda le: g*(2048 if BR else 1024) + ((L >> 2) & 3)*128 + (le ^ (((L >> 3) & 1) | ((g & 1) << 1)))*32 + (L & 3)*8
    toff = lambda t: (8192*(t % 10) + 512*(t // 10)) if BR else 4096*t
    thalf = 1024 if BR else 512
    def trload(abase, R0):
        A(f'v_add_u32 v{vT3}, 0x10000, v{R0}')
        for t in range(20):
            r, o = (R0, toff(t)) if toff(t) < 65536 else (vT3, toff(t) - 65536)
            A(f'ds_read_b64_tr_b16 a[{abase+4*t}:{abase+4*t+1}], v{r} offset:{o}')
            A(f'ds_read_b64_tr_b16 a[{abase+4*t+2}:{abase+4*t+3}], v{r} offset:{o+thalf}')
            if t % 4 == 3: A('s_waitcnt lgkmcnt(4)')
    X.set(vR1, trb(w & 1) + (w >> 1)*81920)
    X.set(vD3, trb((w & 1) + 2) + (w >> 1)*81920)
    A(f's_waitcnt vmcnt({0 if P["coop"] else 3})')
    A('s_barrier')
    trload(0, vR1)
    trload(160, vD3)
    A('s_waitcnt lgkmcnt(0)')
    A('s_barrier')
    stage(58, 81920)
    X.set(vR1, trb(w) + 81920)
    A(f's_and_b32 s{sT0}, s{sB}, 15')
    A(f's_mul_i32 s{sT0}, s{sT0}, 5')
    A(f'v_mov_b32 v{vT0}, s{sT0}')
    for u in range(5):
        uu = X.reg(vT0) + u
        X.set(vZu+u, (uu >> 1)*16384 + (uu & 1)*4096 + tid*16)
    A('s_waitcnt vmcnt(0)')
    A('s_barrier')
    trload(80, vR1)
    A(f's_lshr_b32 s{sZs}, s{sB}, 4')
    def fill(nph, flag):
        for q in range(4): A(f'v_mov_b32 v{vH+q}, -1')
        for ph in range(nph):
            A(f'v_readlane_b32 s{sT0}, v{vZt}, s{sZs}')
            if flag == 0:
                A(f's_cmp_lt_u32 s{sZs}, 3')
                A(f's_cselect_b32 s{sT0}, {OOB:#x}, s{sT0}')
            A(f's_add_u32 s{sZs}, s{sZs}, 8')
            A.nop(4)
            for u in range(5):
                A(f'buffer_store_dwordx4 v[{vH}:{vH+3}], v{vZu+u}, {WS}, s{sT0} offen sc1')
            if P['two']:
                A(f's_add_u32 s{sT0}, s{sT0}, 0x9000000')
                for u in range(5):
                    A(f'buffer_store_dwordx4 v[{vH}:{vH+3}], v{vZu+u}, {WS}, s{sT0} offen sc1')
        A('s_waitcnt vmcnt(0)')
        A('s_barrier')
        A(f's_lshl_b32 s{sT0}, s{sB}, 2')
        A(f's_add_u32 s{sT0}, s{sT0}, {WS_ZFLAG + 512*flag}')
        A(f'buffer_store_dword v{vZf}, v{vZf}, {WS}, s{sT0} offen sc1')
    A(f's_cmp_lt_u32 s{sW}, 2')
    A(f's_cselect_b32 s{sC2}, {f2u(QSCALE):#x}, 1.0')
    A(f's_mov_b32 s{sC2+1}, s{sC2}')
    tq = lambda: (((m_ ^ w) if P['bil'] else m_) & 2) + (w & 1)
    X.set(vGo, X.sel(('lt', w, 2), (c >> 3)*2048 + tq()*512 + (g*8 + (c & 7))*16 + 16384, tq()*1024 + L16))
    X.set(vXo, ((m_ & 2)*2 + w)*1024 + L16 + 8192)
    X.set(vRr, X.sel(('eq', tid, 0), m_*4 + WS_QP, OOB))
    A(f's_and_b32 s3, s{sM}, 1')
    A(f's_mul_i32 s{sO1}, s3, 40960')
    A(f's_mul_i32 s{sLB}, s{sW}, 5120')
    A(f's_add_u32 s{sO1}, s{sO1}, {40960*P["ns0"]}')
    A(f's_add_u32 s{sO1}, s{sO1}, s{sLB}')
    A(f's_mul_i32 s{sO2}, s3, {XSEG}')
    A(f's_lshr_b32 s3, s{sM}, 2')
    A(f's_mul_i32 s3, s3, {XH}')
    A(f's_add_u32 s{sO2}, s{sO2}, s3')
    A(f's_add_u32 s{sO2}, s{sO2}, {WS_KX + XSEG*P["ns0"]}')
    A(f's_mov_b32 s{sN}, {P["ns0"]//2}')
    RG, XA, PK, PV = 40, 72, 84, 88
    def x_dma(buf, adv):
        o = [f's_add_u32 m0, s{sLB}, {20480*buf}', f's_add_u32 s{sT0}, s{sO1}, 4096']
        o += [f'buffer_load_dwordx4 v{vL16}, {WS}, s{sO1} offen offset:{1024*k} sc1 lds' for k in range(4)]
        o += [f's_add_u32 m0, s{sLB}, {20480*buf + 4096}', f's_add_u32 s{sO1}, s{sO1}, {adv}',
              f'buffer_load_dwordx4 v{vL16}, {WS}, s{sT0} offen sc1 lds']
        return o
    def x_tile(tt, young):
        A(f's_waitcnt vmcnt({young})')
        A('s_barrier')
        fl = x_dma(1 - tt, 61440 if tt == 0 else 20480)
        if tt == 1:
            fl = [f'v_mov_b32 v{vT0}, s{sN}', f'buffer_store_dword v{vT0}, v{vRr}, {WS}, 0 offen sc1'] + fl
        o = []
        rd = lambda t: f'ds_read_b128 v[{RG+4*(t%8)}:{RG+4*(t%8)+3}], v{vL16} offset:{20480*tt + 1024*t}'
        for t in range(6): o.append(rd(t))
        for t in range(20):
            o.append(f's_waitcnt lgkmcnt({min(20, t + 6) - t - 1})')
            f = v(RG + 4*(t % 8), 4)
            o.append(M32(v(XA, 4), a(4*t, 4), f, '0' if t == 0 else v(XA, 4)))
            o.append(M32(v(XA+4, 4), a(160+4*t, 4), f, '0' if t == 0 else v(XA+4, 4)))
            o.append(M32(v(XA+8, 4), f, a(80+4*t, 4), '0' if t == 0 else v(XA+8, 4)))
            if t + 6 < 20: o.append(rd(t + 6))
        emit(A, weave(o, fl, per=1))
        if tt: A(f's_add_u32 s{sT1}, s{sO2}, 4096')
        A.nop(6)
        for r in range(0, 8, 2): A(f'v_pk_mul_f32 v[{XA+r}:{XA+r+1}], v[{XA+r}:{XA+r+1}], s[{sC2}:{sC2+1}]')
        for r in range(4): A(f'v_cvt_pk_bf16_f32 v{PK+r}, v{XA+2*r}, v{XA+2*r+1}')
        A(f'buffer_store_dwordx4 v[{PK}:{PK+3}], v{vGo}, {WS}, s{sT1 if tt else sO2} offen sc1')
        for r in range(2): A(f'v_cvt_pk_bf16_f32 v{PV+2*tt+r}, v{XA+8+2*r}, v{XA+8+2*r+1}')
        if tt:
            A(f'buffer_store_dwordx4 v[{PV}:{PV+3}], v{vXo}, {WS}, s{sO2} offen sc1')
            A(f's_add_u32 s{sO2}, s{sO2}, {2*XSEG}')
            A(f's_add_u32 s{sN}, s{sN}, 1')
    wait_start(A, R4, vT0, 26, sTO, 'b_start', 'bulk_abort', sleep=2)
    emit(A, x_dma(0, 20480))
    x2_table(A, X, L, vZt, 26, 54, vT1)
    st()
    if P['ns0']: fill(1, 0)
    A('s_waitcnt vmcnt(0) lgkmcnt(0)')
    A.label('q_loop')
    x_tile(0, 2); x_tile(1, 1)
    A(f's_cmp_eq_u32 s{sN}, {P["ns0"]//2 + 1}')
    A('s_cbranch_scc1 q_fill0')
    A(f's_cmp_eq_u32 s{sN}, 6')
    A('s_cbranch_scc1 q_fill')
    A(f's_cmp_eq_u32 s{sN}, 16')
    A('s_cbranch_scc1 q_fill2')
    A.label('q_back')
    A(f's_cmp_lt_u32 s{sN}, 32')
    A('s_cbranch_scc1 q_loop')
    A('s_branch q_done')
    A.label('q_fill0')
    A('s_waitcnt vmcnt(0)')
    A('s_barrier')
    A(f'v_mov_b32 v{vT0}, s{sN}')
    A(f'buffer_store_dword v{vT0}, v{vRr}, {WS}, 0 offen sc1')
    if not P['ns0']: fill(1, 0)
    A('s_branch q_back')
    A.label('q_fill')
    fill(2, 1)
    A('s_branch q_back')
    A.label('q_fill2')
    fill(5, 2)
    A('s_branch q_back')
    A.label('q_done')
    A('s_waitcnt vmcnt(0)')
    A('s_barrier')
    A(f'v_mov_b32 v{vT0}, 64')
    A(f'buffer_store_dword v{vT0}, v{vRr}, {WS}, 0 offen sc1')
    st()
    srd(A, sR1, 44, DM*FF*2)
    srd(A, sR2, 46, DM*FF*2)
    srd(A, sR3, 48, FF*DM*2)
    jj, qq = (lambda: b >> 2), (lambda: b & 3)
    X.set(vT2, X.sel(('lt', tid, 160), ((tid >> 3)*32 + jj())*3456 + ((tid & 7)*4 + qq())*128, OOB))
    A(f'buffer_load_dword v{vWF}, v{vT2}, {R1}, 0 offen')
    A(f'buffer_load_dword v{vWF+1}, v{vT2}, {R2}, 0 offen')
    X.set(vT3, (tid*6554) >> 16)
    rr = X.reg(vT3)
    X.set(vT2, X.sel(('lt', tid, 140), (((rr >> 1)*4 + qq())*64 + (rr & 1)*32 + jj())*1280 + (tid - rr*10)*128, OOB))
    A(f'buffer_load_dword v{vWF+2}, v{vT2}, {R3}, 0 offen')
    A(f's_and_b32 s{sTile}, s{sB}, 0x7c')
    A(f's_add_u32 s{sTile}, s{sTile}, s{sW}')
    A(f's_mul_i32 s{sT0}, s{sTile}, 20480')
    for t in range(20):
        if t and t % 4 == 0: A(f's_add_u32 s{sT0}, s{sT0}, 4096')
        A(f'buffer_load_dwordx4 a[{4*t}:{4*t+3}], v{vL16}, {WS}, s{sT0} offen offset:{1024*(t%4)} sc1')
    st()
    X.set(vD1, (w*8 + (L >> 3))*3456 + ((((L >> 1) & 3) ^ (((L >> 4) & 1) | ((w & 1) << 1)))*2 + (L & 1))*16)
    for i, dst in enumerate((vD2, vD3)):
        X.set(dst, (w*8 + (L >> 4) + 4*i)*1280 + ((((L >> 1) & 7) ^ ((L >> 4) + 4*i))*2 + (L & 1))*16)
    for tl in range(4):
        X.set(vR1b+tl, (g*8 + ((L >> 2) & 3))*128 + ((((L >> 3) & 1) | ((g & 1) << 1)) ^ tl)*32 + (L & 3)*8)
        X.set(vR1b+4+tl, X.reg(vR1b+tl) + 65536)
    for n in range(8):
        X.set(vR2n+n, (g*4 + ((L >> 2) & 3))*256 + ((((g & 1)*4 + ((L >> 2) & 3)) ^ n)*32) + (L & 3)*8)
        X.set(vR2n+8+n, X.reg(vR2n+n) + 65536)
    A(f'v_mov_b32 v{vT0}, 0')
    for r in range(160): A(f'v_accvgpr_write_b32 a{80+r}, v{vT0}')
    A(f's_cmp_lt_u32 s{sQ}, 3')
    A(f's_cselect_b32 s{sN}, 7, 6')
    A(f's_lshl_b32 s{sO1}, s{sQ}, 7')
    A(f's_mul_i32 s{sO2}, s{sQ}, {64*1280}')
    A(f's_lshl_b32 s{sLB}, s{sW}, 10')
    A(f's_lshl_b32 s{sRB}, s{sW}, 11')
    NS, NC = 15, 30
    def issue(ci, nxt):
        o = []; lb = (ci % NS) * 8192
        if ci < 20:
            for m, sr in enumerate((R1, R2)):
                o.append(f's_add_u32 m0, s{sLB}, {lb + m*4096}')
                o.append(f's_add_u32 s{sT0}, s{sO1}, {ci*32*3456 + nxt*512}')
                o.append(f'buffer_load_dwordx4 v{vD1}, {sr}, s{sT0} offen lds')
        else:
            hb, cc = (ci - 20) // 5, (ci - 20) % 5
            for i in range(2):
                o.append(f's_add_u32 m0, s{sRB}, {lb + i*1024}')
                o.append(f's_add_u32 s{sT0}, s{sO2}, {hb*32*1280 + cc*256}')
                o.append(f'buffer_load_dwordx4 v{vD2 if i == 0 else vD3}, {R3}, s{sT0} offen lds')
        return o
    A('s_waitcnt vmcnt(0)')
    for ci in range(NS - 1): emit(A, issue(ci, 0))
    A.label('ffn_loop')
    for ci in range(NC):
        A(f's_waitcnt vmcnt({2*(NS-2)})')
        A('s_barrier')
        lb = (ci % NS) * 8192
        hi = 1 if lb >= 65536 else 0
        lb -= hi*65536
        nx = issue((ci + NS - 1) % NC, 1 if ci + NS - 1 >= NC else 0)
        mf = []
        if ci < 20:
            for n in range(8):
                m, tl = n >> 2, n & 3
                r = vWF + 4*n
                A(f'ds_read_b64_tr_b16 v[{r}:{r+1}], v{vR1b+4*hi+tl} offset:{lb + m*4096}')
                A(f'ds_read_b64_tr_b16 v[{r+2}:{r+3}], v{vR1b+4*hi+tl} offset:{lb + m*4096 + 512}')
            for n in range(8):
                mf.append(f's_waitcnt lgkmcnt({2*(7-n)})')
                mf.append(M32(v(vA1+4*n, 4), v(vWF+4*n, 4), a(4*ci, 4), '0' if ci == 0 else v(vA1+4*n, 4)))
        else:
            hb, cc = (ci - 20) // 5, (ci - 20) % 5
            for n in range(8):
                r = vWF + 4*n
                A(f'ds_read_b64_tr_b16 v[{r}:{r+1}], v{vR2n+8*hi+n} offset:{lb}')
                A(f'ds_read_b64_tr_b16 v[{r+2}:{r+3}], v{vR2n+8*hi+n} offset:{lb + 4096}')
            if ci == 20:
                for tl in range(4):
                    for r in (0, 2):
                        gx, ux = vA1 + 4*tl + r, vA1 + 16 + 4*tl + r
                        rbf2(A, gx, gx+1, vT0); rbf2(A, ux, ux+1, vT0)
                        silu(A, gx, vT0); silu(A, gx+1, vT1)
                        rbf2(A, gx, gx+1, vT0)
                        A(f'v_mul_f32 v{gx}, v{gx}, v{ux}')
                        A(f'v_mul_f32 v{gx+1}, v{gx+1}, v{ux+1}')
                        A(f'v_cvt_pk_bf16_f32 v{vH+2*tl+r//2}, v{gx}, v{gx+1}')
                A('s_nop 0')
            for n in range(8):
                ct = cc*8 + n
                mf.append(f's_waitcnt lgkmcnt({2*(7-n)})')
                mf.append(M32(a(80+4*ct, 4), v(vWF+4*n, 4), v(vH+4*hb, 4), a(80+4*ct, 4)))
        emit(A, weave(mf, nx, per=1))
    A(f's_add_u32 s{sO1}, s{sO1}, 512')
    A(f's_add_u32 s{sO2}, s{sO2}, {256*1280}')
    A(f's_sub_u32 s{sN}, s{sN}, 1')
    A(f's_cmp_lg_u32 s{sN}, 0')
    A('s_cbranch_scc1 ffn_loop')
    A('s_waitcnt vmcnt(0)')
    A('s_barrier')
    st()
    A(f's_lshl_b32 s{sT0}, s{sQ}, 7')
    A(f's_add_u32 s{sT0}, s{sT0}, s{sTile}')
    A(f's_mul_i32 s{sT0}, s{sT0}, 40960')
    A(f's_add_u32 s{sT0}, s{sT0}, {WS_G}')
    for ct in range(40):
        if ct and ct % 4 == 0: A(f's_add_u32 s{sT0}, s{sT0}, 4096')
        A(f'buffer_store_dwordx4 a[{80+4*ct}:{80+4*ct+3}], v{vL16}, {WS}, s{sT0} offen offset:{1024*(ct%4)} sc1')
    A('s_waitcnt vmcnt(0)')
    A('s_barrier')
    A(f's_lshl_b32 s{sT0}, s{sB}, 2')
    A(f's_add_u32 s{sT0}, s{sT0}, {WS_GFLAG}')
    A(f'buffer_store_dword v{vZf}, v{vZf}, {WS}, s{sT0} offen sc1')
    A(f's_cmp_ge_u32 s{sB}, 120')
    A('s_cbranch_scc1 bulk_end')
    A(f's_mul_i32 s{sTile}, s{sB}, 3277')
    A(f's_lshr_b32 s{sTile}, s{sTile}, 16')
    A(f's_mul_i32 s3, s{sTile}, 20')
    A(f's_sub_u32 s{sNG}, s{sB}, s3')
    srd(A, sR1, 56, 4096*DM*2)
    srd(A, sR2, 60, S_TOK*DM*2)
    srd(A, sR3, 50, S_TOK*DM*2)
    X.set(vD1, (L >> 2)*1280 + (L & 3)*16)
    X.set(vR1, w*40960 + (g*4 + ((L >> 2) & 3))*64 + (L & 3)*8)
    A(f's_mul_i32 s{sO1}, s{sW}, {1024*1280}')
    A(f's_lshl_b32 s3, s{sNG}, 6')
    A(f's_add_u32 s{sO1}, s{sO1}, s3')
    A(f's_mul_i32 s{sLB}, s{sW}, 40960')
    for rnd in range(2):
        for i in range(32):
            A(f's_add_u32 m0, s{sLB}, {1024*i}')
            A(f's_add_u32 s{sT1}, s{sO1}, {(rnd*512 + i*16)*1280}')
            A(f'buffer_load_dwordx4 v{vD1}, {R1}, s{sT1} offen lds')
        A('s_waitcnt vmcnt(0)')
        for t in range(16):
            for tl in range(2):
                r = ((rnd*16 + t)*2 + tl)*4
                A(f'ds_read_b64_tr_b16 a[{r}:{r+1}], v{vR1} offset:{t*2048 + tl*32}')
                A(f'ds_read_b64_tr_b16 a[{r+2}:{r+3}], v{vR1} offset:{t*2048 + tl*32 + 1024}')
            if t % 2 == 1: A('s_waitcnt lgkmcnt(4)')
        A('s_waitcnt lgkmcnt(0)')
    X.set(vRw, w*2048 + L16)
    X.set(vRr, (w & 1)*1024 + L16)
    X.set(vD2, w*32768 + L16)
    X.set(vGo, (w & 1)*1024 + L16)
    X.set(vXo, c*1280 + (w & 1)*32 + g*8)
    if stamps: X.set(vD3, X.sel(('lt', tid, 8), tid*4, OOB))
    spin_flags(A, 'g_poll', 'g_ok', WS_GFLAG, 8)
    A.label('g_ok')
    A('s_barrier')
    st()
    A(f's_mov_b32 s{sRB}, 0')
    A.label('op_loop')
    A(f's_lshr_b32 s{sT0}, s{sTile}, 1')
    A(f's_cmp_ge_u32 s{sT0}, 62')
    A('s_cbranch_scc1 op_final')
    A(f's_lshl_b32 s{sT0}, s{sT0}, 7')
    A(f's_add_u32 s{sT0}, s{sT0}, {WS_PROG}')
    A(f'v_mov_b32 v{vT2}, 0')
    A.label('p_poll')
    A(f'buffer_load_dword v{vT0}, v{vT2}, {WS}, s{sT0} offen sc1')
    A('s_waitcnt vmcnt(0)')
    A(f'v_cmp_eq_u32 vcc, -1, v{vT0}')
    A('s_cbranch_vccz op_go')
    A('s_sleep 8')
    A(f's_sub_u32 s{sTO}, s{sTO}, 1')
    A('s_cbranch_scc0 p_poll')
    A('s_branch bulk_abort')
    spin_flags(A, 'op_final', 'op_go', WS_FLAG, P.get('fsl', 2))
    def o_loads(add):
        A(f's_lshl_b32 s{sT0}, s{sTile}, 17')
        A(f's_add_u32 s{sT0}, s{sT0}, {WS_OF + add*131072}')
        for t in range(32):
            if t and t % 4 == 0: A(f's_add_u32 s{sT0}, s{sT0}, 4096')
            A(f'buffer_load_dwordx4 v[{vOF+4*t}:{vOF+4*t+3}], v{vD2}, {WS}, s{sT0} offen offset:{1024*(t%4)} sc1')
    A.label('op_go')
    o_loads(0)
    A.label('op_mid')
    A(f's_mul_i32 s{sT0}, s{sTile}, 20480')
    A(f's_lshl_b32 s{sT1}, s{sNG}, 10')
    A(f's_add_u32 s{sT1}, s{sT1}, s{sT0}')
    A(f's_lshl_b32 s{sT1}, s{sT1}, 1')
    A(f's_add_u32 s{sT1}, s{sT1}, {WS_G}')
    for q in range(4):
        A(f'buffer_load_dwordx4 v[{vY+4*q}:{vY+4*q+3}], v{vGo}, {WS}, s{sT1} offen sc1')
        if q < 3: A(f's_add_u32 s{sT1}, s{sT1}, {128*40960}')
    A(f's_lshl_b32 s{sT1}, s{sNG}, 6')
    A(f's_add_u32 s{sO2}, s{sT1}, s{sT0}')
    A(f'buffer_load_dwordx2 v[{vH+2}:{vH+3}], v{vXo}, {R2}, s{sO2} offen')
    A(f's_add_u32 s{sT0}, s{sTile}, 6')
    A(f's_lshr_b32 s{sT0}, s{sT0}, 1')
    A(f's_min_u32 s{sT0}, s{sT0}, 63')
    A(f's_lshl_b32 s{sT0}, s{sT0}, 7')
    A(f's_add_u32 s{sT0}, s{sT0}, {WS_PROG}')
    A(f'v_mov_b32 v{vT2}, 0')
    A(f'buffer_load_dword v{vH}, v{vT2}, {WS}, s{sT0} offen sc1')
    for t in range(32):
        A(f's_waitcnt vmcnt({37-t})')
        for tl in range(2):
            A(M32(v(vA1+4*tl, 4), a((2*t+tl)*4, 4), v(vOF+4*t, 4), '0' if t == 0 else v(vA1+4*tl, 4)))
    A(f'v_add_u32 v{vT2}, s{sRB}, v{vRw}')
    A(f'v_add_u32 v{vT3}, s{sRB}, v{vRr}')
    A('s_waitcnt vmcnt(0)')
    A(f'v_readfirstlane_b32 s{sN}, v{vH}')
    A.nop(4)
    A(f'ds_write_b128 v{vT2}, v[{vA1}:{vA1+3}]')
    A(f'ds_write_b128 v{vT2}, v[{vA1+4}:{vA1+7}] offset:1024')
    A(f's_xor_b32 s{sRB}, s{sRB}, 8192')
    A(f's_cmp_eq_u32 s{sN}, -1')
    A('s_cbranch_scc1 op_nopf')
    o_loads(6)
    A.label('op_nopf')
    A('s_waitcnt lgkmcnt(0)')
    A('s_barrier')
    A(f's_cmp_ge_u32 s{sW}, 2')
    A('s_cbranch_scc1 op_next')
    for p in range(4): A(f'ds_read_b128 v[{vWF+4*p}:{vWF+4*p+3}], v{vT3} offset:{2048*p}')
    A('s_waitcnt lgkmcnt(0)')
    for r in range(4):
        for bs in (vWF, vY):
            A(f'v_add_f32 v{bs+r}, v{bs+r}, v{bs+4+r}')
            A(f'v_add_f32 v{bs+8+r}, v{bs+8+r}, v{bs+12+r}')
            A(f'v_add_f32 v{bs+r}, v{bs+r}, v{bs+8+r}')
    for r in (0, 2):
        s0, s1 = vWF+r, vWF+r+1
        rbf2(A, vY+r, vY+r+1, vT0)
        silu(A, vY+r, vT0); silu(A, vY+r+1, vT1)
        rbf2(A, vY+r, vY+r+1, vT0)
        rbf2(A, s0, s1, vT0)
        A(f'v_mul_f32 v{s0}, v{s0}, v{vY+r}')
        A(f'v_mul_f32 v{s1}, v{s1}, v{vY+r+1}')
        rbf2(A, s0, s1, vT0)
        A(f'v_lshlrev_b32 v{vT0}, 16, v{vH+2+r//2}')
        A(f'v_and_b32 v{vT1}, 0xffff0000, v{vH+2+r//2}')
        A(f'v_add_f32 v{s0}, v{s0}, v{vT0}')
        A(f'v_add_f32 v{s1}, v{s1}, v{vT1}')
        A(f'v_cvt_pk_bf16_f32 v{vWF+16+r//2}, v{s0}, v{s1}')
    A(f'buffer_store_dwordx2 v[{vWF+16}:{vWF+17}], v{vXo}, {R3}, s{sO2} offen{P.get("outfl", "")}')
    A.label('op_next')
    A(f's_add_u32 s{sTile}, s{sTile}, 6')
    A(f's_cmp_lg_u32 s{sN}, -1')
    A('s_cbranch_scc1 op_mid')
    A(f's_cmp_lt_u32 s{sTile}, 128')
    A('s_cbranch_scc1 op_loop')
    if stamps:
        A('s_waitcnt vmcnt(0)')
        st()
        for q in range(nst[0]): A(f'v_writelane_b32 v{vT0}, s{70+2*q}, {q}')
        A(f's_lshl_b32 s{sT0}, s{sB}, 6')
        A(f's_add_u32 s{sT0}, s{sT0}, {WS_DBG + 0x400000}')
        A(f'buffer_store_dword v{vT0}, v{vD3}, {WS}, s{sT0} offen')
        if P.get('dbgout'):
            A(f'v_mov_b32 v{vT0}, s{70+2*(nst[0]-1)}')
            A(f'buffer_atomic_umax v{vT0}, v{vZf}, {R4}, 0 offen offset:8')
    A('s_endpgm')
    A.label('bulk_abort')
    A(f'v_mov_b32 v{vT0}, 9')
    A(f'v_mov_b32 v{vT1}, 4')
    A(f'buffer_store_dword v{vT0}, v{vT1}, {R4}, 0 offen')
    A.label('bulk_end')
    A('s_endpgm')
```

```python
from k7_common import *
LOG2E = math.log2(math.e)
sWS, sR1, sR2, sR3, sR4 = 4, 8, 12, 16, 20
sM = 92
sC2 = 24
sW, sB, sN, sO1, sO2, sLB, sT0, sT1, sTO, sTile, sNG, sRB, sZs, sQ = 30, 31, 32, 33, 34, 35, 36, 37, 38, 39, 40, 41, 42, 43
WS = f's[{sWS}:{sWS+3}]'
R1, R2, R3, R4 = [f's[{r}:{r+3}]' for r in (sR1, sR2, sR3, sR4)]
vL16, vD1, vD2, vD3, vR1, vT0, vT1, vT2, vT3 = 1, 2, 3, 4, 5, 6, 7, 8, 9
vGo, vXo, vRw, vRr, vFl, vZt, vZf = 10, 11, 12, 13, 14, 15, 16
vZu = 17
vH = 24
vA1 = 32
vWF = 64
vY = 84
vR1b = 100
vR2n = 112
vOF = 112
F = 244

def rbf2(A, x, y, t):
    A(f'v_cvt_pk_bf16_f32 v{t}, v{x}, v{y}')
    A(f'v_lshlrev_b32 v{x}, 16, v{t}')
    A(f'v_and_b32 v{y}, 0xffff0000, v{t}')
def rbf(A, x):
    A(f'v_cvt_pk_bf16_f32 v{x}, v{x}, v{x}')
    A(f'v_and_b32 v{x}, 0xffff0000, v{x}')
def silu(A, x, t):
    A(f'v_mul_f32 v{t}, {f2u(-LOG2E):#x}, v{x}')
    A(f'v_exp_f32 v{t}, v{t}')
    A('s_nop 0')
    A(f'v_add_f32 v{t}, 1.0, v{t}')
    A(f'v_rcp_f32 v{t}, v{t}')
    A('s_nop 0')
    A(f'v_mul_f32 v{x}, v{x}, v{t}')
def xsum_g(A, x, t):
    for sw in ('16', '32'):
        A(f'v_mov_b32 v{t}, v{x}')
        A.nop(2)
        A(f'v_permlane{sw}_swap_b32 v{t}, v{x}')
        A.nop(1)
        A(f'v_add_f32 v{x}, v{x}, v{t}')
def spin_flags(A, lab, ok, off, sleep):
    A.label(lab)
    A(f's_mov_b32 s{sT0}, {off}')
    A(f'buffer_load_dwordx2 v[{vT0}:{vT1}], v{vFl}, {WS}, s{sT0} offen sc1')
    A('s_waitcnt vmcnt(0)')
    emit(A, check_sent([vT0, vT1], vT0))
    A(f's_cbranch_vccz {ok}')
    A(f's_sleep {sleep}')
    A(f's_sub_u32 s{sTO}, s{sTO}, 1')
    A(f's_cbranch_scc0 {lab}')
    A('s_branch bulk_abort')

def gen_bulk(A, stamps, P):
    nst = [0]
    def st():
        if stamps:
            A(f's_memrealtime s[{70+2*nst[0]}:{71+2*nst[0]}]'); A('s_waitcnt lgkmcnt(0)'); nst[0] += 1
    A.label('bulk_entry')
    st()
    if P['cpf']: code_prefetch(A, 252, P['cpfb'])
    A('s_load_dwordx4 s[44:47], s[0:1], 64')
    A('s_load_dwordx4 s[48:51], s[0:1], 80')
    A('s_load_dwordx4 s[52:55], s[0:1], 96')
    A('s_load_dwordx2 s[56:57], s[0:1], 40')
    A('s_load_dwordx4 s[60:63], s[0:1], 0')
    A('s_load_dwordx4 s[88:91], s[0:1], 16')
    A('s_load_dwordx2 s[58:59], s[0:1], 32')
    X = VX(A, 200, F, 3)
    A(f'v_lshrrev_b32 v{F+3}, 6, v0')
    A(f'v_and_b32 v{F}, 63, v0')
    A(f'v_readfirstlane_b32 s{sW}, v{F+3}')
    A(f'v_bfe_u32 v{F+1}, v0, 4, 2')
    A(f'v_and_b32 v{F+2}, 15, v0')
    A(f's_lshr_b32 s{sB}, s2, 3')
    A(f's_lshl_b32 s{sB}, s{sB}, 2')
    A(f's_and_b32 s{sQ}, s2, 3')
    A(f's_add_u32 s{sB}, s{sB}, s{sQ}')
    A(f'v_mov_b32 v{F+4}, s{sB}')
    A(f's_lshl_b32 s{sM}, s{sQ}, 5')
    A(f's_lshr_b32 s3, s{sB}, 2')
    A(f's_add_u32 s{sM}, s{sM}, s3')
    A(f'v_mov_b32 v{F+5}, s{sM}')
    L, g, c, w, b, m_ = [X.reg(F+i) for i in range(6)]
    tid = X.reg(0)
    A(f's_mov_b32 s{sTO}, 0x400000')
    X.set(vL16, L*16)
    L16 = X.reg(vL16)
    n_ = lambda: m_ >> 1
    X.set(vT0, (n_()*32 + c)*1280 + w*320 + g*16)
    BR = P['brm']
    if BR: X.set(vD1, (((L >> 3) & 3) + (L >> 5)*320)*8192 + ((((L >> 1) & 3) ^ (((L >> 4) & 1) | (w & 2)))*2 + (L & 1))*16 + (m_ >> 2)*256 + (m_ & 2)*64)
    else: X.set(vD1, (L >> 3)*8192 + ((((L >> 1) & 3) ^ (((L >> 4) & 1) | ((w & 1) << 1)))*2 + (L & 1))*16 + (m_ >> 2)*256 + (m_ & 2)*64)
    A('s_waitcnt lgkmcnt(0)')
    srd(A, sWS, 54, WS_SIZE)
    srd(A, sR1, 60, S_TOK*DM*2)
    srd(A, sR4, 52, 256)
    X.set(vZf, X.sel(('eq', tid, 0), 0, OOB))
    X.set(vFl, L*8)
    A(f's_and_b32 s3, s{sM}, 1')
    A('s_cbranch_scc0 b_even')
    XR, XR2, FL = 32, 112, 64
    A('s_movk_i32 s26, 0x5000')
    for t in range(5):
        A(f'buffer_load_dwordx4 v[{XR+4*t}:{XR+4*t+3}], v{vT0}, {R1}, 0 offen offset:{64*t}')
    for t in range(5):
        A(f'buffer_load_dwordx4 v[{XR2+4*t}:{XR2+4*t+3}], v{vT0}, {R1}, s26 offen offset:{64*t}')
    if P['lin2']:
        for i in range(3):
            X.set(160+i, X.sel(('lt', tid + 256*i, 640), n_()*81920 + (tid + 256*i)*128, OOB))
        for mm, ptr in enumerate((88, 90, 58, 56)):
            srd(A, sR2, ptr, DM*4096*2)
            for i in range(3): A(f'buffer_load_dword v{164+3*mm+i}, v{160+i}, {R2}, 0 offen')
    if P['vhelp'] == 2:
        srd(A, sR2, 58, DM*4096*2)
        for i in range(3):
            X.set(vT1, X.sel(('lt', tid + 256*i, 640), (tid + 256*i)*8192 + (m_ >> 2)*256 + (m_ & 2)*64, OOB))
            A(f'buffer_load_dword v{160+i}, v{vT1}, {R2}, 0 offen')
    X.set(vT1, n_()*40960 + w*5120 + L16 + WS_XN)
    X.set(vRw, w*64 + c*4)
    X.set(vRr, c*4)
    A(f's_mov_b32 s{sN}, 0')
    A(f's_waitcnt vmcnt({3 if P["vhelp"] == 2 else 0})')
    A.label('ln_loop')
    for k in range(20):
        A(f'v_lshlrev_b32 v{FL+2*k}, 16, v{XR+k}')
        A(f'v_and_b32 v{FL+2*k+1}, 0xffff0000, v{XR+k}')
    A(f'v_add_f32 v{vT2}, v{FL}, v{FL+1}')
    for k in range(2, 40): A(f'v_add_f32 v{vT2}, v{vT2}, v{FL+k}')
    def wg_sum(dst, off):
        xsum_g(A, vT2, vT3)
        A(f'ds_write_b32 v{vRw}, v{vT2} offset:{off}')
        A('s_waitcnt lgkmcnt(0)')
        A('s_barrier')
        for k in range(4): A(f'ds_read_b32 v{dst+k}, v{vRr} offset:{off+64*k}')
        A('s_waitcnt lgkmcnt(0)')
        A(f'v_add_f32 v{dst}, v{dst}, v{dst+1}')
        A(f'v_add_f32 v{dst+2}, v{dst+2}, v{dst+3}')
        A(f'v_add_f32 v{dst}, v{dst}, v{dst+2}')
        A(f'v_mul_f32 v{dst}, {f2u(1.0/640):#x}, v{dst}')
    MN, VR = 104, 108
    wg_sum(MN, 0)
    A(f'v_sub_f32 v{vT3}, v{FL}, v{MN}')
    A(f'v_mul_f32 v{vT2}, v{vT3}, v{vT3}')
    for k in range(1, 40):
        A(f'v_sub_f32 v{vT3}, v{FL+k}, v{MN}')
        A(f'v_fmac_f32 v{vT2}, v{vT3}, v{vT3}')
    wg_sum(VR, 256)
    rbf(A, VR)
    A(f'v_add_f32 v{VR}, 0x3727c5ac, v{VR}')
    rbf(A, VR)
    A(f'v_sqrt_f32 v{VR}, v{VR}')
    A.nop(1)
    rbf(A, VR)
    A(f'v_rcp_f32 v{VR}, v{VR}')
    rbf(A, MN)
    A(f'v_mov_b32 v{MN+1}, v{MN}')
    A(f'v_mov_b32 v{VR+1}, v{VR}')
    YR = 136
    for k in range(20):
        A(f'v_pk_add_f32 v[{FL+2*k}:{FL+2*k+1}], v[{FL+2*k}:{FL+2*k+1}], v[{MN}:{MN+1}] neg_lo:[0,1] neg_hi:[0,1]')
        rbf2(A, FL+2*k, FL+2*k+1, vT3)
        A(f'v_pk_mul_f32 v[{FL+2*k}:{FL+2*k+1}], v[{FL+2*k}:{FL+2*k+1}], v[{VR}:{VR+1}]')
        A(f'v_cvt_pk_bf16_f32 v{YR+k}, v{FL+2*k}, v{FL+2*k+1}')
    A(f'v_add_u32 v{vT2}, 4096, v{vT1}')
    for t in range(5):
        A(f'buffer_store_dwordx4 v[{YR+4*t}:{YR+4*t+3}], v{vT1 if t < 4 else vT2}, {WS}, 0 offen offset:{1024*(t%4)} sc1')
    for k in range(20): A(f'v_mov_b32 v{XR+k}, v{XR2+k}')
    A(f'v_add_u32 v{vT1}, 20480, v{vT1}')
    A(f's_add_u32 s{sN}, s{sN}, 1')
    A(f's_cmp_lt_u32 s{sN}, 2')
    A('s_cbranch_scc1 ln_loop')
    if P.get('rot'): rot_verify(A, 52, 26, sTO, 'bulk_abort')
    for q in range(4): A(f'v_mov_b32 v{vH+q}, -1')
    X.set(vT1, X.sel(('lt', tid, 16), n_()*256 + tid*16 + WS_TAB, OOB))
    A(f'buffer_store_dwordx4 v[{vH}:{vH+3}], v{vT1}, {WS}, 0 offen sc1')
    A('s_waitcnt vmcnt(0)')
    A('s_barrier')
    if P['vhelp'] == 1:
        srd(A, sR2, 58, DM*4096*2)
        for i in range(3):
            X.set(vT1, X.sel(('lt', tid + 256*i, 640), (tid + 256*i)*8192 + (m_ >> 2)*256 + (m_ & 2)*64, OOB))
            A(f'buffer_load_dword v{116+i}, v{vT1}, {R2}, 0 offen')
    A(f's_cmp_lg_u32 s{sW}, 0')
    A('s_cbranch_scc1 b_arrived')
    arrive_s(A, 52, 26, 'b_arrived')
    A('s_branch b_arrived')
    A.label('b_even')
    if P['coop']:
        for i in range(3):
            X.set(112+i, X.sel(('lt', tid + 256*i, 640), (((m_ >> 1) & 15)*40 + ((tid + 256*i) >> 4))*8192 + (m_ >> 5)*2048 + (tid & 15)*128, OOB))
        for mm, ptr in enumerate((88, 90, 58)):
            srd(A, sR2, ptr, DM*4096*2)
            for i in range(3): A(f'buffer_load_dword v{116+3*mm+i}, v{112+i}, {R2}, 0 offen')
    for _ in range(P['bdel']): A('s_sleep 32')
    if P['lin']: lin_touch(A, X, tid, 160, sR2, (88, 90, 58, 56))
    A.label('b_arrived')
    RS = 4 if BR else 8
    def wst(sr, va, base, i):
        A(f's_add_u32 m0, s{sT0}, {base + 4096*i}')
        A(f's_add_u32 s3, s{sT1}, {i*4*RS*8192}')
        A(f'buffer_load_dwordx4 v{va}, {sr}, s3 offen lds')
    def stage(ptr, base):
        srd(A, sR2, ptr, DM*4096*2)
        A(f's_lshl_b32 s{sT0}, s{sW}, 10')
        A(f's_mul_i32 s{sT1}, s{sW}, {RS*8192}')
        for i in range(20): wst(R2, vD1, base, i)
    X.set(vD2, X.reg(vD1) ^ (128 if P['bil'] else 0))
    srd(A, sR2, 88, DM*4096*2)
    srd(A, sR3, 90, DM*4096*2)
    A(f's_lshl_b32 s{sT0}, s{sW}, 10')
    A(f's_mul_i32 s{sT1}, s{sW}, {RS*8192}')
    if P['bil']:
        for i in range(20): wst(R2, vD1, 0, i); wst(R3, vD2, 81920, i)
    else:
        for i in range(20): wst(R2, vD1, 0, i)
        for i in range(20): wst(R3, vD2, 81920, i)
    if not P['coop']:
        srd(A, sR2, 58, DM*4096*2)
        for i in range(3):
            X.set(vT1, X.sel(('lt', tid + 256*i, 640), (tid + 256*i)*8192 + (m_ >> 2)*256 + (m_ & 2)*64, OOB))
            A(f'buffer_load_dword v{112+i}, v{vT1}, {R2}, 0 offen')
    if P.get('rot'): rot_verify(A, 52, 26, sTO, 'bulk_abort')
    trb = lambda le: g*(2048 if BR else 1024) + ((L >> 2) & 3)*128 + (le ^ (((L >> 3) & 1) | ((g & 1) << 1)))*32 + (L & 3)*8
    toff = lambda t: (8192*(t % 10) + 512*(t // 10)) if BR else 4096*t
    thalf = 1024 if BR else 512
    def trload(abase, R0):
        A(f'v_add_u32 v{vT3}, 0x10000, v{R0}')
        for t in range(20):
            r, o = (R0, toff(t)) if toff(t) < 65536 else (vT3, toff(t) - 65536)
            A(f'ds_read_b64_tr_b16 a[{abase+4*t}:{abase+4*t+1}], v{r} offset:{o}')
            A(f'ds_read_b64_tr_b16 a[{abase+4*t+2}:{abase+4*t+3}], v{r} offset:{o+thalf}')
            if t % 4 == 3: A('s_waitcnt lgkmcnt(4)')
    X.set(vR1, trb(w & 1) + (w >> 1)*81920)
    X.set(vD3, trb((w & 1) + 2) + (w >> 1)*81920)
    A(f's_waitcnt vmcnt({0 if P["coop"] else 3})')
    A('s_barrier')
    trload(0, vR1)
    trload(160, vD3)
    A('s_waitcnt lgkmcnt(0)')
    A('s_barrier')
    stage(58, 81920)
    X.set(vR1, trb(w) + 81920)
    A(f's_and_b32 s{sT0}, s{sB}, 15')
    A(f's_mul_i32 s{sT0}, s{sT0}, 5')
    A(f'v_mov_b32 v{vT0}, s{sT0}')
    for u in range(5):
        uu = X.reg(vT0) + u
        X.set(vZu+u, (uu >> 1)*16384 + (uu & 1)*4096 + tid*16)
    A('s_waitcnt vmcnt(0)')
    A('s_barrier')
    trload(80, vR1)
    A(f's_lshr_b32 s{sZs}, s{sB}, 4')
    def fill(nph, flag):
        for q in range(4): A(f'v_mov_b32 v{vH+q}, -1')
        for ph in range(nph):
            A(f'v_readlane_b32 s{sT0}, v{vZt}, s{sZs}')
            if flag == 0:
                A(f's_cmp_lt_u32 s{sZs}, 3')
                A(f's_cselect_b32 s{sT0}, {OOB:#x}, s{sT0}')
            A(f's_add_u32 s{sZs}, s{sZs}, 8')
            A.nop(4)
            for u in range(5):
                A(f'buffer_store_dwordx4 v[{vH}:{vH+3}], v{vZu+u}, {WS}, s{sT0} offen sc1')
            if P['two']:
                A(f's_add_u32 s{sT0}, s{sT0}, 0x9000000')
                for u in range(5):
                    A(f'buffer_store_dwordx4 v[{vH}:{vH+3}], v{vZu+u}, {WS}, s{sT0} offen sc1')
        A('s_waitcnt vmcnt(0)')
        A('s_barrier')
        A(f's_lshl_b32 s{sT0}, s{sB}, 2')
        A(f's_add_u32 s{sT0}, s{sT0}, {WS_ZFLAG + 512*flag}')
        A(f'buffer_store_dword v{vZf}, v{vZf}, {WS}, s{sT0} offen sc1')
    A(f's_cmp_lt_u32 s{sW}, 2')
    A(f's_cselect_b32 s{sC2}, {f2u(QSCALE):#x}, 1.0')
    A(f's_mov_b32 s{sC2+1}, s{sC2}')
    tq = lambda: (((m_ ^ w) if P['bil'] else m_) & 2) + (w & 1)
    X.set(vGo, X.sel(('lt', w, 2), (c >> 3)*2048 + tq()*512 + (g*8 + (c & 7))*16 + 16384, tq()*1024 + L16))
    X.set(vXo, ((m_ & 2)*2 + w)*1024 + L16 + 8192)
    X.set(vRr, X.sel(('eq', tid, 0), m_*4 + WS_QP, OOB))
    A(f's_and_b32 s3, s{sM}, 1')
    A(f's_mul_i32 s{sO1}, s3, 40960')
    A(f's_mul_i32 s{sLB}, s{sW}, 5120')
    A(f's_add_u32 s{sO1}, s{sO1}, {40960*P["ns0"]}')
    A(f's_add_u32 s{sO1}, s{sO1}, s{sLB}')
    A(f's_mul_i32 s{sO2}, s3, {XSEG}')
    A(f's_lshr_b32 s3, s{sM}, 2')
    A(f's_mul_i32 s3, s3, {XH}')
    A(f's_add_u32 s{sO2}, s{sO2}, s3')
    A(f's_add_u32 s{sO2}, s{sO2}, {WS_KX + XSEG*P["ns0"]}')
    A(f's_mov_b32 s{sN}, {P["ns0"]//2}')
    RG, XA, PK, PV = 40, 72, 84, 88
    def x_dma(buf, adv):
        o = [f's_add_u32 m0, s{sLB}, {20480*buf}', f's_add_u32 s{sT0}, s{sO1}, 4096']
        o += [f'buffer_load_dwordx4 v{vL16}, {WS}, s{sO1} offen offset:{1024*k} sc1 lds' for k in range(4)]
        o += [f's_add_u32 m0, s{sLB}, {20480*buf + 4096}', f's_add_u32 s{sO1}, s{sO1}, {adv}',
              f'buffer_load_dwordx4 v{vL16}, {WS}, s{sT0} offen sc1 lds']
        return o
    def x_tile(tt, young):
        A(f's_waitcnt vmcnt({young})')
        A('s_barrier')
        fl = x_dma(1 - tt, 61440 if tt == 0 else 20480)
        if tt == 1:
            fl = [f'v_mov_b32 v{vT0}, s{sN}', f'buffer_store_dword v{vT0}, v{vRr}, {WS}, 0 offen sc1'] + fl
        o = []
        rd = lambda t: f'ds_read_b128 v[{RG+4*(t%8)}:{RG+4*(t%8)+3}], v{vL16} offset:{20480*tt + 1024*t}'
        for t in range(6): o.append(rd(t))
        for t in range(20):
            o.append(f's_waitcnt lgkmcnt({min(20, t + 6) - t - 1})')
            f = v(RG + 4*(t % 8), 4)
            o.append(M32(v(XA, 4), a(4*t, 4), f, '0' if t == 0 else v(XA, 4)))
            o.append(M32(v(XA+4, 4), a(160+4*t, 4), f, '0' if t == 0 else v(XA+4, 4)))
            o.append(M32(v(XA+8, 4), f, a(80+4*t, 4), '0' if t == 0 else v(XA+8, 4)))
            if t + 6 < 20: o.append(rd(t + 6))
        emit(A, weave(o, fl, per=1))
        if tt: A(f's_add_u32 s{sT1}, s{sO2}, 4096')
        A.nop(6)
        for r in range(0, 8, 2): A(f'v_pk_mul_f32 v[{XA+r}:{XA+r+1}], v[{XA+r}:{XA+r+1}], s[{sC2}:{sC2+1}]')
        for r in range(4): A(f'v_cvt_pk_bf16_f32 v{PK+r}, v{XA+2*r}, v{XA+2*r+1}')
        A(f'buffer_store_dwordx4 v[{PK}:{PK+3}], v{vGo}, {WS}, s{sT1 if tt else sO2} offen sc1')
        for r in range(2): A(f'v_cvt_pk_bf16_f32 v{PV+2*tt+r}, v{XA+8+2*r}, v{XA+8+2*r+1}')
        if tt:
            A(f'buffer_store_dwordx4 v[{PV}:{PV+3}], v{vXo}, {WS}, s{sO2} offen sc1')
            A(f's_add_u32 s{sO2}, s{sO2}, {2*XSEG}')
            A(f's_add_u32 s{sN}, s{sN}, 1')
    wait_start(A, R4, vT0, 26, sTO, 'b_start', 'bulk_abort', sleep=2)
    emit(A, x_dma(0, 20480))
    x2_table(A, X, L, vZt, 26, 54, vT1)
    st()
    if P['ns0']: fill(1, 0)
    A('s_waitcnt vmcnt(0) lgkmcnt(0)')
    A.label('q_loop')
    x_tile(0, 2); x_tile(1, 1)
    A(f's_cmp_eq_u32 s{sN}, {P["ns0"]//2 + 1}')
    A('s_cbranch_scc1 q_fill0')
    A(f's_cmp_eq_u32 s{sN}, 6')
    A('s_cbranch_scc1 q_fill')
    A(f's_cmp_eq_u32 s{sN}, 16')
    A('s_cbranch_scc1 q_fill2')
    A.label('q_back')
    A(f's_cmp_lt_u32 s{sN}, 32')
    A('s_cbranch_scc1 q_loop')
    A('s_branch q_done')
    A.label('q_fill0')
    A('s_waitcnt vmcnt(0)')
    A('s_barrier')
    A(f'v_mov_b32 v{vT0}, s{sN}')
    A(f'buffer_store_dword v{vT0}, v{vRr}, {WS}, 0 offen sc1')
    if not P['ns0']: fill(1, 0)
    A('s_branch q_back')
    A.label('q_fill')
    fill(2, 1)
    A('s_branch q_back')
    A.label('q_fill2')
    fill(5, 2)
    A('s_branch q_back')
    A.label('q_done')
    A('s_waitcnt vmcnt(0)')
    A('s_barrier')
    A(f'v_mov_b32 v{vT0}, 64')
    A(f'buffer_store_dword v{vT0}, v{vRr}, {WS}, 0 offen sc1')
    st()
    srd(A, sR1, 44, DM*FF*2)
    srd(A, sR2, 46, DM*FF*2)
    srd(A, sR3, 48, FF*DM*2)
    jj, qq = (lambda: b >> 2), (lambda: b & 3)
    X.set(vT2, X.sel(('lt', tid, 160), ((tid >> 3)*32 + jj())*3456 + ((tid & 7)*4 + qq())*128, OOB))
    A(f'buffer_load_dword v{vWF}, v{vT2}, {R1}, 0 offen')
    A(f'buffer_load_dword v{vWF+1}, v{vT2}, {R2}, 0 offen')
    X.set(vT3, (tid*6554) >> 16)
    rr = X.reg(vT3)
    X.set(vT2, X.sel(('lt', tid, 140), (((rr >> 1)*4 + qq())*64 + (rr & 1)*32 + jj())*1280 + (tid - rr*10)*128, OOB))
    A(f'buffer_load_dword v{vWF+2}, v{vT2}, {R3}, 0 offen')
    A(f's_and_b32 s{sTile}, s{sB}, 0x7c')
    A(f's_add_u32 s{sTile}, s{sTile}, s{sW}')
    A(f's_mul_i32 s{sT0}, s{sTile}, 20480')
    for t in range(20):
        if t and t % 4 == 0: A(f's_add_u32 s{sT0}, s{sT0}, 4096')
        A(f'buffer_load_dwordx4 a[{4*t}:{4*t+3}], v{vL16}, {WS}, s{sT0} offen offset:{1024*(t%4)} sc1')
    st()
    X.set(vD1, (w*8 + (L >> 3))*3456 + ((((L >> 1) & 3) ^ (((L >> 4) & 1) | ((w & 1) << 1)))*2 + (L & 1))*16)
    for i, dst in enumerate((vD2, vD3)):
        X.set(dst, (w*8 + (L >> 4) + 4*i)*1280 + ((((L >> 1) & 7) ^ ((L >> 4) + 4*i))*2 + (L & 1))*16)
    for tl in range(4):
        X.set(vR1b+tl, (g*8 + ((L >> 2) & 3))*128 + ((((L >> 3) & 1) | ((g & 1) << 1)) ^ tl)*32 + (L & 3)*8)
        X.set(vR1b+4+tl, X.reg(vR1b+tl) + 65536)
    for n in range(8):
        X.set(vR2n+n, (g*4 + ((L >> 2) & 3))*256 + ((((g & 1)*4 + ((L >> 2) & 3)) ^ n)*32) + (L & 3)*8)
        X.set(vR2n+8+n, X.reg(vR2n+n) + 65536)
    A(f'v_mov_b32 v{vT0}, 0')
    for r in range(160): A(f'v_accvgpr_write_b32 a{80+r}, v{vT0}')
    A(f's_cmp_lt_u32 s{sQ}, 3')
    A(f's_cselect_b32 s{sN}, 7, 6')
    A(f's_lshl_b32 s{sO1}, s{sQ}, 7')
    A(f's_mul_i32 s{sO2}, s{sQ}, {64*1280}')
    A(f's_lshl_b32 s{sLB}, s{sW}, 10')
    A(f's_lshl_b32 s{sRB}, s{sW}, 11')
    NS, NC = 15, 30
    def issue(ci, nxt):
        o = []; lb = (ci % NS) * 8192
        if ci < 20:
            for m, sr in enumerate((R1, R2)):
                o.append(f's_add_u32 m0, s{sLB}, {lb + m*4096}')
                o.append(f's_add_u32 s{sT0}, s{sO1}, {ci*32*3456 + nxt*512}')
                o.append(f'buffer_load_dwordx4 v{vD1}, {sr}, s{sT0} offen lds')
        else:
            hb, cc = (ci - 20) // 5, (ci - 20) % 5
            for i in range(2):
                o.append(f's_add_u32 m0, s{sRB}, {lb + i*1024}')
                o.append(f's_add_u32 s{sT0}, s{sO2}, {hb*32*1280 + cc*256}')
                o.append(f'buffer_load_dwordx4 v{vD2 if i == 0 else vD3}, {R3}, s{sT0} offen lds')
        return o
    A('s_waitcnt vmcnt(0)')
    for ci in range(NS - 1): emit(A, issue(ci, 0))
    A.label('ffn_loop')
    for ci in range(NC):
        A(f's_waitcnt vmcnt({2*(NS-2)})')
        A('s_barrier')
        lb = (ci % NS) * 8192
        hi = 1 if lb >= 65536 else 0
        lb -= hi*65536
        nx = issue((ci + NS - 1) % NC, 1 if ci + NS - 1 >= NC else 0)
        mf = []
        if ci < 20:
            for n in range(8):
                m, tl = n >> 2, n & 3
                r = vWF + 4*n
                A(f'ds_read_b64_tr_b16 v[{r}:{r+1}], v{vR1b+4*hi+tl} offset:{lb + m*4096}')
                A(f'ds_read_b64_tr_b16 v[{r+2}:{r+3}], v{vR1b+4*hi+tl} offset:{lb + m*4096 + 512}')
            for n in range(8):
                mf.append(f's_waitcnt lgkmcnt({2*(7-n)})')
                mf.append(M32(v(vA1+4*n, 4), v(vWF+4*n, 4), a(4*ci, 4), '0' if ci == 0 else v(vA1+4*n, 4)))
        else:
            hb, cc = (ci - 20) // 5, (ci - 20) % 5
            for n in range(8):
                r = vWF + 4*n
                A(f'ds_read_b64_tr_b16 v[{r}:{r+1}], v{vR2n+8*hi+n} offset:{lb}')
                A(f'ds_read_b64_tr_b16 v[{r+2}:{r+3}], v{vR2n+8*hi+n} offset:{lb + 4096}')
            if ci == 20:
                for tl in range(4):
                    for r in (0, 2):
                        gx, ux = vA1 + 4*tl + r, vA1 + 16 + 4*tl + r
                        rbf2(A, gx, gx+1, vT0); rbf2(A, ux, ux+1, vT0)
                        silu(A, gx, vT0); silu(A, gx+1, vT1)
                        rbf2(A, gx, gx+1, vT0)
                        A(f'v_mul_f32 v{gx}, v{gx}, v{ux}')
                        A(f'v_mul_f32 v{gx+1}, v{gx+1}, v{ux+1}')
                        A(f'v_cvt_pk_bf16_f32 v{vH+2*tl+r//2}, v{gx}, v{gx+1}')
                A('s_nop 0')
            for n in range(8):
                ct = cc*8 + n
                mf.append(f's_waitcnt lgkmcnt({2*(7-n)})')
                mf.append(M32(a(80+4*ct, 4), v(vWF+4*n, 4), v(vH+4*hb, 4), a(80+4*ct, 4)))
        emit(A, weave(mf, nx, per=1))
    A(f's_add_u32 s{sO1}, s{sO1}, 512')
    A(f's_add_u32 s{sO2}, s{sO2}, {256*1280}')
    A(f's_sub_u32 s{sN}, s{sN}, 1')
    A(f's_cmp_lg_u32 s{sN}, 0')
    A('s_cbranch_scc1 ffn_loop')
    A('s_waitcnt vmcnt(0)')
    A('s_barrier')
    st()
    A(f's_lshl_b32 s{sT0}, s{sQ}, 7')
    A(f's_add_u32 s{sT0}, s{sT0}, s{sTile}')
    A(f's_mul_i32 s{sT0}, s{sT0}, 40960')
    A(f's_add_u32 s{sT0}, s{sT0}, {WS_G}')
    for ct in range(40):
        if ct and ct % 4 == 0: A(f's_add_u32 s{sT0}, s{sT0}, 4096')
        A(f'buffer_store_dwordx4 a[{80+4*ct}:{80+4*ct+3}], v{vL16}, {WS}, s{sT0} offen offset:{1024*(ct%4)} sc1')
    A('s_waitcnt vmcnt(0)')
    A('s_barrier')
    A(f's_lshl_b32 s{sT0}, s{sB}, 2')
    A(f's_add_u32 s{sT0}, s{sT0}, {WS_GFLAG}')
    A(f'buffer_store_dword v{vZf}, v{vZf}, {WS}, s{sT0} offen sc1')
    A(f's_cmp_ge_u32 s{sB}, 120')
    A('s_cbranch_scc1 bulk_end')
    A(f's_mul_i32 s{sTile}, s{sB}, 3277')
    A(f's_lshr_b32 s{sTile}, s{sTile}, 16')
    A(f's_mul_i32 s3, s{sTile}, 20')
    A(f's_sub_u32 s{sNG}, s{sB}, s3')
    srd(A, sR1, 56, 4096*DM*2)
    srd(A, sR2, 60, S_TOK*DM*2)
    srd(A, sR3, 50, S_TOK*DM*2)
    X.set(vD1, (L >> 2)*1280 + (L & 3)*16)
    X.set(vR1, w*40960 + (g*4 + ((L >> 2) & 3))*64 + (L & 3)*8)
    A(f's_mul_i32 s{sO1}, s{sW}, {1024*1280}')
    A(f's_lshl_b32 s3, s{sNG}, 6')
    A(f's_add_u32 s{sO1}, s{sO1}, s3')
    A(f's_mul_i32 s{sLB}, s{sW}, 40960')
    for rnd in range(2):
        for i in range(32):
            A(f's_add_u32 m0, s{sLB}, {1024*i}')
            A(f's_add_u32 s{sT1}, s{sO1}, {(rnd*512 + i*16)*1280}')
            A(f'buffer_load_dwordx4 v{vD1}, {R1}, s{sT1} offen lds')
        A('s_waitcnt vmcnt(0)')
        for t in range(16):
            for tl in range(2):
                r = ((rnd*16 + t)*2 + tl)*4
                A(f'ds_read_b64_tr_b16 a[{r}:{r+1}], v{vR1} offset:{t*2048 + tl*32}')
                A(f'ds_read_b64_tr_b16 a[{r+2}:{r+3}], v{vR1} offset:{t*2048 + tl*32 + 1024}')
            if t % 2 == 1: A('s_waitcnt lgkmcnt(4)')
        A('s_waitcnt lgkmcnt(0)')
    X.set(vRw, w*2048 + L16)
    X.set(vRr, (w & 1)*1024 + L16)
    X.set(vD2, w*32768 + L16)
    X.set(vGo, (w & 1)*1024 + L16)
    X.set(vXo, c*1280 + (w & 1)*32 + g*8)
    if stamps: X.set(vD3, X.sel(('lt', tid, 8), tid*4, OOB))
    spin_flags(A, 'g_poll', 'g_ok', WS_GFLAG, 8)
    A.label('g_ok')
    A('s_barrier')
    st()
    A(f's_mov_b32 s{sRB}, 0')
    A.label('op_loop')
    A(f's_lshr_b32 s{sT0}, s{sTile}, 1')
    A(f's_cmp_ge_u32 s{sT0}, 62')
    A('s_cbranch_scc1 op_final')
    A(f's_lshl_b32 s{sT0}, s{sT0}, 7')
    A(f's_add_u32 s{sT0}, s{sT0}, {WS_PROG}')
    A(f'v_mov_b32 v{vT2}, 0')
    A.label('p_poll')
    A(f'buffer_load_dword v{vT0}, v{vT2}, {WS}, s{sT0} offen sc1')
    A('s_waitcnt vmcnt(0)')
    A(f'v_cmp_eq_u32 vcc, -1, v{vT0}')
    A('s_cbranch_vccz op_go')
    A('s_sleep 8')
    A(f's_sub_u32 s{sTO}, s{sTO}, 1')
    A('s_cbranch_scc0 p_poll')
    A('s_branch bulk_abort')
    if P['tail2']:
        A.label('op_final')
        A(f's_and_b32 s{sT0}, s{sTile}, 2')
        A('s_cbranch_scc1 f_63')
        A(f's_mov_b32 s{sT0}, {WS_DCNT}')
        A(f'v_and_b32 v{vT2}, 0x30, v{vL16}')
        A(f'v_lshlrev_b32 v{vT2}, 3, v{vT2}')
        A.label('c_poll')
        A(f'buffer_load_dword v{vT0}, v{vT2}, {WS}, s{sT0} offen sc1')
        A('s_waitcnt vmcnt(0)')
        A(f'v_cmp_ne_u32 vcc, 31, v{vT0}')
        A('s_cbranch_vccz op_go')
        A('s_sleep 6')
        A(f's_sub_u32 s{sTO}, s{sTO}, 1')
        A('s_cbranch_scc0 c_poll')
        A('s_branch bulk_abort')
        A.label('f_63')
        A(f's_mov_b32 s{sT0}, {WS_FLAG + 128}')
        A(f'v_mov_b32 v{vT2}, 0')
        A.label('f_poll')
        A(f'buffer_load_dwordx4 v[{vWF}:{vWF+3}], v{vT2}, {WS}, s{sT0} offen sc1')
        A('s_waitcnt vmcnt(0)')
        emit(A, check_sent(range(vWF, vWF+4), vT0))
        A('s_cbranch_vccz op_go')
        A('s_sleep 1')
        A(f's_sub_u32 s{sTO}, s{sTO}, 1')
        A('s_cbranch_scc0 f_poll')
        A('s_branch bulk_abort')
    else: spin_flags(A, 'op_final', 'op_go', WS_FLAG, 2)
    def o_loads(add):
        A(f's_lshl_b32 s{sT0}, s{sTile}, 17')
        A(f's_add_u32 s{sT0}, s{sT0}, {WS_OF + add*131072}')
        for t in range(32):
            if t and t % 4 == 0: A(f's_add_u32 s{sT0}, s{sT0}, 4096')
            A(f'buffer_load_dwordx4 v[{vOF+4*t}:{vOF+4*t+3}], v{vD2}, {WS}, s{sT0} offen offset:{1024*(t%4)} sc1')
    A.label('op_go')
    o_loads(0)
    A.label('op_mid')
    A(f's_mul_i32 s{sT0}, s{sTile}, 20480')
    A(f's_lshl_b32 s{sT1}, s{sNG}, 10')
    A(f's_add_u32 s{sT1}, s{sT1}, s{sT0}')
    A(f's_lshl_b32 s{sT1}, s{sT1}, 1')
    A(f's_add_u32 s{sT1}, s{sT1}, {WS_G}')
    for q in range(4):
        A(f'buffer_load_dwordx4 v[{vY+4*q}:{vY+4*q+3}], v{vGo}, {WS}, s{sT1} offen sc1')
        if q < 3: A(f's_add_u32 s{sT1}, s{sT1}, {128*40960}')
    A(f's_lshl_b32 s{sT1}, s{sNG}, 6')
    A(f's_add_u32 s{sO2}, s{sT1}, s{sT0}')
    A(f'buffer_load_dwordx2 v[{vH+2}:{vH+3}], v{vXo}, {R2}, s{sO2} offen')
    A(f's_add_u32 s{sT0}, s{sTile}, 6')
    A(f's_lshr_b32 s{sT0}, s{sT0}, 1')
    A(f's_min_u32 s{sT0}, s{sT0}, 63')
    A(f's_lshl_b32 s{sT0}, s{sT0}, 7')
    A(f's_add_u32 s{sT0}, s{sT0}, {WS_PROG}')
    A(f'v_mov_b32 v{vT2}, 0')
    A(f'buffer_load_dword v{vH}, v{vT2}, {WS}, s{sT0} offen sc1')
    for t in range(32):
        A(f's_waitcnt vmcnt({37-t})')
        for tl in range(2):
            A(M32(v(vA1+4*tl, 4), a((2*t+tl)*4, 4), v(vOF+4*t, 4), '0' if t == 0 else v(vA1+4*tl, 4)))
    A(f'v_add_u32 v{vT2}, s{sRB}, v{vRw}')
    A(f'v_add_u32 v{vT3}, s{sRB}, v{vRr}')
    A('s_waitcnt vmcnt(0)')
    A(f'v_readfirstlane_b32 s{sN}, v{vH}')
    A.nop(4)
    A(f'ds_write_b128 v{vT2}, v[{vA1}:{vA1+3}]')
    A(f'ds_write_b128 v{vT2}, v[{vA1+4}:{vA1+7}] offset:1024')
    A(f's_xor_b32 s{sRB}, s{sRB}, 8192')
    A(f's_cmp_eq_u32 s{sN}, -1')
    A('s_cbranch_scc1 op_nopf')
    o_loads(6)
    A.label('op_nopf')
    A('s_waitcnt lgkmcnt(0)')
    A('s_barrier')
    A(f's_cmp_ge_u32 s{sW}, 2')
    A('s_cbranch_scc1 op_next')
    for p in range(4): A(f'ds_read_b128 v[{vWF+4*p}:{vWF+4*p+3}], v{vT3} offset:{2048*p}')
    A('s_waitcnt lgkmcnt(0)')
    for r in range(4):
        for bs in (vWF, vY):
            A(f'v_add_f32 v{bs+r}, v{bs+r}, v{bs+4+r}')
            A(f'v_add_f32 v{bs+8+r}, v{bs+8+r}, v{bs+12+r}')
            A(f'v_add_f32 v{bs+r}, v{bs+r}, v{bs+8+r}')
    for r in (0, 2):
        s0, s1 = vWF+r, vWF+r+1
        rbf2(A, vY+r, vY+r+1, vT0)
        silu(A, vY+r, vT0); silu(A, vY+r+1, vT1)
        rbf2(A, vY+r, vY+r+1, vT0)
        rbf2(A, s0, s1, vT0)
        A(f'v_mul_f32 v{s0}, v{s0}, v{vY+r}')
        A(f'v_mul_f32 v{s1}, v{s1}, v{vY+r+1}')
        rbf2(A, s0, s1, vT0)
        A(f'v_lshlrev_b32 v{vT0}, 16, v{vH+2+r//2}')
        A(f'v_and_b32 v{vT1}, 0xffff0000, v{vH+2+r//2}')
        A(f'v_add_f32 v{s0}, v{s0}, v{vT0}')
        A(f'v_add_f32 v{s1}, v{s1}, v{vT1}')
        A(f'v_cvt_pk_bf16_f32 v{vWF+16+r//2}, v{s0}, v{s1}')
    A(f'buffer_store_dwordx2 v[{vWF+16}:{vWF+17}], v{vXo}, {R3}, s{sO2} offen{P.get("outfl", "")}')
    A.label('op_next')
    A(f's_add_u32 s{sTile}, s{sTile}, 6')
    A(f's_cmp_lg_u32 s{sN}, -1')
    A('s_cbranch_scc1 op_mid')
    A(f's_cmp_lt_u32 s{sTile}, 128')
    A('s_cbranch_scc1 op_loop')
    if stamps:
        A('s_waitcnt vmcnt(0)')
        st()
        for q in range(nst[0]): A(f'v_writelane_b32 v{vT0}, s{70+2*q}, {q}')
        A(f's_lshl_b32 s{sT0}, s{sB}, 6')
        A(f's_add_u32 s{sT0}, s{sT0}, {WS_DBG + 0x400000}')
        A(f'buffer_store_dword v{vT0}, v{vD3}, {WS}, s{sT0} offen')
        if P.get('dbgout'):
            A(f'v_mov_b32 v{vT0}, s{70+2*(nst[0]-1)}')
            A(f'buffer_atomic_umax v{vT0}, v{vZf}, {R4}, 0 offen offset:8')
    A('s_endpgm')
    A.label('bulk_abort')
    A(f'v_mov_b32 v{vT0}, 9')
    A(f'v_mov_b32 v{vT1}, 4')
    A(f'buffer_store_dword v{vT0}, v{vT1}, {R4}, 0 offen')
    A.label('bulk_end')
    A('s_endpgm')
```

```python
from k7_common import *
NEG = -1.0e30
L_MEM = 0
L_Q   = 10240
L_K   = L_Q + 2048
L_O   = L_K + 2048
L_QX  = L_O + 8192
L_KX  = L_QX + 2048
L_XN  = 40960
LDS_BYTES = 163840
assert L_KX + 8192 <= L_XN
sWS, sWT, sC2 = 4, 8, 12
sKXm, sQXr = 14, 15
sCnt = 16
sPar, sQok = 28, 29
sW, sG, sJ, sH, sA, sStep, sTO, sXw = 30, 31, 32, 33, 34, 35, 36, 37
sX3r, sX1, sX2, sX3w, sVXr, sX2L, sXr, sT0, sT1, sOF, sNH = 38, 39, 40, 41, 42, 44, 45, 46, 47, 48, 49
sX3G, sX1H, sDB, sX2B, sHoff, sT2 = 50, 51, 52, 53, 54, 55
OFFB = 0x9000000
sST = 56
sWarm, sLrng, sZn, sZo = 88, 89, 90, 91
vDbg, vX2tab = 0, 1
vX3ld, vMemR, vX1st, vV1st, vQKld, vQKw, vQr, vKr, vVMld, vOw = 2, 3, 4, 5, 6, 7, 8, 9, 10, 11
vX2st, vSR, vOFst, vL16, vKXr, vXNr, vXA, vM2, vM = 12, 13, 14, 15, 16, 17, 18, 19, 20
vR = 21
vT0, vT1, vT2, vT3, vRinv, vRinv1 = 30, 31, 32, 33, 34, 35
vPL = 36
vBias = 40
vLS = 48
vVE = 52
vWO = 56
vKX = 104
vVX = 136
vS = 144
vAcc = 156
vAcc2 = 160
vP = 164
vVM4 = 168
vXACC = 172
vMW = 180
vOFR = 184
vSent4 = 188
vRG = 192
vPS = 224
vQS = 248
aSel, aOne, aSelH, aOneM = 240, 244, 248, 252
WS = f's[{sWS}:{sWS+3}]'

class Stamp:
    def __init__(self, A, on): self.A, self.on, self.n = A, on, 0
    def __call__(self, lvl=2):
        if self.on >= lvl:
            self.A(f'{"s_memrealtime" if self.on == 3 else "s_memtime"} s[{sST+2*self.n}:{sST+2*self.n+1}]')
            self.A('s_waitcnt lgkmcnt(0)')
            self.n += 1
    def flush(self):
        if not self.on: return
        A = self.A
        for k in range(self.n): A(f'v_writelane_b32 v{vT3}, s{sST+2*k}, {k}')
        for k in range(5): A(f'v_writelane_b32 v{vT3}, s{sCnt+k}, {10+k}')
        A(f'v_writelane_b32 v{vT3}, s100, 15')
        A(f's_lshl_b32 s{sT0}, s{sStep}, 6')
        A(f's_add_u32 s{sT0}, s{sT0}, s{sDB}')
        A(f'buffer_store_dword v{vT3}, v{vDbg}, {WS}, s{sT0} offen')

def slot_list(add):
    return [
    f's_add_u32 s{sT0}, s{sStep}, {add}',
    f's_and_b32 s{sT1}, s{sT0}, 63',
    f's_and_b32 s{sT0}, s{sT0}, 3',
    f's_mul_i32 s{sX3r}, s{sT0}, {X3_SLOT}',
    f's_add_u32 s{sX3r}, s{sX3r}, s{sX3G}',
    f'v_readlane_b32 s{sX2}, v{vX2tab}, s{sT1}',
    f's_mul_i32 s{sX2L}, s{sT0}, {X2_SLOT}',
    f's_add_u32 s{sX2L}, s{sX2L}, {WS_X2L}',
    f's_mul_i32 s{sX1}, s{sT0}, {X1_SLOT}',
    f's_add_u32 s{sX1}, s{sX1}, s{sX1H}',
    f's_add_u32 s{sT0}, s{sT0}, 1',
    f's_and_b32 s{sT0}, s{sT0}, 3',
    f's_mul_i32 s{sX3w}, s{sT0}, {X3_SLOT}',
    f's_add_u32 s{sX3w}, s{sX3w}, s{sX3G}']
def reset_list(fl):
    S4 = f'v[{vSent4}:{vSent4+3}]'
    o = [f's_add_u32 s{sT2}, s{sStep}, 2', f's_and_b32 s{sT2}, s{sT2}, 3',
         f's_mul_i32 s{sT0}, s{sT2}, {X2_SLOT}', f's_add_u32 s{sT0}, s{sT0}, {WS_X2L}']
    for i in range(3):
        o.append(f'buffer_store_dwordx4 {S4}, v{vR if i < 2 else vR+1}, {WS}, s{sT0} offen{fl}')
        if i < 2: o.append(f's_add_u32 s{sT0}, s{sT0}, 32768')
    o += [f's_mul_i32 s{sT1}, s{sT2}, {X1_SLOT}', f's_add_u32 s{sT1}, s{sT1}, s{sX1H}',
          f'buffer_store_dwordx4 {S4}, v{vR+2}, {WS}, s{sT1} offen{fl}',
          f'buffer_store_dwordx4 {S4}, v{vR+2}, {WS}, s{sT1} offen offset:1024{fl}',
          f's_add_u32 s{sT2}, s{sT2}, 1', f's_and_b32 s{sT2}, s{sT2}, 3',
          f's_mul_i32 s{sT1}, s{sT2}, {X3_SLOT}', f's_add_u32 s{sT1}, s{sT1}, s{sX3G}',
          f'buffer_store_dwordx4 {S4}, v{vR+3}, {WS}, s{sT1} offen{fl}']
    return o
def kv_list():
    return [f's_add_u32 m0, s{sKXm}, {L_KX}', f's_add_u32 s{sVXr}, s{sXr}, 8192',
            f'buffer_load_dwordx4 v{vL16}, {WS}, s{sXr} offen sc1 lds',
            f'buffer_load_dwordx4 v{vL16}, {WS}, s{sXr} offen offset:1024 sc1 lds',
            f'buffer_load_dwordx4 v[{vVX}:{vVX+3}], v{vL16}, {WS}, s{sVXr} offen sc1',
            f'buffer_load_dwordx4 v[{vVX+4}:{vVX+7}], v{vL16}, {WS}, s{sVXr} offen offset:1024 sc1',
            f's_add_u32 s{sXr}, s{sXr}, {XSEG}']
def qx_list():
    return [f's_mov_b32 m0, {L_QX}', 's_nop 0',
            f'buffer_load_dwordx4 v{vL16}, {WS}, s{sQXr} offen sc1 lds',
            f'buffer_load_dwordx4 v{vL16}, {WS}, s{sQXr} offen offset:1024 sc1 lds',
            f's_add_u32 s{sQXr}, s{sQXr}, {XSEG}']
def bounded(A, top, code):
    A(f's_sub_u32 s{sTO}, s{sTO}, 1')
    A(f's_cbranch_scc0 {top}')
    A(f's_mov_b32 s{sT0}, {code}')
    A('s_branch chain_abort')
def slow_poll(A, lab, back, issue, consume, nl, code, cnt):
    A.label(lab)
    for k in (0, 1):
        if cnt is not None: A(f's_add_u32 s{cnt}, s{cnt}, 1')
        emit(A, issue(k))
        if nl is not None: A(f's_waitcnt vmcnt({nl})')
        emit(A, consume(1 - k))
        A(f's_cbranch_vccz {back[1 - k] if isinstance(back, tuple) else back}')
    bounded(A, lab, code)
def qp_wait(A, lab, back, shifts=(2, 1)):
    A.label(lab)
    A(f'buffer_load_dword v{vT0}, v{vR+5}, {WS}, 0 offen sc1')
    A('s_waitcnt vmcnt(0)')
    for sh in shifts:
        A(f'v_min_i32_dpp v{vT0}, v{vT0}, v{vT0} row_ror:{sh} row_mask:0xf bank_mask:0xf')
        A('s_nop 1')
    A(f'v_readfirstlane_b32 s{sQok}, v{vT0}')
    A(f's_cmp_ge_i32 s{sQok}, s{sT1}')
    A(f's_cbranch_scc1 {back}')
    bounded(A, lab, 9)

def done_count(A, k, lab):
    A(f's_lshl_b32 s{sT0}, s{sG}, 7')
    A(f's_add_u32 s{sT0}, s{sT0}, {WS_DCNT + 512*k}')
    A(f's_mov_b32 s{sT1}, 1')
    A(f's_atomic_add s{sT1}, s[26:27], s{sT0} glc')
    A('s_waitcnt lgkmcnt(0)')
    A(f's_cmp_lg_u32 s{sT1}, 30')
    A(f's_cbranch_scc1 {lab}')
    A(f's_lshl_b32 s{sT0}, s{sG}, 2')
    A(f's_add_u32 s{sT0}, s{sT0}, {WS_FLAG + 128*k}')
    A(f's_mov_b32 s{sT1}, 0')
    A(f's_atomic_and s{sT1}, s[26:27], s{sT0}')
    A('s_waitcnt lgkmcnt(0)')
    A.label(lab)

def gen_loop(A, tag, fl, role, stamps, P):
    wv = dict(D=0, A=1, E=1, B=2, C=3)[role]
    st = Stamp(A, stamps)
    isA = role in 'ADE'
    recv = role in 'BCE'
    NU = 1
    N3 = 3 if isA else 2
    CH0 = (0, 3, 6, 8)[wv]
    cn = (lambda k: sCnt + k) if stamps else (lambda k: None)
    br = lambda nm: f's_cbranch_vccnz {nm}_{tag}' if nm not in P.get('nock', '') else 's_nop 2'
    tails = []
    def x3_issue(k):
        r = vPS + (0 if P['inl'] else 12*k)
        return [f'buffer_load_dwordx4 v[{r+4*i}:{r+4*i+3}], v{vX3ld}, {WS}, s{sX3r} offen offset:{1024*i} sc1' for i in range(N3)]
    def x3_consume(k):
        o = []
        for i in range(N3):
            r = vPS + 12*k + 4*i
            o.append(f's_waitcnt vmcnt({2*N3 - 1 - i})')
            o.append(f'ds_write_b128 v{vX3ld}, v[{r}:{r+3}] offset:{1024*i}')
            o += [f'v_max3_u32 v{vT0}, v{r}, v{r+1}, v{r+2}', f'v_max_u32 v{vT0}, v{vT0}, v{r+3}'] if i == 0 else \
                 [f'v_max3_u32 v{vT0}, v{vT0}, v{r}, v{r+1}', f'v_max3_u32 v{vT0}, v{vT0}, v{r+2}, v{r+3}']
        return o + [f'v_cmp_eq_u32 vcc, -1, v{vT0}', 's_waitcnt lgkmcnt(0)']
    def qk_issue(k):
        return [f'buffer_load_dwordx4 v[{vQS+4*k}:{vQS+4*k+3}], v{vQKld}, {WS}, s{sX1} offen sc1']
    def qk_consume(k):
        return [f'ds_write_b128 v{vQKw}, v[{vQS+4*k}:{vQS+4*k+3}]'] + check_sent(range(vQS+4*k, vQS+4*k+4), vT0) + ['s_waitcnt lgkmcnt(0)']
    LO = (3, 0, 1, 2)
    def x2_issue(k=0):
        return [f'buffer_load_dwordx4 v[{vKX+16*k+4*L}:{vKX+16*k+4*L+3}], v{vR+L}, {WS}, s{(sX2B if k else sX2) if L < 3 else sX2L} offen sc1' for L in LO]
    def x2_consume(young, k=0):
        o = []
        for i, L in enumerate(LO):
            r = vKX + 16*k + 4*L
            o.append(f's_waitcnt vmcnt({young + 3 - i})')
            o.append(M32(v(vAcc, 4), a(aSel, 4), v(r, 4), '0' if i == 0 else v(vAcc, 4)))
            o += [f'v_max3_u32 v{vT0}, v{r}, v{r+1}, v{r+2}', f'v_max_u32 v{vT0}, v{vT0}, v{r+3}'] if i == 0 else \
                 [f'v_max3_u32 v{vT0}, v{vT0}, v{r}, v{r+1}', f'v_max3_u32 v{vT0}, v{vT0}, v{r+2}, v{r+3}']
        return o + [f'v_cmp_eq_u32 vcc, -1, v{vT0}', 's_nop 3']
    top_young = N3

    A.label(f'entry_{tag}')
    emit(A, x3_issue(0))
    A('s_waitcnt vmcnt(0)')
    emit(A, x3_issue(1))
    if stamps:
        A('s_memrealtime s[96:97]')
        A('s_waitcnt lgkmcnt(0)')
    if P['al'] >= 0:
        A(f's_branch loop_{tag}')
        A.raw('.p2align 6')
        for _ in range(P['al']): A('s_nop 0')
    A.label(f'loop_{tag}')
    if stamps: A('s_memrealtime s[100:101]')
    st(1)
    if P['d3']:
        A.label(f'x3t_{tag}')
        for n in range(P['d3']):
            emit(A, x3_consume(n % 2))
            if n < P['d3'] - 1:
                A(f's_cbranch_vccz x3ok_{tag}')
                if stamps: A(f's_add_u32 s{sCnt}, s{sCnt}, 1')
                emit(A, x3_issue(n % 2))
            else:
                A(br('x3s'))
        A.label(f'x3ok_{tag}')
        def x3_more():
            kl = (P['d3'] - 1) % 2
            if kl == 0:
                slow_poll(A, f'x3s_{tag}', f'x3ok_{tag}', x3_issue, x3_consume, None, 1, cn(0))
            else:
                A.label(f'x3s_{tag}')
                if stamps: A(f's_add_u32 s{sCnt}, s{sCnt}, 1')
                emit(A, x3_issue(1))
                bounded(A, f'x3t_{tag}', 1)
        tails.append(x3_more)
    elif P['inl']:
        A.label(f'x3t_{tag}')
        for i in range(N3):
            r = vPS + 4*i
            A(f's_waitcnt vmcnt({2*N3 - 1 - i})')
            if i == 0:
                A(f'v_max3_u32 v{vT0}, v{r}, v{r+1}, v{r+2}'); A(f'v_max_u32 v{vT0}, v{vT0}, v{r+3}')
            else:
                A(f'v_max3_u32 v{vT0}, v{vT0}, v{r}, v{r+1}'); A(f'v_max3_u32 v{vT0}, v{vT0}, v{r+2}, v{r+3}')
            A(f'ds_write_b128 v{vX3ld}, v[{r}:{r+3}] offset:{1024*i}')
        A(f'v_cmp_eq_u32 vcc, -1, v{vT0}')
        A('s_waitcnt lgkmcnt(0)')
        A(br('x3s'))
        def x3_again():
            A.label(f'x3s_{tag}')
            if stamps: A(f's_add_u32 s{sCnt}, s{sCnt}, 1')
            emit(A, x3_issue(0))
            bounded(A, f'x3t_{tag}', 1)
        tails.append(x3_again)
    else:
        emit(A, x3_consume(0))
        A(br('x3s'))
        A.label(f'x3ok_{tag}')
        def x3_light():
            NSET = P['x3l']
            base = [vPS, vPS+12, vKX, vKX+12]
            iss = lambda k: [f'buffer_load_dwordx4 v[{base[k]+4*i}:{base[k]+4*i+3}], v{vX3ld}, {WS}, s{sX3r} offen offset:{1024*i} sc1' for i in range(N3)]
            A.label(f'x3s_{tag}')
            for k in range(2, NSET): emit(A, iss(k))
            A.label(f'x3t_{tag}')
            for k in range(NSET):
                kk = (k + 1) % NSET
                if stamps: A(f's_add_u32 s{sCnt}, s{sCnt}, 1')
                emit(A, iss(k))
                A(f's_waitcnt vmcnt({N3*(NSET-1)})')
                emit(A, check_sent(range(base[kk], base[kk]+4*N3), vT0))
                A(f's_cbranch_vccz x3w{kk}_{tag}')
            bounded(A, f'x3t_{tag}', 1)
            for k in range(NSET):
                A.label(f'x3w{k}_{tag}')
                for i in range(N3): A(f'ds_write_b128 v{vX3ld}, v[{base[k]+4*i}:{base[k]+4*i+3}] offset:{1024*i}')
                A('s_waitcnt lgkmcnt(0)')
                A(f's_branch x3ok_{tag}')
        if P['x3l']: tails.append(x3_light)
        else: tails.append(lambda: slow_poll(A, f'x3s_{tag}', (f'x3ok_{tag}', f'x3o1_{tag}') if P['own'] else f'x3ok_{tag}', x3_issue, x3_consume, None, 1, cn(0)))
    A('s_barrier')
    st()
    MF = lambda i: (vRG + 4*i) if i < 8 else (vS + 4*(i-8))
    mine = list(range(CH0, CH0 + N3)) if P['own'] else []
    order = [i for i in range(10) if i not in mine] + mine
    def p2_head(k):
        for i in order: A(f'ds_read_b128 v[{MF(i)}:{MF(i)+3}], v{vMemR} offset:{1024*i}')
        for i, ch in enumerate(mine):
            r = vPS + 12*k + 4*i
            A(M32(v(vAcc, 4), a(8*ch, 4), v(r, 4), '0' if i == 0 else v(vAcc, 4)))
            A(M32(v(vAcc2, 4), a(8*ch+4, 4), v(r, 4), '0' if i == 0 else v(vAcc2, 4)))
    p2_head(0)
    A.label(f'p2c_{tag}')
    def p2_alt():
        A.label(f'x3o1_{tag}')
        A('s_barrier')
        p2_head(1)
        A(f's_branch p2c_{tag}')
    if mine: tails.append(p2_alt)
    for n, i in enumerate(order):
        if i in mine: break
        A(f's_waitcnt lgkmcnt({9-n})')
        first = (n == 0 and not mine)
        A(M32(v(vAcc, 4), a(8*i, 4), v(MF(i), 4), '0' if first else v(vAcc, 4)))
        A(M32(v(vAcc2, 4), a(8*i+4, 4), v(MF(i), 4), '0' if first else v(vAcc2, 4)))
    if mine: A('s_waitcnt lgkmcnt(0)')
    vm = [M32(v(vVE, 4), v(MF(i), 4), a(80+4*i, 4), '0' if i == 0 else v(vVE, 4)) for i in range(10)]
    NV = P['nv']
    emit(A, vm[:NV])
    if NV < 3: A('s_nop 1')
    for r in range(4): A(f'v_add_f32_dpp v{vAcc+r}, v{vAcc2+r}, v{vAcc+r} row_ror:8 row_mask:0xf bank_mask:0xf')
    if isA:
        A(f'v_pk_mul_f32 v[{vAcc}:{vAcc+1}], v[{vAcc}:{vAcc+1}], s[{sC2}:{sC2+1}]')
        A(f'v_pk_mul_f32 v[{vAcc+2}:{vAcc+3}], v[{vAcc+2}:{vAcc+3}], s[{sC2}:{sC2+1}]')
    A(f'v_cvt_pk_bf16_f32 v{vT0}, v{vAcc}, v{vAcc+1}')
    A(f'v_cvt_pk_bf16_f32 v{vT1}, v{vAcc+2}, v{vAcc+3}')
    A(f'v_min_u32 v{vT0}, -2, v{vT0}')
    A(f'v_min_u32 v{vT1}, -2, v{vT1}')
    A(f'buffer_store_dwordx2 v[{vT0}:{vT1}], v{vX1st}, {WS}, s{sX1} offen{fl}')
    st(3)
    QR = [vQS, vQS if P['inl'] else vQS+4, vXACC, vXACC+4]
    qi = lambda k: f'buffer_load_dwordx4 v[{QR[k]}:{QR[k]+3}], v{vQKld}, {WS}, s{sX1} offen sc1'
    qc = lambda k: [f'ds_write_b128 v{vQKw}, v[{QR[k]}:{QR[k]+3}]'] + check_sent(range(QR[k], QR[k]+4), vT0) + ['s_waitcnt lgkmcnt(0)']
    late0 = P['qkA'] > 20
    emit(A, weave(vm[NV:], [] if late0 else [(P['qkA'], qi(0))]))
    if P['x3l'] > 2: A('s_waitcnt vmcnt(2)')
    for k in range(8):
        A(f'ds_read_b128 v[{vKX+4*k}:{vKX+4*k+3}], v{vL16} offset:{L_KX + 1024*k}')
        if k == 3 and P['q4']: A(qi(2))
    A(f'v_cvt_pk_bf16_f32 v{vT2}, v{vVE}, v{vVE+1}')
    A(f'v_cvt_pk_bf16_f32 v{vT3}, v{vVE+2}, v{vVE+3}')
    A(f'v_min_u32 v{vT2}, -2, v{vT2}')
    A(f'v_min_u32 v{vT3}, -2, v{vT3}')
    A(f'buffer_store_dwordx2 v[{vT2}:{vT3}], v{vV1st}, {WS}, s{sX1} offen{fl}')
    if wv == 1:
        A(f's_add_u32 s{sT1}, s{sStep}, 3')
        A(f's_lshr_b32 s{sT1}, s{sT1}, 1')
        A(f's_cmp_lt_i32 s{sQok}, s{sT1}')
        A(f's_cbranch_scc1 qp_{tag}')
        A.label(f'qpok_{tag}')
        tails.append(lambda: qp_wait(A, f'qp_{tag}', f'qpok_{tag}'))
    if P['q4']:
        A(qi(3))
        A.nop(P['q4'])
    if late0:
        A.nop(P['qkA'] - 20)
        A(qi(0))
    if P['qkgap']: A.nop(P['qkgap'])
    A(qi(1))
    nq = 0
    for _ in range(P.get('wm1', 0)): A(M32(v(vLS, 4), a(aOne, 4), a(aOne, 4), '0'))
    st()
    A(f's_waitcnt vmcnt({(4 if P["q4"] else 1 if late0 else 2) + nq})')
    if P['d1']:
        emit(A, qc(0))
        A(f's_cbranch_vccz qkok_{tag}')
        if stamps: A(f's_add_u32 s{sCnt+1}, s{sCnt+1}, 1')
        A(qi(0))
        A('s_waitcnt vmcnt(1)')
        emit(A, qc(1))
        A(br('qks'))
        A.label(f'qkok_{tag}')
        def qk_more():
            A.label(f'qks_{tag}')
            if stamps: A(f's_add_u32 s{sCnt+1}, s{sCnt+1}, 1')
            A(qi(1))
            A('s_waitcnt vmcnt(1)')
            emit(A, qc(0))
            A(f's_cbranch_vccz qkok_{tag}')
            slow_poll(A, f'qkt_{tag}', f'qkok_{tag}', qk_issue, qk_consume, 1, 2, cn(1))
        tails.append(qk_more)
    elif P['inl']:
        A.label(f'qkt_{tag}')
        A(f'v_max3_u32 v{vT0}, v{vQS}, v{vQS+1}, v{vQS+2}')
        A(f'v_max_u32 v{vT0}, v{vT0}, v{vQS+3}')
        A(f'ds_write_b128 v{vQKw}, v[{vQS}:{vQS+3}]')
        A(f'v_cmp_eq_u32 vcc, -1, v{vT0}')
        A('s_waitcnt lgkmcnt(0)')
        A(br('qks'))
        def qk_again():
            A.label(f'qks_{tag}')
            if stamps: A(f's_add_u32 s{sCnt+1}, s{sCnt+1}, 1')
            A(qi(0))
            A('s_waitcnt vmcnt(1)')
            bounded(A, f'qkt_{tag}', 2)
        tails.append(qk_again)
    else:
        emit(A, qc(0))
        A(br('qks'))
        A.label(f'qkok_{tag}')
        def qk_slow():
            A.label(f'qks_{tag}')
            if P['q4']:
                for k, n in ((2, 3), (3, 1)):
                    if stamps: A(f's_add_u32 s{sCnt+1}, s{sCnt+1}, 1')
                    A(f's_waitcnt vmcnt({n})')
                    emit(A, qc(k))
                    A(f's_cbranch_vccz qkok_{tag}')
            slow_poll(A, f'qkt_{tag}', f'qkok_{tag}', qk_issue, qk_consume, 1, 2, cn(1))
        tails.append(qk_slow)
    vm_ld = f'buffer_load_dwordx4 v[{vVM4}:{vVM4+3}], v{vVMld}, {WS}, s{sX1} offen sc1'
    if P['vpos'] in (0, 2): A(vm_ld)
    A('s_barrier')
    st()
    QF, KF = vRG, vRG + 16
    for t in range(4): A(f'ds_read_b128 v[{QF+4*t}:{QF+4*t+3}], v{vQr} offset:{512*t}')
    for t in range(4): A(f'ds_read_b128 v[{KF+4*t}:{KF+4*t+3}], v{vKr} offset:{512*t}')
    if P['vpos'] == 1: A(vm_ld)
    vm2 = f'buffer_load_dwordx4 v[{vXACC}:{vXACC+3}], v{vVMld}, {WS}, s{sX1} offen sc1'
    def smf(i, t):
        src = (vKX + 4*t, vKX + 16 + 4*t, KF + 4*t)[i]
        return M32(v(vS+4*i, 4), v(src, 4), v(QF+4*t, 4), (v(vBias+4*i, 4) if i < 2 else '0') if t == 0 else v(vS+4*i, 4))
    E = lambda r: f'v_exp_f32 v{vS+r}, v{vS+r}'
    C = lambda d, r: f'v_cvt_pk_bf16_f32 v{d}, v{vS+r}, v{vS+r+1}'
    for t in range(4):
        A(f's_waitcnt lgkmcnt({7-t})')
        A(smf(0, t))
    if P['vpos'] == 2: A(vm2)
    for t in range(4):
        A(f's_waitcnt lgkmcnt({3-t})')
        A(smf(2, t))
        if t >= 2: A(E(t - 2))
    A(smf(1, 0)); A(E(2))
    A(smf(1, 1)); A(E(3))
    A(smf(1, 2)); A(E(8))
    A(smf(1, 3)); A(E(9))
    A(E(10)); A(E(11))
    if P.get('att'): st()
    A(f's_waitcnt vmcnt({1 if P["vpos"] == 2 else 0})')
    if P.get('att'): st()
    emit(A, check_sent(range(vVM4, vVM4+4), vT2))
    A(C(vPL, 8)); A(C(vPL+1, 10))
    A(E(4))
    A(br('pvs'))
    A.label(f'pvok_{tag}')
    def pv_slow():
        A.label(f'pvs_{tag}')
        if P['vpos'] == 2:
            if stamps: A(f's_add_u32 s{sCnt+2}, s{sCnt+2}, 1')
            A('s_waitcnt vmcnt(0)')
            emit(A, check_sent(range(vXACC, vXACC+4), vT2))
            for r in range(4): A(f'v_mov_b32 v{vVM4+r}, v{vXACC+r}')
            A('s_nop 0')
            A(f's_cbranch_vccz pvok_{tag}')
        A.label(f'pvt_{tag}')
        if stamps: A(f's_add_u32 s{sCnt+2}, s{sCnt+2}, 1')
        A(vm_ld)
        A('s_waitcnt vmcnt(0)')
        emit(A, check_sent(range(vVM4, vVM4+4), vT2))
        A(f's_cbranch_vccz pvok_{tag}')
        bounded(A, f'pvt_{tag}', 3)
    tails.append(pv_slow)
    pvm = [M16(v(vAcc, 4), v(vVM4, 2), v(vPL, 2), '0'), M16(v(vAcc2, 4), v(vVM4+2, 2), v(vPL, 2), '0'),
           M16(v(vLS, 4), a(aOneM, 2), v(vPL, 2), '0')]
    A(pvm[0]); A(E(5))
    if wv == 1 and P['tatt']: A(f'buffer_load_dword v{vM2+0 if False else vXA}, v{vR+4}, {WS}, s{sWarm} offen sc1')
    if role == 'D' and P['tlb']: A(f'buffer_load_dword v{vXA}, v{vR+6}, {WS}, s{sXw} offen sc1')
    if role == 'D' and P['tail2']:
        A(f's_cmp_eq_u32 s{sStep}, {NSEG-1}')
        A(f's_cbranch_scc1 d62_{tag}')
        A.label(f'd62ok_{tag}')
        def d62():
            A.label(f'd62_{tag}')
            A(f's_lshl_b32 s{sT0}, s{sG}, 7')
            A(f's_add_u32 s{sT0}, s{sT0}, {WS_DCNT}')
            A(f'v_mov_b32 v{vT0}, 1')
            A(f'buffer_atomic_add v{vT0}, v{vR+6}, {WS}, s{sT0} offen')
            A(f's_mov_b32 s{sT0}, {WS_PROG + 61*128}')
            A(f'buffer_store_dword v{vM2}, v{vR+5}, {WS}, s{sT0} offen sc1')
            A(f's_branch d62ok_{tag}')
        tails.append(d62)
    A(pvm[1]); A(E(6))
    if wv == 1 and P['qpa']: A(f'buffer_load_dword v{vMW}, v{vR+5}, {WS}, 0 offen sc1')
    if P['pt'] & 1: A(f'buffer_load_dword v{vXNr}, v{vSR}, {WS}, s{sX2} offen sc1')
    A(pvm[2]); A(E(7))
    if recv and P['pt'] & 2: A(f'buffer_load_dword v{vXNr}, v{vKXr}, {WS}, s{sX2} offen sc1')
    A(C(vP, 0)); A(C(vP+1, 2)); A(C(vP+2, 4)); A(C(vP+3, 6))
    A('s_nop 1')
    if P.get('att'): st()
    D = vPS
    NTL = 3 if isA else 2
    def pv_fin():
        A(M32(v(vAcc, 4), v(vVX, 4), v(vP, 4), v(vAcc, 4)))
        A(M32(v(vAcc2, 4), v(vVX+4, 4), v(vP, 4), v(vAcc2, 4)))
        A(M32(v(vLS, 4), a(aOne, 4), v(vP, 4), v(vLS, 4)))
        A.nop(P['pvnop'])
        A(f'v_cvt_pk_bf16_f32 v{vOFR}, v{vAcc}, v{vAcc+1}')
        A(f'v_cvt_pk_bf16_f32 v{vOFR+1}, v{vAcc+2}, v{vAcc+3}')
        A(f'v_cvt_pk_bf16_f32 v{vOFR+2}, v{vAcc2}, v{vAcc2+1}')
        A(f'v_cvt_pk_bf16_f32 v{vOFR+3}, v{vAcc2+2}, v{vAcc2+3}')
        A(f'ds_write_b128 v{vOw}, v[{vOFR}:{vOFR+3}]')
        A(f'v_rcp_f32 v{vRinv}, v{vLS}')
        for k in range(NTL): A(M32(v(D+4*k, 4), v(vWO+16*k+4*wv, 4), v(vOFR, 4), '0'))
    pv_fin()
    A(f'v_subrev_u32 v{vT0}, {f2u(2.0**-60):#x}, v{vLS}')
    A(f'v_cmp_le_u32 vcc, s{sLrng}, v{vT0}')
    A(f'v_mov_b32 v{vRinv1}, v{vRinv}')
    A(f's_cmp_eq_u32 s{sStep}, {NSEG-1}')
    A('s_waitcnt lgkmcnt(0)')
    A(br('smx'))
    A.label(f'smok_{tag}')
    def sm_slow():
        A.label(f'smx_{tag}')
        if stamps: A(f's_add_u32 s{sCnt+4}, s{sCnt+4}, 1')
        for i in range(3):
            for t in range(4): A(smf(i, t))
        A.nop(8)
        A(f'v_max3_f32 v{vM}, v{vS}, v{vS+1}, v{vS+2}')
        for r in range(3, 11, 2): A(f'v_max3_f32 v{vM}, v{vM}, v{vS+r}, v{vS+r+1}')
        A(f'v_max_f32 v{vM}, v{vM}, v{vS+11}')
        for sw in ('16', '32'):
            A(f'v_mov_b32 v{vT0}, v{vM}')
            A.nop(2)
            A(f'v_permlane{sw}_swap_b32 v{vT0}, v{vM}')
            A.nop(1)
            A(f'v_max_f32 v{vM}, v{vM}, v{vT0}')
        for r in range(12): A(f'v_sub_f32 v{vS+r}, v{vS+r}, v{vM}')
        for r in range(12): A(E(r))
        A.nop(1)
        A(C(vP, 0)); A(C(vP+1, 2)); A(C(vP+2, 4)); A(C(vP+3, 6)); A(C(vPL, 8)); A(C(vPL+1, 10))
        A.nop(2)
        emit(A, pvm)
        A.nop(6)
        pv_fin()
        A.nop(1)
        A(f'v_mov_b32 v{vRinv1}, v{vRinv}')
        A(f's_cmp_eq_u32 s{sStep}, {NSEG-1}')
        A('s_waitcnt lgkmcnt(0)')
        A(f's_branch smok_{tag}')
    tails.append(sm_slow)
    A(f's_cbranch_scc1 last_{tag}')
    A('s_barrier')
    st()
    OF4 = vRG
    TS = [t for t in range(4) if t != wv]
    for t in TS: A(f'ds_read_b128 v[{OF4+4*t}:{OF4+4*t+3}], v{vL16} offset:{L_O + 1024*t}')
    R = vS
    RI = f'v[{vRinv}:{vRinv1}]'
    def scale_cvt(k):
        return [f'v_pk_mul_f32 v[{D+4*k}:{D+4*k+1}], v[{D+4*k}:{D+4*k+1}], {RI}',
                f'v_pk_mul_f32 v[{D+4*k+2}:{D+4*k+3}], v[{D+4*k+2}:{D+4*k+3}], {RI}',
                f'v_cvt_pk_bf16_f32 v{D+4*k}, v{D+4*k}, v{D+4*k+1}',
                f'v_cvt_pk_bf16_f32 v{D+4*k+1}, v{D+4*k+2}, v{D+4*k+3}']
    mind = lambda d, s_, ctl: f'v_min_u32_dpp v{d}, v{s_}, v{vM2} ' + ctl.replace(' bank', ' row_mask:0xf bank')
    export = []
    for r in (0, 2):
        export.append(f'v_pk_mul_f32 v[{vAcc+r}:{vAcc+r+1}], v[{vAcc+r}:{vAcc+r+1}], {RI}')
        export.append(f'v_pk_mul_f32 v[{vAcc2+r}:{vAcc2+r+1}], v[{vAcc2+r}:{vAcc2+r+1}], {RI}')
    export += [f'v_cvt_pk_bf16_f32 v{vOFR}, v{vAcc}, v{vAcc+1}', f'v_cvt_pk_bf16_f32 v{vOFR+1}, v{vAcc+2}, v{vAcc+3}',
               f'v_cvt_pk_bf16_f32 v{vOFR+2}, v{vAcc2}, v{vAcc2+1}', f'v_cvt_pk_bf16_f32 v{vOFR+3}, v{vAcc2+2}, v{vAcc2+3}',
               f'buffer_store_dwordx4 v[{vOFR}:{vOFR+3}], v{vOFst}, {WS}, s{sOF} offen sc1',
               f's_add_u32 s{sOF}, s{sOF}, {2*128*1024}']
    emit(A, export[:6])
    op = []
    for n, k in enumerate([2, 0, 1] if isA else [0, 1]):
        for i, t in enumerate(TS):
            if n == 0: op.append(f's_waitcnt lgkmcnt({2-i})')
            op.append(M32(v(D+4*k, 4), v(vWO+16*k+4*t, 4), v(OF4+4*t, 4), v(D+4*k, 4)))
    ident = 'quad_perm:[0,1,2,3] bank_mask:0x3'
    if isA:
        single = scale_cvt(2) + ['s_nop 0', mind(R, D+8, 'row_shr:8 bank_mask:0xc'), mind(R+1, D+9, 'row_shr:8 bank_mask:0xc'),
                                 mind(R+2, D+8, 'row_shr:7 bank_mask:0xc'), mind(R+3, D+9, 'row_shr:7 bank_mask:0xc')]
        emit(A, weave(op, export[6:8] + [(6, x) for x in single], per=3))
    else:
        emit(A, weave(op, export[6:8]))
    emit(A, scale_cvt(0))
    A.nop(2)
    A(mind(R, D, ident)); A(mind(R+1, D+1, ident))
    emit(A, scale_cvt(1))
    A.nop(1)
    A(mind(R+2, D+4, ident)); A(mind(R+3, D+5, ident))
    A(f'buffer_store_dwordx4 v[{R}:{R+3}], v{vSR}, {WS}, s{sX2} offen sc1')
    A(f'buffer_store_dwordx4 v[{R}:{R+3}], v{vX2st}, {WS}, s{sX2L} offen{fl}')
    if P['two']: A(f'buffer_store_dwordx4 v[{R}:{R+3}], v{vSR}, {WS}, s{sX2B} offen sc1')
    st()
    pre = kv_list() if not P.get('nokv') else []
    late = list(export[8:])
    if role == 'D':
        A(f's_cmp_eq_u32 s{sStep}, s{sZn}')
        A(f's_cbranch_scc1 z1_{tag}')
        A.label(f'z1ok_{tag}')
        def z1():
            A.label(f'z1_{tag}')
            A(f'v_lshrrev_b32 v{vT2}, 1, v{vL16}')
            A(f'buffer_load_dwordx2 v[{vT0}:{vT1}], v{vT2}, {WS}, s{sZo} offen sc1')
            A('s_waitcnt vmcnt(0)')
            emit(A, check_sent([vT0, vT1], vT0))
            A(f's_cbranch_vccz z2_{tag}')
            bounded(A, f'z1_{tag}', 8)
            A.label(f'z2_{tag}')
            A(f's_add_u32 s{sZo}, s{sZo}, 512')
            A(f's_cmp_eq_u32 s{sZn}, 2')
            A(f's_cselect_b32 s{sZn}, 7, 23')
            A(f's_branch z1ok_{tag}')
        tails.append(z1)
        late += reset_list(fl)
        late += [f's_lshl_b32 s{sT0}, s{sStep}, 7', f's_add_u32 s{sT0}, s{sT0}, {WS_PROG - 256}',
                 f'buffer_store_dword v{vM2}, v{vR+5}, {WS}, s{sT0} offen sc1']
        late += [f's_add_u32 s{sT0}, s{sStep}, 5', f's_min_u32 s{sT0}, s{sT0}, 63', f'v_readlane_b32 s{sXw}, v{vX2tab}, s{sT0}',
                 f's_xor_b32 s{sXw}, s{sXw}, 8192']
    if wv == 1:
        touch = [f'buffer_load_dword v{vM}, v{vR+4}, {WS}, s{sWarm} offen sc1', f's_add_u32 s{sWarm}, s{sWarm}, {XSEG}']
        if P.get('notouch') or P['tatt']: touch = touch[1:]
        dl = []
        n = P['tdel']
        while n > 0: dl.append(f's_nop {min(n,16)-1}'); n -= 16
        pre = (touch + qx_list() + pre) if P['tfirst'] else (qx_list() + pre + dl + touch)
    if recv:
        if not isA and P['kvS']: A(f's_sleep {P["kvS"]}')
        emit(A, pre)
        A(f's_sleep {P["pollS"] - (P["pollE"] if isA else P["kvS"])}')
        emit(A, x2_issue())
        emit(A, late)
        st()
        if P.get('diag'):
            A(f's_waitcnt vmcnt({nvm(late) + 4*NU + 4})'); st()
            A(f's_waitcnt vmcnt({nvm(late) + 4*NU})'); st()
        if P['two']:
            A(f's_sleep {P["two"]}')
            emit(A, x2_issue(1))
        emit(A, x2_consume(nvm(late) + (4 if P['two'] else 0)))
        A(br('x2s'))
        A.label(f'x2ok_{tag}')
        def x2_slow():
            A.label(f'x2s_{tag}')
            if P['two']:
                if stamps: A(f's_add_u32 s{sCnt+2}, s{sCnt+2}, 1')
                emit(A, x2_consume(0, 1))
                A(f's_cbranch_vccz x2ok_{tag}')
            A.label(f'x2t_{tag}')
            if stamps: A(f's_add_u32 s{sCnt+3}, s{sCnt+3}, 1')
            emit(A, x2_issue())
            emit(A, x2_consume(0))
            A(f's_cbranch_vccz x2ok_{tag}')
            bounded(A, f'x2t_{tag}', 4)
        tails.append(x2_slow)
        st()
        for r in range(4): A(f'v_add_f32_dpp v{vAcc2+r}, v{vAcc+r}, v{vAcc+r} row_ror:8 row_mask:0xf bank_mask:0xf')
        A(f'v_cvt_pk_bf16_f32 v{vT0}, v{vAcc2}, v{vAcc2+1}')
        A(f'v_cvt_pk_bf16_f32 v{vT1}, v{vAcc2+2}, v{vAcc2+3}')
        A(f'v_min_u32 v{vT0}, -2, v{vT0}')
        A(f'v_min_u32 v{vT1}, -2, v{vT1}')
        A(f'buffer_store_dwordx2 v[{vT0}:{vT1}], v{vR+8}, {WS}, s{sX3w} offen{fl}')
    else:
        emit(A, pre)
        if P['lateS']: A(f's_sleep {P["lateS"]}')
        emit(A, late)
        st(); st()
    sl = slot_list(1)
    if not recv: emit(A, sl)
    if P['nob4'] == 0: A('s_barrier')
    elif not recv: A.nop(P['nob4'] - (60 if role == 'D' else 0))
    st.flush()
    if recv: emit(A, sl[:5])
    A.nop(P['x3d'] if not recv else max(0, P['x3d'] - 8))
    emit(A, x3_issue(0))
    if recv: emit(A, sl[5:])
    if wv == 1 and P['qpa']:
        A(f's_waitcnt vmcnt({N3 + 1})')
        for sh in (2, 1):
            A(f'v_min_i32_dpp v{vMW}, v{vMW}, v{vMW} row_ror:{sh} row_mask:0xf bank_mask:0xf')
            A('s_nop 1')
        A(f'v_readfirstlane_b32 s{sT1}, v{vMW}')
        A(f's_max_i32 s{sQok}, s{sQok}, s{sT1}')
    A(f's_add_u32 s{sStep}, s{sStep}, 1')
    A('s_sleep 1')
    emit(A, x3_issue(1))
    for _ in range(P.get('wm3', 0)): A(M32(v(vVE, 4), a(aOne, 4), a(aOne, 4), '0'))
    A(f's_branch loop_{tag}')
    A.label(f'last_{tag}')
    emit(A, export)
    if role == 'D' and not P['tail2']:
        A(f's_mov_b32 s{sT0}, {WS_PROG + 61*128}')
        A(f'buffer_store_dword v{vM2}, v{vR+5}, {WS}, s{sT0} offen sc1')
    A('s_waitcnt vmcnt(0)')
    A('s_barrier')
    if role == 'D' and P['tail2']: done_count(A, 1, f'dn1_{tag}')
    if role == 'D' and not P['tail2']:
        A(f's_lshl_b32 s{sT0}, s{sG}, 5')
        A(f's_add_u32 s{sT0}, s{sT0}, s{sJ}')
        A(f's_lshl_b32 s{sT0}, s{sT0}, 2')
        A(f's_add_u32 s{sT0}, s{sT0}, {WS_FLAG}')
        A(f'v_cmp_eq_u32 vcc, 0, v{vL16}')
        A(f'v_mov_b32 v{vT0}, {OOB:#x}')
        A('s_nop 1')
        A(f'v_cndmask_b32 v{vT0}, v{vT0}, 0, vcc')
        A(f'buffer_store_dword v{vM2}, v{vT0}, {WS}, s{sT0} offen sc1')
    if stamps:
        A('s_memrealtime s[100:101]')
        A('s_waitcnt lgkmcnt(0)')
        A(f'v_writelane_b32 v{vT3}, s{sST}, 0')
        for k, r in enumerate((94, 96, 100, 76, 78, 80, 82, 84, 86)): A(f'v_writelane_b32 v{vT3}, s{r}, {1+k}')
        A(f's_add_u32 s{sT0}, s{sDB}, {63*64}')
        A(f'buffer_store_dword v{vT3}, v{vDbg}, {WS}, s{sT0} offen')
        if P.get('dbgout') and role == 'D':
            A(f'v_writelane_b32 v{vT3}, s74, 10')
            A(f'v_readlane_b32 s{sT0}, v{vX2tab}, 0')
            A(f'v_writelane_b32 v{vT3}, s{sT0}, 11')
            A(f'v_writelane_b32 v{vT3}, s98, 12')
            srd(A, sWT, 24, 64)
            A(f's_add_u32 s{sT0}, s{sJ}, s{sG}')
            A(f's_cmp_eq_u32 s{sT0}, 0')
            A(f's_cselect_b32 s{sT0}, 12, 64')
            A(f'buffer_store_dword v{vT3}, v{vDbg}, s[{sWT}:{sWT+3}], s{sT0} offen')
    A('s_endpgm')
    for t in tails: t()

DEFAULT_P = dict(inl=0, d3=0, d1=0, qpa=1, tail2=0, il=0, k2=0, bil=0, brm=0, vhelp=0, rmap=0, wfl='', two=0, own=0, lin2=0, rot=1, kvS=2, nv=3, coop=0, ns0=0, bdel=0, vpos=0, pollE=2, al=0, x3l=0, lateS=0, pt=0, lin=0, cpf=1, pollS=5, q4=0, x3d=0, nob4=0, tlb=1, tatt=1, tdel=0, tfirst=0, pollA=80, qkA=5, qkgap=0, x3A=4, x3B=8, x3gap=16, pvnop=6)

def gen_chain(A, stamps, P):
    wt = f's[{sWT}:{sWT+3}]'
    npst = [0]
    def pst():
        if stamps == 1:
            A(f's_memrealtime s[{76+2*npst[0]}:{77+2*npst[0]}]'); A('s_waitcnt lgkmcnt(0)'); npst[0] += 1
    if stamps: A('s_memrealtime s[94:95]')
    if P['cpf']: code_prefetch(A, 250, 8)
    A('s_load_dwordx4 s[16:19], s[0:1], 16')
    A('s_load_dwordx4 s[20:23], s[0:1], 32')
    A('s_load_dwordx4 s[24:27], s[0:1], 96')
    A('s_load_dwordx2 s[72:73], s[0:1], 8')
    F = 232
    X = VX(A, vRG, F, 3)
    A(f'v_lshrrev_b32 v{F+3}, 6, v0')
    A(f'v_and_b32 v{F}, 63, v0')
    A(f'v_readfirstlane_b32 s{sW}, v{F+3}')
    A(f'v_bfe_u32 v{F+1}, v0, 4, 2')
    A(f'v_and_b32 v{F+2}, 15, v0')
    A(f's_and_b32 s{sG}, s2, 3')
    A(f's_lshr_b32 s{sJ}, s2, 3')
    A(f's_lshr_b32 s{sH}, s{sJ}, 2')
    A(f's_lshl_b32 s3, s{sG}, 3')
    A(f's_add_u32 s{sH}, s{sH}, s3')
    A(f's_and_b32 s{sA}, s{sJ}, 3')
    A(f's_and_b32 s{sPar}, s{sA}, 1')
    A(f's_mov_b32 s{sTO}, 0x400000')
    for i, sr in enumerate((sA, sH, sJ, sG)): A(f'v_mov_b32 v{F+4+i}, s{sr}')
    A(f'v_mov_b32 v{F+8}, v0')
    L, g, c, w, a_, h, j, G, tid = [X.reg(F+i) for i in range(9)]
    X.set(vL16, L*16)
    L16 = X.reg(vL16)
    def frag_addr(dst, it):
        X.set(vT1, ((it >> 3)*3277) >> 16)
        ua = X.reg(vT1)
        X.set(vT2, (it >> 3) - ua*20)
        u = X.reg(vT2)
        g1, r1, gh = (lambda: (it >> 2) & 1), (lambda: (it >> 1) & 1), (lambda: it & 1)
        X.set(vT3, (ua*5 + (u >> 2))*512 + ((g1()*2 + gh())*8 + (u & 3)*2 + r1())*16)
        X.set(dst, (ua*5 + 4)*512 + (((u & 2) + gh())*8 + (u & 1)*4 + r1()*2 + g1())*16)
        X.set(dst, X.sel(('lt', u, 16), X.reg(vT3), X.reg(dst)))
    TQ, TA_, TV, TO1, TO2 = [vXACC + i for i in range(5)]
    RM = P['rmap']
    if RM: X.set(TQ, (((L >> 2) & 3) + (L >> 4)*160)*8192 + (((L >> 1) & 1) ^ (w >> 1))*32 + (L & 1)*16 + h*256 + a_*64)
    else: X.set(TQ, (L >> 2)*8192 + (((L >> 1) & 1) ^ ((L >> 5) & 1))*32 + (L & 1)*16 + h*256 + a_*64)
    A('s_waitcnt lgkmcnt(0)')
    srd(A, sWS, 26, WS_SIZE)
    if P['lin']: lin_touch(A, X, tid, vKX, sWT, (16, 18, 20, 22))
    A(f's_lshl_b32 s3, s{sG}, 5')
    A(f's_add_u32 s3, s3, s{sJ}')
    A(f's_lshl_b32 s60, s{sW}, 7')
    A('s_add_u32 s3, s3, s60')
    A('s_cmp_ge_u32 s3, 22')
    A('s_cbranch_scc1 cal_done')
    A('s_sub_u32 s60, 0, s26')
    A('s_and_b32 s60, s60, 0x1fffff')
    A(f's_lshl_b32 s61, s{sJ}, 21')
    A('s_add_u32 s60, s60, s61')
    A(f's_add_u32 s60, s60, {WS_X2 + 0x1f8000}')
    A('s_add_u32 s70, s26, s60')
    A('s_addc_u32 s71, s27, 0')
    A('s_mov_b32 s62, -1')
    A('s_mov_b32 s63, -1')
    for rep in range(P['calrep']):
        for hf in range(2):
            A('s_mov_b32 s61, 0')
            A('s_memtime s[64:65]')
            A('s_waitcnt lgkmcnt(0)')
            A(f's_atomic_or s61, s[70:71], {hf*8192 + (rep&1)*4096} glc')
            A('s_waitcnt lgkmcnt(0)')
            A('s_memtime s[66:67]')
            A('s_waitcnt lgkmcnt(0)')
            A('s_sub_u32 s64, s66, s64')
            A(f's_min_u32 s{62+hf}, s{62+hf}, s64')
    A('s_cmp_lt_u32 s63, s62')
    A('s_cselect_b32 s61, 1, 0')
    A(f's_lshl_b32 s61, s61, s{sJ}')
    if P.get('rot'):
        rot_poll(A, 24, 60, sTO, 'chain_abort10')
        A(f's_cmp_lg_u32 s60, s{sRot}')
        A('s_cbranch_scc1 cal_done')
    A(f's_atomic_or s61, s[24:25], {DBG_MASK} glc')
    A('s_waitcnt lgkmcnt(0)')
    arrive_s(A, 24, 61, 'cal_done')
    A.label('cal_done')
    if P['coop']:
        for i in range(2):
            X.set(vKX+i, X.sel(('lt', tid + 256*i, 320), (j*20 + ((tid + 256*i) >> 4))*8192 + G*2048 + (tid & 15)*128, OOB))
        for m, ptr in enumerate((16, 18, 20)):
            srd(A, sWT, ptr, DM * 4096 * 2)
            for i in range(2): A(f'buffer_load_dword v{vKX+4+2*m+i}, v{vKX+i}, {wt}, 0 offen')
        srd(A, sWT, 22, 4096 * DM * 2)
        for i in range(2):
            X.set(vT1, X.sel(('lt', tid + 256*i, 320), (G*32 + j)*40960 + (tid + 256*i)*128, OOB))
            A(f'buffer_load_dword v{vKX+10+i}, v{vT1}, {wt}, 0 offen')
    TK = vXACC + 5
    X.set(TK, X.reg(TQ) ^ (128 if P['k2'] else 0))
    SR = (sWT, 56, 60, 64)
    for sr, ptr in zip(SR, (16, 18, 20, 22)): srd(A, sr, ptr, DM * 4096 * 2)
    A(f's_lshl_b32 s70, s{sW}, 10')
    A(f's_mul_i32 s71, s{sW}, {(4 if RM else 16)*8192}')
    A(f's_mul_i32 s74, s{sH}, {128*1280}')
    A(f's_mul_i32 s3, s{sA}, 320')
    A(f's_add_u32 s74, s74, s3')
    def wq(m, i):
        A(f's_add_u32 m0, s70, {40960*(m+1) + 4096*i}')
        A(f's_add_u32 s3, s71, {i*(16 if RM else 64)*8192}')
        A(f'buffer_load_dwordx4 v{TK if m == 1 else TQ}, s[{SR[m]}:{SR[m]+3}], s3 offen lds')
    def wo(i):
        cid = tid + 256*i
        row = (cid*3277) >> 16
        X.set(vT0, row*1280 + (cid - row*20)*16)
        A(f's_add_u32 m0, s70, {4096*i}')
        A('s_nop 0')
        A(f'buffer_load_dwordx4 v{vT0}, s[64:67], s74 offen lds')
    if P['il']:
        for i in range(10):
            for m in range(3): wq(m, i)
            wo(i)
    else:
        for m in range(3):
            for i in range(10): wq(m, i)
        for i in range(10): wo(i)
    if P.get('rot'): rot_verify(A, 24, 60, sTO, 'chain_abort10')
    for q in range(4): X.set(vSent4+q, -1)
    S4 = f'v[{vSent4}:{vSent4+3}]'
    srd(A, sWT, 72, NM*DM*2)
    idn = lambda: j*20 + tid
    X.set(vT2, X.sel(('lt', tid, 20), (idn() & 7)*1280 + (idn() >> 3)*16, OOB))
    A(f'buffer_load_dwordx4 v[{vS}:{vS+3}], v{vT2}, {wt}, 0 offen')
    per = -(-(WS_FILL_END - WS_FILL_BEG) // (128 * 4096))
    X.set(vT1, (G*32 + j)*(per*4096) + tid*16 + WS_FILL_BEG)
    A(f's_mov_b32 s{sWS+2}, {WS_FILL_END:#x}')
    for r in range(per):
        A(f'buffer_store_dwordx4 {S4}, v{vT1}, {WS}, 0 offen sc1')
        A(f'v_add_u32 v{vT1}, 4096, v{vT1}')
    A(f's_mov_b32 s{sWS+2}, {WS_SIZE:#x}')
    A('s_sub_u32 s60, 0, s26')
    A('s_and_b32 s60, s60, 0x1fffff')
    A(f's_add_u32 s60, s60, {WS_X2}')
    X.set(vT1, X.sel(('lt', G*32 + j, 120), (G*32 + j)*16384 + tid*16, OOB))
    for r in range(4):
        A(f'buffer_store_dwordx4 {S4}, v{vT1}, {WS}, s60 offen sc1')
        if P['two']:
            A(f's_add_u32 s61, s60, {OFFB}')
            A(f'buffer_store_dwordx4 {S4}, v{vT1}, {WS}, s61 offen sc1')
        A('s_add_u32 s60, s60, 4096')
    X.set(vS+4, X.sel(('lt', tid, 20), idn()*16 + G*X3_G + WS_X3, OOB))
    X.set(vM2, -2)
    clt8 = ('lt', c, 8); glt2 = ('lt', g, 2); wlt2 = ('lt', w, 2); w0 = ('eq', w, 0)
    X.set(vT0, 0x3f803f80)
    for q in range(4): A(f'v_accvgpr_write_b32 a{aOne+q}, v{vT0}')
    X.set(vT0, X.sel(glt2, 0x3f803f80, 0))
    for q in range(2): A(f'v_accvgpr_write_b32 a{aOneM+q}, v{vT0}')
    slot = lambda: (g*8 + (c & 7))*16
    X.set(vMemR, slot() + (c >> 3)*512)
    X.set(vX3ld, X.sel(wlt2, w*3072, w*2048 + 2048) + X.reg(vMemR))
    X.set(vKr, slot() + L_K)
    X.set(vQr, X.sel(clt8, L_Q, L_QX) + slot())
    tq = lambda: (((a_ ^ w) if P['k2'] else a_) & 2) + (w & 1)
    tt = lambda: a_ & 1
    X.set(vX1st, X.sel(clt8, tq()*1024 + (w >> 1)*512 + slot() + tt()*8, OOB))
    X.set(vV1st, X.sel(('eq', g >> 1, w >> 1), a_*1024 + L16 + (w & 1)*8 + 4096, OOB))
    X.set(vVMld, w*1024 + L16 + 4096)
    X.set(vQKld, w*1024 + L16)
    X.set(vOw, w*1024 + L16 + L_O)
    X.set(vQKw, X.sel(glt2, L_Q, L_K - 512) + w*512 + L16)
    X.set(vT0, (a_*20 + w*4 + (c >> 1))*4096 + ((c & 1)*4 + g)*16)
    X.set(vT1, (a_*20 + 16 + w*2 + ((c >> 2) & 1))*4096 + (((c >> 1) & 1)*4 + g)*16)
    X.set(vT1, X.sel(('eq', (c & 1) + (w & 2), 0), X.reg(vT1), OOB))
    X.set(vX2st, X.sel(clt8, X.reg(vT0), X.reg(vT1)) + h*128)
    xs = X.reg(vX2st)
    X.set(vSR, X.sel(('lt', xs, OOB), (xs >> 13)*16384 + (xs & 8191), OOB))
    X.set(vOFst, X.sel(clt8, OOB, ((a_ >> 1)*128 + h*4 + w)*1024 + tt()*128 + L16 - 128))
    X.set(vT0, X.sel(('lt', j, 16), j*3 + X.sel(wlt2, 2, w & 1), j*2 + 16 + (w & 1)))
    U = X.reg(vT0)
    x2a = lambda Uq, Lq: (Uq*4096 if Lq == 3 else (Uq >> 1)*16384 + (Uq & 1)*4096) + L16 + ((G + (Lq+1)) & 3)*1024
    lo = [lambda: (a_*20 + (L >> 3))*4096 + h*128 + (L & 7)*16,
          lambda: X.sel(('lt', L, 32), X.reg(vR), OOB),
          lambda: a_*2048 + L16,
          lambda: X.sel(('lt', L, 20), j*320 + L16, OOB)]
    for i in range(4):
        X.set(vR+i, X.sel(w0, lo[i](), x2a(U, i)))
    X.set(vR+4, X.sel(('lt', L, 32), a_*4096 + L*128, X.sel(('lt', L, 48), a_*2048 + L*128 + (16384 - 4096), OOB)))
    X.set(vR+5, X.sel(w0, X.sel(('eq', L + j + G, 0), 0, OOB), h*16 + (L & 3)*4 + WS_QP))
    X.set(vR+6, X.sel(('eq', L, 0), 0, OOB))
    if P['pt']: X.set(vKXr, X.sel(('lt', L, 2), ((U + L) >> 1)*16384 + ((U + L) & 1)*4096 + G*1024, OOB))
    X.set(vRinv1, (U + (g >> 1))*8 + (g & 1)*4 + ((c & 7) >> 1))
    frag_addr(vRinv, X.reg(vRinv1))
    X.set(vR+8, X.sel(('eq', (c >> 3) + (g >> 1), 0), X.reg(vRinv) + (c & 1)*8, OOB))
    for q in range(4):
        X.set(vT1, X.sel(('eq', c >> 1, q), X.sel(('eq', c & 1, 0), 0x3f80, 0x3f800000), 0))
        A(f'v_accvgpr_write_b32 a{aSel+q if q < 4 else aSelH+q-4}, v{vT1}')
    X.set(vT1, X.sel(clt8, 63, a_*8 + c - 8))
    for kt in range(2):
        for r in range(4):
            X.set(vBias+4*kt+r, X.sel(('gt', g*4 + (16*kt + r), X.reg(vT1)), f2u(NEG), 0))
    trb = lambda: g*(2048 if RM else 512) + ((L >> 2) & 3)*64 + ((w & 1) ^ (g & 1))*32 + (L & 3)*8
    toff = lambda t: (8192*(t % 5) + 256*(t // 5)) if RM else 2048*t
    thalf = 1024 if RM else 256
    X.set(TA_, trb() + (w >> 1)*40960 + 40960)
    X.set(TV, trb() + 122880)
    wob = lambda: (g*4 + ((L >> 2) & 3))*320 + (L & 3)*8
    X.set(TO1, wob() + w*64)
    X.set(TO2, wob() + (w & 1)*32 + 256)
    X.set(vP+1, X.sel(('eq', tid, 0), 0, OOB))
    X.set(vP+2, (L & 31)*4)
    X.set(vDbg, X.sel(('lt', L, 16), L*4, OOB))
    A(f's_mov_b32 s{sOF}, {WS_OF}')
    A(f's_cmp_lt_u32 s{sJ}, 16')
    A(f's_cselect_b32 s{sNH}, 3, 2')
    A(f's_mov_b32 s{sC2}, {f2u(QSCALE):#x}')
    A(f's_mov_b32 s{sC2+1}, {f2u(QSCALE):#x}')
    A(f's_mul_i32 s{sX3G}, s{sG}, {X3_G}')
    A(f's_add_u32 s{sX3G}, s{sX3G}, {WS_X3}')
    A(f's_lshl_b32 s{sX1H}, s{sH}, 13')
    A(f's_add_u32 s{sX1H}, s{sX1H}, {WS_X1}')
    A(f's_mul_i32 s{sHoff}, s{sH}, {XH}')
    A(f's_add_u32 s{sHoff}, s{sHoff}, {WS_KX}')
    A(f's_lshl_b32 s75, s{sG}, 5')
    A(f's_add_u32 s75, s75, s{sJ}')
    A(f's_lshl_b32 s{sDB}, s75, 2')
    A(f's_add_u32 s{sDB}, s{sDB}, s{sW}')
    A(f's_lshl_b32 s{sDB}, s{sDB}, 12')
    A(f's_add_u32 s{sDB}, s{sDB}, {WS_DBG:#x}')
    A(f's_lshl_b32 s{sKXm}, s{sW}, 11')
    A(f's_lshl_b32 s{sQXr}, s{sA}, 11')
    A(f's_add_u32 s{sQXr}, s{sQXr}, s{sHoff}')
    A(f's_add_u32 s{sQXr}, s{sQXr}, 16384')
    A(f's_add_u32 s{sXr}, s{sHoff}, s{sKXm}')
    A(f's_mov_b32 s{sLrng}, {f2u(2.0**64) - f2u(2.0**-60):#x}')
    A(f's_add_u32 s{sWarm}, s{sHoff}, {XSEG}')
    pst()
    A('s_waitcnt vmcnt(0)')
    for k in range(4): A(f'v_min_u32 v{vS+k}, -2, v{vS+k}')
    A(f'buffer_store_dwordx4 v[{vS}:{vS+3}], v{vS+4}, {WS}, 0 offen sc1')
    A('s_barrier')
    pst()
    for t in range(20):
        A(f'ds_read_b64_tr_b16 a[{4*t}:{4*t+1}], v{TA_} offset:{toff(t)}')
        A(f'ds_read_b64_tr_b16 a[{4*t+2}:{4*t+3}], v{TA_} offset:{toff(t)+thalf}')
        if t % 4 == 3: A('s_waitcnt lgkmcnt(4)')
    A(f's_cmp_ge_u32 s{sW}, 2')
    A('s_cbranch_scc1 v_odd')
    for par in range(2):
        if par: A.label('v_odd')
        for i in range(10):
            A(f'ds_read_b64_tr_b16 a[{80+4*i}:{80+4*i+1}], v{TV} offset:{toff(2*i+par)}')
            A(f'ds_read_b64_tr_b16 a[{80+4*i+2}:{80+4*i+3}], v{TV} offset:{toff(2*i+par)+thalf}')
            if i % 4 == 3: A('s_waitcnt lgkmcnt(4)')
        if not par: A('s_branch v_done')
    A.label('v_done')
    for k in range(3):
        for t in range(4):
            r, o = (TO1, 32*320*t + 32*k) if k < 2 else (TO2, 32*320*t)
            A(f'ds_read_b64_tr_b16 v[{vWO+16*k+4*t}:{vWO+16*k+4*t+1}], v{r} offset:{o}')
            A(f'ds_read_b64_tr_b16 v[{vWO+16*k+4*t+2}:{vWO+16*k+4*t+3}], v{r} offset:{o+16*320}')
        A('s_waitcnt lgkmcnt(0)')
    pst()
    srd(A, sWT, 24, 256)
    wait_start(A, wt, vT0, 74, sTO, 'start_ok', 'chain_abort10', sleep=4)
    pst()
    NS0 = 0
    x2_table(A, X, L, vX2tab, 74, 26, vT1)
    if P.get('dbgout'): A('s_mov_b32 s98, s74')
    A(f's_getreg_b32 s74, hwreg(HW_REG_XCC_ID, 0, 4)')
    A(f's_lshl_b32 s3, s75, 2')
    A(f's_add_u32 s3, s3, {WS_TAB}')
    A(f'v_mov_b32 v{vT1}, s74')
    A(f'buffer_store_dword v{vT1}, v{vP+1}, {WS}, s3 offen sc1')
    if NS0 == 0:
        A(f's_cmp_lg_u32 s{sW}, 1')
        A('s_cbranch_scc1 qp0_ok')
        A(f's_mov_b32 s{sT1}, 1')
        qp_wait(A, 'qp0', 'qp0_ok', shifts=(2,))
        A.label('qp0_ok')
        A('s_barrier')
    A(f's_mov_b32 s{sQok}, {NS0 // 2}')
    pst()
    A(f's_mov_b32 s{sZn}, 2')
    A(f's_mov_b32 s{sZo}, {WS_ZFLAG}')
    A(f's_lshl_b32 s3, s{sG}, 7')
    A(f's_add_u32 s3, s3, {WS_TAB}')
    A(f's_mov_b32 s60, {WS_TAB}')
    A(f'v_lshrrev_b32 v{vT2}, 1, v{vL16}')
    A.label('tab_poll')
    A(f'buffer_load_dwordx2 v[{vRinv}:{vRinv1}], v{vT2}, {WS}, s60 offen sc1')
    A(f'buffer_load_dword v{vT0}, v{vP+2}, {WS}, s3 offen sc1')
    A('s_waitcnt vmcnt(0)')
    emit(A, check_sent([vRinv, vRinv1, vT0], vT3))
    A('s_cbranch_vccz tab_ok')
    bounded(A, 'tab_poll', 5)
    A.label('tab_ok')
    pst()
    A(f'v_cmp_ne_u32 s[68:69], v{vT1}, v{vT0}')
    A(f's_mov_b32 s{sStep}, 0')
    emit(A, kv_list())
    A(f's_cmp_lg_u32 s{sW}, 1')
    A('s_cbranch_scc1 no_q0')
    emit(A, qx_list())
    A(f'buffer_load_dword v{vM}, v{vR+4}, {WS}, s{sWarm} offen sc1')
    A(f's_add_u32 s{sWarm}, s{sWarm}, {XSEG}')
    A.label('no_q0')
    emit(A, slot_list(0))
    A(f'v_readlane_b32 s{sXw}, v{vX2tab}, 4')
    A(f's_xor_b32 s{sXw}, s{sXw}, 8192')
    for k in range(5): A(f's_mov_b32 s{sCnt+k}, 0')
    for mode in ('f', 's'):
        if mode == 'f':
            A('s_cmp_lg_u64 s[68:69], 0')
            A('s_cbranch_scc1 disp_s')
        else:
            A.label('disp_s')
        A(f's_cmp_eq_u32 s{sW}, 0')
        A(f's_cbranch_scc1 j_{mode}D')
        A(f's_cmp_eq_u32 s{sW}, 2')
        A(f's_cbranch_scc1 j_{mode}B')
        A(f's_cmp_eq_u32 s{sW}, 3')
        A(f's_cbranch_scc1 j_{mode}C')
        A(f's_cmp_eq_u32 s{sNH}, 3')
        A(f's_cbranch_scc1 j_{mode}E')
        A(f's_branch entry_{mode}A')
        for r in 'BDEC':
            A.label(f'j_{mode}{r}')
            A(f's_branch entry_{mode}{r}')
    for mode, fl in (('f', ''), ('s', ' sc1')):
        for role in 'DABEC':
            gen_loop(A, mode + role, fl, role, stamps, P)
    A.label('chain_abort10')
    A(f's_mov_b32 s{sT0}, 10')
    A.label('chain_abort')
    srd(A, sWT, 24, 256)
    A(f'v_mov_b32 v{vT0}, s{sT0}')
    A(f'v_mov_b32 v{vT1}, 0')
    A(f'buffer_store_dword v{vT0}, v{vT1}, {wt}, 0 offen')
    A('s_endpgm')
```

```python
from k7_common import *
NEG = -1.0e30
L_MEM = 0
L_Q   = 10240
L_K   = L_Q + 2048
L_O   = L_K + 2048
L_QX  = L_O + 8192
L_KX  = L_QX + 2048
L_XN  = 40960
LDS_BYTES = 163840
assert L_KX + 8192 <= L_XN
sWS, sWT, sC2 = 4, 8, 12
sKXm, sQXr = 14, 15
sCnt = 16
sPar, sQok = 28, 29
sW, sG, sJ, sH, sA, sStep, sTO, sXw = 30, 31, 32, 33, 34, 35, 36, 37
sX3r, sX1, sX2, sX3w, sVXr, sX2L, sXr, sT0, sT1, sOF, sNH = 38, 39, 40, 41, 42, 44, 45, 46, 47, 48, 49
sX3G, sX1H, sDB, sX2B, sHoff, sT2 = 50, 51, 52, 53, 54, 55
OFFB = 0x9000000
sST = 56
sWarm, sLrng, sZn, sZo = 88, 89, 90, 91
vDbg, vX2tab = 0, 1
vX3ld, vMemR, vX1st, vV1st, vQKld, vQKw, vQr, vKr, vVMld, vOw = 2, 3, 4, 5, 6, 7, 8, 9, 10, 11
vX2st, vSR, vOFst, vL16, vKXr, vXNr, vXA, vM2, vM = 12, 13, 14, 15, 16, 17, 18, 19, 20
vR = 21
vT0, vT1, vT2, vT3, vRinv, vRinv1 = 30, 31, 32, 33, 34, 35
vPL = 36
vBias = 40
vLS = 48
vVE = 52
vWO = 56
vKX = 104
vVX = 136
vS = 144
vAcc = 156
vAcc2 = 160
vP = 164
vVM4 = 168
vXACC = 172
vMW = 180
vOFR = 184
vSent4 = 188
vRG = 192
vPS = 224
vQS = 248
aSel, aOne, aSelH, aOneM = 240, 244, 248, 252
WS = f's[{sWS}:{sWS+3}]'

class Stamp:
    def __init__(self, A, on): self.A, self.on, self.n = A, on, 0
    def __call__(self, lvl=2):
        if self.on >= lvl:
            self.A(f'{"s_memrealtime" if self.on == 3 else "s_memtime"} s[{sST+2*self.n}:{sST+2*self.n+1}]')
            self.A('s_waitcnt lgkmcnt(0)')
            self.n += 1
    def flush(self):
        if not self.on: return
        A = self.A
        for k in range(self.n): A(f'v_writelane_b32 v{vT3}, s{sST+2*k}, {k}')
        for k in range(5): A(f'v_writelane_b32 v{vT3}, s{sCnt+k}, {10+k}')
        A(f'v_writelane_b32 v{vT3}, s100, 15')
        A(f's_lshl_b32 s{sT0}, s{sStep}, 6')
        A(f's_add_u32 s{sT0}, s{sT0}, s{sDB}')
        A(f'buffer_store_dword v{vT3}, v{vDbg}, {WS}, s{sT0} offen')

def slot_list(add):
    return [
    f's_add_u32 s{sT0}, s{sStep}, {add}',
    f's_and_b32 s{sT1}, s{sT0}, 63',
    f's_and_b32 s{sT0}, s{sT0}, 3',
    f's_mul_i32 s{sX3r}, s{sT0}, {X3_SLOT}',
    f's_add_u32 s{sX3r}, s{sX3r}, s{sX3G}',
    f'v_readlane_b32 s{sX2}, v{vX2tab}, s{sT1}',
    f's_mul_i32 s{sX2L}, s{sT0}, {X2_SLOT}',
    f's_add_u32 s{sX2L}, s{sX2L}, {WS_X2L}',
    f's_mul_i32 s{sX1}, s{sT0}, {X1_SLOT}',
    f's_add_u32 s{sX1}, s{sX1}, s{sX1H}',
    f's_add_u32 s{sT0}, s{sT0}, 1',
    f's_and_b32 s{sT0}, s{sT0}, 3',
    f's_mul_i32 s{sX3w}, s{sT0}, {X3_SLOT}',
    f's_add_u32 s{sX3w}, s{sX3w}, s{sX3G}']
def reset_list(fl):
    S4 = f'v[{vSent4}:{vSent4+3}]'
    o = [f's_add_u32 s{sT2}, s{sStep}, 2', f's_and_b32 s{sT2}, s{sT2}, 3',
         f's_mul_i32 s{sT0}, s{sT2}, {X2_SLOT}', f's_add_u32 s{sT0}, s{sT0}, {WS_X2L}']
    for i in range(3):
        o.append(f'buffer_store_dwordx4 {S4}, v{vR if i < 2 else vR+1}, {WS}, s{sT0} offen{fl}')
        if i < 2: o.append(f's_add_u32 s{sT0}, s{sT0}, 32768')
    o += [f's_mul_i32 s{sT1}, s{sT2}, {X1_SLOT}', f's_add_u32 s{sT1}, s{sT1}, s{sX1H}',
          f'buffer_store_dwordx4 {S4}, v{vR+2}, {WS}, s{sT1} offen{fl}',
          f'buffer_store_dwordx4 {S4}, v{vR+2}, {WS}, s{sT1} offen offset:1024{fl}',
          f's_add_u32 s{sT2}, s{sT2}, 1', f's_and_b32 s{sT2}, s{sT2}, 3',
          f's_mul_i32 s{sT1}, s{sT2}, {X3_SLOT}', f's_add_u32 s{sT1}, s{sT1}, s{sX3G}',
          f'buffer_store_dwordx4 {S4}, v{vR+3}, {WS}, s{sT1} offen{fl}']
    return o
def kv_list():
    return [f's_add_u32 m0, s{sKXm}, {L_KX}', f's_add_u32 s{sVXr}, s{sXr}, 8192',
            f'buffer_load_dwordx4 v{vL16}, {WS}, s{sXr} offen sc1 lds',
            f'buffer_load_dwordx4 v{vL16}, {WS}, s{sXr} offen offset:1024 sc1 lds',
            f'buffer_load_dwordx4 v[{vVX}:{vVX+3}], v{vL16}, {WS}, s{sVXr} offen sc1',
            f'buffer_load_dwordx4 v[{vVX+4}:{vVX+7}], v{vL16}, {WS}, s{sVXr} offen offset:1024 sc1',
            f's_add_u32 s{sXr}, s{sXr}, {XSEG}']
def qx_list():
    return [f's_mov_b32 m0, {L_QX}', 's_nop 0',
            f'buffer_load_dwordx4 v{vL16}, {WS}, s{sQXr} offen sc1 lds',
            f'buffer_load_dwordx4 v{vL16}, {WS}, s{sQXr} offen offset:1024 sc1 lds',
            f's_add_u32 s{sQXr}, s{sQXr}, {XSEG}']
def bounded(A, top, code):
    A(f's_sub_u32 s{sTO}, s{sTO}, 1')
    A(f's_cbranch_scc0 {top}')
    A(f's_mov_b32 s{sT0}, {code}')
    A('s_branch chain_abort')
def slow_poll(A, lab, back, issue, consume, nl, code, cnt):
    A.label(lab)
    for k in (0, 1):
        if cnt is not None: A(f's_add_u32 s{cnt}, s{cnt}, 1')
        emit(A, issue(k))
        if nl is not None: A(f's_waitcnt vmcnt({nl})')
        emit(A, consume(1 - k))
        A(f's_cbranch_vccz {back[1 - k] if isinstance(back, tuple) else back}')
    bounded(A, lab, code)
def qp_wait(A, lab, back, shifts=(2, 1)):
    A.label(lab)
    A(f'buffer_load_dword v{vT0}, v{vR+5}, {WS}, 0 offen sc1')
    A('s_waitcnt vmcnt(0)')
    for sh in shifts:
        A(f'v_min_i32_dpp v{vT0}, v{vT0}, v{vT0} row_ror:{sh} row_mask:0xf bank_mask:0xf')
        A('s_nop 1')
    A(f'v_readfirstlane_b32 s{sQok}, v{vT0}')
    A(f's_cmp_ge_i32 s{sQok}, s{sT1}')
    A(f's_cbranch_scc1 {back}')
    bounded(A, lab, 9)

def done_count(A, k, lab):
    A(f's_lshl_b32 s{sT0}, s{sG}, 7')
    A(f's_add_u32 s{sT0}, s{sT0}, {WS_DCNT + 512*k}')
    A(f's_mov_b32 s{sT1}, 1')
    A(f's_atomic_add s{sT1}, s[26:27], s{sT0} glc')
    A('s_waitcnt lgkmcnt(0)')
    A(f's_cmp_lg_u32 s{sT1}, 30')
    A(f's_cbranch_scc1 {lab}')
    A(f's_lshl_b32 s{sT0}, s{sG}, 2')
    A(f's_add_u32 s{sT0}, s{sT0}, {WS_FLAG + 128*k}')
    A(f's_mov_b32 s{sT1}, 0')
    A(f's_atomic_and s{sT1}, s[26:27], s{sT0}')
    A('s_waitcnt lgkmcnt(0)')
    A.label(lab)

def gen_loop(A, tag, fl, role, stamps, P):
    wv = dict(D=0, A=1, E=1, B=2, C=3)[role]
    st = Stamp(A, stamps)
    isA = role in 'ADE'
    recv = role in 'BCE'
    NU = 1
    N3 = 3 if isA else 2
    CH0 = (0, 3, 6, 8)[wv]
    cn = (lambda k: sCnt + k) if stamps else (lambda k: None)
    br = lambda nm: f's_cbranch_vccnz {nm}_{tag}' if nm not in P.get('nock', '') else 's_nop 2'
    tails = []
    def x3_issue(k):
        r = vPS + (0 if P['inl'] else 12*k)
        return [f'buffer_load_dwordx4 v[{r+4*i}:{r+4*i+3}], v{vX3ld}, {WS}, s{sX3r} offen offset:{1024*i} sc1' for i in range(N3)]
    def x3_consume(k):
        o = []
        for i in range(N3):
            r = vPS + 12*k + 4*i
            o.append(f's_waitcnt vmcnt({2*N3 - 1 - i})')
            o.append(f'ds_write_b128 v{vX3ld}, v[{r}:{r+3}] offset:{1024*i}')
            o += [f'v_max3_u32 v{vT0}, v{r}, v{r+1}, v{r+2}', f'v_max_u32 v{vT0}, v{vT0}, v{r+3}'] if i == 0 else \
                 [f'v_max3_u32 v{vT0}, v{vT0}, v{r}, v{r+1}', f'v_max3_u32 v{vT0}, v{vT0}, v{r+2}, v{r+3}']
        return o + [f'v_cmp_eq_u32 vcc, -1, v{vT0}', 's_waitcnt lgkmcnt(0)']
    def qk_issue(k):
        return [f'buffer_load_dwordx4 v[{vQS+4*k}:{vQS+4*k+3}], v{vQKld}, {WS}, s{sX1} offen sc1']
    def qk_consume(k):
        return [f'ds_write_b128 v{vQKw}, v[{vQS+4*k}:{vQS+4*k+3}]'] + check_sent(range(vQS+4*k, vQS+4*k+4), vT0) + ['s_waitcnt lgkmcnt(0)']
    LO = (3, 0, 1, 2)
    def x2_issue(k=0):
        return [f'buffer_load_dwordx4 v[{vKX+16*k+4*L}:{vKX+16*k+4*L+3}], v{vR+L}, {WS}, s{(sX2B if k else sX2) if L < 3 else sX2L} offen sc1' for L in LO]
    def x2_consume(young, k=0):
        o = []
        for i, L in enumerate(LO):
            r = vKX + 16*k + 4*L
            o.append(f's_waitcnt vmcnt({young + 3 - i})')
            o.append(M32(v(vAcc, 4), a(aSel, 4), v(r, 4), '0' if i == 0 else v(vAcc, 4)))
            o += [f'v_max3_u32 v{vT0}, v{r}, v{r+1}, v{r+2}', f'v_max_u32 v{vT0}, v{vT0}, v{r+3}'] if i == 0 else \
                 [f'v_max3_u32 v{vT0}, v{vT0}, v{r}, v{r+1}', f'v_max3_u32 v{vT0}, v{vT0}, v{r+2}, v{r+3}']
        return o + [f'v_cmp_eq_u32 vcc, -1, v{vT0}', 's_nop 3']
    top_young = N3

    A.label(f'entry_{tag}')
    emit(A, x3_issue(0))
    A('s_waitcnt vmcnt(0)')
    emit(A, x3_issue(1))
    if stamps:
        A('s_memrealtime s[96:97]')
        A('s_waitcnt lgkmcnt(0)')
    if P['al'] >= 0:
        A(f's_branch loop_{tag}')
        A.raw('.p2align 6')
        for _ in range(P['al']): A('s_nop 0')
    A.label(f'loop_{tag}')
    if stamps: A('s_memrealtime s[100:101]')
    st(1)
    if P['d3']:
        A.label(f'x3t_{tag}')
        for n in range(P['d3']):
            emit(A, x3_consume(n % 2))
            if n < P['d3'] - 1:
                A(f's_cbranch_vccz x3ok_{tag}')
                if stamps: A(f's_add_u32 s{sCnt}, s{sCnt}, 1')
                emit(A, x3_issue(n % 2))
            else:
                A(br('x3s'))
        A.label(f'x3ok_{tag}')
        def x3_more():
            kl = (P['d3'] - 1) % 2
            if kl == 0:
                slow_poll(A, f'x3s_{tag}', f'x3ok_{tag}', x3_issue, x3_consume, None, 1, cn(0))
            else:
                A.label(f'x3s_{tag}')
                if stamps: A(f's_add_u32 s{sCnt}, s{sCnt}, 1')
                emit(A, x3_issue(1))
                bounded(A, f'x3t_{tag}', 1)
        tails.append(x3_more)
    elif P['inl']:
        A.label(f'x3t_{tag}')
        for i in range(N3):
            r = vPS + 4*i
            A(f's_waitcnt vmcnt({2*N3 - 1 - i})')
            if i == 0:
                A(f'v_max3_u32 v{vT0}, v{r}, v{r+1}, v{r+2}'); A(f'v_max_u32 v{vT0}, v{vT0}, v{r+3}')
            else:
                A(f'v_max3_u32 v{vT0}, v{vT0}, v{r}, v{r+1}'); A(f'v_max3_u32 v{vT0}, v{vT0}, v{r+2}, v{r+3}')
            A(f'ds_write_b128 v{vX3ld}, v[{r}:{r+3}] offset:{1024*i}')
        A(f'v_cmp_eq_u32 vcc, -1, v{vT0}')
        A('s_waitcnt lgkmcnt(0)')
        A(br('x3s'))
        def x3_again():
            A.label(f'x3s_{tag}')
            if stamps: A(f's_add_u32 s{sCnt}, s{sCnt}, 1')
            emit(A, x3_issue(0))
            bounded(A, f'x3t_{tag}', 1)
        tails.append(x3_again)
    else:
        emit(A, x3_consume(0))
        A(br('x3s'))
        A.label(f'x3ok_{tag}')
        def x3_light():
            NSET = P['x3l']
            base = [vPS, vPS+12, vKX, vKX+12]
            iss = lambda k: [f'buffer_load_dwordx4 v[{base[k]+4*i}:{base[k]+4*i+3}], v{vX3ld}, {WS}, s{sX3r} offen offset:{1024*i} sc1' for i in range(N3)]
            A.label(f'x3s_{tag}')
            for k in range(2, NSET): emit(A, iss(k))
            A.label(f'x3t_{tag}')
            for k in range(NSET):
                kk = (k + 1) % NSET
                if stamps: A(f's_add_u32 s{sCnt}, s{sCnt}, 1')
                emit(A, iss(k))
                A(f's_waitcnt vmcnt({N3*(NSET-1)})')
                emit(A, check_sent(range(base[kk], base[kk]+4*N3), vT0))
                A(f's_cbranch_vccz x3w{kk}_{tag}')
            bounded(A, f'x3t_{tag}', 1)
            for k in range(NSET):
                A.label(f'x3w{k}_{tag}')
                for i in range(N3): A(f'ds_write_b128 v{vX3ld}, v[{base[k]+4*i}:{base[k]+4*i+3}] offset:{1024*i}')
                A('s_waitcnt lgkmcnt(0)')
                A(f's_branch x3ok_{tag}')
        if P['x3l']: tails.append(x3_light)
        else: tails.append(lambda: slow_poll(A, f'x3s_{tag}', (f'x3ok_{tag}', f'x3o1_{tag}') if P['own'] else f'x3ok_{tag}', x3_issue, x3_consume, None, 1, cn(0)))
    A('s_barrier')
    st()
    MF = lambda i: (vRG + 4*i) if i < 8 else (vS + 4*(i-8))
    mine = list(range(CH0, CH0 + N3)) if P['own'] else []
    order = [i for i in range(10) if i not in mine] + mine
    def p2_head(k):
        for i in order: A(f'ds_read_b128 v[{MF(i)}:{MF(i)+3}], v{vMemR} offset:{1024*i}')
        for i, ch in enumerate(mine):
            r = vPS + 12*k + 4*i
            A(M32(v(vAcc, 4), a(8*ch, 4), v(r, 4), '0' if i == 0 else v(vAcc, 4)))
            A(M32(v(vAcc2, 4), a(8*ch+4, 4), v(r, 4), '0' if i == 0 else v(vAcc2, 4)))
    p2_head(0)
    A.label(f'p2c_{tag}')
    def p2_alt():
        A.label(f'x3o1_{tag}')
        A('s_barrier')
        p2_head(1)
        A(f's_branch p2c_{tag}')
    if mine: tails.append(p2_alt)
    for n, i in enumerate(order):
        if i in mine: break
        A(f's_waitcnt lgkmcnt({9-n})')
        first = (n == 0 and not mine)
        A(M32(v(vAcc, 4), a(8*i, 4), v(MF(i), 4), '0' if first else v(vAcc, 4)))
        A(M32(v(vAcc2, 4), a(8*i+4, 4), v(MF(i), 4), '0' if first else v(vAcc2, 4)))
    if mine: A('s_waitcnt lgkmcnt(0)')
    vm = [M32(v(vVE, 4), v(MF(i), 4), a(80+4*i, 4), '0' if i == 0 else v(vVE, 4)) for i in range(10)]
    NV = P['nv']
    emit(A, vm[:NV])
    if NV < 3: A('s_nop 1')
    for r in range(4): A(f'v_add_f32_dpp v{vAcc+r}, v{vAcc2+r}, v{vAcc+r} row_ror:8 row_mask:0xf bank_mask:0xf')
    if isA:
        A(f'v_pk_mul_f32 v[{vAcc}:{vAcc+1}], v[{vAcc}:{vAcc+1}], s[{sC2}:{sC2+1}]')
        A(f'v_pk_mul_f32 v[{vAcc+2}:{vAcc+3}], v[{vAcc+2}:{vAcc+3}], s[{sC2}:{sC2+1}]')
    A(f'v_cvt_pk_bf16_f32 v{vT0}, v{vAcc}, v{vAcc+1}')
    A(f'v_cvt_pk_bf16_f32 v{vT1}, v{vAcc+2}, v{vAcc+3}')
    A(f'v_min_u32 v{vT0}, -2, v{vT0}')
    A(f'v_min_u32 v{vT1}, -2, v{vT1}')
    A(f'buffer_store_dwordx2 v[{vT0}:{vT1}], v{vX1st}, {WS}, s{sX1} offen{fl}')
    st(3)
    QR = [vQS, vQS if P['inl'] else vQS+4, vXACC, vXACC+4]
    qi = lambda k: f'buffer_load_dwordx4 v[{QR[k]}:{QR[k]+3}], v{vQKld}, {WS}, s{sX1} offen sc1'
    qc = lambda k: [f'ds_write_b128 v{vQKw}, v[{QR[k]}:{QR[k]+3}]'] + check_sent(range(QR[k], QR[k]+4), vT0) + ['s_waitcnt lgkmcnt(0)']
    late0 = P['qkA'] > 20
    emit(A, weave(vm[NV:], [] if late0 else [(P['qkA'], qi(0))]))
    if P['x3l'] > 2: A('s_waitcnt vmcnt(2)')
    for k in range(8):
        A(f'ds_read_b128 v[{vKX+4*k}:{vKX+4*k+3}], v{vL16} offset:{L_KX + 1024*k}')
        if k == 3 and P['q4']: A(qi(2))
    A(f'v_cvt_pk_bf16_f32 v{vT2}, v{vVE}, v{vVE+1}')
    A(f'v_cvt_pk_bf16_f32 v{vT3}, v{vVE+2}, v{vVE+3}')
    A(f'v_min_u32 v{vT2}, -2, v{vT2}')
    A(f'v_min_u32 v{vT3}, -2, v{vT3}')
    A(f'buffer_store_dwordx2 v[{vT2}:{vT3}], v{vV1st}, {WS}, s{sX1} offen{fl}')
    if wv == 1:
        A(f's_add_u32 s{sT1}, s{sStep}, 3')
        A(f's_lshr_b32 s{sT1}, s{sT1}, 1')
        A(f's_cmp_lt_i32 s{sQok}, s{sT1}')
        A(f's_cbranch_scc1 qp_{tag}')
        A.label(f'qpok_{tag}')
        tails.append(lambda: qp_wait(A, f'qp_{tag}', f'qpok_{tag}'))
    if P['q4']:
        A(qi(3))
        A.nop(P['q4'])
    if late0:
        A.nop(P['qkA'] - 20)
        A(qi(0))
    if P['qkgap']: A.nop(P['qkgap'])
    A(qi(1))
    nq = 0
    for _ in range(P.get('wm1', 0)): A(M32(v(vLS, 4), a(aOne, 4), a(aOne, 4), '0'))
    st()
    A(f's_waitcnt vmcnt({(4 if P["q4"] else 1 if late0 else 2) + nq})')
    if P['d1']:
        emit(A, qc(0))
        A(f's_cbranch_vccz qkok_{tag}')
        if stamps: A(f's_add_u32 s{sCnt+1}, s{sCnt+1}, 1')
        A(qi(0))
        A('s_waitcnt vmcnt(1)')
        emit(A, qc(1))
        if P['d1'] > 1:
            A(f's_cbranch_vccz qkok_{tag}')
            A(qi(1))
            A('s_waitcnt vmcnt(1)')
            emit(A, qc(0))
            A(f's_cbranch_vccnz qkt_{tag}')
        else:
            A(br('qks'))
        A.label(f'qkok_{tag}')
        def qk_more():
            A.label(f'qks_{tag}')
            if stamps: A(f's_add_u32 s{sCnt+1}, s{sCnt+1}, 1')
            A(qi(1))
            A('s_waitcnt vmcnt(1)')
            emit(A, qc(0))
            A(f's_cbranch_vccz qkok_{tag}')
            slow_poll(A, f'qkt_{tag}', f'qkok_{tag}', qk_issue, qk_consume, 1, 2, cn(1))
        tails.append(qk_more)
    elif P['inl']:
        A.label(f'qkt_{tag}')
        A(f'v_max3_u32 v{vT0}, v{vQS}, v{vQS+1}, v{vQS+2}')
        A(f'v_max_u32 v{vT0}, v{vT0}, v{vQS+3}')
        A(f'ds_write_b128 v{vQKw}, v[{vQS}:{vQS+3}]')
        A(f'v_cmp_eq_u32 vcc, -1, v{vT0}')
        A('s_waitcnt lgkmcnt(0)')
        A(br('qks'))
        def qk_again():
            A.label(f'qks_{tag}')
            if stamps: A(f's_add_u32 s{sCnt+1}, s{sCnt+1}, 1')
            A(qi(0))
            A('s_waitcnt vmcnt(1)')
            bounded(A, f'qkt_{tag}', 2)
        tails.append(qk_again)
    else:
        emit(A, qc(0))
        A(br('qks'))
        A.label(f'qkok_{tag}')
        def qk_slow():
            A.label(f'qks_{tag}')
            if P['q4']:
                for k, n in ((2, 3), (3, 1)):
                    if stamps: A(f's_add_u32 s{sCnt+1}, s{sCnt+1}, 1')
                    A(f's_waitcnt vmcnt({n})')
                    emit(A, qc(k))
                    A(f's_cbranch_vccz qkok_{tag}')
            slow_poll(A, f'qkt_{tag}', f'qkok_{tag}', qk_issue, qk_consume, 1, 2, cn(1))
        tails.append(qk_slow)
    vm_ld = f'buffer_load_dwordx4 v[{vVM4}:{vVM4+3}], v{vVMld}, {WS}, s{sX1} offen sc1'
    if P['vpos'] in (0, 2): A(vm_ld)
    A('s_barrier')
    st()
    QF, KF = vRG, vRG + 16
    for t in range(4): A(f'ds_read_b128 v[{QF+4*t}:{QF+4*t+3}], v{vQr} offset:{512*t}')
    for t in range(4): A(f'ds_read_b128 v[{KF+4*t}:{KF+4*t+3}], v{vKr} offset:{512*t}')
    if P['vpos'] == 1: A(vm_ld)
    vm2 = f'buffer_load_dwordx4 v[{vXACC}:{vXACC+3}], v{vVMld}, {WS}, s{sX1} offen sc1'
    def smf(i, t):
        src = (vKX + 4*t, vKX + 16 + 4*t, KF + 4*t)[i]
        return M32(v(vS+4*i, 4), v(src, 4), v(QF+4*t, 4), (v(vBias+4*i, 4) if i < 2 else '0') if t == 0 else v(vS+4*i, 4))
    E = lambda r: f'v_exp_f32 v{vS+r}, v{vS+r}'
    C = lambda d, r: f'v_cvt_pk_bf16_f32 v{d}, v{vS+r}, v{vS+r+1}'
    for t in range(4):
        A(f's_waitcnt lgkmcnt({7-t})')
        A(smf(0, t))
    if P['vpos'] == 2: A(vm2)
    for t in range(4):
        A(f's_waitcnt lgkmcnt({3-t})')
        A(smf(2, t))
        if t >= 2: A(E(t - 2))
    A(smf(1, 0)); A(E(2))
    A(smf(1, 1)); A(E(3))
    A(smf(1, 2)); A(E(8))
    A(smf(1, 3)); A(E(9))
    A(E(10)); A(E(11))
    if P.get('att'): st()
    A(f's_waitcnt vmcnt({1 if P["vpos"] == 2 else 0})')
    if P.get('att'): st()
    emit(A, check_sent(range(vVM4, vVM4+4), vT2))
    A(C(vPL, 8)); A(C(vPL+1, 10))
    A(E(4))
    A(br('pvs'))
    A.label(f'pvok_{tag}')
    def pv_slow():
        A.label(f'pvs_{tag}')
        if P['vpos'] == 2:
            if stamps: A(f's_add_u32 s{sCnt+2}, s{sCnt+2}, 1')
            A('s_waitcnt vmcnt(0)')
            emit(A, check_sent(range(vXACC, vXACC+4), vT2))
            for r in range(4): A(f'v_mov_b32 v{vVM4+r}, v{vXACC+r}')
            A('s_nop 0')
            A(f's_cbranch_vccz pvok_{tag}')
        A.label(f'pvt_{tag}')
        if stamps: A(f's_add_u32 s{sCnt+2}, s{sCnt+2}, 1')
        A(vm_ld)
        A('s_waitcnt vmcnt(0)')
        emit(A, check_sent(range(vVM4, vVM4+4), vT2))
        A(f's_cbranch_vccz pvok_{tag}')
        bounded(A, f'pvt_{tag}', 3)
    tails.append(pv_slow)
    pvm = [M16(v(vAcc, 4), v(vVM4, 2), v(vPL, 2), '0'), M16(v(vAcc2, 4), v(vVM4+2, 2), v(vPL, 2), '0'),
           M16(v(vLS, 4), a(aOneM, 2), v(vPL, 2), '0')]
    A(pvm[0]); A(E(5))
    if wv == 1 and P['tatt']: A(f'buffer_load_dword v{vM2+0 if False else vXA}, v{vR+4}, {WS}, s{sWarm} offen sc1')
    if role == 'D' and P['tlb']: A(f'buffer_load_dword v{vXA}, v{vR+6}, {WS}, s{sXw} offen sc1')
    if role == 'D' and P['tail2']:
        A(f's_cmp_eq_u32 s{sStep}, {NSEG-1}')
        A(f's_cbranch_scc1 d62_{tag}')
        A.label(f'd62ok_{tag}')
        def d62():
            A.label(f'd62_{tag}')
            A(f's_lshl_b32 s{sT0}, s{sG}, 7')
            A(f's_add_u32 s{sT0}, s{sT0}, {WS_DCNT}')
            A(f'v_mov_b32 v{vT0}, 1')
            A(f'buffer_atomic_add v{vT0}, v{vR+6}, {WS}, s{sT0} offen')
            A(f's_mov_b32 s{sT0}, {WS_PROG + 61*128}')
            A(f'buffer_store_dword v{vM2}, v{vR+5}, {WS}, s{sT0} offen sc1')
            A(f's_branch d62ok_{tag}')
        tails.append(d62)
    A(pvm[1]); A(E(6))
    if wv == 1 and P['qpa']: A(f'buffer_load_dword v{vMW}, v{vR+5}, {WS}, 0 offen sc1')
    if P['pt'] & 1: A(f'buffer_load_dword v{vXNr}, v{vSR}, {WS}, s{sX2} offen sc1')
    A(pvm[2]); A(E(7))
    if recv and P['pt'] & 2: A(f'buffer_load_dword v{vXNr}, v{vKXr}, {WS}, s{sX2} offen sc1')
    A(C(vP, 0)); A(C(vP+1, 2)); A(C(vP+2, 4)); A(C(vP+3, 6))
    A('s_nop 1')
    if P.get('att'): st()
    D = vPS
    NTL = 3 if isA else 2
    def pv_fin():
        A(M32(v(vAcc, 4), v(vVX, 4), v(vP, 4), v(vAcc, 4)))
        A(M32(v(vAcc2, 4), v(vVX+4, 4), v(vP, 4), v(vAcc2, 4)))
        A(M32(v(vLS, 4), a(aOne, 4), v(vP, 4), v(vLS, 4)))
        A.nop(P['pvnop'])
        A(f'v_cvt_pk_bf16_f32 v{vOFR}, v{vAcc}, v{vAcc+1}')
        A(f'v_cvt_pk_bf16_f32 v{vOFR+1}, v{vAcc+2}, v{vAcc+3}')
        A(f'v_cvt_pk_bf16_f32 v{vOFR+2}, v{vAcc2}, v{vAcc2+1}')
        A(f'v_cvt_pk_bf16_f32 v{vOFR+3}, v{vAcc2+2}, v{vAcc2+3}')
        A(f'ds_write_b128 v{vOw}, v[{vOFR}:{vOFR+3}]')
        A(f'v_rcp_f32 v{vRinv}, v{vLS}')
        for k in range(NTL): A(M32(v(D+4*k, 4), v(vWO+16*k+4*wv, 4), v(vOFR, 4), '0'))
    pv_fin()
    A(f'v_subrev_u32 v{vT0}, {f2u(2.0**-60):#x}, v{vLS}')
    A(f'v_cmp_le_u32 vcc, s{sLrng}, v{vT0}')
    A(f'v_mov_b32 v{vRinv1}, v{vRinv}')
    A(f's_cmp_eq_u32 s{sStep}, {NSEG-1}')
    A('s_waitcnt lgkmcnt(0)')
    A(br('smx'))
    A.label(f'smok_{tag}')
    def sm_slow():
        A.label(f'smx_{tag}')
        if stamps: A(f's_add_u32 s{sCnt+4}, s{sCnt+4}, 1')
        for i in range(3):
            for t in range(4): A(smf(i, t))
        A.nop(8)
        A(f'v_max3_f32 v{vM}, v{vS}, v{vS+1}, v{vS+2}')
        for r in range(3, 11, 2): A(f'v_max3_f32 v{vM}, v{vM}, v{vS+r}, v{vS+r+1}')
        A(f'v_max_f32 v{vM}, v{vM}, v{vS+11}')
        for sw in ('16', '32'):
            A(f'v_mov_b32 v{vT0}, v{vM}')
            A.nop(2)
            A(f'v_permlane{sw}_swap_b32 v{vT0}, v{vM}')
            A.nop(1)
            A(f'v_max_f32 v{vM}, v{vM}, v{vT0}')
        for r in range(12): A(f'v_sub_f32 v{vS+r}, v{vS+r}, v{vM}')
        for r in range(12): A(E(r))
        A.nop(1)
        A(C(vP, 0)); A(C(vP+1, 2)); A(C(vP+2, 4)); A(C(vP+3, 6)); A(C(vPL, 8)); A(C(vPL+1, 10))
        A.nop(2)
        emit(A, pvm)
        A.nop(6)
        pv_fin()
        A.nop(1)
        A(f'v_mov_b32 v{vRinv1}, v{vRinv}')
        A(f's_cmp_eq_u32 s{sStep}, {NSEG-1}')
        A('s_waitcnt lgkmcnt(0)')
        A(f's_branch smok_{tag}')
    tails.append(sm_slow)
    A(f's_cbranch_scc1 last_{tag}')
    A('s_barrier')
    st()
    OF4 = vRG
    TS = [t for t in range(4) if t != wv]
    for t in TS: A(f'ds_read_b128 v[{OF4+4*t}:{OF4+4*t+3}], v{vL16} offset:{L_O + 1024*t}')
    R = vS
    RI = f'v[{vRinv}:{vRinv1}]'
    def scale_cvt(k):
        return [f'v_pk_mul_f32 v[{D+4*k}:{D+4*k+1}], v[{D+4*k}:{D+4*k+1}], {RI}',
                f'v_pk_mul_f32 v[{D+4*k+2}:{D+4*k+3}], v[{D+4*k+2}:{D+4*k+3}], {RI}',
                f'v_cvt_pk_bf16_f32 v{D+4*k}, v{D+4*k}, v{D+4*k+1}',
                f'v_cvt_pk_bf16_f32 v{D+4*k+1}, v{D+4*k+2}, v{D+4*k+3}']
    mind = lambda d, s_, ctl: f'v_min_u32_dpp v{d}, v{s_}, v{vM2} ' + ctl.replace(' bank', ' row_mask:0xf bank')
    export = []
    for r in (0, 2):
        export.append(f'v_pk_mul_f32 v[{vAcc+r}:{vAcc+r+1}], v[{vAcc+r}:{vAcc+r+1}], {RI}')
        export.append(f'v_pk_mul_f32 v[{vAcc2+r}:{vAcc2+r+1}], v[{vAcc2+r}:{vAcc2+r+1}], {RI}')
    export += [f'v_cvt_pk_bf16_f32 v{vOFR}, v{vAcc}, v{vAcc+1}', f'v_cvt_pk_bf16_f32 v{vOFR+1}, v{vAcc+2}, v{vAcc+3}',
               f'v_cvt_pk_bf16_f32 v{vOFR+2}, v{vAcc2}, v{vAcc2+1}', f'v_cvt_pk_bf16_f32 v{vOFR+3}, v{vAcc2+2}, v{vAcc2+3}',
               f'buffer_store_dwordx4 v[{vOFR}:{vOFR+3}], v{vOFst}, {WS}, s{sOF} offen sc1',
               f's_add_u32 s{sOF}, s{sOF}, {2*128*1024}']
    emit(A, export[:6])
    op = []
    for n, k in enumerate([2, 0, 1] if isA else [0, 1]):
        for i, t in enumerate(TS):
            if n == 0: op.append(f's_waitcnt lgkmcnt({2-i})')
            op.append(M32(v(D+4*k, 4), v(vWO+16*k+4*t, 4), v(OF4+4*t, 4), v(D+4*k, 4)))
    ident = 'quad_perm:[0,1,2,3] bank_mask:0x3'
    if isA:
        single = scale_cvt(2) + ['s_nop 0', mind(R, D+8, 'row_shr:8 bank_mask:0xc'), mind(R+1, D+9, 'row_shr:8 bank_mask:0xc'),
                                 mind(R+2, D+8, 'row_shr:7 bank_mask:0xc'), mind(R+3, D+9, 'row_shr:7 bank_mask:0xc')]
        emit(A, weave(op, export[6:8] + [(6, x) for x in single], per=3))
    else:
        emit(A, weave(op, export[6:8]))
    emit(A, scale_cvt(0))
    A.nop(2)
    A(mind(R, D, ident)); A(mind(R+1, D+1, ident))
    emit(A, scale_cvt(1))
    A.nop(1)
    A(mind(R+2, D+4, ident)); A(mind(R+3, D+5, ident))
    A(f'buffer_store_dwordx4 v[{R}:{R+3}], v{vSR}, {WS}, s{sX2} offen sc1')
    A(f'buffer_store_dwordx4 v[{R}:{R+3}], v{vX2st}, {WS}, s{sX2L} offen{fl}')
    if P['two']: A(f'buffer_store_dwordx4 v[{R}:{R+3}], v{vSR}, {WS}, s{sX2B} offen sc1')
    st()
    pre = kv_list() if not P.get('nokv') else []
    late = list(export[8:])
    if role == 'D':
        A(f's_cmp_eq_u32 s{sStep}, s{sZn}')
        A(f's_cbranch_scc1 z1_{tag}')
        A.label(f'z1ok_{tag}')
        def z1():
            A.label(f'z1_{tag}')
            A(f'v_lshrrev_b32 v{vT2}, 1, v{vL16}')
            A(f'buffer_load_dwordx2 v[{vT0}:{vT1}], v{vT2}, {WS}, s{sZo} offen sc1')
            A('s_waitcnt vmcnt(0)')
            emit(A, check_sent([vT0, vT1], vT0))
            A(f's_cbranch_vccz z2_{tag}')
            bounded(A, f'z1_{tag}', 8)
            A.label(f'z2_{tag}')
            A(f's_add_u32 s{sZo}, s{sZo}, 512')
            A(f's_cmp_eq_u32 s{sZn}, 2')
            A(f's_cselect_b32 s{sZn}, 7, 23')
            A(f's_branch z1ok_{tag}')
        tails.append(z1)
        late += reset_list(fl)
        late += [f's_lshl_b32 s{sT0}, s{sStep}, 7', f's_add_u32 s{sT0}, s{sT0}, {WS_PROG - 256}',
                 f'buffer_store_dword v{vM2}, v{vR+5}, {WS}, s{sT0} offen sc1']
        late += [f's_add_u32 s{sT0}, s{sStep}, 5', f's_min_u32 s{sT0}, s{sT0}, 63', f'v_readlane_b32 s{sXw}, v{vX2tab}, s{sT0}',
                 f's_xor_b32 s{sXw}, s{sXw}, 8192']
    if wv == 1:
        touch = [f'buffer_load_dword v{vM}, v{vR+4}, {WS}, s{sWarm} offen sc1', f's_add_u32 s{sWarm}, s{sWarm}, {XSEG}']
        if P.get('notouch') or P['tatt']: touch = touch[1:]
        dl = []
        n = P['tdel']
        while n > 0: dl.append(f's_nop {min(n,16)-1}'); n -= 16
        pre = (touch + qx_list() + pre) if P['tfirst'] else (qx_list() + pre + dl + touch)
    if recv:
        if not isA and P['kvS']: A(f's_sleep {P["kvS"]}')
        emit(A, pre)
        A(f's_sleep {P["pollS"] - (P["pollE"] if isA else P["kvS"])}')
        emit(A, x2_issue())
        emit(A, late)
        st()
        if P.get('diag'):
            A(f's_waitcnt vmcnt({nvm(late) + 4*NU + 4})'); st()
            A(f's_waitcnt vmcnt({nvm(late) + 4*NU})'); st()
        if P['two']:
            A(f's_sleep {P["two"]}')
            emit(A, x2_issue(1))
        emit(A, x2_consume(nvm(late) + (4 if P['two'] else 0)))
        for _ in range(P['d2']):
            A(f's_cbranch_vccz x2ok_{tag}')
            if stamps: A(f's_add_u32 s{sCnt+3}, s{sCnt+3}, 1')
            emit(A, x2_issue())
            emit(A, x2_consume(0))
        A(br('x2s'))
        A.label(f'x2ok_{tag}')
        def x2_slow():
            A.label(f'x2s_{tag}')
            if P['two']:
                if stamps: A(f's_add_u32 s{sCnt+2}, s{sCnt+2}, 1')
                emit(A, x2_consume(0, 1))
                A(f's_cbranch_vccz x2ok_{tag}')
            A.label(f'x2t_{tag}')
            if stamps: A(f's_add_u32 s{sCnt+3}, s{sCnt+3}, 1')
            emit(A, x2_issue())
            emit(A, x2_consume(0))
            A(f's_cbranch_vccz x2ok_{tag}')
            bounded(A, f'x2t_{tag}', 4)
        tails.append(x2_slow)
        st()
        for r in range(4): A(f'v_add_f32_dpp v{vAcc2+r}, v{vAcc+r}, v{vAcc+r} row_ror:8 row_mask:0xf bank_mask:0xf')
        A(f'v_cvt_pk_bf16_f32 v{vT0}, v{vAcc2}, v{vAcc2+1}')
        A(f'v_cvt_pk_bf16_f32 v{vT1}, v{vAcc2+2}, v{vAcc2+3}')
        A(f'v_min_u32 v{vT0}, -2, v{vT0}')
        A(f'v_min_u32 v{vT1}, -2, v{vT1}')
        A(f'buffer_store_dwordx2 v[{vT0}:{vT1}], v{vR+8}, {WS}, s{sX3w} offen{fl}')
    else:
        emit(A, pre)
        if P['lateS']: A(f's_sleep {P["lateS"]}')
        emit(A, late)
        st(); st()
    sl = slot_list(1)
    if not recv: emit(A, sl)
    if P['nob4'] == 0: A('s_barrier')
    elif not recv: A.nop(P['nob4'] - (60 if role == 'D' else 0))
    st.flush()
    if recv: emit(A, sl[:5])
    A.nop(P['x3d'] if not recv else max(0, P['x3d'] - 8))
    emit(A, x3_issue(0))
    if recv: emit(A, sl[5:])
    if wv == 1 and P['qpa']:
        A(f's_waitcnt vmcnt({N3 + 1})')
        for sh in (2, 1):
            A(f'v_min_i32_dpp v{vMW}, v{vMW}, v{vMW} row_ror:{sh} row_mask:0xf bank_mask:0xf')
            A('s_nop 1')
        A(f'v_readfirstlane_b32 s{sT1}, v{vMW}')
        A(f's_max_i32 s{sQok}, s{sQok}, s{sT1}')
    A(f's_add_u32 s{sStep}, s{sStep}, 1')
    A('s_sleep 1')
    emit(A, x3_issue(1))
    for _ in range(P.get('wm3', 0)): A(M32(v(vVE, 4), a(aOne, 4), a(aOne, 4), '0'))
    A(f's_branch loop_{tag}')
    A.label(f'last_{tag}')
    emit(A, export)
    if role == 'D' and not P['tail2']:
        A(f's_mov_b32 s{sT0}, {WS_PROG + 61*128}')
        A(f'buffer_store_dword v{vM2}, v{vR+5}, {WS}, s{sT0} offen sc1')
    A('s_waitcnt vmcnt(0)')
    A('s_barrier')
    if role == 'D' and P['tail2']: done_count(A, 1, f'dn1_{tag}')
    if role == 'D' and not P['tail2']:
        A(f's_lshl_b32 s{sT0}, s{sG}, 5')
        A(f's_add_u32 s{sT0}, s{sT0}, s{sJ}')
        A(f's_lshl_b32 s{sT0}, s{sT0}, 2')
        A(f's_add_u32 s{sT0}, s{sT0}, {WS_FLAG}')
        A(f'v_cmp_eq_u32 vcc, 0, v{vL16}')
        A(f'v_mov_b32 v{vT0}, {OOB:#x}')
        A('s_nop 1')
        A(f'v_cndmask_b32 v{vT0}, v{vT0}, 0, vcc')
        A(f'buffer_store_dword v{vM2}, v{vT0}, {WS}, s{sT0} offen sc1')
    if stamps:
        A('s_memrealtime s[100:101]')
        A('s_waitcnt lgkmcnt(0)')
        A(f'v_writelane_b32 v{vT3}, s{sST}, 0')
        for k, r in enumerate((94, 96, 100, 76, 78, 80, 82, 84, 86)): A(f'v_writelane_b32 v{vT3}, s{r}, {1+k}')
        A(f's_add_u32 s{sT0}, s{sDB}, {63*64}')
        A(f'buffer_store_dword v{vT3}, v{vDbg}, {WS}, s{sT0} offen')
        if P.get('dbgout') and role == 'D':
            A(f'v_writelane_b32 v{vT3}, s74, 10')
            A(f'v_readlane_b32 s{sT0}, v{vX2tab}, 0')
            A(f'v_writelane_b32 v{vT3}, s{sT0}, 11')
            A(f'v_writelane_b32 v{vT3}, s98, 12')
            srd(A, sWT, 24, 64)
            A(f's_add_u32 s{sT0}, s{sJ}, s{sG}')
            A(f's_cmp_eq_u32 s{sT0}, 0')
            A(f's_cselect_b32 s{sT0}, 12, 64')
            A(f'buffer_store_dword v{vT3}, v{vDbg}, s[{sWT}:{sWT+3}], s{sT0} offen')
    A('s_endpgm')
    for t in tails: t()

DEFAULT_P = dict(inl=0, d3=4, d1=1, d2=0, qpa=1, tail2=0, il=0, k2=0, bil=0, brm=0, vhelp=0, rmap=0, wfl='', two=0, own=0, lin2=0, rot=1, kvS=2, nv=3, coop=0, ns0=0, bdel=0, vpos=0, pollE=2, al=0, x3l=0, lateS=0, pt=0, lin=0, cpf=1, pollS=5, q4=0, x3d=0, nob4=0, tlb=1, tatt=1, tdel=0, tfirst=0, pollA=80, qkA=5, qkgap=0, x3A=4, x3B=8, x3gap=16, pvnop=6)

def gen_chain(A, stamps, P):
    wt = f's[{sWT}:{sWT+3}]'
    npst = [0]
    def pst():
        if stamps == 1:
            A(f's_memrealtime s[{76+2*npst[0]}:{77+2*npst[0]}]'); A('s_waitcnt lgkmcnt(0)'); npst[0] += 1
    if stamps: A('s_memrealtime s[94:95]')
    if P['cpf']: code_prefetch(A, 250, 8)
    A('s_load_dwordx4 s[16:19], s[0:1], 16')
    A('s_load_dwordx4 s[20:23], s[0:1], 32')
    A('s_load_dwordx4 s[24:27], s[0:1], 96')
    A('s_load_dwordx2 s[72:73], s[0:1], 8')
    F = 232
    X = VX(A, vRG, F, 3)
    A(f'v_lshrrev_b32 v{F+3}, 6, v0')
    A(f'v_and_b32 v{F}, 63, v0')
    A(f'v_readfirstlane_b32 s{sW}, v{F+3}')
    A(f'v_bfe_u32 v{F+1}, v0, 4, 2')
    A(f'v_and_b32 v{F+2}, 15, v0')
    A(f's_and_b32 s{sG}, s2, 3')
    A(f's_lshr_b32 s{sJ}, s2, 3')
    A(f's_lshr_b32 s{sH}, s{sJ}, 2')
    A(f's_lshl_b32 s3, s{sG}, 3')
    A(f's_add_u32 s{sH}, s{sH}, s3')
    A(f's_and_b32 s{sA}, s{sJ}, 3')
    A(f's_and_b32 s{sPar}, s{sA}, 1')
    A(f's_mov_b32 s{sTO}, 0x400000')
    for i, sr in enumerate((sA, sH, sJ, sG)): A(f'v_mov_b32 v{F+4+i}, s{sr}')
    A(f'v_mov_b32 v{F+8}, v0')
    L, g, c, w, a_, h, j, G, tid = [X.reg(F+i) for i in range(9)]
    X.set(vL16, L*16)
    L16 = X.reg(vL16)
    def frag_addr(dst, it):
        X.set(vT1, ((it >> 3)*3277) >> 16)
        ua = X.reg(vT1)
        X.set(vT2, (it >> 3) - ua*20)
        u = X.reg(vT2)
        g1, r1, gh = (lambda: (it >> 2) & 1), (lambda: (it >> 1) & 1), (lambda: it & 1)
        X.set(vT3, (ua*5 + (u >> 2))*512 + ((g1()*2 + gh())*8 + (u & 3)*2 + r1())*16)
        X.set(dst, (ua*5 + 4)*512 + (((u & 2) + gh())*8 + (u & 1)*4 + r1()*2 + g1())*16)
        X.set(dst, X.sel(('lt', u, 16), X.reg(vT3), X.reg(dst)))
    TQ, TA_, TV, TO1, TO2 = [vXACC + i for i in range(5)]
    RM = P['rmap']
    if RM: X.set(TQ, (((L >> 2) & 3) + (L >> 4)*160)*8192 + (((L >> 1) & 1) ^ (w >> 1))*32 + (L & 1)*16 + h*256 + a_*64)
    else: X.set(TQ, (L >> 2)*8192 + (((L >> 1) & 1) ^ ((L >> 5) & 1))*32 + (L & 1)*16 + h*256 + a_*64)
    A('s_waitcnt lgkmcnt(0)')
    srd(A, sWS, 26, WS_SIZE)
    if P['lin']: lin_touch(A, X, tid, vKX, sWT, (16, 18, 20, 22))
    A(f's_lshl_b32 s3, s{sG}, 5')
    A(f's_add_u32 s3, s3, s{sJ}')
    A(f's_lshl_b32 s60, s{sW}, 7')
    A('s_add_u32 s3, s3, s60')
    A('s_cmp_ge_u32 s3, 22')
    A('s_cbranch_scc1 cal_done')
    A('s_sub_u32 s60, 0, s26')
    A('s_and_b32 s60, s60, 0x1fffff')
    A(f's_lshl_b32 s61, s{sJ}, 21')
    A('s_add_u32 s60, s60, s61')
    A(f's_add_u32 s60, s60, {WS_X2 + 0x1f8000}')
    A('s_add_u32 s70, s26, s60')
    A('s_addc_u32 s71, s27, 0')
    A('s_mov_b32 s62, -1')
    A('s_mov_b32 s63, -1')
    for rep in range(P['calrep']):
        for hf in range(2):
            A('s_mov_b32 s61, 0')
            A('s_memtime s[64:65]')
            A('s_waitcnt lgkmcnt(0)')
            A(f's_atomic_or s61, s[70:71], {hf*8192 + (rep&1)*4096} glc')
            A('s_waitcnt lgkmcnt(0)')
            A('s_memtime s[66:67]')
            A('s_waitcnt lgkmcnt(0)')
            A('s_sub_u32 s64, s66, s64')
            A(f's_min_u32 s{62+hf}, s{62+hf}, s64')
    A('s_cmp_lt_u32 s63, s62')
    A('s_cselect_b32 s61, 1, 0')
    A(f's_lshl_b32 s61, s61, s{sJ}')
    if P.get('rot'):
        rot_poll(A, 24, 60, sTO, 'chain_abort10')
        A(f's_cmp_lg_u32 s60, s{sRot}')
        A('s_cbranch_scc1 cal_done')
    A(f's_atomic_or s61, s[24:25], {DBG_MASK} glc')
    A('s_waitcnt lgkmcnt(0)')
    arrive_s(A, 24, 61, 'cal_done')
    A.label('cal_done')
    if P['coop']:
        for i in range(2):
            X.set(vKX+i, X.sel(('lt', tid + 256*i, 320), (j*20 + ((tid + 256*i) >> 4))*8192 + G*2048 + (tid & 15)*128, OOB))
        for m, ptr in enumerate((16, 18, 20)):
            srd(A, sWT, ptr, DM * 4096 * 2)
            for i in range(2): A(f'buffer_load_dword v{vKX+4+2*m+i}, v{vKX+i}, {wt}, 0 offen')
        srd(A, sWT, 22, 4096 * DM * 2)
        for i in range(2):
            X.set(vT1, X.sel(('lt', tid + 256*i, 320), (G*32 + j)*40960 + (tid + 256*i)*128, OOB))
            A(f'buffer_load_dword v{vKX+10+i}, v{vT1}, {wt}, 0 offen')
    TK = vXACC + 5
    X.set(TK, X.reg(TQ) ^ (128 if P['k2'] else 0))
    SR = (sWT, 56, 60, 64)
    for sr, ptr in zip(SR, (16, 18, 20, 22)): srd(A, sr, ptr, DM * 4096 * 2)
    A(f's_lshl_b32 s70, s{sW}, 10')
    A(f's_mul_i32 s71, s{sW}, {(4 if RM else 16)*8192}')
    A(f's_mul_i32 s74, s{sH}, {128*1280}')
    A(f's_mul_i32 s3, s{sA}, 320')
    A(f's_add_u32 s74, s74, s3')
    def wq(m, i):
        A(f's_add_u32 m0, s70, {40960*(m+1) + 4096*i}')
        A(f's_add_u32 s3, s71, {i*(16 if RM else 64)*8192}')
        A(f'buffer_load_dwordx4 v{TK if m == 1 else TQ}, s[{SR[m]}:{SR[m]+3}], s3 offen lds')
    def wo(i):
        cid = tid + 256*i
        row = (cid*3277) >> 16
        X.set(vT0, row*1280 + (cid - row*20)*16)
        A(f's_add_u32 m0, s70, {4096*i}')
        A('s_nop 0')
        A(f'buffer_load_dwordx4 v{vT0}, s[64:67], s74 offen lds')
    if P['il']:
        for i in range(10):
            for m in range(3): wq(m, i)
            wo(i)
    else:
        for m in range(3):
            for i in range(10): wq(m, i)
        for i in range(10): wo(i)
    if P.get('rot'): rot_verify(A, 24, 60, sTO, 'chain_abort10')
    for q in range(4): X.set(vSent4+q, -1)
    S4 = f'v[{vSent4}:{vSent4+3}]'
    srd(A, sWT, 72, NM*DM*2)
    idn = lambda: j*20 + tid
    X.set(vT2, X.sel(('lt', tid, 20), (idn() & 7)*1280 + (idn() >> 3)*16, OOB))
    A(f'buffer_load_dwordx4 v[{vS}:{vS+3}], v{vT2}, {wt}, 0 offen')
    per = -(-(WS_FILL_END - WS_FILL_BEG) // (128 * 4096))
    X.set(vT1, (G*32 + j)*(per*4096) + tid*16 + WS_FILL_BEG)
    A(f's_mov_b32 s{sWS+2}, {WS_FILL_END:#x}')
    for r in range(per):
        A(f'buffer_store_dwordx4 {S4}, v{vT1}, {WS}, 0 offen sc1')
        A(f'v_add_u32 v{vT1}, 4096, v{vT1}')
    A(f's_mov_b32 s{sWS+2}, {WS_SIZE:#x}')
    A('s_sub_u32 s60, 0, s26')
    A('s_and_b32 s60, s60, 0x1fffff')
    A(f's_add_u32 s60, s60, {WS_X2}')
    X.set(vT1, X.sel(('lt', G*32 + j, 120), (G*32 + j)*16384 + tid*16, OOB))
    for r in range(4):
        A(f'buffer_store_dwordx4 {S4}, v{vT1}, {WS}, s60 offen sc1')
        if P['two']:
            A(f's_add_u32 s61, s60, {OFFB}')
            A(f'buffer_store_dwordx4 {S4}, v{vT1}, {WS}, s61 offen sc1')
        A('s_add_u32 s60, s60, 4096')
    X.set(vS+4, X.sel(('lt', tid, 20), idn()*16 + G*X3_G + WS_X3, OOB))
    X.set(vM2, -2)
    clt8 = ('lt', c, 8); glt2 = ('lt', g, 2); wlt2 = ('lt', w, 2); w0 = ('eq', w, 0)
    X.set(vT0, 0x3f803f80)
    for q in range(4): A(f'v_accvgpr_write_b32 a{aOne+q}, v{vT0}')
    X.set(vT0, X.sel(glt2, 0x3f803f80, 0))
    for q in range(2): A(f'v_accvgpr_write_b32 a{aOneM+q}, v{vT0}')
    slot = lambda: (g*8 + (c & 7))*16
    X.set(vMemR, slot() + (c >> 3)*512)
    X.set(vX3ld, X.sel(wlt2, w*3072, w*2048 + 2048) + X.reg(vMemR))
    X.set(vKr, slot() + L_K)
    X.set(vQr, X.sel(clt8, L_Q, L_QX) + slot())
    tq = lambda: (((a_ ^ w) if P['k2'] else a_) & 2) + (w & 1)
    tt = lambda: a_ & 1
    X.set(vX1st, X.sel(clt8, tq()*1024 + (w >> 1)*512 + slot() + tt()*8, OOB))
    X.set(vV1st, X.sel(('eq', g >> 1, w >> 1), a_*1024 + L16 + (w & 1)*8 + 4096, OOB))
    X.set(vVMld, w*1024 + L16 + 4096)
    X.set(vQKld, w*1024 + L16)
    X.set(vOw, w*1024 + L16 + L_O)
    X.set(vQKw, X.sel(glt2, L_Q, L_K - 512) + w*512 + L16)
    X.set(vT0, (a_*20 + w*4 + (c >> 1))*4096 + ((c & 1)*4 + g)*16)
    X.set(vT1, (a_*20 + 16 + w*2 + ((c >> 2) & 1))*4096 + (((c >> 1) & 1)*4 + g)*16)
    X.set(vT1, X.sel(('eq', (c & 1) + (w & 2), 0), X.reg(vT1), OOB))
    X.set(vX2st, X.sel(clt8, X.reg(vT0), X.reg(vT1)) + h*128)
    xs = X.reg(vX2st)
    X.set(vSR, X.sel(('lt', xs, OOB), (xs >> 13)*16384 + (xs & 8191), OOB))
    X.set(vOFst, X.sel(clt8, OOB, ((a_ >> 1)*128 + h*4 + w)*1024 + tt()*128 + L16 - 128))
    X.set(vT0, X.sel(('lt', j, 16), j*3 + X.sel(wlt2, 2, w & 1), j*2 + 16 + (w & 1)))
    U = X.reg(vT0)
    x2a = lambda Uq, Lq: (Uq*4096 if Lq == 3 else (Uq >> 1)*16384 + (Uq & 1)*4096) + L16 + ((G + (Lq+1)) & 3)*1024
    lo = [lambda: (a_*20 + (L >> 3))*4096 + h*128 + (L & 7)*16,
          lambda: X.sel(('lt', L, 32), X.reg(vR), OOB),
          lambda: a_*2048 + L16,
          lambda: X.sel(('lt', L, 20), j*320 + L16, OOB)]
    for i in range(4):
        X.set(vR+i, X.sel(w0, lo[i](), x2a(U, i)))
    X.set(vR+4, X.sel(('lt', L, 32), a_*4096 + L*128, X.sel(('lt', L, 48), a_*2048 + L*128 + (16384 - 4096), OOB)))
    X.set(vR+5, X.sel(w0, X.sel(('eq', L + j + G, 0), 0, OOB), h*16 + (L & 3)*4 + WS_QP))
    X.set(vR+6, X.sel(('eq', L, 0), 0, OOB))
    if P['pt']: X.set(vKXr, X.sel(('lt', L, 2), ((U + L) >> 1)*16384 + ((U + L) & 1)*4096 + G*1024, OOB))
    X.set(vRinv1, (U + (g >> 1))*8 + (g & 1)*4 + ((c & 7) >> 1))
    frag_addr(vRinv, X.reg(vRinv1))
    X.set(vR+8, X.sel(('eq', (c >> 3) + (g >> 1), 0), X.reg(vRinv) + (c & 1)*8, OOB))
    for q in range(4):
        X.set(vT1, X.sel(('eq', c >> 1, q), X.sel(('eq', c & 1, 0), 0x3f80, 0x3f800000), 0))
        A(f'v_accvgpr_write_b32 a{aSel+q if q < 4 else aSelH+q-4}, v{vT1}')
    X.set(vT1, X.sel(clt8, 63, a_*8 + c - 8))
    for kt in range(2):
        for r in range(4):
            X.set(vBias+4*kt+r, X.sel(('gt', g*4 + (16*kt + r), X.reg(vT1)), f2u(NEG), 0))
    trb = lambda: g*(2048 if RM else 512) + ((L >> 2) & 3)*64 + ((w & 1) ^ (g & 1))*32 + (L & 3)*8
    toff = lambda t: (8192*(t % 5) + 256*(t // 5)) if RM else 2048*t
    thalf = 1024 if RM else 256
    X.set(TA_, trb() + (w >> 1)*40960 + 40960)
    X.set(TV, trb() + 122880)
    wob = lambda: (g*4 + ((L >> 2) & 3))*320 + (L & 3)*8
    X.set(TO1, wob() + w*64)
    X.set(TO2, wob() + (w & 1)*32 + 256)
    X.set(vP+1, X.sel(('eq', tid, 0), 0, OOB))
    X.set(vP+2, (L & 31)*4)
    X.set(vDbg, X.sel(('lt', L, 16), L*4, OOB))
    A(f's_mov_b32 s{sOF}, {WS_OF}')
    A(f's_cmp_lt_u32 s{sJ}, 16')
    A(f's_cselect_b32 s{sNH}, 3, 2')
    A(f's_mov_b32 s{sC2}, {f2u(QSCALE):#x}')
    A(f's_mov_b32 s{sC2+1}, {f2u(QSCALE):#x}')
    A(f's_mul_i32 s{sX3G}, s{sG}, {X3_G}')
    A(f's_add_u32 s{sX3G}, s{sX3G}, {WS_X3}')
    A(f's_lshl_b32 s{sX1H}, s{sH}, 13')
    A(f's_add_u32 s{sX1H}, s{sX1H}, {WS_X1}')
    A(f's_mul_i32 s{sHoff}, s{sH}, {XH}')
    A(f's_add_u32 s{sHoff}, s{sHoff}, {WS_KX}')
    A(f's_lshl_b32 s75, s{sG}, 5')
    A(f's_add_u32 s75, s75, s{sJ}')
    A(f's_lshl_b32 s{sDB}, s75, 2')
    A(f's_add_u32 s{sDB}, s{sDB}, s{sW}')
    A(f's_lshl_b32 s{sDB}, s{sDB}, 12')
    A(f's_add_u32 s{sDB}, s{sDB}, {WS_DBG:#x}')
    A(f's_lshl_b32 s{sKXm}, s{sW}, 11')
    A(f's_lshl_b32 s{sQXr}, s{sA}, 11')
    A(f's_add_u32 s{sQXr}, s{sQXr}, s{sHoff}')
    A(f's_add_u32 s{sQXr}, s{sQXr}, 16384')
    A(f's_add_u32 s{sXr}, s{sHoff}, s{sKXm}')
    A(f's_mov_b32 s{sLrng}, {f2u(2.0**64) - f2u(2.0**-60):#x}')
    A(f's_add_u32 s{sWarm}, s{sHoff}, {XSEG}')
    pst()
    A('s_waitcnt vmcnt(0)')
    for k in range(4): A(f'v_min_u32 v{vS+k}, -2, v{vS+k}')
    A(f'buffer_store_dwordx4 v[{vS}:{vS+3}], v{vS+4}, {WS}, 0 offen sc1')
    A('s_barrier')
    pst()
    for t in range(20):
        A(f'ds_read_b64_tr_b16 a[{4*t}:{4*t+1}], v{TA_} offset:{toff(t)}')
        A(f'ds_read_b64_tr_b16 a[{4*t+2}:{4*t+3}], v{TA_} offset:{toff(t)+thalf}')
        if t % 4 == 3: A('s_waitcnt lgkmcnt(4)')
    A(f's_cmp_ge_u32 s{sW}, 2')
    A('s_cbranch_scc1 v_odd')
    for par in range(2):
        if par: A.label('v_odd')
        for i in range(10):
            A(f'ds_read_b64_tr_b16 a[{80+4*i}:{80+4*i+1}], v{TV} offset:{toff(2*i+par)}')
            A(f'ds_read_b64_tr_b16 a[{80+4*i+2}:{80+4*i+3}], v{TV} offset:{toff(2*i+par)+thalf}')
            if i % 4 == 3: A('s_waitcnt lgkmcnt(4)')
        if not par: A('s_branch v_done')
    A.label('v_done')
    for k in range(3):
        for t in range(4):
            r, o = (TO1, 32*320*t + 32*k) if k < 2 else (TO2, 32*320*t)
            A(f'ds_read_b64_tr_b16 v[{vWO+16*k+4*t}:{vWO+16*k+4*t+1}], v{r} offset:{o}')
            A(f'ds_read_b64_tr_b16 v[{vWO+16*k+4*t+2}:{vWO+16*k+4*t+3}], v{r} offset:{o+16*320}')
        A('s_waitcnt lgkmcnt(0)')
    pst()
    srd(A, sWT, 24, 256)
    wait_start(A, wt, vT0, 74, sTO, 'start_ok', 'chain_abort10', sleep=4)
    pst()
    NS0 = 0
    x2_table(A, X, L, vX2tab, 74, 26, vT1)
    if P.get('dbgout'): A('s_mov_b32 s98, s74')
    A(f's_getreg_b32 s74, hwreg(HW_REG_XCC_ID, 0, 4)')
    A(f's_lshl_b32 s3, s75, 2')
    A(f's_add_u32 s3, s3, {WS_TAB}')
    A(f'v_mov_b32 v{vT1}, s74')
    A(f'buffer_store_dword v{vT1}, v{vP+1}, {WS}, s3 offen sc1')
    if NS0 == 0:
        A(f's_cmp_lg_u32 s{sW}, 1')
        A('s_cbranch_scc1 qp0_ok')
        A(f's_mov_b32 s{sT1}, 1')
        qp_wait(A, 'qp0', 'qp0_ok', shifts=(2,))
        A.label('qp0_ok')
        A('s_barrier')
    A(f's_mov_b32 s{sQok}, {NS0 // 2}')
    pst()
    A(f's_mov_b32 s{sZn}, 2')
    A(f's_mov_b32 s{sZo}, {WS_ZFLAG}')
    A(f's_lshl_b32 s3, s{sG}, 7')
    A(f's_add_u32 s3, s3, {WS_TAB}')
    A(f's_mov_b32 s60, {WS_TAB}')
    A(f'v_lshrrev_b32 v{vT2}, 1, v{vL16}')
    A.label('tab_poll')
    A(f'buffer_load_dwordx2 v[{vRinv}:{vRinv1}], v{vT2}, {WS}, s60 offen sc1')
    A(f'buffer_load_dword v{vT0}, v{vP+2}, {WS}, s3 offen sc1')
    A('s_waitcnt vmcnt(0)')
    emit(A, check_sent([vRinv, vRinv1, vT0], vT3))
    A('s_cbranch_vccz tab_ok')
    bounded(A, 'tab_poll', 5)
    A.label('tab_ok')
    pst()
    A(f'v_cmp_ne_u32 s[68:69], v{vT1}, v{vT0}')
    A(f's_mov_b32 s{sStep}, 0')
    emit(A, kv_list())
    A(f's_cmp_lg_u32 s{sW}, 1')
    A('s_cbranch_scc1 no_q0')
    emit(A, qx_list())
    A(f'buffer_load_dword v{vM}, v{vR+4}, {WS}, s{sWarm} offen sc1')
    A(f's_add_u32 s{sWarm}, s{sWarm}, {XSEG}')
    A.label('no_q0')
    emit(A, slot_list(0))
    A(f'v_readlane_b32 s{sXw}, v{vX2tab}, 4')
    A(f's_xor_b32 s{sXw}, s{sXw}, 8192')
    for k in range(5): A(f's_mov_b32 s{sCnt+k}, 0')
    for mode in ('f', 's'):
        if mode == 'f':
            A('s_cmp_lg_u64 s[68:69], 0')
            A('s_cbranch_scc1 disp_s')
        else:
            A.label('disp_s')
        A(f's_cmp_eq_u32 s{sW}, 0')
        A(f's_cbranch_scc1 j_{mode}D')
        A(f's_cmp_eq_u32 s{sW}, 2')
        A(f's_cbranch_scc1 j_{mode}B')
        A(f's_cmp_eq_u32 s{sW}, 3')
        A(f's_cbranch_scc1 j_{mode}C')
        A(f's_cmp_eq_u32 s{sNH}, 3')
        A(f's_cbranch_scc1 j_{mode}E')
        A(f's_branch entry_{mode}A')
        for r in 'BDEC':
            A.label(f'j_{mode}{r}')
            A(f's_branch entry_{mode}{r}')
    for mode, fl in (('f', ''), ('s', ' sc1')):
        for role in 'DABEC':
            gen_loop(A, mode + role, fl, role, stamps, P)
    A.label('chain_abort10')
    A(f's_mov_b32 s{sT0}, 10')
    A.label('chain_abort')
    srd(A, sWT, 24, 256)
    A(f'v_mov_b32 v{vT0}, s{sT0}')
    A(f'v_mov_b32 v{vT1}, 0')
    A(f'buffer_store_dword v{vT0}, v{vT1}, {wt}, 0 offen')
    A('s_endpgm')
```
